```python
import torch

def _softmax(x, axis=-1):
    return torch.softmax(x, dim=axis)
def _gelu(x):
    return torch.nn.functional.gelu(x, approximate="tanh")
def _silu(x):
    return torch.nn.functional.silu(x)
def _sigmoid(x):
    return torch.sigmoid(x)
def _layernorm(x, axis=-1, eps=1e-5):
    m = x.mean(dim=axis, keepdim=True)
    v = x.var(dim=axis, keepdim=True, unbiased=False)
    return (x - m) / torch.sqrt(v + eps)
def _scatter_add(tgt, idx, src, axis=0):
    return tgt.clone().index_add_(axis, idx, src)
def _segment_sum(src, seg, n):
    out = torch.zeros((n,) + src.shape[1:], dtype=src.dtype)
    return out.index_add_(0, seg, src)
def _pad(x, pw):
    flat = tuple(v for pair in reversed(pw) for v in pair)
    return torch.nn.functional.pad(x, flat)

kernel_name = 'interleave_layers__linear_kernel_hedgehog__spectral_fnet__prompt'

def setup_inputs():

    _w = (lambda a: (lambda t: t.to(torch.bfloat16) if t.is_floating_point() else t)(torch.as_tensor(a)))
    def _A_setup():
        B, S, D, H = 1, 2048, 640, 32
        Dh = D // H
        return {
            "x": _w((lambda *s: torch.randn(*s, dtype=torch.bfloat16) * 0.4)(B, S, D)),
            "wqkv": _w((lambda *s: torch.randn(*s, dtype=torch.bfloat16) * 1.6)(D, 3 * D)),
            "w_phi": _w((lambda *s: torch.randn(*s, dtype=torch.bfloat16) * 1.6)(H, Dh, Dh) * (Dh ** -0.5)),
            "wo": _w((lambda *s: torch.randn(*s, dtype=torch.bfloat16) * 1.6)(D, D)),
        }
    _A_in = _A_setup()

    def _B_setup():
        B, S, D = 1, 2048, 640
        ns = torch.arange(S)[:, None] * torch.arange(S)[None, :]
        nd = torch.arange(D)[:, None] * torch.arange(D)[None, :]
        Ws_re = torch.cos(-2.0 * torch.pi * ns / S).to(float)
        Ws_im = torch.sin(-2.0 * torch.pi * ns / S).to(float)
        Wd_re = torch.cos(-2.0 * torch.pi * nd / D).to(float)
        Wd_im = torch.sin(-2.0 * torch.pi * nd / D).to(float)
        return {
            "x": _w((lambda *s: torch.randn(*s, dtype=torch.bfloat16) * 0.4)(B, S, D)),
            "dft_seq_re": _w(Ws_re),
            "dft_seq_im": _w(Ws_im),
            "dft_hid_re": _w(Wd_re),
            "dft_hid_im": _w(Wd_im),
        }
    _B_in = _B_setup()

    return {
        "A_x": _A_in["x"],
        "A_wqkv": _A_in["wqkv"],
        "A_w_phi": _A_in["w_phi"],
        "A_wo": _A_in["wo"],
        "B_x": _B_in["x"],
        "B_dft_seq_re": _B_in["dft_seq_re"],
        "B_dft_seq_im": _B_in["dft_seq_im"],
        "B_dft_hid_re": _B_in["dft_hid_re"],
        "B_dft_hid_im": _B_in["dft_hid_im"],
    }

def reference(A_x, A_wqkv, A_w_phi, A_wo, B_x, B_dft_seq_re, B_dft_seq_im, B_dft_hid_re, B_dft_hid_im):
    def _A_ref(x, wqkv, w_phi, wo):
        B, S, D = x.shape
        H = 32; Dh = D // H
        qkv = (lambda x, *d: x.permute(*d))((x @ wqkv).reshape(B, S, 3, H, Dh), 2, 0, 3, 1, 4)
        q, k, v = qkv[0], qkv[1], qkv[2]
        pq = torch.einsum("bhsd,hdf->bhsf", q, w_phi)
        pk = torch.einsum("bhsd,hdf->bhsf", k, w_phi)
        phi_q = torch.concatenate([_softmax(pq, axis=-1), _softmax(-pq, axis=-1)], axis=-1)
        phi_k = torch.concatenate([_softmax(pk, axis=-1), _softmax(-pk, axis=-1)], axis=-1)
        kv = torch.einsum("bhsf,bhsd->bhfd", phi_k, v)
        z  = torch.einsum("bhsf->bhf", phi_k)
        num = torch.einsum("bhqf,bhfd->bhqd", phi_q, kv)
        den = torch.einsum("bhqf,bhf->bhq", phi_q, z)[..., None] + 1e-6
        o = num / den
        return (lambda x, *d: x.permute(*d))(o, 0, 2, 1, 3).reshape(B, S, D) @ wo

    def _B_ref(x, dft_seq_re, dft_seq_im, dft_hid_re, dft_hid_im):
        a = torch.einsum("bsd,ed->bse", x, dft_hid_re)
        b = torch.einsum("bsd,ed->bse", x, dft_hid_im)
        y = torch.einsum("ts,bse->bte", dft_seq_re, a) - torch.einsum("ts,bse->bte", dft_seq_im, b)
        return y

    x = A_x
    x = x + _A_ref(_layernorm(x, axis=-1), A_wqkv, A_w_phi, A_wo)
    x = x + _B_ref(_layernorm(x, axis=-1), B_dft_seq_re, B_dft_seq_im, B_dft_hid_re, B_dft_hid_im)
    x = x + _A_ref(_layernorm(x, axis=-1), A_wqkv, A_w_phi, A_wo)
    x = x + _B_ref(_layernorm(x, axis=-1), B_dft_seq_re, B_dft_seq_im, B_dft_hid_re, B_dft_hid_im)
    return x
```

```python
import re

TRANS = ("v_exp_f32", "v_log_f32", "v_rcp_f32", "v_rsq_f32", "v_sqrt_f32", "v_sin_f32", "v_cos_f32", "v_rcp_iflag_f32")
REG_RE = re.compile(r"(?<![\w.])([vas])(\d+)(?![\w\[])|(?<![\w.])([vas])\[(\d+):(\d+)\]|(?<![\w.])(vcc|exec|m0|scc)(_lo|_hi)?(?![\w])")

def regs_of(tok):
    out = []
    for m in REG_RE.finditer(tok):
        if m.group(1): out.append((m.group(1), int(m.group(2))))
        elif m.group(3):
            for i in range(int(m.group(4)), int(m.group(5)) + 1): out.append((m.group(3), i))
        else:
            nm = m.group(6)
            if nm == "vcc":
                if m.group(7) == "_lo": out.append(("s", 106))
                elif m.group(7) == "_hi": out.append(("s", 107))
                else: out += [("s", 106), ("s", 107)]
            elif nm == "exec": out += [("x", 0)]
            elif nm == "m0": out.append(("m", 0))
    return out

def split_ops(s):
    ops, depth, cur = [], 0, ""
    for ch in s:
        if ch == "[" or ch == "(": depth += 1
        if ch == "]" or ch == ")": depth -= 1
        if ch == "," and depth == 0: ops.append(cur.strip()); cur = ""
        else: cur += ch
    if cur.strip(): ops.append(cur.strip())
    return ops

class Inst:
    __slots__ = ("text", "op", "cls", "wr", "rd", "states", "passes", "srcc", "store_data", "isdpp", "lds_dma", "mask_rd", "sgpr_valu_wr", "ab")
    def __init__(self, text):
        self.text = text
        t = text.split(";")[0].strip()
        parts = t.split(None, 1)
        self.op = op = parts[0]
        rest = parts[1] if len(parts) > 1 else ""
        ops = split_ops(rest)
        self.wr, self.rd = [], []
        self.states = 1; self.passes = 0; self.srcc = []; self.store_data = []; self.ab = []
        self.isdpp = ("row_" in rest or "quad_perm" in rest or "wave_" in rest or "dpp" in op)
        self.lds_dma = False; self.mask_rd = []; self.sgpr_valu_wr = []
        R = lambda i: regs_of(ops[i].split(" ")[0] if i == len(ops) - 1 else ops[i]) if i < len(ops) else []
        if op == "s_nop":
            self.cls = "nop"; self.states = int(ops[0], 0) + 1
        elif op.startswith("v_mfma"):
            self.cls = "mfma"; self.wr = R(0); self.ab = R(1) + R(2); self.srcc = R(3); self.rd = self.ab + self.srcc
            self.passes = 8 if "32x32" in op else 4
        elif op.startswith("v_"):
            self.cls = "trans" if op.replace("_e32", "").replace("_e64", "") in TRANS else "valu"
            base = op.replace("_e32", "").replace("_e64", "")
            if base.startswith("v_cmp"):
                self.wr = R(0); self.rd = R(1) + R(2)
            elif base.startswith("v_permlane") and "swap" in base:
                self.wr = R(0) + R(1); self.rd = R(0) + R(1)
            elif base in ("v_readfirstlane_b32", "v_readlane_b32"):
                self.wr = R(0); self.rd = sum((R(i) for i in range(1, len(ops))), [])
            elif base in ("v_add_co_u32", "v_sub_co_u32", "v_addc_co_u32", "v_subb_co_u32", "v_mad_u64_u32"):
                self.wr = R(0) + R(1); self.rd = sum((R(i) for i in range(2, len(ops))), [])
            else:
                self.wr = R(0); self.rd = sum((R(i) for i in range(1, len(ops))), [])
                if base.startswith("v_fmac") or base.startswith("v_pk_fmac") or base.startswith("v_dot2c") or base in ("v_writelane_b32",): self.rd += R(0)
                if base == "v_cndmask_b32":
                    if len(ops) == 3: self.rd += [("s", 106), ("s", 107)]; self.mask_rd = [("s", 106), ("s", 107)]
                    else: self.mask_rd = R(3)
            self.sgpr_valu_wr = [r for r in self.wr if r[0] == "s"]
        elif op.startswith("ds_"):
            self.cls = "ds"
            if op.startswith("ds_read") or op.startswith("ds_bpermute") or op.startswith("ds_permute") or op.startswith("ds_swizzle"):
                self.wr = R(0); self.rd = sum((R(i) for i in range(1, len(ops))), [])
            else:
                self.rd = sum((R(i) for i in range(len(ops))), [])
        elif op.startswith("buffer_") or op.startswith("global_"):
            self.cls = "vmem"
            words = rest.replace(",", " ").split()
            islds = ("lds" in words) or ("_lds_" in op)
            allr = sum((R(i) for i in range(len(ops))), [])
            if op in ("buffer_wbl2", "buffer_inv"): pass
            elif islds:
                self.lds_dma = True; self.rd = allr + [("m", 0)]
            elif "_load" in op:
                self.wr = R(0); self.rd = sum((R(i) for i in range(1, len(ops))), [])
            elif "_store" in op:
                self.rd = allr
                d = R(0) if op.startswith("buffer_") else R(1)
                if "x4" in op or "x3" in op: self.store_data = d
            elif "_atomic" in op:
                self.rd = allr
                if "sc0" in words: self.wr = R(0)
        elif op.startswith("s_"):
            self.cls = "salu"
            if op.startswith(("s_waitcnt", "s_barrier", "s_branch", "s_cbranch", "s_endpgm", "s_setprio", "s_sleep")):
                self.cls = "sctl"
            elif op.startswith("s_cmp"):
                self.rd = sum((R(i) for i in range(len(ops))), [])
            elif op.startswith("s_load") or op.startswith("s_memtime") or op.startswith("s_memrealtime") or op.startswith("s_getreg") or op.startswith("s_getpc"):
                self.wr = R(0); self.rd = sum((R(i) for i in range(1, len(ops))), [])
            else:
                self.wr = R(0); self.rd = sum((R(i) for i in range(1, len(ops))), [])
                if "saveexec" in op: self.wr += [("x", 0)]
        else:
            raise ValueError("unknown instruction: " + text)

def need(prod, cons):
    n = 0
    pw = set(prod.wr);
    isvalu = lambda i: i.cls in ("valu", "trans")
    crd = set(cons.rd); cwr = set(cons.wr)
    if isvalu(prod):
        vw = {r for r in pw if r[0] in "va"}
        if vw & crd:
            if cons.cls == "mfma": n = max(n, 2)
            if cons.op.startswith("v_permlane"): n = max(n, 2)
            if cons.op.startswith(("v_readlane", "v_readfirstlane")): n = max(n, 1)
            if cons.isdpp: n = max(n, 2)
            if prod.cls == "trans" and cons.cls != "trans": n = max(n, 1)
        sw = {r for r in pw if r[0] == "s"}
        if sw & crd:
            if cons.cls == "vmem": n = max(n, 5)
            elif cons.op.startswith(("v_readlane", "v_writelane")): n = max(n, 4)
            elif isvalu(cons) or cons.cls == "mfma": n = max(n, 2)
            elif cons.cls in ("salu",): n = max(n, 1)
    if prod.cls == "mfma":
        p = prod.passes
        d = set(prod.wr)
        if cons.cls == "mfma":
            if d & set(cons.ab): n = max(n, 8 if p == 4 else 12)
            c = set(cons.srcc)
            if d & c and not (c == d and cons.passes == p): n = max(n, 6 if p == 4 else 10)
            if d & cwr and not (d & c): n = max(n, 6 if p == 4 else 10)
        else:
            if d & (crd | cwr): n = max(n, 8 if p == 4 else 12)
        if isvalu(cons) and set(prod.srcc) & cwr: n = max(n, 3 if p == 4 else 7)
    if prod.cls == "salu" and ("m", 0) in pw and cons.lds_dma: n = max(n, 1)
    if prod.store_data and set(prod.store_data) & cwr:
        n = max(n, 2 if isvalu(cons) or cons.cls == "mfma" else 1)
    return n

class Asm:
    def __init__(self):
        self.out = []
        self.hist = []
        self.nops = 0
    def raw(self, s): self.out.append(s)
    def label(self, name):
        self.out.append(name + ":")
    def e(self, text):
        for line in text.split("\n"):
            line = line.strip()
            if not line or line.startswith(";"): continue
            if line.endswith(":"): self.label(line[:-1]); continue
            ins = Inst(line)
            mo = re.search(r"offset:(-?\d+)", line)
            if mo:
                ov = int(mo.group(1))
                if ins.op.startswith("buffer_"): assert 0 <= ov <= 4095, line
                elif ins.op.startswith("global_"): assert -4096 <= ov <= 4095, line
                elif ins.op.startswith("ds_"): assert 0 <= ov <= 65535, line
            req = 0; dist = 0
            for p in reversed(self.hist):
                k = need(p, ins)
                if k > dist: req = max(req, k - dist)
                dist += p.states
                if dist >= 12: break
            if req > 0 and ins.cls != "nop":
                nop = Inst(f"s_nop {req-1}")
                self.out.append("    " + nop.text); self.hist.append(nop); self.nops += 1
            self.out.append("    " + line)
            self.hist.append(ins)
            if len(self.hist) > 24: self.hist = self.hist[-24:]
    def text(self): return "\n".join(self.out) + "\n"

def kernel_header(name):
    return f".text\n.globl {name}\n.p2align 8\n.type {name},@function\n{name}:\n"
def kernel_desc(name, vgpr, agpr=0, sgpr=100):
    acc = (vgpr + 3) // 4 * 4
    nfv = acc + agpr if agpr else vgpr
    return f""".section .rodata,"a"
.p2align 6
.amdhsa_kernel {name}
  .amdhsa_next_free_vgpr {nfv}
  .amdhsa_next_free_sgpr {sgpr}
  .amdhsa_accum_offset {acc}
  .amdhsa_group_segment_fixed_size 0
  .amdhsa_kernarg_size 96
  .amdhsa_user_sgpr_count 2
  .amdhsa_user_sgpr_kernarg_segment_ptr 1
  .amdhsa_system_sgpr_workgroup_id_x 1
  .amdhsa_float_denorm_mode_32 3
.end_amdhsa_kernel
"""

class VM:
    def __init__(self, a): self.a = a; self.q = []
    def issue(self, text, tag):
        self.a.e(text); self.q.append(tag)
    def wait(self, tag, extra=""):
        idx = max(i for i, t in enumerate(self.q) if t == tag)
        n = len(self.q) - 1 - idx
        assert n <= 63, n
        self.a.e(f"s_waitcnt vmcnt({n}){extra}")
        self.q = self.q[idx+1:]
    def wait_all(self):
        self.a.e("s_waitcnt vmcnt(0)"); self.q = []

def srd(a, s, base_lo, base_hi, off, size):
    if isinstance(off, str):
        a.e(f"s_add_u32 s{s}, s{base_lo}, {off}"); a.e(f"s_addc_u32 s{s+1}, s{base_hi}, 0")
    elif off:
        a.e(f"s_add_u32 s{s}, s{base_lo}, {off}"); a.e(f"s_addc_u32 s{s+1}, s{base_hi}, 0")
    else:
        a.e(f"s_mov_b32 s{s}, s{base_lo}"); a.e(f"s_mov_b32 s{s+1}, s{base_hi}")
    a.e(f"s_mov_b32 s{s+2}, {size}")
    a.e(f"s_mov_b32 s{s+3}, 0x20000")

def wg_to_rc(a, sR, sC, tmp):
    e = a.e
    e(f"s_and_b32 s{tmp}, s2, 7"); e(f"s_lshr_b32 s{tmp+1}, s2, 3")
    e(f"s_lshr_b32 s{sR}, s{tmp}, 1"); e(f"s_lshl_b32 s{sR}, s{sR}, 2"); e(f"s_and_b32 s{sC}, s{tmp+1}, 3"); e(f"s_add_u32 s{sR}, s{sR}, s{sC}")
    e(f"s_and_b32 s{sC}, s{tmp}, 1"); e(f"s_lshl_b32 s{sC}, s{sC}, 3"); e(f"s_lshr_b32 s{tmp+1}, s{tmp+1}, 2"); e(f"s_add_u32 s{sC}, s{sC}, s{tmp+1}")

LOG2E = 1.4426950408889634

def softmax_pair(a, K, vC, Ep, tmp, P):
    e = a.e
    mx, mn, sp, sm = tmp, tmp + 1, tmp + 2, tmp + 3
    e(f"v_max3_f32 v{mx}, v{K[0]}, v{K[1]}, v{K[2]}")
    e(f"v_min3_f32 v{mn}, v{K[0]}, v{K[1]}, v{K[2]}")
    for u in range(3, 19, 2):
        e(f"v_max3_f32 v{mx}, v{mx}, v{K[u]}, v{K[u+1]}")
        e(f"v_min3_f32 v{mn}, v{mn}, v{K[u]}, v{K[u+1]}")
    e(f"v_max_f32 v{mx}, v{mx}, v{K[19]}")
    e(f"v_min_f32 v{mn}, v{mn}, v{K[19]}")
    e(f"v_mul_f32 v{mx}, v{vC}, v{mx}")
    e(f"v_mul_f32 v{mn}, v{vC}, v{mn}")
    for u in range(20):
        e(f"v_fma_f32 v{Ep+u}, v{K[u]}, v{vC}, -v{mx}")
        e(f"v_fma_f32 v{K[u]}, -v{K[u]}, v{vC}, v{mn}")
    for u in range(20):
        e(f"v_exp_f32 v{Ep+u}, v{Ep+u}")
        e(f"v_exp_f32 v{K[u]}, v{K[u]}")
    e(f"v_add_f32 v{sp}, v{Ep}, v{Ep+1}")
    e(f"v_add_f32 v{sm}, v{K[0]}, v{K[1]}")
    for u in range(2, 20):
        e(f"v_add_f32 v{sp}, v{sp}, v{Ep+u}")
        e(f"v_add_f32 v{sm}, v{sm}, v{K[u]}")
    e(f"v_rcp_f32 v{sp}, v{sp}")
    e(f"v_rcp_f32 v{sm}, v{sm}")
    for u in range(20):
        e(f"v_mul_f32 v{Ep+u}, v{sp}, v{Ep+u}")
        e(f"v_mul_f32 v{K[u]}, v{sm}, v{K[u]}")
    for q in range(10):
        e(f"v_cvt_pk_bf16_f32 v{P+q}, v{Ep+2*q}, v{Ep+2*q+1}")
        e(f"v_cvt_pk_bf16_f32 v{P+10+q}, v{K[2*q]}, v{K[2*q+1]}")
```

```python
import sys
sys.path.insert(0, "gen")
from asm import *
from layout import *
from build import build
import importlib

HDR = open("interleave_layers__linear_kernel_hedgehog__spectral_fnet__prompt.s.ref").read().split("; Override launch")[0]

def assemble(launches, bodies, path, check=True):
    txt = HDR
    for k, g, b, lds in launches:
        txt += f"; @launch kernel={k} grid=({g},1,1) block=({b},1,1) lds={lds}\n"
    txt += '.amdgcn_target "amdgcn-amd-amdhsa--gfx950"\n.text\n.p2align 8\nprog_start:\n'
    codes, descs = [], []
    for bdy in bodies:
        i = bdy.index('.section .rodata')
        codes.append(bdy[:i]); descs.append(bdy[i:])
    txt += "".join(codes) + ".text\nprog_end:\n    s_endpgm\n" + "".join(descs)
    open(path, "w").write(txt)
    return build(path, launches[0][0], check=check)
```

```python
from asm import *
from layout import *

OOB = 0x40000000

def srd(a, s, base_lo, base_hi, off, size):
    if off:
        a.e(f"s_add_u32 s{s}, s{base_lo}, {off}")
        a.e(f"s_addc_u32 s{s+1}, s{base_hi}, 0")
    else:
        a.e(f"s_mov_b32 s{s}, s{base_lo}")
        a.e(f"s_mov_b32 s{s+1}, s{base_hi}")
    a.e(f"s_mov_b32 s{s+2}, {size}")
    a.e(f"s_mov_b32 s{s+3}, 0x20000")

def ident_frag(a, dst, vdiff, tmp):
    for q in range(4):
        a.e(f"v_cmp_eq_u32 vcc, {2*q}, v{vdiff}")
        a.e(f"v_cndmask_b32 v{dst+q}, 0, v{tmp}, vcc")
        a.e(f"v_cmp_eq_u32 vcc, {2*q+1}, v{vdiff}")
        a.e(f"v_cndmask_b32 v{dst+q}, v{dst+q}, v{tmp+1}, vcc")

def gen_k0(name, code_bytes):
    a = Asm()
    e = a.e
    e(f"s_cmp_ge_u32 s2, 261")
    e(f"s_cbranch_scc1 {name}_end")
    e("s_load_dwordx4 s[4:7], s[0:1], 8")
    e("s_load_dwordx2 s[8:9], s[0:1], 24")
    e("s_load_dwordx4 s[12:15], s[0:1], 56")
    e("s_load_dwordx2 s[16:17], s[0:1], 88")
    e("v_and_b32 v1, 63, v0")
    e("v_lshrrev_b32 v2, 6, v0")
    e("v_and_b32 v3, 15, v1")
    e("v_lshrrev_b32 v4, 4, v1")
    e("v_readfirstlane_b32 s18, v2")
    e("s_getpc_b64 s[20:21]")
    a.label(f"{name}_pc")
    e(f"s_sub_u32 s20, s20, {name}_pc-prog_start")
    e("s_subb_u32 s21, s21, 0")
    e("v_lshlrev_b32 v5, 7, v1")
    e("s_waitcnt lgkmcnt(0)")
    e("s_cmp_lg_u32 s18, 0")
    e(f"s_cbranch_scc1 {name}_nopf")
    nld = (code_bytes + 8191) // 8192
    for q in range(nld):
        e(f"v_min_u32 v6, prog_end-prog_start-4, v5")
        e(f"global_load_dword v{240+q}, v6, s[20:21]")
        if q + 1 < nld:
            e(f"v_add_u32 v5, 8192, v5")
    a.label(f"{name}_nopf")
    srd(a, 24, 16, 17, 0, WS_USED)
    e("s_cmp_ge_u32 s2, 256")
    e(f"s_cbranch_scc1 {name}_tables")
    e("s_lshl_b32 s19, s2, 10")
    e(f"s_add_u32 s19, s19, {ZERO_OFF}")
    e("v_lshlrev_b32 v6, 2, v0")
    e("v_mov_b32 v7, 0")
    e("buffer_store_dword v7, v6, s[24:27], s19 offen")
    e("s_cmp_ge_u32 s2, 96")
    e(f"s_cbranch_scc1 {name}_wf")

    e("s_lshr_b32 s28, s2, 5")
    e("s_and_b32 s29, s2, 31")
    srd(a, 32, 4, 5, 0, 640 * 3840)
    srd(a, 36, 6, 7, 0, 32 * 400 * 2)
    e("s_mul_i32 s30, s18, 160")
    e("v_add_u32 v8, s30, v3")
    e("s_movk_i32 s31, 3840")
    e("v_mul_lo_u32 v8, v8, s31")
    e("s_mul_i32 s30, s28, 640")
    e("s_mul_i32 s31, s29, 20")
    e("s_add_u32 s30, s30, s31")
    e("s_lshl_b32 s30, s30, 1")
    e("v_lshlrev_b32 v9, 4, v4")
    e("v_add3_u32 v8, v8, v9, s30")
    e("s_mov_b32 s31, 0")
    for m in range(10):
        e(f"buffer_load_dwordx4 v[{16+4*m}:{19+4*m}], v8, s[32:35], s31 offen")
        if m < 9: e("s_add_u32 s31, s31, 61440")
    e("s_cmp_eq_u32 s28, 2")
    e(f"s_cbranch_scc1 {name}_bid")
    e("s_mul_i32 s30, s29, 800")
    e("v_mul_u32_u24 v9, 320, v4")
    e("v_lshlrev_b32 v10, 1, v3")
    e("v_add3_u32 v9, v9, v10, s30")
    e(f"v_mov_b32 v14, {OOB}")
    e("v_cmp_ge_u32 vcc, 2, v4"); e("v_cndmask_b32 v10, v14, v9, vcc")
    e("v_cmp_ge_u32 vcc, 1, v4"); e("v_cndmask_b32 v11, v14, v9, vcc")
    e("v_cmp_gt_u32 vcc, 4, v3"); e("v_cndmask_b32 v12, v14, v10, vcc"); e("v_cndmask_b32 v13, v14, v11, vcc")
    for nt in range(2):
        for jj in range(8):
            vo = 10 + 2 * nt + (jj >> 2)
            e(f"buffer_load_ushort v{64 + 8*nt + jj}, v{vo}, s[36:39], 0 offen offset:{jj*40 + nt*32}")
    e("s_waitcnt vmcnt(0)")
    for nt in range(2):
        for q in range(4):
            e(f"v_lshl_or_b32 v{56 + 4*nt + q}, v{64 + 8*nt + 2*q + 1}, 16, v{64 + 8*nt + 2*q}")
    e(f"s_branch {name}_bdone")
    a.label(f"{name}_bid")
    e("v_mov_b32 v12, 0x3f80"); e("v_mov_b32 v13, 0x3f800000")
    e("v_lshlrev_b32 v9, 3, v4")
    e("v_sub_u32 v10, v3, v9")
    e("v_add_u32 v11, 16, v10")
    ident_frag(a, 56, 10, 12)
    ident_frag(a, 60, 11, 12)
    e("s_waitcnt vmcnt(0)")
    a.label(f"{name}_bdone")
    for m in range(10):
        for nt in range(2):
            d = 80 + 8 * m + 4 * nt
            e(f"v_mfma_f32_16x16x32_bf16 v[{d}:{d+3}], v[{16+4*m}:{19+4*m}], v[{56+4*nt}:{59+4*nt}], 0")
    for nt in range(2):
        e(f"v_add_f32 v{64+nt}, v{80+4*nt}, v{81+4*nt}")
        for m in range(10):
            for b in range(4):
                if m == 0 and b < 2: continue
                e(f"v_add_f32 v{64+nt}, v{64+nt}, v{80+8*m+4*nt+b}")
    for nt in range(2):
        r = 64 + nt
        e(f"v_mov_b32 v66, v{r}")
        e(f"v_permlane32_swap_b32 v{r}, v66")
        e(f"v_add_f32 v{r}, v{r}, v66")
        e(f"v_mov_b32 v66, v{r}")
        e(f"v_permlane16_swap_b32 v{r}, v66")
        e(f"v_add_f32 v{r}, v{r}, v66")
    e("v_lshlrev_b32 v67, 4, v3")
    e("s_lshl_b32 s30, s18, 2")
    e("v_add_u32 v68, s30, v67")
    e("ds_write_b32 v68, v64")
    e("ds_write_b32 v68, v65 offset:256")
    e("s_waitcnt lgkmcnt(0)")
    e("s_barrier")
    e("ds_read_b128 v[68:71], v67")
    e("ds_read_b128 v[72:75], v67 offset:256")
    e("s_waitcnt lgkmcnt(0)")
    for nt in range(2):
        b = 68 + 4 * nt
        e(f"v_add_f32 v{b}, v{b}, v{b+1}"); e(f"v_add_f32 v{b+2}, v{b+2}, v{b+3}"); e(f"v_add_f32 v{b}, v{b}, v{b+2}")
        e(f"v_mul_f32 v{64+nt}, {1.0/640.0!r}, v{b}")
    e("s_and_b32 s30, s29, 1")
    e("s_cmp_eq_u32 s28, 2"); e("s_cselect_b32 s31, 2, 0"); e("s_add_u32 s30, s30, s31")
    e("s_lshl_b32 s30, s30, 6")
    e("v_lshrrev_b32 v8, 1, v4"); e("v_lshlrev_b32 v8, 8, v8")
    e("v_and_b32 v9, 1, v4"); e("v_lshlrev_b32 v9, 3, v9")
    e("v_add3_u32 v8, v8, v9, s30")
    for nt in range(2):
        e(f"v_add_u32 v9, {16*nt}, v3")
        e("v_lshrrev_b32 v10, 2, v9"); e("v_lshlrev_b32 v10, 10, v10")
        e("v_and_b32 v11, 3, v9"); e("v_lshlrev_b32 v11, 4, v11")
        e(f"v_add3_u32 v{66+nt}, v8, v10, v11")
    e(f"v_mov_b32 v14, {OOB}")
    e("v_cmp_gt_u32 vcc, 4, v3"); e("v_cndmask_b32 v67, v14, v67, vcc")
    e("s_lshr_b32 s30, s29, 1"); e(f"s_mul_i32 s30, s30, {W1_C}")
    e("s_cmp_eq_u32 s28, 0"); e("s_cselect_b32 s31, 102400, 0"); e("s_add_u32 s30, s30, s31")
    e("s_mul_i32 s31, s18, 25600"); e("s_add_u32 s30, s30, s31")
    for m in range(10):
        for nt in range(2):
            d = 80 + 8 * m + 4 * nt
            for b in range(4): e(f"v_sub_f32 v{d+b}, v{d+b}, v{64+nt}")
            e(f"v_cvt_pk_bf16_f32 v{d}, v{d}, v{d+1}")
            e(f"v_cvt_pk_bf16_f32 v{d+1}, v{d+2}, v{d+3}")
            e(f"buffer_store_dwordx2 v[{d}:{d+1}], v{66+nt}, s[24:27], s30 offen offset:{(m&1)*512}")
        if m & 1: e("s_add_u32 s30, s30, 5120")
    e("s_cmp_lg_u32 s28, 0")
    e(f"s_cbranch_scc1 {name}_end")
    e("s_and_b32 s30, s29, 1")
    e("s_cmp_eq_u32 s30, 1")
    e("s_cselect_b32 s40, s14, s12"); e("s_cselect_b32 s41, s15, s13")
    e(f"s_mov_b32 s42, {640*1280}"); e("s_mov_b32 s43, 0x20000")
    e("s_lshr_b32 s31, s29, 1")
    e("s_mul_i32 s44, s31, 20"); e("s_add_u32 s44, s44, 1"); e("s_mul_i32 s44, s44, 1280")
    e(f"s_mul_i32 s45, s31, {W1_C}"); e("s_add_u32 s45, s45, 102400")
    e("s_add_u32 s30, s30, 2"); e("s_lshl_b32 s30, s30, 6"); e("s_add_u32 s45, s45, s30")
    e(f"v_mov_b32 v14, {OOB}")
    for q in range(7):
        e(f"v_add_u32 v8, {256*q}, v0")
        e("v_mul_u32_u24 v9, 52429, v8"); e("v_lshrrev_b32 v9, 22, v9")
        e("v_mul_u32_u24 v10, 80, v9"); e("v_sub_u32 v10, v8, v10")
        e("v_mul_u32_u24 v11, 1280, v9"); e(f"v_lshl_add_u32 v{20+q}, v10, 4, v11")
        e("v_lshrrev_b32 v11, 2, v10"); e("v_mul_u32_u24 v11, 5, v11")
        e("v_lshrrev_b32 v12, 2, v9"); e("v_add_u32 v11, v11, v12"); e("v_lshlrev_b32 v11, 10, v11")
        e("v_and_b32 v12, 3, v9"); e("v_and_b32 v13, 3, v10"); e("v_lshl_add_u32 v12, v13, 4, v12")
        e(f"v_lshl_add_u32 v{30+q}, v12, 4, v11")
        if q == 6:
            e("v_cmp_gt_u32 vcc, 1600, v8")
            e(f"v_cndmask_b32 v{20+q}, v14, v{20+q}, vcc"); e(f"v_cndmask_b32 v{30+q}, v14, v{30+q}, vcc")
        e(f"buffer_load_dwordx4 v[{40+4*q}:{43+4*q}], v{20+q}, s[40:43], s44 offen")
    for q in range(7):
        e(f"s_waitcnt vmcnt({6-q + q})" if False else f"s_waitcnt vmcnt({6 - q + q})" if False else f"s_waitcnt vmcnt(6)")
        e(f"buffer_store_dwordx4 v[{40+4*q}:{43+4*q}], v{30+q}, s[24:27], s45 offen")
    e(f"s_branch {name}_end")

    a.label(f"{name}_wf")
    e("s_sub_u32 s28, s2, 96")
    e("s_and_b32 s29, s28, 15")
    e("s_lshr_b32 s28, s28, 4")
    e("s_lshl_b32 s28, s28, 2"); e("s_add_u32 s28, s28, s18")
    srd(a, 32, 8, 9, 0, 640 * 1280)
    e("s_lshl_b32 s30, s28, 4")
    e("v_add_u32 v8, s30, v3"); e("v_mul_u32_u24 v8, 1280, v8"); e("v_lshl_add_u32 v8, v4, 4, v8")
    e("s_mul_i32 s30, s29, 20"); e("s_add_u32 s30, s30, 1")
    e("s_mul_i32 s31, s18, 320")
    e("v_add_u32 v9, s30, v3"); e("v_mul_u32_u24 v9, 1280, v9"); e("v_lshl_add_u32 v9, v4, 4, v9"); e("v_add_u32 v9, s31, v9")
    e("v_mov_b32 v11, s13"); e("v_add_co_u32 v10, vcc, s12, v9"); e("v_addc_co_u32 v11, vcc, 0, v11, vcc")
    e("v_mov_b32 v13, s15"); e("v_add_co_u32 v12, vcc, s14, v9"); e("v_addc_co_u32 v13, vcc, 0, v13, vcc")
    e("v_and_b32 v16, 3, v3"); e("v_add_u32 v16, 16, v16"); e("v_add_u32 v16, s30, v16")
    e("v_mul_u32_u24 v16, 1280, v16"); e("v_lshl_add_u32 v16, v4, 4, v16"); e("v_add_u32 v16, s31, v16")
    e("v_mov_b32 v17, s12"); e("v_mov_b32 v18, s13"); e("v_mov_b32 v19, s14"); e("v_mov_b32 v20, s15")
    e("v_cmp_gt_u32 vcc, 4, v3")
    e("v_cndmask_b32 v17, v19, v17, vcc"); e("v_cndmask_b32 v18, v20, v18, vcc")
    e("v_add_co_u32 v14, vcc, v17, v16"); e("v_addc_co_u32 v15, vcc, 0, v18, vcc")
    e("s_mul_i32 s31, s18, 5120")
    for nt in range(3):
        for q in range(5):
            e(f"s_add_u32 s34, s31, {(nt*20+q)*1024}") if False else None
    for nt in range(3):
        va = 10 + 2 * nt
        for q in range(5):
            e(f"s_add_u32 s40, s31, {(nt*20+q)*1024}")
            e("s_mov_b32 m0, s40")
            e(f"global_load_lds_dwordx4 v[{va}:{va+1}], off")
            if q < 4:
                e(f"v_add_co_u32 v{va}, vcc, 64, v{va}")
                e(f"v_addc_co_u32 v{va+1}, vcc, 0, v{va+1}, vcc")
    for s in range(20):
        e(f"buffer_load_dwordx4 v[{24+4*s}:{27+4*s}], v8, s[32:35], 0 offen offset:{64*s}")
    e("s_mul_i32 s30, s29, 80")
    e("buffer_load_dwordx4 v[104:107], v8, s[32:35], s30 offen")
    e("buffer_load_dwordx4 v[108:111], v8, s[32:35], s30 offen offset:64")
    e("v_mov_b32 v22, 0x3f80"); e("v_mov_b32 v23, 0x3f800000")
    e("v_lshlrev_b32 v9, 3, v4"); e("v_sub_u32 v16, v3, v9"); e("v_add_u32 v17, 16, v16")
    ident_frag(a, 112, 16, 22)
    ident_frag(a, 116, 17, 22)
    for r in range(120, 132): e(f"v_mov_b32 v{r}, 0")
    e("v_lshlrev_b32 v9, 4, v1")
    e("s_waitcnt vmcnt(0)")
    e("s_barrier")
    for s in range(20):
        for nt in range(3):
            e(f"ds_read_b128 v[{144+4*nt+12*(s&1)}:{147+4*nt+12*(s&1)}], v9 offset:{(nt*20+s)*1024}")
        e("s_waitcnt lgkmcnt(0)")
        for nt in range(3):
            b = 144 + 4 * nt + 12 * (s & 1)
            e(f"v_mfma_f32_16x16x32_bf16 v[{120+4*nt}:{123+4*nt}], v[{24+4*s}:{27+4*s}], v[{b}:{b+3}], v[{120+4*nt}:{123+4*nt}]")
    e("v_mfma_f32_16x16x32_bf16 v[132:135], v[104:107], v[112:115], 0")
    e("v_mfma_f32_16x16x32_bf16 v[136:139], v[104:107], v[116:119], 0")
    e("v_mfma_f32_16x16x32_bf16 v[140:143], v[108:111], v[112:115], 0")
    e(f"s_mul_i32 s30, s29, {W2_C}"); e("s_lshr_b32 s31, s28, 1"); e("s_mul_i32 s31, s31, 5120"); e("s_add_u32 s30, s30, s31")
    e("s_and_b32 s31, s28, 1"); e("s_lshl_b32 s31, s31, 9"); e("s_add_u32 s30, s30, s31"); e(f"s_add_u32 s30, s30, {W2_OFF}")
    e("v_lshrrev_b32 v8, 1, v4"); e("v_lshlrev_b32 v8, 8, v8"); e("v_and_b32 v9, 1, v4"); e("v_lshl_add_u32 v8, v9, 3, v8")
    e(f"v_mov_b32 v14, {OOB}")
    def xf_addr(dst, vu, ri_const=None, vri=None):
        e(f"v_lshrrev_b32 v10, 2, v{vu}"); e("v_lshlrev_b32 v10, 10, v10")
        e(f"v_and_b32 v11, 3, v{vu}")
        if ri_const is not None: e(f"v_add_u32 v11, {4*(2+ri_const)}, v11")
        else: e(f"v_lshl_add_u32 v11, v{vri}, 2, v11"); e("v_add_u32 v11, 8, v11")
        e("v_lshlrev_b32 v11, 4, v11")
        e(f"v_add3_u32 v{dst}, v8, v10, v11")
    xf_addr(16, 3, 0); xf_addr(17, 3, 1)
    e("v_and_b32 v12, 3, v3"); e("v_add_u32 v12, 16, v12"); e("v_lshrrev_b32 v13, 2, v3")
    xf_addr(18, 12, None, 13)
    e("v_cmp_gt_u32 vcc, 8, v3"); e("v_cndmask_b32 v18, v14, v18, vcc")
    for nt in range(3):
        e(f"v_add_u32 v12, {16*nt}, v3")
        e("v_cmp_le_u32 vcc, 20, v12"); e("v_cndmask_b32 v13, 0, 1, vcc")
        e("v_mul_u32_u24 v15, 20, v13"); e("v_sub_u32 v12, v12, v15")
        e("v_lshrrev_b32 v10, 2, v12"); e("v_lshlrev_b32 v10, 10, v10")
        e("v_and_b32 v11, 3, v12"); e("v_lshl_add_u32 v11, v13, 2, v11"); e("v_lshlrev_b32 v11, 4, v11")
        e(f"v_add3_u32 v{19+nt}, v8, v10, v11")
    e("v_cmp_gt_u32 vcc, 8, v3"); e("v_cndmask_b32 v21, v14, v21, vcc")
    for t in range(6):
        d = 120 + 4 * t
        e(f"v_cvt_pk_bf16_f32 v{d}, v{d}, v{d+1}")
        e(f"v_cvt_pk_bf16_f32 v{d+1}, v{d+2}, v{d+3}")
        e(f"buffer_store_dwordx2 v[{d}:{d+1}], v{16+t}, s[24:27], s30 offen")
    e(f"s_branch {name}_end")

    a.label(f"{name}_tables")
    e("s_sub_u32 s28, s2, 256")
    e("v_lshlrev_b32 v9, 4, v1")
    e("s_cmp_eq_u32 s28, 4")
    e(f"s_cbranch_scc1 {name}_tab2")
    e("s_lshl_b32 s29, s28, 4"); e("v_add_u32 v8, s29, v3")
    e("s_cmp_ge_u32 s18, 2")
    e(f"s_cbranch_scc1 {name}_tabtw")
    e("s_lshl_b32 s29, s18, 5"); e("v_lshlrev_b32 v10, 3, v4"); e("v_add_u32 v10, s29, v10")
    for jj in range(8):
        e(f"v_add_u32 v11, {jj}, v10"); e("v_mul_u32_u24 v11, v11, v8"); e("v_and_b32 v11, 63, v11")
        e("v_cvt_f32_u32 v11, v11"); e(f"v_mul_f32 v11, {1.0/64!r}, v11")
        e(f"v_cos_f32 v{16+jj}, v11"); e(f"v_sin_f32 v{24+jj}, v11")
    for q in range(4):
        e(f"v_cvt_pk_bf16_f32 v{32+q}, v{16+2*q}, v{17+2*q}")
        e(f"v_cvt_pk_bf16_f32 v{40+q}, v{24+2*q}, v{25+2*q}")
        e(f"v_xor_b32 v{36+q}, 0x80008000, v{40+q}")
    e("s_mul_i32 s29, s28, 6144"); e("s_lshl_b32 s30, s18, 10"); e("s_add_u32 s29, s29, s30"); e(f"s_add_u32 s29, s29, {TAB_OFF + TAB_W64}")
    for var in range(3):
        if var == 2: e("s_add_u32 s29, s29, 4096")
        e(f"buffer_store_dwordx4 v[{32+4*var}:{35+4*var}], v9, s[24:27], s29 offen offset:{2048*(var&1)}")
    e(f"s_branch {name}_end")
    a.label(f"{name}_tabtw")
    e("s_cmp_lg_u32 s18, 2")
    e(f"s_cbranch_scc1 {name}_end")
    for T in range(2):
        for b in range(4):
            e(f"v_lshlrev_b32 v11, 2, v4"); e(f"v_add_u32 v11, {16*T+b}, v11"); e("v_mul_u32_u24 v11, v11, v8")
            e("v_cvt_f32_u32 v11, v11"); e(f"v_mul_f32 v11, {1.0/2048!r}, v11")
            e(f"v_cos_f32 v{16+4*T+b}, v11"); e(f"v_sin_f32 v{24+4*T+b}, v11")
    e("s_lshl_b32 s29, s28, 12"); e(f"s_add_u32 s29, s29, {TAB_OFF + TAB_TW}")
    for q in range(4):
        e(f"buffer_store_dwordx4 v[{16+4*q}:{19+4*q}], v9, s[24:27], s29 offen offset:{1024*q}")
    e(f"s_branch {name}_end")
    a.label(f"{name}_tab2")
    e("s_cmp_ge_u32 s18, 2")
    e(f"s_cbranch_scc1 {name}_end")
    e("s_lshl_b32 s29, s18, 4"); e("v_add_u32 v8, s29, v3")
    for jj in range(8):
        e(f"v_lshlrev_b32 v11, 2, v4"); e(f"v_add_u32 v11, {16*(jj>>2) + (jj&3)}, v11"); e("v_mul_u32_u24 v11, v11, v8"); e("v_and_b32 v11, 31, v11")
        e("v_cvt_f32_u32 v11, v11"); e(f"v_mul_f32 v11, {1.0/32!r}, v11")
        e(f"v_cos_f32 v{16+jj}, v11"); e(f"v_sin_f32 v{24+jj}, v11")
    for q in range(4):
        e(f"v_cvt_pk_bf16_f32 v{32+q}, v{16+2*q}, v{17+2*q}")
        e(f"v_cvt_pk_bf16_f32 v{36+q}, v{24+2*q}, v{25+2*q}")
    e("s_lshl_b32 s29, s18, 11"); e(f"s_add_u32 s29, s29, {TAB_OFF + TAB_S2}")
    e("buffer_store_dwordx4 v[32:35], v9, s[24:27], s29 offen")
    e("buffer_store_dwordx4 v[36:39], v9, s[24:27], s29 offen offset:1024")
    a.label(f"{name}_end")
    e("s_endpgm")
    return kernel_header(name) + a.text() + kernel_desc(name, 256, 0, 64)
```

```python
from asm import *
from layout import *
OOB = 0x40000000
TB = 40960
ROWP = 272

def gemm_pass(a, vm, nsteps, lds_base_of, acc, abuf, xreg, first_zero, per_step_extra=None, pre_step=None):
    e = a.e
    def reads(s):
        for T in range(5):
            vb, imm = lds_base_of(s, T)
            r = abuf[s & 1] + 4 * T
            e(f"ds_read_b128 v[{r}:{r+3}], v{vb} offset:{imm}")
    reads(0)
    for s in range(nsteps):
        if pre_step: pre_step(s)
        if s + 1 < nsteps:
            reads(s + 1); e("s_waitcnt lgkmcnt(5)")
        else:
            e("s_waitcnt lgkmcnt(0)")
        for T in range(5):
            r = abuf[s & 1] + 4 * T
            for tt in range(2):
                d = acc(tt, T)
                c = "0" if (s == 0 and first_zero) else f"v[{d}:{d+3}]"
                e(f"v_mfma_f32_16x16x32_bf16 v[{d}:{d+3}], v[{r}:{r+3}], {xreg(tt, s)}, {c}")
        if per_step_extra: per_step_extra(s)

def gen_k1(name, layer):
    a = Asm(); e = a.e; vm = VM(a)
    e("s_cmp_ge_u32 s2, 256")
    e(f"s_cbranch_scc1 {name}_end")
    if layer == 0: e("s_load_dwordx2 s[4:5], s[0:1], 0")
    e("s_load_dwordx2 s[30:31], s[0:1], 88")
    wg_to_rc(a, 16, 17, 19)
    e("v_and_b32 v1, 63, v0"); e("v_lshrrev_b32 v2, 6, v0")
    e("v_readfirstlane_b32 s18, v2")
    e("v_and_b32 v2, 15, v1"); e("v_lshrrev_b32 v3, 4, v1")
    e("s_and_b32 s19, s18, 1"); e("s_lshl_b32 s19, s19, 10"); e("s_lshl_b32 s20, s16, 1"); e("s_add_u32 s19, s19, s20")
    e("s_lshr_b32 s20, s18, 1"); e("s_add_u32 s19, s19, s20")
    e("v_lshlrev_b32 v4, 6, v2"); e("v_add_u32 v4, s19, v4")
    e("v_mul_u32_u24 v4, 1280, v4"); e("v_lshl_add_u32 v4, v3, 4, v4")
    e("v_lshlrev_b32 v5, 4, v1")
    e("v_add_u32 v6, 61440, v5"); e("v_add_u32 v7, 102400, v5")
    e("s_mov_b32 s20, 40960")
    e("s_waitcnt lgkmcnt(0)")
    if layer == 0:
        e(f"s_mov_b32 s6, {ACT}"); e("s_mov_b32 s7, 0x20000")
    else:
        srd(a, 4, 30, 31, X2_OFF, ACT)
    e(f"s_mul_i32 s19, s17, {W1_C}")
    e("s_add_u32 s8, s30, s19"); e("s_addc_u32 s9, s31, 0"); e(f"s_mov_b32 s10, {W1_C}"); e("s_mov_b32 s11, 0x20000")
    srd(a, 12, 30, 31, 0, WS_USED)
    e("s_lshl_b32 s21, s18, 12")
    e("s_lshl_b32 s22, s18, 10"); e("s_add_u32 s22, s22, 16384")
    def dma_chunk(goff, loff, tag):
        e(f"s_add_u32 s23, s21, {goff}")
        if loff == goff: e("s_mov_b32 m0, s23")
        else: e(f"s_add_u32 m0, s21, {loff}")
        for q in range(4):
            vm.issue(f"buffer_load_dwordx4 v5, s[8:11], s23 offen offset:{1024*q} lds", tag)
        e(f"s_add_u32 s23, s22, {goff}")
        if loff == goff: e("s_mov_b32 m0, s23")
        else: e(f"s_add_u32 m0, s22, {loff}")
        vm.issue(f"buffer_load_dwordx4 v5, s[8:11], s23 offen lds", tag)
    X = lambda tt, s: f"a[{(2*s+tt)*4}:{(2*s+tt)*4+3}]"
    def x_chunk(q, tag):
        for s in range(4*q, 4*q+4):
            vm.issue(f"buffer_load_dwordx4 {X(0,s)}, v4, s[4:7], 0 offen offset:{64*s}", tag)
            vm.issue(f"buffer_load_dwordx4 {X(1,s)}, v4, s[4:7], s20 offen offset:{64*s}", tag)
    for q in range(4):
        dma_chunk(q*20480, q*20480, f"c{q}"); x_chunk(q, f"c{q}")
    for r in range(112, 116): e(f"v_mov_b32 v{r}, 0x3f803f80")
    e("v_and_b32 v8, 3, v2")
    e("v_cmp_eq_u32 s[24:25], 1, v8"); e("v_cmp_eq_u32 s[26:27], 2, v8"); e("v_cmp_eq_u32 s[28:29], 3, v8")
    e("v_lshrrev_b32 v9, 2, v2"); e("v_lshl_add_u32 v9, v9, 4, v2"); e("v_lshlrev_b32 v9, 2, v9")
    vm.wait("c0"); e("s_barrier")
    dma_chunk(4*20480, 4*20480, "c4"); x_chunk(4, "c4")
    acc = lambda tt, T: 56 + 20*tt + 4*T
    def lds0(s, T):
        off = (s*5+T)*1024
        return (5, off) if s < 12 else (6, off - 61440)
    def pre0(s):
        if s % 4 == 3 and s < 19:
            q = (s+1)//4
            vm.wait(f"c{q}"); e("s_barrier")
            if q <= 3:
                dma_chunk(102400 + (q-1)*20480, 102400 + (q-1)*20480, f"p{q-1}")
    def extra0(s):
        for tt in range(2):
            c0 = "0" if s == 0 else f"v[{96+4*tt}:{99+4*tt}]"
            c1 = "0" if s == 0 else f"v[{104+4*tt}:{107+4*tt}]"
            e(f"v_mfma_f32_16x16x32_bf16 v[{96+4*tt}:{99+4*tt}], v[112:115], {X(tt,s)}, {c0}")
            e(f"v_mfma_f32_16x16x32_bf16 v[{104+4*tt}:{107+4*tt}], {X(tt,s)}, {X(tt,s)}, {c1}")
    gemm_pass(a, vm, 20, lds0, acc, (16, 36), X, True, extra0, pre0)
    e("s_barrier")
    dma_chunk(102400 + 3*20480, 0, "p3"); dma_chunk(102400 + 4*20480, 20480, "p4")
    e("v_permlane32_swap_b32 v96, v100")
    for tt in range(2):
        g0 = 104 + 4*tt
        e(f"v_cndmask_b32 v{g0}, v{g0}, v{g0+1}, s[24:25]")
        e(f"v_cndmask_b32 v{g0}, v{g0}, v{g0+2}, s[26:27]")
        e(f"v_cndmask_b32 v{g0}, v{g0}, v{g0+3}, s[28:29]")
    e("ds_bpermute_b32 v105, v9, v104"); e("ds_bpermute_b32 v109, v9, v108")
    for u in range(20): e(f"v_permlane32_swap_b32 v{56+u}, v{76+u}")
    e("s_waitcnt lgkmcnt(0)")
    e("v_permlane32_swap_b32 v105, v109")
    e(f"v_mul_f32 v96, {1/640!r}, v96")
    e(f"v_mul_f32 v105, {1/640!r}, v105")
    e("v_fma_f32 v105, -v96, v96, v105")
    e("v_max_f32 v105, 0, v105")
    e("v_add_f32 v105, 0x3727c5ac, v105")
    e("v_rsq_f32 v10, v105")
    e(f"v_mul_f32 v11, {LOG2E!r}, v10")
    for u in range(20): e(f"v_mul_f32 v{76+u}, v10, v{76+u}")
    for q in range(10): e(f"v_cvt_pk_bf16_f32 v{116+q}, v{76+2*q}, v{77+2*q}")
    e("v_mov_b32 v126, 0x3f80"); e("v_mov_b32 v127, 0")
    e("v_lshrrev_b32 v12, 5, v1"); e("v_lshl_add_u32 v12, v12, 4, v2"); e("s_lshl_b32 s19, s18, 5"); e("v_add_u32 v12, s19, v12")
    e(f"v_mul_u32_u24 v12, {ROWP}, v12"); e(f"v_add_u32 v12, {TB}, v12")
    e("v_and_b32 v13, 1, v3")
    e("v_mul_u32_u24 v14, 48, v13"); e("v_add_u32 v14, v12, v14")
    e("v_mul_u32_u24 v13, 80, v13"); e("v_add_u32 v13, v12, v13")
    for q in range(3): e(f"ds_write_b128 v14, v[{116+4*q}:{119+4*q}] offset:{160+16*q}")
    softmax_pair(a, list(range(56, 76)), 11, 128, 148, 156)
    for q in range(5): e(f"ds_write_b128 v13, v[{156+4*q}:{159+4*q}] offset:{16*q}")
    e("v_lshrrev_b32 v12, 2, v2"); e("v_lshl_add_u32 v12, v3, 3, v12")
    e(f"v_mul_u32_u24 v12, {ROWP}, v12"); e("v_and_b32 v13, 3, v1"); e("v_lshl_add_u32 v12, v13, 3, v12"); e(f"v_add_u32 v12, {TB}, v12")
    e("s_lshr_b32 s19, s18, 1"); e("s_and_b32 s23, s18, 1")
    e("s_mul_i32 s3, s19, 48"); e("s_lshl_b32 s33, s23, 5"); e("s_add_u32 s3, s3, s33"); e("s_add_u32 s3, s3, 160")
    e("v_add_u32 v13, s3, v12")
    e("s_mul_i32 s3, s19, 80"); e("v_add_u32 v12, s3, v12")
    e("s_waitcnt lgkmcnt(0)"); e("s_barrier")
    for ks in range(4):
        e(f"ds_read_b64_tr_b16 v[{16+4*ks}:{17+4*ks}], v13 offset:{ks*32*ROWP}")
        e(f"ds_read_b64_tr_b16 v[{18+4*ks}:{19+4*ks}], v13 offset:{ks*32*ROWP + 4*ROWP}")
        for nt in range(3):
            r = 56 + 16*nt + 4*ks
            e(f"ds_read_b64_tr_b16 v[{r}:{r+1}], v12 offset:{ks*32*ROWP + 32*nt}")
            e(f"ds_read_b64_tr_b16 v[{r+2}:{r+3}], v12 offset:{ks*32*ROWP + 4*ROWP + 32*nt}")
    e("s_lshl_b32 s3, s23, 4"); e("v_lshlrev_b32 v14, 2, v3"); e("v_add_u32 v14, s3, v14")
    e("v_mul_u32_u24 v15, 160, v14"); e("v_lshl_add_u32 v15, v2, 2, v15")
    e("s_lshl_b32 s3, s17, 1"); e("s_add_u32 s3, s3, s19"); e("s_mul_i32 s3, s3, 3360"); e(f"s_add_u32 s33, s3, {KV_OFF[layer]}")
    e(f"v_mov_b32 v132, {OOB}")
    e("v_cmp_ge_u32 vcc, 20, v14"); e("v_cndmask_b32 v128, v132, v15, vcc")
    e("v_cmp_ge_u32 vcc, 17, v14"); e("v_cndmask_b32 v129, v132, v15, vcc")
    e("v_cmp_gt_u32 vcc, 8, v2"); e("v_cndmask_b32 v130, v132, v128, vcc"); e("v_cndmask_b32 v131, v132, v129, vcc")
    e("s_waitcnt lgkmcnt(0)")
    for ks in range(4):
        for nt in range(3):
            r = 56 + 16*nt + 4*ks; d = 36 + 4*nt
            c = "0" if ks == 0 else f"v[{d}:{d+3}]"
            e(f"v_mfma_f32_16x16x32_bf16 v[{d}:{d+3}], v[{16+4*ks}:{19+4*ks}], v[{r}:{r+3}], {c}")
    for nt in range(3):
        for b in range(4):
            vo = 128 + (0 if b == 0 else 1) + (2 if nt == 2 else 0)
            vm.issue(f"buffer_atomic_add_f32 v{36+4*nt+b}, v{vo}, s[12:15], s33 offen offset:{160*b + 64*nt}", "at")
    vm.wait("p4"); e("s_barrier")
    def lds1(s, T):
        off = (s*5+T)*1024
        return (7, off) if s < 12 else (5, off - 61440)
    gemm_pass(a, vm, 20, lds1, acc, (16, 36), X, True)
    for u in range(20): e(f"v_permlane32_swap_b32 v{56+u}, v{76+u}")
    e("s_lshl_b32 s3, s16, 4"); e("s_add_u32 s3, s3, s17"); e("s_lshl_b32 s3, s3, 2"); e("s_add_u32 s3, s3, s18"); e("s_mul_i32 s3, s3, 5120")
    e(f"s_add_u32 s19, s3, {XF0_OFF[layer]}"); e(f"s_add_u32 s23, s3, {PHIQ_OFF[layer]}")
    e("s_add_u32 s33, s19, 4096"); e("s_add_u32 s34, s23, 4096")
    for q in range(5):
        so, im = ("s19", 1024*q) if q < 4 else ("s33", 0)
        e(f"buffer_store_dwordx4 v[{76+4*q}:{79+4*q}], v5, s[12:15], {so} offen offset:{im}")
    softmax_pair(a, list(range(56, 76)), 11, 128, 148, 156)
    for q in range(5):
        so, im = ("s23", 1024*q) if q < 4 else ("s34", 0)
        e(f"buffer_store_dwordx4 v[{156+4*q}:{159+4*q}], v5, s[12:15], {so} offen offset:{im}")
    a.label(f"{name}_end")
    e("s_endpgm")
    return kernel_header(name) + a.text() + kernel_desc(name, 176, 160, 64)
```

```python
from asm import *
from layout import *
from k1 import gemm_pass
OOB = 0x40000000

def gen_k2a(name, layer):
    a = Asm(); e = a.e; vm = VM(a)
    e("s_cmp_ge_u32 s2, 256")
    e(f"s_cbranch_scc1 {name}_end")
    e("s_load_dwordx2 s[30:31], s[0:1], 88")
    wg_to_rc(a, 16, 17, 19)
    e("v_and_b32 v1, 63, v0"); e("v_lshrrev_b32 v2, 6, v0")
    e("v_readfirstlane_b32 s18, v2")
    e("v_and_b32 v2, 15, v1"); e("v_lshrrev_b32 v3, 4, v1")
    e("v_lshlrev_b32 v5, 4, v1")
    e("s_waitcnt lgkmcnt(0)")
    srd(a, 12, 30, 31, 0, WS_USED)
    e("v_lshlrev_b32 v6, 5, v0"); e(f"v_mov_b32 v7, {OOB}"); e("v_cmp_gt_u32 vcc, 210, v0"); e("v_cndmask_b32 v6, v7, v6, vcc")
    e("s_mul_i32 s3, s17, 6720"); e(f"s_add_u32 s3, s3, {KV_OFF[layer]}")
    vm.issue("buffer_load_dwordx4 v[40:43], v6, s[12:15], s3 offen", "kv")
    vm.issue("buffer_load_dwordx4 v[44:47], v6, s[12:15], s3 offen offset:16", "kv")
    e("s_lshl_b32 s3, s16, 4"); e("s_add_u32 s3, s3, s17"); e("s_lshl_b32 s3, s3, 2"); e("s_add_u32 s3, s3, s18"); e("s_mul_i32 s3, s3, 5120")
    e(f"s_add_u32 s23, s3, {PHIQ_OFF[layer]}"); e("s_add_u32 s34, s23, 4096")
    for q in range(5):
        so, im = ("s23", 1024*q) if q < 4 else ("s34", 0)
        vm.issue(f"buffer_load_dwordx4 v[{16+4*q}:{19+4*q}], v5, s[12:15], {so} offen offset:{im}", "phi")
    for r in range(48, 52): e(f"v_mov_b32 v{r}, 0")
    e("v_lshlrev_b32 v8, 4, v0"); e("v_add_u32 v9, 3840, v8")
    e("v_cmp_gt_u32 vcc, 128, v0"); e("s_and_saveexec_b64 s[20:21], vcc")
    e("ds_write_b128 v9, v[48:51]")
    e("s_mov_b64 exec, s[20:21]")
    e("v_cmp_le_u32 vcc, 105, v0"); e("v_cndmask_b32 v9, 0, 1, vcc"); e("v_mul_u32_u24 v9, 240, v9"); e("v_add_u32 v9, v9, v8")
    e("v_and_b32 v10, 1, v3"); e("v_mul_u32_u24 v10, 1920, v10"); e("v_and_b32 v11, 3, v2"); e("v_mul_u32_u24 v11, 80, v11"); e("v_add_u32 v10, v10, v11")
    e("v_lshrrev_b32 v11, 2, v2"); e("v_cmp_eq_u32 vcc, v11, v3"); e("v_mov_b32 v11, 3840"); e("v_cndmask_b32 v10, v11, v10, vcc")
    vm.wait("kv")
    for q in range(4): e(f"v_cvt_pk_bf16_f32 v{40+q}, v{40+2*q}, v{41+2*q}")
    e("v_cmp_gt_u32 vcc, 210, v0"); e("s_and_saveexec_b64 s[20:21], vcc")
    e("ds_write_b128 v9, v[40:43]")
    e("s_mov_b64 exec, s[20:21]")
    e("s_waitcnt lgkmcnt(0)"); e("s_barrier")
    for Tp in range(6):
        for ch in range(5):
            r = 64 + (Tp*5+ch)*4
            e(f"ds_read_b128 v[{r}:{r+3}], v10 offset:{Tp*320 + ch*16}")
    e("v_lshrrev_b32 v12, 5, v1"); e("v_lshl_add_u32 v12, v12, 4, v2"); e("s_lshl_b32 s3, s16, 7"); e("s_lshl_b32 s19, s18, 5"); e("s_add_u32 s3, s3, s19"); e("v_add_u32 v12, s3, v12")
    e("v_mul_u32_u24 v12, 1280, v12"); e("v_and_b32 v13, 1, v3"); e("v_mul_u32_u24 v13, 40, v13"); e("v_add_u32 v12, v12, v13")
    e("s_mul_i32 s3, s17, 80"); e(f"s_add_u32 s3, s3, {O_OFF[layer]}")
    vm.wait("phi")
    e("s_waitcnt lgkmcnt(0)")
    for ch in range(5):
        for Tp in range(6):
            r = 64 + (Tp*5+ch)*4; d = 40 + 4*Tp
            c = "0" if ch == 0 else f"v[{d}:{d+3}]"
            e(f"v_mfma_f32_16x16x32_bf16 v[{d}:{d+3}], v[{r}:{r+3}], v[{16+4*ch}:{19+4*ch}], {c}")
    e("v_add_f32 v60, 0x358637bd, v60")
    e("v_rcp_f32 v60, v60")
    for u in range(20): e(f"v_mul_f32 v{40+u}, v60, v{40+u}")
    for q in range(10): e(f"v_cvt_pk_bf16_f32 v{16+q}, v{40+2*q}, v{41+2*q}")
    e("buffer_store_dwordx4 v[16:19], v12, s[12:15], s3 offen")
    e("buffer_store_dwordx4 v[20:23], v12, s[12:15], s3 offen offset:16")
    e("buffer_store_dwordx2 v[24:25], v12, s[12:15], s3 offen offset:32")
    a.label(f"{name}_end")
    e("s_endpgm")
    return kernel_header(name) + a.text() + kernel_desc(name, 192, 0, 64)

def gen_k2b(name, layer):
    a = Asm(); e = a.e; vm = VM(a)
    e("s_cmp_ge_u32 s2, 256")
    e(f"s_cbranch_scc1 {name}_end")
    if layer == 0: e("s_load_dwordx2 s[24:25], s[0:1], 0")
    e("s_load_dwordx2 s[30:31], s[0:1], 88")
    wg_to_rc(a, 16, 17, 19)
    e("v_and_b32 v1, 63, v0"); e("v_lshrrev_b32 v2, 6, v0")
    e("v_readfirstlane_b32 s18, v2")
    e("v_and_b32 v2, 15, v1"); e("v_lshrrev_b32 v3, 4, v1")
    e("s_lshl_b32 s19, s16, 7"); e("s_lshl_b32 s20, s18, 5"); e("s_add_u32 s19, s19, s20")
    e("v_add_u32 v4, s19, v2"); e("v_mul_u32_u24 v4, 1280, v4"); e("v_lshl_add_u32 v4, v3, 4, v4")
    e("v_lshlrev_b32 v5, 4, v1"); e("v_add_u32 v6, 61440, v5")
    e("s_mov_b32 s20, 20480")
    e("s_and_b32 s19, s18, 1"); e("s_lshl_b32 s19, s19, 10"); e("s_lshl_b32 s21, s16, 1"); e("s_add_u32 s19, s19, s21")
    e("s_lshr_b32 s21, s18, 1"); e("s_add_u32 s19, s19, s21")
    e("v_lshrrev_b32 v7, 5, v1"); e("v_lshl_add_u32 v8, v2, 1, v7"); e("v_lshlrev_b32 v8, 5, v8"); e("v_add_u32 v8, s19, v8")
    e("v_mul_u32_u24 v8, 1280, v8"); e("v_and_b32 v9, 1, v3"); e("v_mul_u32_u24 v9, 40, v9"); e("v_add_u32 v8, v8, v9")
    e("s_waitcnt lgkmcnt(0)")
    srd(a, 4, 30, 31, O_OFF[layer], ACT)
    e(f"s_mul_i32 s19, s17, {W2_C}"); e(f"s_add_u32 s19, s19, {W2_OFF}")
    e("s_add_u32 s8, s30, s19"); e("s_addc_u32 s9, s31, 0"); e(f"s_mov_b32 s10, {W2_C}"); e("s_mov_b32 s11, 0x20000")
    srd(a, 12, 30, 31, 0, WS_USED)
    if layer == 0:
        e(f"s_mov_b32 s26, {ACT}"); e("s_mov_b32 s27, 0x20000")
    else:
        srd(a, 24, 30, 31, X2_OFF, ACT)
    e("s_mul_i32 s3, s17, 80")
    vm.issue("buffer_load_dwordx4 v[96:99], v8, s[24:27], s3 offen", "init")
    vm.issue("buffer_load_dwordx4 v[100:103], v8, s[24:27], s3 offen offset:16", "init")
    vm.issue("buffer_load_dwordx2 v[104:105], v8, s[24:27], s3 offen offset:32", "init")
    e("s_lshl_b32 s19, s16, 4"); e("s_add_u32 s19, s19, s17"); e("s_lshl_b32 s19, s19, 2"); e("s_add_u32 s19, s19, s18"); e("s_mul_i32 s19, s19, 5120")
    e(f"s_add_u32 s19, s19, {XF0_OFF[layer]}"); e("s_add_u32 s33, s19, 4096")
    for q in range(5):
        so, im = ("s19", 1024*q) if q < 4 else ("s33", 0)
        vm.issue(f"buffer_load_dwordx4 v[{76+4*q}:{79+4*q}], v5, s[12:15], {so} offen offset:{im}", "init")
    e("s_lshl_b32 s21, s18, 12"); e("s_lshl_b32 s22, s18, 10"); e("s_add_u32 s22, s22, 16384")
    def dma_chunk(goff, tag):
        e(f"s_add_u32 s23, s21, {goff}"); e("s_mov_b32 m0, s23")
        for q in range(4):
            vm.issue(f"buffer_load_dwordx4 v5, s[8:11], s23 offen offset:{1024*q} lds", tag)
        e(f"s_add_u32 s23, s22, {goff}"); e("s_mov_b32 m0, s23")
        vm.issue(f"buffer_load_dwordx4 v5, s[8:11], s23 offen lds", tag)
    X = lambda tt, s: f"a[{(2*s+tt)*4}:{(2*s+tt)*4+3}]"
    def x_chunk(q, tag):
        for s in range(4*q, 4*q+4):
            vm.issue(f"buffer_load_dwordx4 {X(0,s)}, v4, s[4:7], 0 offen offset:{64*s}", tag)
            vm.issue(f"buffer_load_dwordx4 {X(1,s)}, v4, s[4:7], s20 offen offset:{64*s}", tag)
    for q in range(4):
        dma_chunk(q*20480, f"c{q}"); x_chunk(q, f"c{q}")
    vm.wait("init")
    for q in range(10):
        e(f"v_lshlrev_b32 v{56+2*q}, 16, v{96+q}")
        e(f"v_and_b32 v{57+2*q}, 0xffff0000, v{96+q}")
    for u in range(20): e(f"v_permlane32_swap_b32 v{56+u}, v{76+u}")
    vm.wait("c0"); e("s_barrier")
    dma_chunk(4*20480, "c4"); x_chunk(4, "c4")
    acc = lambda tt, T: 56 + 20*tt + 4*T
    def lds0(s, T):
        off = (s*5+T)*1024
        return (5, off) if s < 12 else (6, off - 61440)
    def pre0(s):
        if s % 4 == 3 and s < 19:
            vm.wait(f"c{(s+1)//4}"); e("s_barrier")
    gemm_pass(a, vm, 20, lds0, acc, (16, 36), X, False, None, pre0)
    for u in range(20): e(f"v_cvt_pk_bf16_f32 v{96+u}, v{56+u}, v{76+u}")
    for u in range(0, 20, 2): e(f"v_permlane32_swap_b32 v{96+u}, v{97+u}")
    e("v_lshlrev_b32 v9, 13, v7"); e("v_and_b32 v10, 1, v3"); e("v_lshl_add_u32 v9, v10, 12, v9"); e("v_lshl_add_u32 v9, v2, 2, v9")
    e("s_mul_i32 s3, s17, 163840"); e("s_lshl_b32 s19, s16, 1"); e("s_lshr_b32 s23, s18, 1"); e("s_add_u32 s19, s19, s23")
    e("s_lshl_b32 s23, s19, 7"); e("s_add_u32 s3, s3, s23"); e("s_and_b32 s23, s18, 1"); e("s_lshl_b32 s33, s23, 6"); e("s_add_u32 s3, s3, s33"); e(f"s_add_u32 s3, s3, {XF_OFF[layer]}")
    for u in range(0, 20, 2):
        e(f"buffer_store_dword v{97+u}, v9, s[12:15], s3 offen")
        if u < 18: e("s_add_u32 s3, s3, 16384")
    for u in range(20): e(f"v_permlane32_swap_b32 v{56+u}, v{76+u}")
    e("v_add_f32 v120, v56, v57"); e("v_mul_f32 v121, v56, v56"); e("v_fmac_f32 v121, v57, v57")
    for u in range(2, 20):
        e(f"v_add_f32 v120, v120, v{56+u}"); e(f"v_fmac_f32 v121, v{56+u}, v{56+u}")
    for r in (120, 121):
        e(f"v_mov_b32 v122, v{r}"); e(f"v_permlane16_swap_b32 v{r}, v122"); e(f"v_add_f32 v{r}, v{r}, v122")
    e("s_lshl_b32 s19, s19, 6"); e("s_lshl_b32 s23, s23, 5"); e("s_add_u32 s19, s19, s23"); e("s_lshl_b32 s19, s19, 2"); e(f"s_add_u32 s19, s19, {ST_OFF[layer]}")
    e("v_lshl_add_u32 v10, v2, 1, v7"); e("v_lshlrev_b32 v10, 2, v10"); e(f"v_mov_b32 v11, {OOB}")
    e("v_and_b32 v12, 1, v3"); e("v_cmp_eq_u32 vcc, 0, v12"); e("v_cndmask_b32 v10, v11, v10, vcc")
    e("s_add_u32 s23, s19, 8192")
    e("buffer_atomic_add_f32 v120, v10, s[12:15], s19 offen")
    e("buffer_atomic_add_f32 v121, v10, s[12:15], s23 offen")
    for q in range(10): e(f"v_cvt_pk_bf16_f32 v{124+q}, v{56+2*q}, v{57+2*q}")
    e("s_mul_i32 s3, s17, 80"); e(f"s_add_u32 s3, s3, {X1_OFF[layer]}")
    e("buffer_store_dwordx4 v[124:127], v8, s[12:15], s3 offen")
    e("buffer_store_dwordx4 v[128:131], v8, s[12:15], s3 offen offset:16")
    e("buffer_store_dwordx2 v[132:133], v8, s[12:15], s3 offen offset:32")
    a.label(f"{name}_end")
    e("s_endpgm")
    return kernel_header(name) + a.text() + kernel_desc(name, 136, 160, 64)
```

```python
from asm import *
from layout import *
OOB = 0x40000000
RB = 0
YB = 8704

def gen_k3(name, layer):
    a = Asm(); e = a.e; vm = VM(a)
    e("s_cmp_ge_u32 s2, 160")
    e(f"s_cbranch_scc1 {name}_end")
    e("s_load_dwordx2 s[30:31], s[0:1], 88")
    if layer == 1: e("s_load_dwordx2 s[24:25], s[0:1], 72")
    e("s_and_b32 s16, s2, 7"); e("s_lshr_b32 s17, s2, 3"); e("s_lshr_b32 s19, s17, 2"); e("s_lshl_b32 s19, s19, 3")
    e("s_add_u32 s16, s16, s19")
    e("s_and_b32 s17, s17, 3")
    e("v_and_b32 v1, 63, v0"); e("v_lshrrev_b32 v2, 6, v0")
    e("v_readfirstlane_b32 s18, v2")
    e("v_and_b32 v2, 15, v1"); e("v_lshrrev_b32 v3, 4, v1")
    e("v_lshlrev_b32 v5, 4, v1")
    e("v_lshlrev_b32 v6, 4, v0")
    e("s_waitcnt lgkmcnt(0)")
    srd(a, 12, 30, 31, 0, WS_USED)
    srd(a, 4, 30, 31, X1_OFF[layer], ACT)
    if layer == 0: srd(a, 24, 30, 31, X2_OFF, ACT)
    else:
        e(f"s_mov_b32 s26, {ACT}"); e("s_mov_b32 s27, 0x20000")
    e(f"s_mov_b32 s3, {ST_OFF[layer]}"); e(f"s_mov_b32 s19, {ST_OFF[layer] + 8192}")
    vm.issue("buffer_load_dwordx4 v[8:11], v6, s[12:15], s3 offen", "st")
    vm.issue("buffer_load_dwordx4 v[12:15], v6, s[12:15], s19 offen", "st")
    e("v_lshlrev_b32 v7, 7, v2"); e("v_lshl_add_u32 v7, v3, 4, v7")
    e("s_lshl_b32 s3, s16, 3"); e("s_add_u32 s3, s3, s18"); e("s_lshl_b32 s3, s3, 13"); e(f"s_add_u32 s3, s3, {XF_OFF[layer]}")
    e("s_add_u32 s19, s3, 4096")
    Xr = lambda T, st, ri: 32 + ((T*2+st)*2+ri)*4
    for T in range(2):
        for st in range(2):
            for ri in range(2):
                r = Xr(T, st, ri)
                vm.issue(f"buffer_load_dwordx4 v[{r}:{r+3}], v7, s[12:15], {'s19' if ri else 's3'} offen offset:{T*2048 + st*64}", "data")
    e("s_mul_i32 s3, s17, 6144"); e(f"s_add_u32 s3, s3, {TAB_OFF + TAB_W64}"); e("s_add_u32 s19, s3, 4096")
    for var in range(3):
        for st in range(2):
            r = 96 + (var*2+st)*4
            so, im = ("s3", var*2048 + st*1024) if var < 2 else ("s19", st*1024)
            vm.issue(f"buffer_load_dwordx4 v[{r}:{r+3}], v5, s[12:15], {so} offen offset:{im}", "tab")
    e("s_lshl_b32 s3, s17, 12"); e(f"s_add_u32 s3, s3, {TAB_OFF + TAB_TW}")
    for q in range(4): vm.issue(f"buffer_load_dwordx4 v[{120+4*q}:{123+4*q}], v5, s[12:15], s3 offen offset:{1024*q}", "tab")
    e(f"s_mov_b32 s3, {TAB_OFF + TAB_S2}")
    for q in range(4): vm.issue(f"buffer_load_dwordx4 v[{136+4*q}:{139+4*q}], v5, s[12:15], s3 offen offset:{1024*q}", "tab")
    e("v_and_b32 v16, 15, v0"); e("v_lshrrev_b32 v17, 4, v0"); e("v_lshl_add_u32 v16, v17, 6, v16"); e("s_lshl_b32 s3, s17, 4"); e("v_add_u32 v16, s3, v16")
    e("v_sub_u32 v17, 2048, v16"); e("v_and_b32 v17, 2047, v17")
    e("v_mul_u32_u24 v18, 1280, v16"); e("v_mul_u32_u24 v19, 1280, v17")
    e("s_lshl_b32 s20, s16, 4"); e("s_add_u32 s21, s20, 2")
    e("s_sub_u32 s22, 1264, s20")
    vm.issue("buffer_load_dwordx4 v[168:171], v18, s[4:7], s21 offen", "res")
    vm.issue("buffer_load_dwordx4 v[172:175], v19, s[4:7], s22 offen", "res")
    vm.issue("buffer_load_ushort v176, v18, s[4:7], 0 offen", "res")
    vm.wait("st")
    for q in range(4):
        e(f"v_mul_f32 v{8+q}, {1/640!r}, v{8+q}")
        e(f"v_mul_f32 v{12+q}, {1/640!r}, v{12+q}")
        e(f"v_fma_f32 v{12+q}, -v{8+q}, v{8+q}, v{12+q}")
        e(f"v_max_f32 v{12+q}, 0, v{12+q}")
        e(f"v_add_f32 v{12+q}, 0x3727c5ac, v{12+q}")
        e(f"v_rsq_f32 v{12+q}, v{12+q}")
    e("v_lshrrev_b32 v8, 4, v0"); e("v_mul_u32_u24 v8, 272, v8"); e("v_and_b32 v9, 15, v0"); e("v_lshl_add_u32 v8, v9, 4, v8")
    e("ds_write_b128 v8, v[12:15]")
    e("s_waitcnt lgkmcnt(0)"); e("s_barrier")
    e("v_mul_u32_u24 v8, 272, v2"); e("v_lshl_add_u32 v8, v3, 5, v8")
    RR = lambda T, st: 64 + (T*2+st)*8
    for T in range(2):
        for st in range(2):
            r = RR(T, st)
            e(f"ds_read_b128 v[{r}:{r+3}], v8 offset:{T*16*272 + st*128}")
            e(f"ds_read_b128 v[{r+4}:{r+7}], v8 offset:{T*16*272 + st*128 + 16}")
    vm.wait("data")
    e("s_waitcnt lgkmcnt(0)")
    for T in range(2):
        for st in range(2):
            for ri in range(2):
                d = Xr(T, st, ri); r = RR(T, st)
                for q in range(4):
                    e(f"v_lshlrev_b32 v20, 16, v{d+q}"); e(f"v_and_b32 v21, 0xffff0000, v{d+q}")
                    e(f"v_mul_f32 v20, v{r+2*q}, v20"); e(f"v_mul_f32 v21, v{r+2*q+1}, v21")
                    e(f"v_cvt_pk_bf16_f32 v{d+q}, v20, v21")
    vm.wait("tab")
    W = lambda var, st: 96 + (var*2+st)*4
    G = lambda T, ri: 152 + (T*2+ri)*4
    def mf(d, A, B, first):
        c = "0" if first else f"v[{d}:{d+3}]"
        e(f"v_mfma_f32_16x16x32_bf16 v[{d}:{d+3}], v[{A}:{A+3}], v[{B}:{B+3}], {c}")
    for st in range(2):
        for T in range(2):
            mf(G(T,0), Xr(T,st,0), W(0,st), st == 0)
            mf(G(T,1), Xr(T,st,0), W(1,st), st == 0)
    for st in range(2):
        for T in range(2):
            mf(G(T,0), Xr(T,st,1), W(2,st), False)
            mf(G(T,1), Xr(T,st,1), W(0,st), False)
    for T in range(2):
        for b in range(4):
            c, s = 120 + 4*T + b, 128 + 4*T + b
            gr, gi = G(T,0) + b, G(T,1) + b
            e(f"v_mul_f32 v{32+4*T+b}, v{gr}, v{c}"); e(f"v_mul_f32 v{40+4*T+b}, v{gi}, v{c}")
            e(f"v_fmac_f32 v{32+4*T+b}, v{gi}, v{s}"); e(f"v_fma_f32 v{40+4*T+b}, -v{gr}, v{s}, v{40+4*T+b}")
    for q in range(4):
        e(f"v_cvt_pk_bf16_f32 v{48+q}, v{32+2*q}, v{33+2*q}")
        e(f"v_cvt_pk_bf16_f32 v{52+q}, v{40+2*q}, v{41+2*q}")
    for T2 in range(2):
        mf(56 + 4*T2, 136 + 8*T2, 48, True)
    for T2 in range(2):
        mf(56 + 4*T2, 140 + 8*T2, 52, False)
    e("v_lshl_add_u32 v8, v3, 6, v2"); e("v_mul_u32_u24 v8, 48, v8"); e("s_lshl_b32 s3, s18, 2"); e(f"s_add_u32 s3, s3, {YB}"); e("v_add_u32 v8, s3, v8")
    for T2 in range(2):
        for b in range(4):
            e(f"ds_write_b32 v8, v{56+4*T2+b} offset:{12288*T2 + 768*b}")
    e("s_waitcnt lgkmcnt(0)"); e("s_barrier")
    e("v_mul_u32_u24 v8, 48, v0")
    e(f"ds_read_b128 v[32:35], v8 offset:{YB}"); e(f"ds_read_b128 v[36:39], v8 offset:{YB+16}")
    vm.wait("res")
    for q in range(4):
        e(f"v_lshlrev_b32 v{40+2*q}, 16, v{168+q}"); e(f"v_and_b32 v{41+2*q}, 0xffff0000, v{168+q}")
        e(f"v_lshlrev_b32 v{48+2*q}, 16, v{172+q}"); e(f"v_and_b32 v{49+2*q}, 0xffff0000, v{172+q}")
    e("s_waitcnt lgkmcnt(0)")
    for q in range(8):
        e(f"v_add_f32 v{40+q}, v{40+q}, v{32+q}")
        e(f"v_add_f32 v{48+q}, v{48+q}, v{39-q}")
    for q in range(4):
        e(f"v_cvt_pk_bf16_f32 v{56+q}, v{40+2*q}, v{41+2*q}")
        e(f"v_cvt_pk_bf16_f32 v{60+q}, v{48+2*q}, v{49+2*q}")
    e("buffer_store_dwordx4 v[56:59], v18, s[24:27], s21 offen")
    e("buffer_store_dwordx4 v[60:63], v19, s[24:27], s22 offen")
    e("s_cmp_lg_u32 s16, 0")
    e(f"s_cbranch_scc1 {name}_end")
    e("buffer_store_short v176, v18, s[24:27], 0 offen")
    a.label(f"{name}_end")
    e("s_endpgm")
    return kernel_header(name) + a.text() + kernel_desc(name, 180, 0, 64)
```

```python
S, D, H, DH = 2048, 640, 32, 20
W1_OFF = 0
W1_C = 204800
W2_OFF = 16 * W1_C
W2_C = 102400
TAB_OFF = W2_OFF + 16 * W2_C
TAB_W64 = 0
TAB_TW = 4 * 6144
TAB_S2 = TAB_TW + 4 * 4096
TAB_SIZE = 65536
ZERO_OFF = TAB_OFF + TAB_SIZE
KV_BYTES = 32 * 21 * 40 * 4
KV_OFF = [ZERO_OFF, ZERO_OFF + KV_BYTES]
ST_OFF = [ZERO_OFF + 2 * KV_BYTES, ZERO_OFF + 2 * KV_BYTES + 16384]
ZERO_SIZE = 262144
ACT = 2048 * 1280
base = ZERO_OFF + ZERO_SIZE
PHIQ_OFF = [base, base + 2 * ACT]
base += 4 * ACT
XF0_OFF = [base, base + 2 * ACT]
base += 4 * ACT
O_OFF = [base, base + ACT]; base += 2 * ACT
X1_OFF = [base, base + ACT]; base += 2 * ACT
XF_OFF = [base, base + ACT]; base += 2 * ACT
X2_OFF = base; base += ACT
WS_USED = base
```

```python
import sys; sys.path.insert(0,'gen')
from gen_all import *
from k0 import gen_k0
from k1 import gen_k1
from k2 import gen_k2a, gen_k2b
from k3 import gen_k3
launches = [("k0_kernel", 261, 256, 61440)]
bodies = [gen_k0("k0_kernel", 65536)]
for L in range(2):
    launches += [(f"k1l{L}_kernel", 256, 256, 163840), (f"k2al{L}_kernel", 256, 256, 6144), (f"k2bl{L}_kernel", 256, 256, 102400), (f"k3l{L}_kernel", 160, 512, 33792)]
    bodies += [gen_k1(f"k1l{L}_kernel", L), gen_k2a(f"k2al{L}_kernel", L), gen_k2b(f"k2bl{L}_kernel", L), gen_k3(f"k3l{L}_kernel", L)]
out = sys.argv[1] if len(sys.argv) > 1 else "v1.s"
print(assemble(launches, bodies, out))
```

```python
import re

TRANS = ("v_exp_f32", "v_log_f32", "v_rcp_f32", "v_rsq_f32", "v_sqrt_f32", "v_sin_f32", "v_cos_f32", "v_rcp_iflag_f32")
REG_RE = re.compile(r"(?<![\w.])([vas])(\d+)(?![\w\[])|(?<![\w.])([vas])\[(\d+):(\d+)\]|(?<![\w.])(vcc|exec|m0|scc)(_lo|_hi)?(?![\w])")

def regs_of(tok):
    out = []
    for m in REG_RE.finditer(tok):
        if m.group(1): out.append((m.group(1), int(m.group(2))))
        elif m.group(3):
            for i in range(int(m.group(4)), int(m.group(5)) + 1): out.append((m.group(3), i))
        else:
            nm = m.group(6)
            if nm == "vcc":
                if m.group(7) == "_lo": out.append(("s", 106))
                elif m.group(7) == "_hi": out.append(("s", 107))
                else: out += [("s", 106), ("s", 107)]
            elif nm == "exec": out += [("x", 0)]
            elif nm == "m0": out.append(("m", 0))
    return out

def split_ops(s):
    ops, depth, cur = [], 0, ""
    for ch in s:
        if ch == "[" or ch == "(": depth += 1
        if ch == "]" or ch == ")": depth -= 1
        if ch == "," and depth == 0: ops.append(cur.strip()); cur = ""
        else: cur += ch
    if cur.strip(): ops.append(cur.strip())
    return ops

class Inst:
    __slots__ = ("text", "op", "cls", "wr", "rd", "states", "passes", "srcc", "store_data", "isdpp", "lds_dma", "mask_rd", "sgpr_valu_wr", "ab")
    def __init__(self, text):
        self.text = text
        t = text.split(";")[0].strip()
        parts = t.split(None, 1)
        self.op = op = parts[0]
        rest = parts[1] if len(parts) > 1 else ""
        ops = split_ops(rest)
        self.wr, self.rd = [], []
        self.states = 1; self.passes = 0; self.srcc = []; self.store_data = []; self.ab = []
        self.isdpp = ("row_" in rest or "quad_perm" in rest or "wave_" in rest or "dpp" in op)
        self.lds_dma = False; self.mask_rd = []; self.sgpr_valu_wr = []
        R = lambda i: regs_of(ops[i].split(" ")[0] if i == len(ops) - 1 else ops[i]) if i < len(ops) else []
        if op == "s_nop":
            self.cls = "nop"; self.states = int(ops[0], 0) + 1
        elif op.startswith("v_mfma"):
            self.cls = "mfma"; self.wr = R(0); self.ab = R(1) + R(2); self.srcc = R(3); self.rd = self.ab + self.srcc
            self.passes = 8 if "32x32" in op else 4
        elif op.startswith("v_"):
            self.cls = "trans" if op.replace("_e32", "").replace("_e64", "") in TRANS else "valu"
            base = op.replace("_e32", "").replace("_e64", "")
            if base.startswith("v_cmp"):
                self.wr = R(0); self.rd = R(1) + R(2)
            elif base.startswith("v_permlane") and "swap" in base:
                self.wr = R(0) + R(1); self.rd = R(0) + R(1)
            elif base in ("v_readfirstlane_b32", "v_readlane_b32"):
                self.wr = R(0); self.rd = sum((R(i) for i in range(1, len(ops))), [])
            elif base in ("v_add_co_u32", "v_sub_co_u32", "v_addc_co_u32", "v_subb_co_u32", "v_mad_u64_u32"):
                self.wr = R(0) + R(1); self.rd = sum((R(i) for i in range(2, len(ops))), [])
            else:
                self.wr = R(0); self.rd = sum((R(i) for i in range(1, len(ops))), [])
                if base.startswith("v_fmac") or base.startswith("v_pk_fmac") or base.startswith("v_dot2c") or base in ("v_writelane_b32",): self.rd += R(0)
                if base == "v_cndmask_b32":
                    if len(ops) == 3: self.rd += [("s", 106), ("s", 107)]; self.mask_rd = [("s", 106), ("s", 107)]
                    else: self.mask_rd = R(3)
            self.sgpr_valu_wr = [r for r in self.wr if r[0] == "s"]
        elif op.startswith("ds_"):
            self.cls = "ds"
            if op.startswith("ds_read") or op.startswith("ds_bpermute") or op.startswith("ds_permute") or op.startswith("ds_swizzle"):
                self.wr = R(0); self.rd = sum((R(i) for i in range(1, len(ops))), [])
            else:
                self.rd = sum((R(i) for i in range(len(ops))), [])
        elif op.startswith("buffer_") or op.startswith("global_"):
            self.cls = "vmem"
            words = rest.replace(",", " ").split()
            islds = ("lds" in words) or ("_lds_" in op)
            allr = sum((R(i) for i in range(len(ops))), [])
            if op in ("buffer_wbl2", "buffer_inv"): pass
            elif islds:
                self.lds_dma = True; self.rd = allr + [("m", 0)]
            elif "_load" in op:
                self.wr = R(0); self.rd = sum((R(i) for i in range(1, len(ops))), [])
            elif "_store" in op:
                self.rd = allr
                d = R(0) if op.startswith("buffer_") else R(1)
                if "x4" in op or "x3" in op: self.store_data = d
            elif "_atomic" in op:
                self.rd = allr
                if "sc0" in words: self.wr = R(0)
        elif op.startswith("s_"):
            self.cls = "salu"
            if op.startswith(("s_waitcnt", "s_barrier", "s_branch", "s_cbranch", "s_endpgm", "s_setprio", "s_sleep")):
                self.cls = "sctl"
            elif op.startswith("s_cmp"):
                self.rd = sum((R(i) for i in range(len(ops))), [])
            elif op.startswith("s_load") or op.startswith("s_memtime") or op.startswith("s_memrealtime") or op.startswith("s_getreg") or op.startswith("s_getpc"):
                self.wr = R(0); self.rd = sum((R(i) for i in range(1, len(ops))), [])
            else:
                self.wr = R(0); self.rd = sum((R(i) for i in range(1, len(ops))), [])
                if "saveexec" in op: self.wr += [("x", 0)]
        else:
            raise ValueError("unknown instruction: " + text)

def need(prod, cons):
    n = 0
    pw = set(prod.wr);
    isvalu = lambda i: i.cls in ("valu", "trans")
    crd = set(cons.rd); cwr = set(cons.wr)
    if isvalu(prod):
        vw = {r for r in pw if r[0] in "va"}
        if vw & crd:
            if cons.cls == "mfma": n = max(n, 2)
            if cons.op.startswith("v_permlane"): n = max(n, 2)
            if cons.op.startswith(("v_readlane", "v_readfirstlane")): n = max(n, 1)
            if cons.isdpp: n = max(n, 2)
            if prod.cls == "trans" and cons.cls != "trans": n = max(n, 1)
        sw = {r for r in pw if r[0] == "s"}
        if sw & crd:
            if cons.cls == "vmem": n = max(n, 5)
            elif cons.op.startswith(("v_readlane", "v_writelane")): n = max(n, 4)
            elif isvalu(cons) or cons.cls == "mfma": n = max(n, 2)
            elif cons.cls in ("salu",): n = max(n, 1)
    if prod.cls == "mfma":
        p = prod.passes
        d = set(prod.wr)
        if cons.cls == "mfma":
            if d & set(cons.ab): n = max(n, 8 if p == 4 else 12)
            c = set(cons.srcc)
            if d & c and not (c == d and cons.passes == p): n = max(n, 6 if p == 4 else 10)
            if d & cwr and not (d & c): n = max(n, 6 if p == 4 else 10)
        else:
            if d & (crd | cwr): n = max(n, 8 if p == 4 else 12)
        if isvalu(cons) and set(prod.srcc) & cwr: n = max(n, 3 if p == 4 else 7)
    if prod.cls == "salu" and ("m", 0) in pw and cons.lds_dma: n = max(n, 1)
    if prod.store_data and set(prod.store_data) & cwr:
        n = max(n, 2 if isvalu(cons) or cons.cls == "mfma" else 1)
    return n

class Asm:
    def __init__(self):
        self.out = []
        self.hist = []
        self.nops = 0
    def raw(self, s): self.out.append(s)
    def label(self, name):
        self.out.append(name + ":")
    def e(self, text):
        for line in text.split("\n"):
            line = line.strip()
            if not line or line.startswith(";"): continue
            if line.endswith(":"): self.label(line[:-1]); continue
            ins = Inst(line)
            mo = re.search(r"offset:(-?\d+)", line)
            if mo:
                ov = int(mo.group(1))
                if ins.op.startswith("buffer_"): assert 0 <= ov <= 4095, line
                elif ins.op.startswith("global_"): assert -4096 <= ov <= 4095, line
                elif ins.op.startswith("ds_"): assert 0 <= ov <= 65535, line
            req = 0; dist = 0
            for p in reversed(self.hist):
                k = need(p, ins)
                if k > dist: req = max(req, k - dist)
                dist += p.states
                if dist >= 12: break
            if req > 0 and ins.cls != "nop":
                nop = Inst(f"s_nop {req-1}")
                self.out.append("    " + nop.text); self.hist.append(nop); self.nops += 1
            self.out.append("    " + line)
            self.hist.append(ins)
            if len(self.hist) > 24: self.hist = self.hist[-24:]
    def text(self): return "\n".join(self.out) + "\n"

def kernel_header(name):
    return f".text\n.globl {name}\n.p2align 8\n.type {name},@function\n{name}:\n"
def kernel_desc(name, vgpr, agpr=0, sgpr=100):
    acc = (vgpr + 3) // 4 * 4
    nfv = acc + agpr if agpr else vgpr
    return f""".section .rodata,"a"
.p2align 6
.amdhsa_kernel {name}
  .amdhsa_next_free_vgpr {nfv}
  .amdhsa_next_free_sgpr {sgpr}
  .amdhsa_accum_offset {acc}
  .amdhsa_group_segment_fixed_size 0
  .amdhsa_kernarg_size 96
  .amdhsa_user_sgpr_count 2
  .amdhsa_user_sgpr_kernarg_segment_ptr 1
  .amdhsa_system_sgpr_workgroup_id_x 1
  .amdhsa_float_denorm_mode_32 3
.end_amdhsa_kernel
"""

class VM:
    def __init__(self, a): self.a = a; self.q = []
    def issue(self, text, tag):
        self.a.e(text); self.q.append(tag)
    def wait(self, tag, extra=""):
        idx = max(i for i, t in enumerate(self.q) if t == tag)
        n = len(self.q) - 1 - idx
        assert n <= 63, n
        self.a.e(f"s_waitcnt vmcnt({n}){extra}")
        self.q = self.q[idx+1:]
    def wait_all(self):
        self.a.e("s_waitcnt vmcnt(0)"); self.q = []

def srd(a, s, base_lo, base_hi, off, size):
    if isinstance(off, str):
        a.e(f"s_add_u32 s{s}, s{base_lo}, {off}"); a.e(f"s_addc_u32 s{s+1}, s{base_hi}, 0")
    elif off:
        a.e(f"s_add_u32 s{s}, s{base_lo}, {off}"); a.e(f"s_addc_u32 s{s+1}, s{base_hi}, 0")
    else:
        a.e(f"s_mov_b32 s{s}, s{base_lo}"); a.e(f"s_mov_b32 s{s+1}, s{base_hi}")
    a.e(f"s_mov_b32 s{s+2}, {size}")
    a.e(f"s_mov_b32 s{s+3}, 0x20000")

def wg_to_rc(a, sR, sC, tmp):
    e = a.e
    e(f"s_and_b32 s{tmp}, s2, 7"); e(f"s_lshr_b32 s{tmp+1}, s2, 3")
    e(f"s_lshr_b32 s{sR}, s{tmp}, 1"); e(f"s_lshl_b32 s{sR}, s{sR}, 2"); e(f"s_and_b32 s{sC}, s{tmp+1}, 3"); e(f"s_add_u32 s{sR}, s{sR}, s{sC}")
    e(f"s_and_b32 s{sC}, s{tmp}, 1"); e(f"s_lshl_b32 s{sC}, s{sC}, 3"); e(f"s_lshr_b32 s{tmp+1}, s{tmp+1}, 2"); e(f"s_add_u32 s{sC}, s{sC}, s{tmp+1}")

LOG2E = 1.4426950408889634

def softmax_pair(a, K, vC, Ep, tmp, P):
    e = a.e
    mx, mn, sp, sm = tmp, tmp + 1, tmp + 2, tmp + 3
    e(f"v_max3_f32 v{mx}, v{K[0]}, v{K[1]}, v{K[2]}")
    e(f"v_min3_f32 v{mn}, v{K[0]}, v{K[1]}, v{K[2]}")
    for u in range(3, 19, 2):
        e(f"v_max3_f32 v{mx}, v{mx}, v{K[u]}, v{K[u+1]}")
        e(f"v_min3_f32 v{mn}, v{mn}, v{K[u]}, v{K[u+1]}")
    e(f"v_max_f32 v{mx}, v{mx}, v{K[19]}")
    e(f"v_min_f32 v{mn}, v{mn}, v{K[19]}")
    e(f"v_mul_f32 v{mx}, v{vC}, v{mx}")
    e(f"v_mul_f32 v{mn}, v{vC}, v{mn}")
    for u in range(20):
        e(f"v_fma_f32 v{Ep+u}, v{K[u]}, v{vC}, -v{mx}")
        e(f"v_fma_f32 v{K[u]}, -v{K[u]}, v{vC}, v{mn}")
    for u in range(20):
        e(f"v_exp_f32 v{Ep+u}, v{Ep+u}")
        e(f"v_exp_f32 v{K[u]}, v{K[u]}")
    e(f"v_add_f32 v{sp}, v{Ep}, v{Ep+1}")
    e(f"v_add_f32 v{sm}, v{K[0]}, v{K[1]}")
    for u in range(2, 20):
        e(f"v_add_f32 v{sp}, v{sp}, v{Ep+u}")
        e(f"v_add_f32 v{sm}, v{sm}, v{K[u]}")
    e(f"v_rcp_f32 v{sp}, v{sp}")
    e(f"v_rcp_f32 v{sm}, v{sm}")
    for u in range(20):
        e(f"v_mul_f32 v{Ep+u}, v{sp}, v{Ep+u}")
        e(f"v_mul_f32 v{K[u]}, v{sm}, v{K[u]}")
    for q in range(10):
        e(f"v_cvt_pk_bf16_f32 v{P+q}, v{Ep+2*q}, v{Ep+2*q+1}")
        e(f"v_cvt_pk_bf16_f32 v{P+10+q}, v{K[2*q]}, v{K[2*q+1]}")

STAMP_OFF = 200 * 1024 * 1024
class Stamps:
    def __init__(self, a, on, kid): self.a = a; self.on = on; self.n = 0; self.kid = kid; self.names = []
    def mark(self, nm):
        if not self.on: return
        r = 70 + 2 * self.n; self.n += 1; self.names.append(nm)
        assert r + 1 <= 99
        self.a.e(f"s_memtime s[{r}:{r+1}]"); self.a.e("s_waitcnt lgkmcnt(0)")
    def flush(self, ws_lo, ws_hi, wave_sgpr):
        if not self.on: return
        e = self.a.e
        e("s_memrealtime s[68:69]"); e("s_waitcnt lgkmcnt(0)")
        e(f"s_cmp_lg_u32 s{wave_sgpr}, 0"); lab = f"Lstamp_{self.kid}"
        e(f"s_cbranch_scc1 {lab}")
        e(f"s_lshl_b32 s66, s2, 7"); e(f"s_add_u32 s66, s66, {STAMP_OFF + self.kid * 65536}")
        e(f"s_add_u32 s64, s{ws_lo}, s66"); e(f"s_addc_u32 s65, s{ws_hi}, 0")
        e("v_mov_b32 v200, 0")
        for i in range(self.n):
            e(f"v_mov_b32 v201, s{70+2*i}")
            e(f"global_store_dword v200, v201, s[64:65] offset:{4*i}")
        e("v_mov_b32 v201, s68"); e(f"global_store_dword v200, v201, s[64:65] offset:120")
        self.a.label(lab)
```

```python
from asm import *
from layout import *

OOB = 0x40000000

def srd(a, s, base_lo, base_hi, off, size):
    if off:
        a.e(f"s_add_u32 s{s}, s{base_lo}, {off}")
        a.e(f"s_addc_u32 s{s+1}, s{base_hi}, 0")
    else:
        a.e(f"s_mov_b32 s{s}, s{base_lo}")
        a.e(f"s_mov_b32 s{s+1}, s{base_hi}")
    a.e(f"s_mov_b32 s{s+2}, {size}")
    a.e(f"s_mov_b32 s{s+3}, 0x20000")

def ident_frag(a, dst, vdiff, tmp):
    for q in range(4):
        a.e(f"v_cmp_eq_u32 vcc, {2*q}, v{vdiff}")
        a.e(f"v_cndmask_b32 v{dst+q}, 0, v{tmp}, vcc")
        a.e(f"v_cmp_eq_u32 vcc, {2*q+1}, v{vdiff}")
        a.e(f"v_cndmask_b32 v{dst+q}, v{dst+q}, v{tmp+1}, vcc")

def gen_k0(name, code_bytes):
    a = Asm()
    e = a.e
    e(f"s_cmp_ge_u32 s2, 256")
    e(f"s_cbranch_scc1 {name}_end")
    e("s_load_dwordx4 s[4:7], s[0:1], 8")
    e("s_load_dwordx2 s[8:9], s[0:1], 24")
    e("s_load_dwordx4 s[12:15], s[0:1], 56")
    e("s_load_dwordx2 s[16:17], s[0:1], 88")
    e("v_and_b32 v1, 63, v0")
    e("v_lshrrev_b32 v2, 6, v0")
    e("v_and_b32 v3, 15, v1")
    e("v_lshrrev_b32 v4, 4, v1")
    e("v_readfirstlane_b32 s18, v2")
    e("s_getpc_b64 s[20:21]")
    a.label(f"{name}_pc")
    e(f"s_sub_u32 s20, s20, {name}_pc-prog_start")
    e("s_subb_u32 s21, s21, 0")
    e("v_lshlrev_b32 v5, 7, v1")
    e("s_waitcnt lgkmcnt(0)")
    e("s_cmp_lg_u32 s18, 0")
    e(f"s_cbranch_scc1 {name}_nopf")
    nld = (code_bytes + 8191) // 8192
    for q in range(nld):
        e(f"v_min_u32 v6, prog_end-prog_start-4, v5")
        e(f"global_load_dword v{240+q}, v6, s[20:21]")
        if q + 1 < nld:
            e(f"v_add_u32 v5, 8192, v5")
    a.label(f"{name}_nopf")
    srd(a, 24, 16, 17, 0, WS_USED)
    e("s_lshl_b32 s19, s2, 10")
    e(f"s_add_u32 s19, s19, {ZERO_OFF}")
    e("v_lshlrev_b32 v6, 2, v0")
    e("v_mov_b32 v7, 0")
    e("buffer_store_dword v7, v6, s[24:27], s19 offen")
    e("s_load_dwordx2 s[44:45], s[0:1], 0")
    e("s_lshr_b32 s28, s2, 1"); e("s_and_b32 s29, s2, 1")
    e("s_lshr_b32 s30, s28, 3"); e("s_bfe_u32 s31, s28, 0x20001"); e("s_and_b32 s46, s28, 1")
    e("s_and_b32 s47, s30, 1"); e("s_lshl_b32 s47, s47, 10"); e("s_lshl_b32 s46, s46, 5"); e("s_add_u32 s47, s47, s46")
    e("s_lshr_b32 s30, s30, 1"); e("s_lshl_b32 s30, s30, 2"); e("s_add_u32 s47, s47, s30"); e("s_add_u32 s47, s47, s31")
    e("s_mul_i32 s47, s47, 1280"); e("s_mul_i32 s46, s29, 640"); e("s_add_u32 s47, s47, s46")
    e(f"s_mul_i32 s46, s28, {AF_WT}"); e("s_mul_i32 s30, s29, 10240"); e("s_add_u32 s46, s46, s30"); e(f"s_add_u32 s46, s46, {XIN_OFF[0]}")
    e("s_waitcnt lgkmcnt(0)")
    e(f"s_mov_b32 s48, s44"); e("s_mov_b32 s49, s45"); e(f"s_mov_b32 s50, {ACT}"); e("s_mov_b32 s51, 0x20000")
    e(f"v_mov_b32 v14, {OOB}")
    for r in range(3):
        e(f"v_add_u32 v8, {256*r}, v0"); e("v_mul_u32_u24 v9, 52429, v8"); e("v_lshrrev_b32 v9, 21, v9")
        e("v_mul_u32_u24 v10, 40, v9"); e("v_sub_u32 v10, v8, v10")
        e("v_mul_u32_u24 v11, 81920, v9"); e(f"v_lshl_add_u32 v11, v10, 4, v11")
        e("v_lshlrev_b32 v12, 4, v9"); e(f"v_lshl_add_u32 v{216+r}, v10, 8, v12")
        if r == 2:
            e("v_cmp_gt_u32 vcc, 640, v8"); e("v_cndmask_b32 v11, v14, v11, vcc")
        e(f"buffer_load_dwordx4 v[{220+4*r}:{223+4*r}], v11, s[48:51], s47 offen")
    e("s_waitcnt vmcnt(0)")
    XL = 0
    for r in range(3):
        if r == 2:
            e("v_cmp_gt_u32 vcc, 128, v0"); e("s_and_saveexec_b64 s[52:53], vcc")
        e(f"v_add_u32 v8, {XL}, v{216+r}")
        e(f"ds_write_b128 v8, v[{220+4*r}:{223+4*r}]")
        if r == 2: e("s_mov_b64 exec, s[52:53]")
    e("s_waitcnt lgkmcnt(0)"); e("s_barrier")
    e("v_lshlrev_b32 v8, 4, v0"); e(f"v_add_u32 v9, {XL}, v8")
    for r in range(3): e(f"ds_read_b128 v[{220+4*r}:{223+4*r}], v9 offset:{4096*r}")
    e("v_cmp_gt_u32 vcc, 128, v0"); e("v_cndmask_b32 v9, v14, v8, vcc")
    e("s_waitcnt lgkmcnt(0)"); e("s_barrier")
    e("buffer_store_dwordx4 v[220:223], v8, s[24:27], s46 offen")
    e("s_add_u32 s46, s46, 4096"); e("buffer_store_dwordx4 v[224:227], v8, s[24:27], s46 offen")
    e("s_add_u32 s46, s46, 4096"); e("buffer_store_dwordx4 v[228:231], v9, s[24:27], s46 offen")
    e("s_cmp_ge_u32 s2, 96")
    e(f"s_cbranch_scc1 {name}_wf")

    e("s_lshr_b32 s28, s2, 5")
    e("s_and_b32 s29, s2, 31")
    srd(a, 32, 4, 5, 0, 640 * 3840)
    srd(a, 36, 6, 7, 0, 32 * 400 * 2)
    e("s_mul_i32 s30, s18, 160")
    e("v_add_u32 v8, s30, v3")
    e("s_movk_i32 s31, 3840")
    e("v_mul_lo_u32 v8, v8, s31")
    e("s_mul_i32 s30, s28, 640")
    e("s_mul_i32 s31, s29, 20")
    e("s_add_u32 s30, s30, s31")
    e("s_lshl_b32 s30, s30, 1")
    e("v_lshlrev_b32 v9, 4, v4")
    e("v_add3_u32 v8, v8, v9, s30")
    e("s_mov_b32 s31, 0")
    for m in range(10):
        e(f"buffer_load_dwordx4 v[{16+4*m}:{19+4*m}], v8, s[32:35], s31 offen")
        if m < 9: e("s_add_u32 s31, s31, 61440")
    e("s_cmp_eq_u32 s28, 2")
    e(f"s_cbranch_scc1 {name}_bid")
    e("s_mul_i32 s30, s29, 800")
    e("v_mul_u32_u24 v9, 320, v4")
    e("v_lshlrev_b32 v10, 1, v3")
    e("v_add3_u32 v9, v9, v10, s30")
    e(f"v_mov_b32 v14, {OOB}")
    e("v_cmp_ge_u32 vcc, 2, v4"); e("v_cndmask_b32 v10, v14, v9, vcc")
    e("v_cmp_ge_u32 vcc, 1, v4"); e("v_cndmask_b32 v11, v14, v9, vcc")
    e("v_cmp_gt_u32 vcc, 4, v3"); e("v_cndmask_b32 v12, v14, v10, vcc"); e("v_cndmask_b32 v13, v14, v11, vcc")
    for nt in range(2):
        for jj in range(8):
            vo = 10 + 2 * nt + (jj >> 2)
            e(f"buffer_load_ushort v{64 + 8*nt + jj}, v{vo}, s[36:39], 0 offen offset:{jj*40 + nt*32}")
    e("s_waitcnt vmcnt(0)")
    for nt in range(2):
        for q in range(4):
            e(f"v_lshl_or_b32 v{56 + 4*nt + q}, v{64 + 8*nt + 2*q + 1}, 16, v{64 + 8*nt + 2*q}")
    e(f"s_branch {name}_bdone")
    a.label(f"{name}_bid")
    e("v_mov_b32 v12, 0x3f80"); e("v_mov_b32 v13, 0x3f800000")
    e("v_lshlrev_b32 v9, 3, v4")
    e("v_sub_u32 v10, v3, v9")
    e("v_add_u32 v11, 16, v10")
    ident_frag(a, 56, 10, 12)
    ident_frag(a, 60, 11, 12)
    e("s_waitcnt vmcnt(0)")
    a.label(f"{name}_bdone")
    for m in range(10):
        for nt in range(2):
            d = 80 + 8 * m + 4 * nt
            e(f"v_mfma_f32_16x16x32_bf16 v[{d}:{d+3}], v[{16+4*m}:{19+4*m}], v[{56+4*nt}:{59+4*nt}], 0")
    for nt in range(2):
        e(f"v_add_f32 v{64+nt}, v{80+4*nt}, v{81+4*nt}")
        for m in range(10):
            for b in range(4):
                if m == 0 and b < 2: continue
                e(f"v_add_f32 v{64+nt}, v{64+nt}, v{80+8*m+4*nt+b}")
    for nt in range(2):
        r = 64 + nt
        e(f"v_mov_b32 v66, v{r}")
        e(f"v_permlane32_swap_b32 v{r}, v66")
        e(f"v_add_f32 v{r}, v{r}, v66")
        e(f"v_mov_b32 v66, v{r}")
        e(f"v_permlane16_swap_b32 v{r}, v66")
        e(f"v_add_f32 v{r}, v{r}, v66")
    e("v_lshlrev_b32 v67, 4, v3")
    e("s_lshl_b32 s30, s18, 2")
    e("v_add_u32 v68, s30, v67")
    e("ds_write_b32 v68, v64")
    e("ds_write_b32 v68, v65 offset:256")
    e("s_waitcnt lgkmcnt(0)")
    e("s_barrier")
    e("ds_read_b128 v[68:71], v67")
    e("ds_read_b128 v[72:75], v67 offset:256")
    e("s_waitcnt lgkmcnt(0)")
    for nt in range(2):
        b = 68 + 4 * nt
        e(f"v_add_f32 v{b}, v{b}, v{b+1}"); e(f"v_add_f32 v{b+2}, v{b+2}, v{b+3}"); e(f"v_add_f32 v{b}, v{b}, v{b+2}")
        e(f"v_mul_f32 v{64+nt}, {1.0/640.0!r}, v{b}")
    e("s_and_b32 s30, s29, 1")
    e("s_cmp_eq_u32 s28, 2"); e("s_cselect_b32 s31, 2, 0"); e("s_add_u32 s30, s30, s31")
    e("s_lshl_b32 s30, s30, 6")
    e("v_lshrrev_b32 v8, 1, v4"); e("v_lshlrev_b32 v8, 8, v8")
    e("v_and_b32 v9, 1, v4"); e("v_lshlrev_b32 v9, 3, v9")
    e("v_add3_u32 v8, v8, v9, s30")
    for nt in range(2):
        e(f"v_add_u32 v9, {16*nt}, v3")
        e("v_lshrrev_b32 v10, 2, v9"); e("v_lshlrev_b32 v10, 10, v10")
        e("v_and_b32 v11, 3, v9"); e("v_lshlrev_b32 v11, 4, v11")
        e(f"v_add3_u32 v{66+nt}, v8, v10, v11")
    e(f"v_mov_b32 v14, {OOB}")
    e("v_cmp_gt_u32 vcc, 4, v3"); e("v_cndmask_b32 v67, v14, v67, vcc")
    e("s_lshr_b32 s30, s29, 1"); e(f"s_mul_i32 s30, s30, {W1_C}")
    e("s_cmp_eq_u32 s28, 0"); e("s_cselect_b32 s31, 102400, 0"); e("s_add_u32 s30, s30, s31")
    e("s_mul_i32 s31, s18, 25600"); e("s_add_u32 s30, s30, s31")
    for m in range(10):
        for nt in range(2):
            d = 80 + 8 * m + 4 * nt
            for b in range(4): e(f"v_sub_f32 v{d+b}, v{d+b}, v{64+nt}")
            e(f"v_cvt_pk_bf16_f32 v{d}, v{d}, v{d+1}")
            e(f"v_cvt_pk_bf16_f32 v{d+1}, v{d+2}, v{d+3}")
            e(f"buffer_store_dwordx2 v[{d}:{d+1}], v{66+nt}, s[24:27], s30 offen offset:{(m&1)*512}")
        if m & 1: e("s_add_u32 s30, s30, 5120")
    e("s_cmp_ge_u32 s2, 64")
    e(f"s_cbranch_scc1 {name}_tables")
    e("s_cmp_lg_u32 s28, 0")
    e(f"s_cbranch_scc1 {name}_end")
    e("s_and_b32 s30, s29, 1")
    e("s_cmp_eq_u32 s30, 1")
    e("s_cselect_b32 s40, s14, s12"); e("s_cselect_b32 s41, s15, s13")
    e(f"s_mov_b32 s42, {640*1280}"); e("s_mov_b32 s43, 0x20000")
    e("s_lshr_b32 s31, s29, 1")
    e("s_mul_i32 s44, s31, 20"); e("s_add_u32 s44, s44, 1"); e("s_mul_i32 s44, s44, 1280")
    e(f"s_mul_i32 s45, s31, {W1_C}"); e("s_add_u32 s45, s45, 102400")
    e("s_add_u32 s30, s30, 2"); e("s_lshl_b32 s30, s30, 6"); e("s_add_u32 s45, s45, s30")
    e(f"v_mov_b32 v14, {OOB}")
    for q in range(7):
        e(f"v_add_u32 v8, {256*q}, v0")
        e("v_mul_u32_u24 v9, 52429, v8"); e("v_lshrrev_b32 v9, 22, v9")
        e("v_mul_u32_u24 v10, 80, v9"); e("v_sub_u32 v10, v8, v10")
        e("v_mul_u32_u24 v11, 1280, v9"); e(f"v_lshl_add_u32 v{20+q}, v10, 4, v11")
        e("v_lshrrev_b32 v11, 2, v10"); e("v_mul_u32_u24 v11, 5, v11")
        e("v_lshrrev_b32 v12, 2, v9"); e("v_add_u32 v11, v11, v12"); e("v_lshlrev_b32 v11, 10, v11")
        e("v_and_b32 v12, 3, v9"); e("v_and_b32 v13, 3, v10"); e("v_lshl_add_u32 v12, v13, 4, v12")
        e(f"v_lshl_add_u32 v{30+q}, v12, 4, v11")
        if q == 6:
            e("v_cmp_gt_u32 vcc, 1600, v8")
            e(f"v_cndmask_b32 v{20+q}, v14, v{20+q}, vcc"); e(f"v_cndmask_b32 v{30+q}, v14, v{30+q}, vcc")
        e(f"buffer_load_dwordx4 v[{40+4*q}:{43+4*q}], v{20+q}, s[40:43], s44 offen")
    for q in range(7):
        e(f"s_waitcnt vmcnt({6-q + q})" if False else f"s_waitcnt vmcnt({6 - q + q})" if False else f"s_waitcnt vmcnt(6)")
        e(f"buffer_store_dwordx4 v[{40+4*q}:{43+4*q}], v{30+q}, s[24:27], s45 offen")
    e(f"s_branch {name}_end")

    a.label(f"{name}_wf")
    e("s_sub_u32 s28, s2, 96")
    e("s_and_b32 s29, s28, 15")
    e("s_lshr_b32 s28, s28, 4")
    srd(a, 32, 8, 9, 0, 640 * 1280)
    srd(a, 36, 12, 13, 0, 640 * 1280)
    srd(a, 40, 14, 15, 0, 640 * 1280)
    for n in range(5):
        e(f"v_add_u32 v8, {64*n}, v1"); e("v_mul_u32_u24 v9, 52429, v8"); e("v_lshrrev_b32 v9, 22, v9")
        e("v_mul_u32_u24 v20, 80, v9"); e("v_sub_u32 v20, v8, v20")
        e("v_mul_u32_u24 v21, 1280, v9")
        e("v_xor_b32 v22, v20, v9"); e(f"v_lshl_add_u32 v{10+n}, v22, 4, v21")
        e("v_add_u32 v9, 4, v9"); e("v_xor_b32 v22, v20, v9"); e(f"v_lshl_add_u32 v{15+n}, v22, 4, v21")
    e("s_and_b32 s44, s18, 1"); e("s_cmp_eq_u32 s44, 1"); e("s_cselect_b64 vcc, -1, 0")
    for n in range(5): e(f"v_cndmask_b32 v{24+n}, v{10+n}, v{15+n}, vcc")
    for gi in range(4):
        e(f"s_lshl_b32 s30, s28, 6"); e("s_lshl_b32 s31, s18, 2"); e("s_add_u32 s30, s30, s31"); e(f"s_add_u32 s30, s30, {16*gi}")
        e("s_mul_i32 s31, s30, 52429"); e("s_lshr_b32 s31, s31, 21"); e("s_mul_i32 s31, s31, 40"); e("s_sub_u32 s31, s30, s31")
        e("s_cmp_eq_u32 s31, 20"); e("s_cselect_b32 s44, 16, 0"); e("s_add_u32 s30, s30, s44")
        e("s_cmp_ge_u32 s31, 24"); e("s_cselect_b32 s44, 4, 0"); e("s_sub_u32 s30, s30, s44")
        e("s_mul_i32 s30, s30, 1280")
        e(f"s_add_u32 s31, s18, {4*gi}"); e("s_mul_i32 s31, s31, 5120")
        for n in range(5):
            e(f"s_add_u32 m0, s31, {1024*n}")
            e(f"buffer_load_dwordx4 v{24+n}, s[32:35], s30 offen lds")
        if gi == 0: pass
    e("s_mul_i32 s45, s29, 20"); e("s_add_u32 s45, s45, 1")
    e("s_lshl_b32 s31, s18, 2"); e("s_add_u32 s30, s45, s31"); e("s_mul_i32 s30, s30, 1280")
    e("s_mul_i32 s31, s18, 5120"); e("s_add_u32 s31, s31, 81920")
    for n in range(5):
        e(f"s_add_u32 m0, s31, {1024*n}"); e(f"buffer_load_dwordx4 v{24+n}, s[36:39], s30 offen lds")
    e("s_add_u32 s31, s31, 20480")
    for n in range(5):
        e(f"s_add_u32 m0, s31, {1024*n}"); e(f"buffer_load_dwordx4 v{24+n}, s[40:43], s30 offen lds")
    e("s_cmp_ge_u32 s18, 2"); e(f"s_cbranch_scc1 {name}_wfb")
    e("s_add_u32 s30, s45, 16"); e("s_mul_i32 s30, s30, 1280"); e("s_add_u32 s31, s31, 20480")
    e("s_cmp_eq_u32 s18, 0"); e("s_cselect_b32 s48, s36, s40"); e("s_cselect_b32 s49, s37, s41"); e(f"s_mov_b32 s50, {640*1280}"); e("s_mov_b32 s51, 0x20000")
    for n in range(5):
        e(f"s_add_u32 m0, s31, {1024*n}"); e(f"buffer_load_dwordx4 v{24+n}, s[48:51], s30 offen lds")
    a.label(f"{name}_wfb")
    e("v_and_b32 v8, 7, v3")
    e("v_xor_b32 v9, v4, v8"); e("v_lshlrev_b32 v9, 4, v9")
    e("v_add_u32 v20, 4, v4"); e("v_xor_b32 v20, v20, v8"); e("v_lshlrev_b32 v20, 4, v20")
    e("v_mul_u32_u24 v21, 1280, v3")
    e("s_mul_i32 s30, s18, 20480")
    e("v_add3_u32 v10, v21, v9, s30"); e("v_add3_u32 v11, v21, v20, s30")
    e("s_mov_b32 s30, 81920"); e("v_add3_u32 v12, v21, v9, s30"); e("v_add3_u32 v13, v21, v20, s30")
    e("s_mul_i32 s31, s29, 5"); e("v_add_u32 v14, s31, v4"); e("v_xor_b32 v15, v14, v8"); e("v_lshlrev_b32 v15, 4, v15")
    e("v_add_u32 v14, 4, v14"); e("v_xor_b32 v14, v14, v8"); e("v_lshlrev_b32 v14, 4, v14")
    e("s_mul_i32 s30, s18, 20480"); e("v_add3_u32 v15, v21, v15, s30"); e("v_add3_u32 v14, v21, v14, s30")
    e("v_mov_b32 v22, 0x3f80"); e("v_mov_b32 v23, 0x3f800000")
    e("v_lshlrev_b32 v9, 3, v4"); e("v_sub_u32 v16, v3, v9"); e("v_add_u32 v17, 16, v16")
    ident_frag(a, 112, 16, 22)
    ident_frag(a, 116, 17, 22)
    for r in range(120, 132): e(f"v_mov_b32 v{r}, 0")
    e("s_waitcnt vmcnt(0)")
    e("s_barrier")
    e("ds_read_b128 v[104:107], v15"); e("ds_read_b128 v[108:111], v14")
    for s in range(20):
        p = s & 1; b0 = 144 + 16*p
        e(f"ds_read_b128 v[{b0}:{b0+3}], v{10+p} offset:{(s>>1)*128}")
        for nt in range(3):
            e(f"ds_read_b128 v[{b0+4+4*nt}:{b0+7+4*nt}], v{12+p} offset:{nt*20480 + (s>>1)*128}")
        e("s_waitcnt lgkmcnt(0)")
        for nt in range(3):
            e(f"v_mfma_f32_16x16x32_bf16 v[{120+4*nt}:{123+4*nt}], v[{b0}:{b0+3}], v[{b0+4+4*nt}:{b0+7+4*nt}], v[{120+4*nt}:{123+4*nt}]")
    e("v_mfma_f32_16x16x32_bf16 v[132:135], v[104:107], v[112:115], 0")
    e("v_mfma_f32_16x16x32_bf16 v[136:139], v[104:107], v[116:119], 0")
    e("v_mfma_f32_16x16x32_bf16 v[140:143], v[108:111], v[112:115], 0")
    e("s_lshl_b32 s28, s28, 2"); e("s_add_u32 s28, s28, s18")
    e(f"s_mul_i32 s30, s29, {W2_C}"); e("s_lshr_b32 s31, s28, 1"); e("s_mul_i32 s31, s31, 5120"); e("s_add_u32 s30, s30, s31")
    e("s_and_b32 s31, s28, 1"); e("s_lshl_b32 s31, s31, 9"); e("s_add_u32 s30, s30, s31"); e(f"s_add_u32 s30, s30, {W2_OFF}")
    e("v_lshrrev_b32 v8, 1, v4"); e("v_lshlrev_b32 v8, 8, v8"); e("v_and_b32 v9, 1, v4"); e("v_lshl_add_u32 v8, v9, 3, v8")
    e(f"v_mov_b32 v14, {OOB}")
    def xf_addr(dst, vu, ri_const=None, vri=None):
        e(f"v_lshrrev_b32 v10, 2, v{vu}"); e("v_lshlrev_b32 v10, 10, v10")
        e(f"v_and_b32 v11, 3, v{vu}")
        if ri_const is not None: e(f"v_add_u32 v11, {4*(2+ri_const)}, v11")
        else: e(f"v_lshl_add_u32 v11, v{vri}, 2, v11"); e("v_add_u32 v11, 8, v11")
        e("v_lshlrev_b32 v11, 4, v11")
        e(f"v_add3_u32 v{dst}, v8, v10, v11")
    xf_addr(16, 3, 0); xf_addr(17, 3, 1)
    e("v_and_b32 v12, 3, v3"); e("v_add_u32 v12, 16, v12"); e("v_lshrrev_b32 v13, 2, v3")
    xf_addr(18, 12, None, 13)
    e("v_cmp_gt_u32 vcc, 8, v3"); e("v_cndmask_b32 v18, v14, v18, vcc")
    for nt in range(3):
        e(f"v_add_u32 v12, {16*nt}, v3")
        e("v_cmp_le_u32 vcc, 20, v12"); e("v_cndmask_b32 v13, 0, 1, vcc")
        e("v_lshlrev_b32 v15, 2, v13"); e("v_sub_u32 v15, v12, v15")
        e("v_cmp_le_u32 vcc, 24, v12"); e("v_subrev_u32 v12, 24, v12"); e("v_cndmask_b32 v12, v15, v12, vcc")
        e("v_lshrrev_b32 v10, 2, v12"); e("v_lshlrev_b32 v10, 10, v10")
        e("v_and_b32 v11, 3, v12"); e("v_lshl_add_u32 v11, v13, 2, v11"); e("v_lshlrev_b32 v11, 4, v11")
        e(f"v_add3_u32 v{19+nt}, v8, v10, v11")
    e("v_cmp_gt_u32 vcc, 8, v3"); e("v_cndmask_b32 v21, v14, v21, vcc")
    for t in range(6):
        d = 120 + 4 * t
        e(f"v_cvt_pk_bf16_f32 v{d}, v{d}, v{d+1}")
        e(f"v_cvt_pk_bf16_f32 v{d+1}, v{d+2}, v{d+3}")
        e(f"buffer_store_dwordx2 v[{d}:{d+1}], v{16+t}, s[24:27], s30 offen")
    e(f"s_branch {name}_end")

    a.label(f"{name}_tables")
    e("s_sub_u32 s28, s2, 64")
    e("s_cmp_gt_u32 s28, 4")
    e(f"s_cbranch_scc1 {name}_end")
    e("v_lshlrev_b32 v9, 4, v1")
    e("s_cmp_eq_u32 s28, 4")
    e(f"s_cbranch_scc1 {name}_tab2")
    e("s_lshl_b32 s29, s28, 4"); e("v_add_u32 v8, s29, v3")
    e("s_cmp_ge_u32 s18, 2")
    e(f"s_cbranch_scc1 {name}_tabtw")
    e("s_lshl_b32 s29, s18, 5"); e("v_lshlrev_b32 v10, 3, v4"); e("v_add_u32 v10, s29, v10")
    for jj in range(8):
        e(f"v_add_u32 v11, {jj}, v10"); e("v_mul_u32_u24 v11, v11, v8"); e("v_and_b32 v11, 63, v11")
        e("v_cvt_f32_u32 v11, v11"); e(f"v_mul_f32 v11, {1.0/64!r}, v11")
        e(f"v_cos_f32 v{16+jj}, v11"); e(f"v_sin_f32 v{24+jj}, v11")
    for q in range(4):
        e(f"v_cvt_pk_bf16_f32 v{32+q}, v{16+2*q}, v{17+2*q}")
        e(f"v_cvt_pk_bf16_f32 v{40+q}, v{24+2*q}, v{25+2*q}")
        e(f"v_xor_b32 v{36+q}, 0x80008000, v{40+q}")
    e("s_mul_i32 s29, s28, 6144"); e("s_lshl_b32 s30, s18, 10"); e("s_add_u32 s29, s29, s30"); e(f"s_add_u32 s29, s29, {TAB_OFF + TAB_W64}")
    for var in range(3):
        if var == 2: e("s_add_u32 s29, s29, 4096")
        e(f"buffer_store_dwordx4 v[{32+4*var}:{35+4*var}], v9, s[24:27], s29 offen offset:{2048*(var&1)}")
    e(f"s_branch {name}_end")
    a.label(f"{name}_tabtw")
    e("s_cmp_lg_u32 s18, 2")
    e(f"s_cbranch_scc1 {name}_end")
    for T in range(2):
        for b in range(4):
            e(f"v_lshlrev_b32 v11, 2, v4"); e(f"v_add_u32 v11, {16*T+b}, v11"); e("v_mul_u32_u24 v11, v11, v8")
            e("v_cvt_f32_u32 v11, v11"); e(f"v_mul_f32 v11, {1.0/2048!r}, v11")
            e(f"v_cos_f32 v{16+4*T+b}, v11"); e(f"v_sin_f32 v{24+4*T+b}, v11")
    e("s_lshl_b32 s29, s28, 12"); e(f"s_add_u32 s29, s29, {TAB_OFF + TAB_TW}")
    for q in range(4):
        e(f"buffer_store_dwordx4 v[{16+4*q}:{19+4*q}], v9, s[24:27], s29 offen offset:{1024*q}")
    e(f"s_branch {name}_end")
    a.label(f"{name}_tab2")
    e("s_cmp_ge_u32 s18, 2")
    e(f"s_cbranch_scc1 {name}_end")
    e("s_lshl_b32 s29, s18, 4"); e("v_add_u32 v8, s29, v3")
    for jj in range(8):
        e(f"v_lshlrev_b32 v11, 2, v4"); e(f"v_add_u32 v11, {16*(jj>>2) + (jj&3)}, v11"); e("v_mul_u32_u24 v11, v11, v8"); e("v_and_b32 v11, 31, v11")
        e("v_cvt_f32_u32 v11, v11"); e(f"v_mul_f32 v11, {1.0/32!r}, v11")
        e(f"v_cos_f32 v{16+jj}, v11"); e(f"v_sin_f32 v{24+jj}, v11")
    for q in range(4):
        e(f"v_cvt_pk_bf16_f32 v{32+q}, v{16+2*q}, v{17+2*q}")
        e(f"v_cvt_pk_bf16_f32 v{36+q}, v{24+2*q}, v{25+2*q}")
    e("s_lshl_b32 s29, s18, 11"); e(f"s_add_u32 s29, s29, {TAB_OFF + TAB_S2}")
    e("buffer_store_dwordx4 v[32:35], v9, s[24:27], s29 offen")
    e("buffer_store_dwordx4 v[36:39], v9, s[24:27], s29 offen offset:1024")
    a.label(f"{name}_end")
    e("s_endpgm")
    return kernel_header(name) + a.text() + kernel_desc(name, 256, 0, 64)
```

```python
from asm import *
from layout import *
OOB = 0x40000000
TB = 40960
ROWP = 272

def gemm_pass(a, vm, nsteps, lds_base_of, acc, abuf, xreg, first_zero, per_step_extra=None, pre_step=None):
    e = a.e
    def reads(s):
        for T in range(5):
            vb, imm = lds_base_of(s, T)
            r = abuf[s & 1] + 4 * T
            e(f"ds_read_b128 v[{r}:{r+3}], v{vb} offset:{imm}")
    reads(0)
    for s in range(nsteps):
        if pre_step: pre_step(s)
        if s + 1 < nsteps:
            reads(s + 1); e("s_waitcnt lgkmcnt(5)")
        else:
            e("s_waitcnt lgkmcnt(0)")
        for T in range(5):
            r = abuf[s & 1] + 4 * T
            for tt in range(2):
                d = acc(tt, T)
                c = "0" if (s == 0 and first_zero) else f"v[{d}:{d+3}]"
                e(f"v_mfma_f32_16x16x32_bf16 v[{d}:{d+3}], v[{r}:{r+3}], {xreg(tt, s)}, {c}")
        if per_step_extra: per_step_extra(s)

def gen_k1(name, layer, stamps=False):
    a = Asm(); e = a.e; vm = VM(a); st = Stamps(a, stamps, 1 + 4*layer)
    e("s_cmp_ge_u32 s2, 256")
    e(f"s_cbranch_scc1 {name}_end")
    st.mark("start")
    e("s_load_dwordx2 s[30:31], s[0:1], 88")
    wg_to_rc(a, 16, 17, 19)
    e("v_and_b32 v1, 63, v0"); e("v_lshrrev_b32 v2, 6, v0")
    e("v_readfirstlane_b32 s18, v2")
    e("v_and_b32 v2, 15, v1"); e("v_lshrrev_b32 v3, 4, v1")
    e("v_lshlrev_b32 v5, 4, v1")
    e("v_add_u32 v6, 61440, v5"); e("v_add_u32 v7, 102400, v5")
    e("s_lshl_b32 s19, s16, 2"); e("s_add_u32 s19, s19, s18"); e(f"s_mul_i32 s19, s19, {2*AF_WT}"); e(f"s_add_u32 s19, s19, {XIN_OFF[layer]}")
    e("s_waitcnt lgkmcnt(0)")
    e("s_add_u32 s4, s30, s19"); e("s_addc_u32 s5, s31, 0"); e(f"s_mov_b32 s6, {2*AF_WT}"); e("s_mov_b32 s7, 0x20000")
    e(f"s_mul_i32 s19, s17, {W1_C}")
    e("s_add_u32 s8, s30, s19"); e("s_addc_u32 s9, s31, 0"); e(f"s_mov_b32 s10, {W1_C}"); e("s_mov_b32 s11, 0x20000")
    srd(a, 12, 30, 31, 0, WS_USED)
    e("s_lshl_b32 s21, s18, 12")
    e("s_lshl_b32 s22, s18, 10"); e("s_add_u32 s22, s22, 16384")
    def dma_chunk(goff, loff, tag):
        e(f"s_add_u32 s23, s21, {goff}")
        if loff == goff: e("s_mov_b32 m0, s23")
        else: e(f"s_add_u32 m0, s21, {loff}")
        for q in range(4):
            vm.issue(f"buffer_load_dwordx4 v5, s[8:11], s23 offen offset:{1024*q} lds", tag)
        e(f"s_add_u32 s23, s22, {goff}")
        if loff == goff: e("s_mov_b32 m0, s23")
        else: e(f"s_add_u32 m0, s22, {loff}")
        vm.issue(f"buffer_load_dwordx4 v5, s[8:11], s23 offen lds", tag)
    X = lambda tt, s: f"a[{(2*s+tt)*4}:{(2*s+tt)*4+3}]"
    def x_chunk(q, tag):
        for tt in range(2):
            e(f"s_mov_b32 s20, {tt*AF_WT + q*4096}")
            for s in range(4*q, 4*q+4):
                vm.issue(f"buffer_load_dwordx4 {X(tt,s)}, v5, s[4:7], s20 offen offset:{1024*(s-4*q)}", tag)
    for q in range(4):
        dma_chunk(q*20480, q*20480, f"c{q}"); x_chunk(q, f"c{q}")
    for r in range(112, 116): e(f"v_mov_b32 v{r}, 0x3f803f80")
    e("v_and_b32 v8, 3, v2")
    e("v_cmp_eq_u32 s[24:25], 1, v8"); e("v_cmp_eq_u32 s[26:27], 2, v8"); e("v_cmp_eq_u32 s[28:29], 3, v8")
    e("v_lshrrev_b32 v9, 2, v2"); e("v_lshl_add_u32 v9, v9, 4, v2"); e("v_lshlrev_b32 v9, 2, v9")
    st.mark("issued")
    vm.wait("c0"); e("s_barrier")
    st.mark("c0")
    dma_chunk(4*20480, 4*20480, "c4"); x_chunk(4, "c4")
    acc = lambda tt, T: 56 + 20*tt + 4*T
    def lds0(s, T):
        off = (s*5+T)*1024
        return (5, off) if s < 12 else (6, off - 61440)
    def pre0(s):
        if s % 4 == 3 and s < 19:
            q = (s+1)//4
            vm.wait(f"c{q}"); e("s_barrier")
            if q <= 3:
                dma_chunk(102400 + (q-1)*20480, 102400 + (q-1)*20480, f"p{q-1}")
    def extra0(s):
        for tt in range(2):
            c0 = "0" if s == 0 else f"v[{96+4*tt}:{99+4*tt}]"
            c1 = "0" if s == 0 else f"v[{104+4*tt}:{107+4*tt}]"
            e(f"v_mfma_f32_16x16x32_bf16 v[{96+4*tt}:{99+4*tt}], v[112:115], {X(tt,s)}, {c0}")
            e(f"v_mfma_f32_16x16x32_bf16 v[{104+4*tt}:{107+4*tt}], {X(tt,s)}, {X(tt,s)}, {c1}")
    gemm_pass(a, vm, 20, lds0, acc, (16, 36), X, True, extra0, pre0)
    st.mark("pass0")
    e("s_barrier")
    dma_chunk(102400 + 3*20480, 0, "p3"); dma_chunk(102400 + 4*20480, 20480, "p4")
    e("v_permlane32_swap_b32 v96, v100")
    for tt in range(2):
        g0 = 104 + 4*tt
        e(f"v_cndmask_b32 v{g0}, v{g0}, v{g0+1}, s[24:25]")
        e(f"v_cndmask_b32 v{g0}, v{g0}, v{g0+2}, s[26:27]")
        e(f"v_cndmask_b32 v{g0}, v{g0}, v{g0+3}, s[28:29]")
    e("ds_bpermute_b32 v105, v9, v104"); e("ds_bpermute_b32 v109, v9, v108")
    for u in range(20): e(f"v_permlane32_swap_b32 v{56+u}, v{76+u}")
    e("s_waitcnt lgkmcnt(0)")
    e("v_permlane32_swap_b32 v105, v109")
    e(f"v_mul_f32 v96, {1/640!r}, v96")
    e(f"v_mul_f32 v105, {1/640!r}, v105")
    e("v_fma_f32 v105, -v96, v96, v105")
    e("v_max_f32 v105, 0, v105")
    e("v_add_f32 v105, 0x3727c5ac, v105")
    e("v_rsq_f32 v10, v105")
    e(f"v_mul_f32 v11, {LOG2E!r}, v10")
    for u in range(20): e(f"v_mul_f32 v{76+u}, v10, v{76+u}")
    for q in range(10): e(f"v_cvt_pk_bf16_f32 v{116+q}, v{76+2*q}, v{77+2*q}")
    e("v_mov_b32 v126, 0x3f80"); e("v_mov_b32 v127, 0")
    e("v_lshrrev_b32 v12, 5, v1"); e("v_lshl_add_u32 v12, v12, 4, v2"); e("s_lshl_b32 s19, s18, 5"); e("v_add_u32 v12, s19, v12")
    e(f"v_mul_u32_u24 v12, {ROWP}, v12"); e(f"v_add_u32 v12, {TB}, v12")
    e("v_and_b32 v13, 1, v3")
    e("v_mul_u32_u24 v14, 48, v13"); e("v_add_u32 v14, v12, v14")
    e("v_mul_u32_u24 v13, 80, v13"); e("v_add_u32 v13, v12, v13")
    for q in range(3): e(f"ds_write_b128 v14, v[{116+4*q}:{119+4*q}] offset:{160+16*q}")
    softmax_pair(a, list(range(56, 76)), 11, 128, 148, 156)
    for q in range(5): e(f"ds_write_b128 v13, v[{156+4*q}:{159+4*q}] offset:{16*q}")
    st.mark("softmax1")
    e("v_lshrrev_b32 v12, 2, v2"); e("v_lshl_add_u32 v12, v3, 3, v12")
    e(f"v_mul_u32_u24 v12, {ROWP}, v12"); e("v_and_b32 v13, 3, v1"); e("v_lshl_add_u32 v12, v13, 3, v12"); e(f"v_add_u32 v12, {TB}, v12")
    e("s_lshr_b32 s19, s18, 1"); e("s_and_b32 s23, s18, 1")
    e("s_mul_i32 s3, s19, 48"); e("s_lshl_b32 s33, s23, 5"); e("s_add_u32 s3, s3, s33"); e("s_add_u32 s3, s3, 160")
    e("v_add_u32 v13, s3, v12")
    e("s_mul_i32 s3, s19, 80"); e("v_add_u32 v12, s3, v12")
    e("s_waitcnt lgkmcnt(0)"); e("s_barrier")
    for ks in range(4):
        e(f"ds_read_b64_tr_b16 v[{16+4*ks}:{17+4*ks}], v13 offset:{ks*32*ROWP}")
        e(f"ds_read_b64_tr_b16 v[{18+4*ks}:{19+4*ks}], v13 offset:{ks*32*ROWP + 4*ROWP}")
        for nt in range(3):
            r = 56 + 16*nt + 4*ks
            e(f"ds_read_b64_tr_b16 v[{r}:{r+1}], v12 offset:{ks*32*ROWP + 32*nt}")
            e(f"ds_read_b64_tr_b16 v[{r+2}:{r+3}], v12 offset:{ks*32*ROWP + 4*ROWP + 32*nt}")
    e("s_lshl_b32 s3, s23, 4"); e("v_lshlrev_b32 v14, 2, v3"); e("v_add_u32 v14, s3, v14")
    e("v_mul_u32_u24 v15, 160, v14"); e("v_lshl_add_u32 v15, v2, 2, v15")
    e("s_lshl_b32 s3, s17, 1"); e("s_add_u32 s3, s3, s19"); e("s_mul_i32 s3, s3, 3360"); e(f"s_add_u32 s33, s3, {KV_OFF[layer]}")
    e(f"v_mov_b32 v132, {OOB}")
    e("v_cmp_ge_u32 vcc, 20, v14"); e("v_cndmask_b32 v128, v132, v15, vcc")
    e("v_cmp_ge_u32 vcc, 17, v14"); e("v_cndmask_b32 v129, v132, v15, vcc")
    e("v_cmp_gt_u32 vcc, 8, v2"); e("v_cndmask_b32 v130, v132, v128, vcc"); e("v_cndmask_b32 v131, v132, v129, vcc")
    e("s_waitcnt lgkmcnt(0)")
    for ks in range(4):
        for nt in range(3):
            r = 56 + 16*nt + 4*ks; d = 36 + 4*nt
            c = "0" if ks == 0 else f"v[{d}:{d+3}]"
            e(f"v_mfma_f32_16x16x32_bf16 v[{d}:{d+3}], v[{16+4*ks}:{19+4*ks}], v[{r}:{r+3}], {c}")
    for nt in range(3):
        for b in range(4):
            vo = 128 + (0 if b == 0 else 1) + (2 if nt == 2 else 0)
            vm.issue(f"buffer_atomic_add_f32 v{36+4*nt+b}, v{vo}, s[12:15], s33 offen offset:{160*b + 64*nt}", "at")
    st.mark("epi1")
    vm.wait("p4"); e("s_barrier")
    st.mark("p4wait")
    def lds1(s, T):
        off = (s*5+T)*1024
        return (7, off) if s < 12 else (5, off - 61440)
    gemm_pass(a, vm, 20, lds1, acc, (16, 36), X, True)
    st.mark("pass1")
    for u in range(20): e(f"v_permlane32_swap_b32 v{56+u}, v{76+u}")
    e("s_lshl_b32 s3, s16, 4"); e("s_add_u32 s3, s3, s17"); e("s_lshl_b32 s3, s3, 2"); e("s_add_u32 s3, s3, s18"); e("s_mul_i32 s3, s3, 5120")
    e(f"s_add_u32 s19, s3, {XF0_OFF[layer]}"); e(f"s_add_u32 s23, s3, {PHIQ_OFF[layer]}")
    e("s_add_u32 s33, s19, 4096"); e("s_add_u32 s34, s23, 4096")
    for q in range(5):
        so, im = ("s19", 1024*q) if q < 4 else ("s33", 0)
        e(f"buffer_store_dwordx4 v[{76+4*q}:{79+4*q}], v5, s[12:15], {so} offen offset:{im}")
    softmax_pair(a, list(range(56, 76)), 11, 128, 148, 156)
    for q in range(5):
        so, im = ("s23", 1024*q) if q < 4 else ("s34", 0)
        e(f"buffer_store_dwordx4 v[{156+4*q}:{159+4*q}], v5, s[12:15], {so} offen offset:{im}")
    st.mark("epi2")
    if stamps: e("s_waitcnt vmcnt(0)"); st.mark("drain")
    st.flush(30, 31, 18)
    a.label(f"{name}_end")
    e("s_endpgm")
    gen_k1.names = st.names
    return kernel_header(name) + a.text() + kernel_desc(name, 208 if stamps else 176, 160, 102 if stamps else 64)
```

```python
from asm import *
from layout import *
from k1 import gemm_pass
OOB = 0x40000000

def gen_k2a(name, layer):
    a = Asm(); e = a.e; vm = VM(a)
    e("s_cmp_ge_u32 s2, 256")
    e(f"s_cbranch_scc1 {name}_end")
    e("s_load_dwordx2 s[30:31], s[0:1], 88")
    wg_to_rc(a, 16, 17, 19)
    e("v_and_b32 v1, 63, v0"); e("v_lshrrev_b32 v2, 6, v0")
    e("v_readfirstlane_b32 s18, v2")
    e("v_and_b32 v2, 15, v1"); e("v_lshrrev_b32 v3, 4, v1")
    e("v_lshlrev_b32 v5, 4, v1")
    e("s_waitcnt lgkmcnt(0)")
    srd(a, 12, 30, 31, 0, WS_USED)
    e("v_lshlrev_b32 v6, 5, v0"); e(f"v_mov_b32 v7, {OOB}"); e("v_cmp_gt_u32 vcc, 210, v0"); e("v_cndmask_b32 v6, v7, v6, vcc")
    e("s_mul_i32 s3, s17, 6720"); e(f"s_add_u32 s3, s3, {KV_OFF[layer]}")
    vm.issue("buffer_load_dwordx4 v[40:43], v6, s[12:15], s3 offen", "kv")
    vm.issue("buffer_load_dwordx4 v[44:47], v6, s[12:15], s3 offen offset:16", "kv")
    e("s_lshl_b32 s3, s16, 4"); e("s_add_u32 s3, s3, s17"); e("s_lshl_b32 s3, s3, 2"); e("s_add_u32 s3, s3, s18"); e("s_mul_i32 s3, s3, 5120")
    e(f"s_add_u32 s23, s3, {PHIQ_OFF[layer]}"); e("s_add_u32 s34, s23, 4096")
    for q in range(5):
        so, im = ("s23", 1024*q) if q < 4 else ("s34", 0)
        vm.issue(f"buffer_load_dwordx4 v[{16+4*q}:{19+4*q}], v5, s[12:15], {so} offen offset:{im}", "phi")
    for r in range(48, 52): e(f"v_mov_b32 v{r}, 0")
    e("v_lshlrev_b32 v8, 4, v0"); e("v_add_u32 v9, 3840, v8")
    e("v_cmp_gt_u32 vcc, 128, v0"); e("s_and_saveexec_b64 s[20:21], vcc")
    e("ds_write_b128 v9, v[48:51]")
    e("s_mov_b64 exec, s[20:21]")
    e("v_cmp_le_u32 vcc, 105, v0"); e("v_cndmask_b32 v9, 0, 1, vcc"); e("v_mul_u32_u24 v9, 240, v9"); e("v_add_u32 v9, v9, v8")
    e("v_and_b32 v10, 1, v3"); e("v_mul_u32_u24 v10, 1920, v10"); e("v_and_b32 v11, 3, v2"); e("v_mul_u32_u24 v11, 80, v11"); e("v_add_u32 v10, v10, v11")
    e("v_lshrrev_b32 v11, 2, v2"); e("v_cmp_eq_u32 vcc, v11, v3"); e("v_mov_b32 v11, 3840"); e("v_cndmask_b32 v10, v11, v10, vcc")
    vm.wait("kv")
    for q in range(4): e(f"v_cvt_pk_bf16_f32 v{40+q}, v{40+2*q}, v{41+2*q}")
    e("v_cmp_gt_u32 vcc, 210, v0"); e("s_and_saveexec_b64 s[20:21], vcc")
    e("ds_write_b128 v9, v[40:43]")
    e("s_mov_b64 exec, s[20:21]")
    e("s_waitcnt lgkmcnt(0)"); e("s_barrier")
    for Tp in range(6):
        for ch in range(5):
            r = 64 + (Tp*5+ch)*4
            e(f"ds_read_b128 v[{r}:{r+3}], v10 offset:{Tp*320 + ch*16}")
    e("v_lshrrev_b32 v12, 5, v1"); e(f"v_mul_u32_u24 v12, {AF_WT}, v12"); e("v_lshl_add_u32 v12, v2, 4, v12")
    e("v_and_b32 v13, 1, v3"); e("v_lshl_add_u32 v14, v13, 3, v12"); e("v_mul_u32_u24 v13, 768, v13"); e("v_add_u32 v12, v12, v13")
    e("s_lshl_b32 s3, s16, 2"); e("s_add_u32 s3, s3, s18"); e(f"s_mul_i32 s3, s3, {2*AF_WT}"); e("s_mul_i32 s19, s17, 1280"); e("s_add_u32 s3, s3, s19"); e(f"s_add_u32 s3, s3, {O_OFF[layer]}")
    vm.wait("phi")
    e("s_waitcnt lgkmcnt(0)")
    for ch in range(5):
        for Tp in range(6):
            r = 64 + (Tp*5+ch)*4; d = 40 + 4*Tp
            c = "0" if ch == 0 else f"v[{d}:{d+3}]"
            e(f"v_mfma_f32_16x16x32_bf16 v[{d}:{d+3}], v[{r}:{r+3}], v[{16+4*ch}:{19+4*ch}], {c}")
    e("v_add_f32 v60, 0x358637bd, v60")
    e("v_rcp_f32 v60, v60")
    for u in range(20): e(f"v_mul_f32 v{40+u}, v60, v{40+u}")
    for q in range(10): e(f"v_cvt_pk_bf16_f32 v{16+q}, v{40+2*q}, v{41+2*q}")
    e("buffer_store_dwordx4 v[16:19], v12, s[12:15], s3 offen")
    e("buffer_store_dwordx4 v[20:23], v12, s[12:15], s3 offen offset:256")
    e("buffer_store_dwordx2 v[24:25], v14, s[12:15], s3 offen offset:512")
    a.label(f"{name}_end")
    e("s_endpgm")
    return kernel_header(name) + a.text() + kernel_desc(name, 192, 0, 64)

def gen_k2b(name, layer):
    a = Asm(); e = a.e; vm = VM(a)
    e("s_cmp_ge_u32 s2, 256")
    e(f"s_cbranch_scc1 {name}_end")
    e("s_load_dwordx2 s[30:31], s[0:1], 88")
    wg_to_rc(a, 16, 17, 19)
    e("v_and_b32 v1, 63, v0"); e("v_lshrrev_b32 v2, 6, v0")
    e("v_readfirstlane_b32 s18, v2")
    e("v_and_b32 v2, 15, v1"); e("v_lshrrev_b32 v3, 4, v1")
    e("v_lshlrev_b32 v5, 4, v1"); e("v_add_u32 v6, 61440, v5")
    e("v_lshrrev_b32 v7, 5, v1"); e(f"v_mul_u32_u24 v8, {AF_WT}, v7"); e("v_lshl_add_u32 v8, v2, 4, v8")
    e("v_and_b32 v10, 1, v3"); e("v_lshl_add_u32 v9, v10, 3, v8"); e("v_mul_u32_u24 v10, 768, v10"); e("v_add_u32 v8, v8, v10")
    e("s_lshl_b32 s26, s16, 2"); e("s_add_u32 s26, s26, s18"); e(f"s_mul_i32 s26, s26, {2*AF_WT}")
    e("s_mul_i32 s27, s17, 1280"); e("s_add_u32 s27, s27, s26")
    e("s_waitcnt lgkmcnt(0)")
    e(f"s_add_u32 s19, s26, {O_OFF[layer]}")
    e("s_add_u32 s4, s30, s19"); e("s_addc_u32 s5, s31, 0"); e(f"s_mov_b32 s6, {2*AF_WT}"); e("s_mov_b32 s7, 0x20000")
    e(f"s_mul_i32 s19, s17, {W2_C}"); e(f"s_add_u32 s19, s19, {W2_OFF}")
    e("s_add_u32 s8, s30, s19"); e("s_addc_u32 s9, s31, 0"); e(f"s_mov_b32 s10, {W2_C}"); e("s_mov_b32 s11, 0x20000")
    srd(a, 12, 30, 31, 0, WS_USED)
    e(f"s_add_u32 s3, s27, {XIN_OFF[layer]}")
    vm.issue("buffer_load_dwordx4 v[96:99], v8, s[12:15], s3 offen", "init")
    vm.issue("buffer_load_dwordx4 v[100:103], v8, s[12:15], s3 offen offset:256", "init")
    vm.issue("buffer_load_dwordx2 v[104:105], v9, s[12:15], s3 offen offset:512", "init")
    e("s_lshl_b32 s19, s16, 4"); e("s_add_u32 s19, s19, s17"); e("s_lshl_b32 s19, s19, 2"); e("s_add_u32 s19, s19, s18"); e("s_mul_i32 s19, s19, 5120")
    e(f"s_add_u32 s19, s19, {XF0_OFF[layer]}"); e("s_add_u32 s33, s19, 4096")
    for q in range(5):
        so, im = ("s19", 1024*q) if q < 4 else ("s33", 0)
        vm.issue(f"buffer_load_dwordx4 v[{76+4*q}:{79+4*q}], v5, s[12:15], {so} offen offset:{im}", "init")
    e("s_lshl_b32 s21, s18, 12"); e("s_lshl_b32 s22, s18, 10"); e("s_add_u32 s22, s22, 16384")
    def dma_chunk(goff, tag):
        e(f"s_add_u32 s23, s21, {goff}"); e("s_mov_b32 m0, s23")
        for q in range(4):
            vm.issue(f"buffer_load_dwordx4 v5, s[8:11], s23 offen offset:{1024*q} lds", tag)
        e(f"s_add_u32 s23, s22, {goff}"); e("s_mov_b32 m0, s23")
        vm.issue(f"buffer_load_dwordx4 v5, s[8:11], s23 offen lds", tag)
    X = lambda tt, s: f"a[{(2*s+tt)*4}:{(2*s+tt)*4+3}]"
    def x_chunk(q, tag):
        for tt in range(2):
            e(f"s_mov_b32 s20, {tt*AF_WT + q*4096}")
            for s in range(4*q, 4*q+4):
                vm.issue(f"buffer_load_dwordx4 {X(tt,s)}, v5, s[4:7], s20 offen offset:{1024*(s-4*q)}", tag)
    for q in range(4):
        dma_chunk(q*20480, f"c{q}"); x_chunk(q, f"c{q}")
    vm.wait("init")
    for q in range(10):
        e(f"v_lshlrev_b32 v{56+2*q}, 16, v{96+q}")
        e(f"v_and_b32 v{57+2*q}, 0xffff0000, v{96+q}")
    for u in range(20): e(f"v_permlane32_swap_b32 v{56+u}, v{76+u}")
    vm.wait("c0"); e("s_barrier")
    dma_chunk(4*20480, "c4"); x_chunk(4, "c4")
    acc = lambda tt, T: 56 + 20*tt + 4*T
    def lds0(s, T):
        off = (s*5+T)*1024
        return (5, off) if s < 12 else (6, off - 61440)
    def pre0(s):
        if s % 4 == 3 and s < 19:
            vm.wait(f"c{(s+1)//4}"); e("s_barrier")
    gemm_pass(a, vm, 20, lds0, acc, (16, 36), X, False, None, pre0)
    for u in range(20): e(f"v_cvt_pk_bf16_f32 v{96+u}, v{56+u}, v{76+u}")
    for u in range(0, 20, 2): e(f"v_permlane32_swap_b32 v{96+u}, v{97+u}")
    XB = 102400
    e("v_lshlrev_b32 v10, 9, v7"); e("v_and_b32 v11, 1, v3"); e("v_lshl_add_u32 v10, v11, 8, v10")
    e("v_lshrrev_b32 v11, 2, v2"); e("v_lshl_add_u32 v10, v11, 6, v10"); e("v_and_b32 v11, 3, v2"); e("v_lshl_add_u32 v10, v11, 2, v10")
    e("s_lshl_b32 s3, s18, 4"); e(f"s_add_u32 s3, s3, {XB}"); e("v_add_u32 v10, s3, v10")
    for u in range(0, 20, 2): e(f"ds_write_b32 v10, v{97+u} offset:{u*512}")
    for u in range(20): e(f"v_permlane32_swap_b32 v{56+u}, v{76+u}")
    e("v_add_f32 v120, v56, v57"); e("v_mul_f32 v121, v56, v56"); e("v_fmac_f32 v121, v57, v57")
    for u in range(2, 20):
        e(f"v_add_f32 v120, v120, v{56+u}"); e(f"v_fmac_f32 v121, v{56+u}, v{56+u}")
    for r in (120, 121):
        e(f"v_mov_b32 v122, v{r}"); e(f"v_permlane16_swap_b32 v{r}, v122"); e(f"v_add_f32 v{r}, v{r}, v122")
    e("s_lshr_b32 s19, s16, 1"); e("s_lshl_b32 s19, s19, 2"); e("s_add_u32 s19, s19, s18")
    e("s_and_b32 s23, s16, 1")
    e("s_lshl_b32 s33, s19, 6"); e("s_lshl_b32 s34, s23, 5"); e("s_add_u32 s33, s33, s34"); e("s_lshl_b32 s33, s33, 2"); e(f"s_add_u32 s33, s33, {ST_OFF[layer]}")
    e("v_lshl_add_u32 v11, v2, 1, v7"); e("v_lshlrev_b32 v11, 2, v11"); e(f"v_mov_b32 v12, {OOB}")
    e("v_and_b32 v13, 1, v3"); e("v_cmp_eq_u32 vcc, 0, v13"); e("v_cndmask_b32 v11, v12, v11, vcc")
    e("s_add_u32 s34, s33, 8192")
    e("buffer_atomic_add_f32 v120, v11, s[12:15], s33 offen")
    e("buffer_atomic_add_f32 v121, v11, s[12:15], s34 offen")
    for q in range(10): e(f"v_cvt_pk_bf16_f32 v{124+q}, v{56+2*q}, v{57+2*q}")
    e(f"s_add_u32 s3, s27, {X1_OFF[layer]}")
    e("buffer_store_dwordx4 v[124:127], v8, s[12:15], s3 offen")
    e("buffer_store_dwordx4 v[128:131], v8, s[12:15], s3 offen offset:256")
    e("buffer_store_dwordx2 v[132:133], v9, s[12:15], s3 offen offset:512")
    e("s_waitcnt lgkmcnt(0)"); e("s_barrier")
    e("v_lshlrev_b32 v10, 4, v0"); e(f"v_add_u32 v10, {XB}, v10")
    for r in range(3): e(f"ds_read_b128 v[{96+4*r}:{99+4*r}], v10 offset:{4096*r}")
    e("v_lshrrev_b32 v11, 4, v0"); e("v_lshlrev_b32 v11, 12, v11"); e("v_bfe_u32 v12, v0, 2, 2"); e("v_lshl_add_u32 v11, v12, 8, v11")
    e("v_and_b32 v12, 3, v0"); e("v_lshl_add_u32 v11, v12, 4, v11")
    e("s_lshr_b32 s19, s16, 1"); e("s_lshr_b32 s33, s19, 2"); e("s_lshl_b32 s33, s33, 11")
    e("s_and_b32 s19, s19, 3"); e("s_lshl_b32 s19, s19, 6"); e("s_add_u32 s33, s33, s19")
    e("s_lshl_b32 s23, s23, 10"); e("s_add_u32 s33, s33, s23"); e("s_mul_i32 s19, s17, 163840"); e("s_add_u32 s33, s33, s19"); e(f"s_add_u32 s33, s33, {XF_OFF[layer]}")
    e(f"v_mov_b32 v12, {OOB}"); e("v_cmp_gt_u32 vcc, 128, v0"); e("v_cndmask_b32 v12, v12, v11, vcc")
    e("s_waitcnt lgkmcnt(0)")
    e("buffer_store_dwordx4 v[96:99], v11, s[12:15], s33 offen")
    e("s_add_u32 s33, s33, 65536")
    e("buffer_store_dwordx4 v[100:103], v11, s[12:15], s33 offen")
    e("s_add_u32 s33, s33, 65536")
    e("buffer_store_dwordx4 v[104:107], v12, s[12:15], s33 offen")
    a.label(f"{name}_end")
    e("s_endpgm")
    return kernel_header(name) + a.text() + kernel_desc(name, 136, 160, 64)
```

```python
from asm import *
from layout import *
OOB = 0x40000000
RB = 0
YB = 8704

def af_addr(a, dst, vt, t0, t1):
    e = a.e
    e(f"v_and_b32 v{t0}, 31, v{vt}")
    e(f"v_lshrrev_b32 v{t1}, 5, v{vt}")
    e(f"v_lshrrev_b32 v{dst}, 2, v{t0}"); e(f"v_lshlrev_b32 v{dst}, 4, v{dst}")
    e(f"v_and_b32 v{t0}, 3, v{t0}"); e(f"v_lshl_add_u32 v{dst}, v{t0}, 1, v{dst}")
    e(f"v_lshrrev_b32 v{t0}, 5, v{t1}"); e(f"v_lshl_add_u32 v{dst}, v{t0}, 3, v{dst}")
    e(f"v_and_b32 v{t0}, 1, v{t1}"); e(f"v_add_u32 v{dst}, v{dst}, v{t0}")
    e(f"v_mul_u32_u24 v{dst}, {AF_WT}, v{dst}")
    e(f"v_bfe_u32 v{t0}, v{t1}, 1, 4"); e(f"v_lshl_add_u32 v{dst}, v{t0}, 4, v{dst}")

def gen_k3(name, layer):
    a = Asm(); e = a.e; vm = VM(a)
    e("s_cmp_ge_u32 s2, 160")
    e(f"s_cbranch_scc1 {name}_end")
    e("s_load_dwordx2 s[30:31], s[0:1], 88")
    if layer == 1: e("s_load_dwordx2 s[24:25], s[0:1], 72")
    e("s_and_b32 s16, s2, 7"); e("s_lshr_b32 s17, s2, 3"); e("s_lshr_b32 s19, s17, 2"); e("s_lshl_b32 s19, s19, 3")
    e("s_add_u32 s16, s16, s19")
    e("s_and_b32 s17, s17, 3")
    e("v_and_b32 v1, 63, v0"); e("v_lshrrev_b32 v2, 6, v0")
    e("v_readfirstlane_b32 s18, v2")
    e("v_and_b32 v2, 15, v1"); e("v_lshrrev_b32 v3, 4, v1")
    e("v_lshlrev_b32 v5, 4, v1")
    e("v_lshlrev_b32 v6, 4, v0")
    e("s_waitcnt lgkmcnt(0)")
    srd(a, 12, 30, 31, 0, WS_USED)
    if layer == 1:
        e(f"s_mov_b32 s26, {ACT}"); e("s_mov_b32 s27, 0x20000")
    e(f"s_mov_b32 s3, {ST_OFF[layer]}"); e(f"s_mov_b32 s19, {ST_OFF[layer] + 8192}")
    e(f"v_mov_b32 v7, {OOB}"); e("v_cmp_gt_u32 vcc, 512, v0"); e("v_cndmask_b32 v7, v7, v6, vcc")
    vm.issue("buffer_load_dwordx4 v[8:11], v7, s[12:15], s3 offen", "st")
    vm.issue("buffer_load_dwordx4 v[12:15], v7, s[12:15], s19 offen", "st")
    e("s_lshl_b32 s3, s16, 3"); e("s_add_u32 s3, s3, s18"); e("s_sub_u32 s20, s3, 1"); e("s_lshl_b32 s20, s20, 13"); e(f"s_add_u32 s20, s20, {XF_OFF[layer]}")
    e("s_cmp_eq_u32 s3, 0"); e(f"s_cselect_b32 s3, {OOB}, 0"); e("v_add_u32 v4, s3, v5"); e("s_add_u32 s19, s20, 4096")
    Xr = lambda T, st, ri: 32 + ((T*2+st)*2+ri)*4
    for T in range(2):
        for st in range(2):
            for ri in range(2):
                r = Xr(T, st, ri)
                vm.issue(f"buffer_load_dwordx4 v[{r}:{r+3}], v4, s[12:15], {'s19' if ri else 's20'} offen offset:{T*2048 + st*1024}", "data")
    e("s_mul_i32 s3, s17, 6144"); e(f"s_add_u32 s3, s3, {TAB_OFF + TAB_W64}"); e("s_add_u32 s19, s3, 4096")
    for var in range(3):
        for st in range(2):
            r = 96 + (var*2+st)*4
            so, im = ("s3", var*2048 + st*1024) if var < 2 else ("s19", st*1024)
            vm.issue(f"buffer_load_dwordx4 v[{r}:{r+3}], v5, s[12:15], {so} offen offset:{im}", "tab")
    e("s_lshl_b32 s3, s17, 12"); e(f"s_add_u32 s3, s3, {TAB_OFF + TAB_TW}")
    for q in range(4): vm.issue(f"buffer_load_dwordx4 v[{120+4*q}:{123+4*q}], v5, s[12:15], s3 offen offset:{1024*q}", "tab")
    e(f"s_mov_b32 s3, {TAB_OFF + TAB_S2}")
    for q in range(4): vm.issue(f"buffer_load_dwordx4 v[{136+4*q}:{139+4*q}], v5, s[12:15], s3 offen offset:{1024*q}", "tab")
    e("v_lshrrev_b32 v16, 5, v0"); e("v_and_b32 v17, 31, v0"); e("v_lshl_add_u32 v16, v17, 6, v16"); e("s_lshl_b32 s3, s17, 4"); e("v_add_u32 v16, s3, v16")
    e("v_sub_u32 v17, 2048, v16"); e("v_and_b32 v17, 2047, v17")
    af_addr(a, 18, 16, 20, 21); af_addr(a, 19, 17, 20, 21)
    e(f"v_mov_b32 v20, {OOB}"); e("v_cmp_gt_u32 vcc, 512, v0"); e("v_cndmask_b32 v18, v20, v18, vcc"); e("v_cndmask_b32 v19, v20, v19, vcc")
    e("s_lshl_b32 s20, s16, 8")
    e("s_sub_u32 s22, 20224, s20")
    e(f"s_add_u32 s21, s20, {X1_OFF[layer]}"); e(f"s_add_u32 s23, s22, {X1_OFF[layer]}")
    vm.issue("buffer_load_dwordx4 v[24:27], v18, s[12:15], s21 offen", "res")
    vm.issue("buffer_load_dwordx4 v[28:31], v19, s[12:15], s23 offen", "res")
    vm.wait("st")
    for q in range(4):
        e(f"v_mul_f32 v{8+q}, {1/640!r}, v{8+q}")
        e(f"v_mul_f32 v{12+q}, {1/640!r}, v{12+q}")
        e(f"v_fma_f32 v{12+q}, -v{8+q}, v{8+q}, v{12+q}")
        e(f"v_max_f32 v{12+q}, 0, v{12+q}")
        e(f"v_add_f32 v{12+q}, 0x3727c5ac, v{12+q}")
        e(f"v_rsq_f32 v{12+q}, v{12+q}")
    e("v_lshrrev_b32 v8, 4, v0"); e("v_mul_u32_u24 v8, 272, v8"); e("v_and_b32 v9, 15, v0"); e("v_lshl_add_u32 v8, v9, 4, v8")
    e("s_cmp_eq_u32 s18, 8"); e(f"s_cbranch_scc1 {name}_nor")
    e("ds_write_b128 v8, v[12:15]")
    a.label(f"{name}_nor")
    e("s_waitcnt lgkmcnt(0)"); e("s_barrier")
    e("v_mul_u32_u24 v8, 272, v2"); e("v_lshl_add_u32 v8, v3, 5, v8")
    RR = lambda T, st: 64 + (T*2+st)*8
    for T in range(2):
        for st in range(2):
            r = RR(T, st)
            e(f"ds_read_b128 v[{r}:{r+3}], v8 offset:{T*16*272 + st*128}")
            e(f"ds_read_b128 v[{r+4}:{r+7}], v8 offset:{T*16*272 + st*128 + 16}")
    vm.wait("data")
    e("s_waitcnt lgkmcnt(0)")
    for T in range(2):
        for st in range(2):
            for ri in range(2):
                d = Xr(T, st, ri); r = RR(T, st)
                for q in range(4):
                    t0 = 20 + 2*(q & 1)
                    e(f"v_lshlrev_b32 v{t0}, 16, v{d+q}"); e(f"v_and_b32 v{t0+1}, 0xffff0000, v{d+q}")
                    e(f"v_mul_f32 v{t0}, v{r+2*q}, v{t0}"); e(f"v_mul_f32 v{t0+1}, v{r+2*q+1}, v{t0+1}")
                    e(f"v_cvt_pk_bf16_f32 v{d+q}, v{t0}, v{t0+1}")
    vm.wait("tab")
    W = lambda var, st: 96 + (var*2+st)*4
    G = lambda T, ri: 152 + (T*2+ri)*4
    def mf(d, A, B, first):
        c = "0" if first else f"v[{d}:{d+3}]"
        e(f"v_mfma_f32_16x16x32_bf16 v[{d}:{d+3}], v[{A}:{A+3}], v[{B}:{B+3}], {c}")
    for st in range(2):
        for T in range(2):
            mf(G(T,0), Xr(T,st,0), W(0,st), st == 0)
            mf(G(T,1), Xr(T,st,0), W(1,st), st == 0)
    for st in range(2):
        for T in range(2):
            mf(G(T,0), Xr(T,st,1), W(2,st), False)
            mf(G(T,1), Xr(T,st,1), W(0,st), False)
    for T in range(2):
        for b in range(4):
            c, s = 120 + 4*T + b, 128 + 4*T + b
            gr, gi = G(T,0) + b, G(T,1) + b
            e(f"v_mul_f32 v{32+4*T+b}, v{gr}, v{c}"); e(f"v_mul_f32 v{40+4*T+b}, v{gi}, v{c}")
            e(f"v_fmac_f32 v{32+4*T+b}, v{gi}, v{s}"); e(f"v_fma_f32 v{40+4*T+b}, -v{gr}, v{s}, v{40+4*T+b}")
    for q in range(4):
        e(f"v_cvt_pk_bf16_f32 v{48+q}, v{32+2*q}, v{33+2*q}")
        e(f"v_cvt_pk_bf16_f32 v{52+q}, v{40+2*q}, v{41+2*q}")
    for T2 in range(2):
        mf(56 + 4*T2, 136 + 8*T2, 48, True)
    for T2 in range(2):
        mf(56 + 4*T2, 140 + 8*T2, 52, False)
    e("v_mul_u32_u24 v8, 33, v2"); e("v_lshl_add_u32 v8, v3, 2, v8"); e("v_mul_u32_u24 v8, 48, v8"); e("s_lshl_b32 s3, s18, 2"); e(f"s_add_u32 s3, s3, {YB}"); e("v_add_u32 v8, s3, v8")
    for T2 in range(2):
        for b in range(4):
            e(f"ds_write_b32 v8, v{56+4*T2+b} offset:{768*T2 + 48*b}")
    e("s_waitcnt lgkmcnt(0)"); e("s_barrier")
    e("s_cmp_eq_u32 s18, 8"); e(f"s_cbranch_scc1 {name}_end")
    e("v_lshrrev_b32 v8, 5, v0"); e("v_mul_u32_u24 v8, 33, v8"); e("v_and_b32 v9, 31, v0"); e("v_add_u32 v8, v8, v9"); e("v_mul_u32_u24 v8, 48, v8")
    e(f"ds_read_b128 v[32:35], v8 offset:{YB}"); e(f"ds_read_b128 v[36:39], v8 offset:{YB+16}"); e(f"ds_read_b32 v64, v8 offset:{YB+32}")
    vm.wait("res")
    for q in range(4):
        e(f"v_lshlrev_b32 v{40+2*q}, 16, v{24+q}"); e(f"v_and_b32 v{41+2*q}, 0xffff0000, v{24+q}")
        e(f"v_lshlrev_b32 v{48+2*q}, 16, v{28+q}"); e(f"v_and_b32 v{49+2*q}, 0xffff0000, v{28+q}")
    e("s_waitcnt lgkmcnt(0)")
    for q in range(8):
        e(f"v_add_f32 v{40+q}, v{40+q}, v{32+q}")
        e(f"v_add_f32 v{48+q}, v{48+q}, v{64 if q == 0 else 40-q}")
    for q in range(4):
        e(f"v_cvt_pk_bf16_f32 v{56+q}, v{40+2*q}, v{41+2*q}")
        e(f"v_cvt_pk_bf16_f32 v{60+q}, v{48+2*q}, v{49+2*q}")
    if layer == 0:
        e(f"s_add_u32 s21, s20, {XIN_OFF[1]}"); e(f"s_add_u32 s23, s22, {XIN_OFF[1]}")
        e("buffer_store_dwordx4 v[56:59], v18, s[12:15], s21 offen")
        e("buffer_store_dwordx4 v[60:63], v19, s[12:15], s23 offen")
    else:
        e("v_mul_u32_u24 v18, 1280, v16"); e("v_mul_u32_u24 v19, 1280, v17")
        e("s_lshl_b32 s20, s16, 4"); e("s_sub_u32 s22, 1264, s20")
        e("buffer_store_dwordx4 v[56:59], v18, s[24:27], s20 offen")
        e("buffer_store_dwordx4 v[60:63], v19, s[24:27], s22 offen")
    a.label(f"{name}_end")
    e("s_endpgm")
    return kernel_header(name) + a.text() + kernel_desc(name, 168, 0, 64)
```

```python
S, D, H, DH = 2048, 640, 32, 20
W1_OFF = 0
W1_C = 204800
W2_OFF = 16 * W1_C
W2_C = 102400
TAB_OFF = W2_OFF + 16 * W2_C
TAB_W64 = 0
TAB_TW = 4 * 6144
TAB_S2 = TAB_TW + 4 * 4096
TAB_SIZE = 65536
ZERO_OFF = TAB_OFF + TAB_SIZE
KV_BYTES = 32 * 21 * 40 * 4
KV_OFF = [ZERO_OFF, ZERO_OFF + KV_BYTES]
ST_OFF = [ZERO_OFF + 2 * KV_BYTES, ZERO_OFF + 2 * KV_BYTES + 16384]
CNT_OFF = ZERO_OFF + 2 * KV_BYTES + 32768
ZERO_SIZE = 262144
ACT = 2048 * 1280
base = ZERO_OFF + ZERO_SIZE
PHIQ_OFF = [base, base + 2 * ACT]
base += 4 * ACT
XF0_OFF = [base, base + 2 * ACT]
base += 4 * ACT
O_OFF = [base, base + ACT]; base += 2 * ACT
X1_OFF = [base, base + ACT]; base += 2 * ACT
XF_OFF = [base, base + ACT]; base += 2 * ACT
XIN_OFF = [base, base + ACT]; base += 2 * ACT
KVP_OFF = [base, base + 256 * 3584]; base += 2 * 256 * 3584
WS_USED = base
AF_R = 163840
AF_WT = 20480
def token(R, w, tt, j): return 32 * (32 * (R & 1) + 2 * j + tt) + 4 * (R >> 1) + w
def m40(gg, u): return 24 * gg + u if u < 16 else 16 + 4 * gg + (u - 16)
```

```python
import sys; sys.path.insert(0,'gen')
from gen_all import *
from k0 import gen_k0
from k1 import gen_k1
from k2 import gen_k2a, gen_k2b
from k3 import gen_k3
STAMPS = len(sys.argv) > 2 and sys.argv[2] == 'stamps'
launches = [("k0_kernel", 256, 256, 143360)]
bodies = [gen_k0("k0_kernel", 65536)]
for L in range(2):
    launches += [(f"k1l{L}_kernel", 256, 256, 163840), (f"k2al{L}_kernel", 256, 256, 6144), (f"k2bl{L}_kernel", 256, 256, 112640), (f"k3l{L}_kernel", 160, 576, 34048)]
    bodies += [gen_k1(f"k1l{L}_kernel", L, STAMPS), gen_k2a(f"k2al{L}_kernel", L), gen_k2b(f"k2bl{L}_kernel", L), gen_k3(f"k3l{L}_kernel", L)]
out = sys.argv[1] if len(sys.argv) > 1 else "v2.s"
print(assemble(launches, bodies, out))
```

```python
import re

TRANS = ("v_exp_f32", "v_log_f32", "v_rcp_f32", "v_rsq_f32", "v_sqrt_f32", "v_sin_f32", "v_cos_f32", "v_rcp_iflag_f32")
REG_RE = re.compile(r"(?<![\w.])([vas])(\d+)(?![\w\[])|(?<![\w.])([vas])\[(\d+):(\d+)\]|(?<![\w.])(vcc|exec|m0|scc)(_lo|_hi)?(?![\w])")

def regs_of(tok):
    out = []
    for m in REG_RE.finditer(tok):
        if m.group(1): out.append((m.group(1), int(m.group(2))))
        elif m.group(3):
            for i in range(int(m.group(4)), int(m.group(5)) + 1): out.append((m.group(3), i))
        else:
            nm = m.group(6)
            if nm == "vcc":
                if m.group(7) == "_lo": out.append(("s", 106))
                elif m.group(7) == "_hi": out.append(("s", 107))
                else: out += [("s", 106), ("s", 107)]
            elif nm == "exec": out += [("x", 0)]
            elif nm == "m0": out.append(("m", 0))
    return out

def split_ops(s):
    ops, depth, cur = [], 0, ""
    for ch in s:
        if ch == "[" or ch == "(": depth += 1
        if ch == "]" or ch == ")": depth -= 1
        if ch == "," and depth == 0: ops.append(cur.strip()); cur = ""
        else: cur += ch
    if cur.strip(): ops.append(cur.strip())
    return ops

class Inst:
    __slots__ = ("text", "op", "cls", "wr", "rd", "states", "passes", "srcc", "store_data", "isdpp", "lds_dma", "mask_rd", "sgpr_valu_wr", "ab")
    def __init__(self, text):
        self.text = text
        t = text.split(";")[0].strip()
        parts = t.split(None, 1)
        self.op = op = parts[0]
        rest = parts[1] if len(parts) > 1 else ""
        ops = split_ops(rest)
        self.wr, self.rd = [], []
        self.states = 1; self.passes = 0; self.srcc = []; self.store_data = []; self.ab = []
        self.isdpp = ("row_" in rest or "quad_perm" in rest or "wave_" in rest or "dpp" in op)
        self.lds_dma = False; self.mask_rd = []; self.sgpr_valu_wr = []
        R = lambda i: regs_of(ops[i].split(" ")[0] if i == len(ops) - 1 else ops[i]) if i < len(ops) else []
        if op == "s_nop":
            self.cls = "nop"; self.states = int(ops[0], 0) + 1
        elif op.startswith("v_mfma"):
            self.cls = "mfma"; self.wr = R(0); self.ab = R(1) + R(2); self.srcc = R(3); self.rd = self.ab + self.srcc
            self.passes = 8 if "32x32" in op else 4
        elif op.startswith("v_"):
            self.cls = "trans" if op.replace("_e32", "").replace("_e64", "") in TRANS else "valu"
            base = op.replace("_e32", "").replace("_e64", "")
            if base.startswith("v_cmp"):
                self.wr = R(0); self.rd = R(1) + R(2)
            elif base.startswith("v_permlane") and "swap" in base:
                self.wr = R(0) + R(1); self.rd = R(0) + R(1)
            elif base in ("v_readfirstlane_b32", "v_readlane_b32"):
                self.wr = R(0); self.rd = sum((R(i) for i in range(1, len(ops))), [])
            elif base in ("v_add_co_u32", "v_sub_co_u32", "v_addc_co_u32", "v_subb_co_u32", "v_mad_u64_u32"):
                self.wr = R(0) + R(1); self.rd = sum((R(i) for i in range(2, len(ops))), [])
            else:
                self.wr = R(0); self.rd = sum((R(i) for i in range(1, len(ops))), [])
                if base.startswith("v_fmac") or base.startswith("v_pk_fmac") or base.startswith("v_dot2c") or base in ("v_writelane_b32",): self.rd += R(0)
                if base == "v_cndmask_b32":
                    if len(ops) == 3: self.rd += [("s", 106), ("s", 107)]; self.mask_rd = [("s", 106), ("s", 107)]
                    else: self.mask_rd = R(3)
            self.sgpr_valu_wr = [r for r in self.wr if r[0] == "s"]
        elif op.startswith("ds_"):
            self.cls = "ds"
            if op.startswith("ds_read") or op.startswith("ds_bpermute") or op.startswith("ds_permute") or op.startswith("ds_swizzle"):
                self.wr = R(0); self.rd = sum((R(i) for i in range(1, len(ops))), [])
            else:
                self.rd = sum((R(i) for i in range(len(ops))), [])
        elif op.startswith("buffer_") or op.startswith("global_"):
            self.cls = "vmem"
            words = rest.replace(",", " ").split()
            islds = ("lds" in words) or ("_lds_" in op)
            allr = sum((R(i) for i in range(len(ops))), [])
            if op in ("buffer_wbl2", "buffer_inv"): pass
            elif islds:
                self.lds_dma = True; self.rd = allr + [("m", 0)]
            elif "_load" in op:
                self.wr = R(0); self.rd = sum((R(i) for i in range(1, len(ops))), [])
            elif "_store" in op:
                self.rd = allr
                d = R(0) if op.startswith("buffer_") else R(1)
                if "x4" in op or "x3" in op: self.store_data = d
            elif "_atomic" in op:
                self.rd = allr
                if "sc0" in words: self.wr = R(0)
        elif op.startswith("s_"):
            self.cls = "salu"
            if op.startswith(("s_waitcnt", "s_barrier", "s_branch", "s_cbranch", "s_endpgm", "s_setprio", "s_sleep")):
                self.cls = "sctl"
            elif op.startswith("s_cmp"):
                self.rd = sum((R(i) for i in range(len(ops))), [])
            elif op.startswith("s_load") or op.startswith("s_memtime") or op.startswith("s_memrealtime") or op.startswith("s_getreg") or op.startswith("s_getpc"):
                self.wr = R(0); self.rd = sum((R(i) for i in range(1, len(ops))), [])
            else:
                self.wr = R(0); self.rd = sum((R(i) for i in range(1, len(ops))), [])
                if "saveexec" in op: self.wr += [("x", 0)]
        else:
            raise ValueError("unknown instruction: " + text)

def need(prod, cons):
    n = 0
    pw = set(prod.wr);
    isvalu = lambda i: i.cls in ("valu", "trans")
    crd = set(cons.rd); cwr = set(cons.wr)
    if isvalu(prod):
        vw = {r for r in pw if r[0] in "va"}
        if vw & crd:
            if cons.cls == "mfma": n = max(n, 2)
            if cons.op.startswith("v_permlane"): n = max(n, 2)
            if cons.op.startswith(("v_readlane", "v_readfirstlane")): n = max(n, 1)
            if cons.isdpp: n = max(n, 2)
            if prod.cls == "trans" and cons.cls != "trans": n = max(n, 1)
        sw = {r for r in pw if r[0] == "s"}
        if sw & crd:
            if cons.cls == "vmem": n = max(n, 5)
            elif cons.op.startswith(("v_readlane", "v_writelane")): n = max(n, 4)
            elif isvalu(cons) or cons.cls == "mfma": n = max(n, 2)
            elif cons.cls in ("salu",): n = max(n, 1)
    if prod.cls == "mfma":
        p = prod.passes
        d = set(prod.wr)
        if cons.cls == "mfma":
            if d & set(cons.ab): n = max(n, 8 if p == 4 else 12)
            c = set(cons.srcc)
            if d & c and not (c == d and cons.passes == p): n = max(n, 6 if p == 4 else 10)
            if d & cwr and not (d & c): n = max(n, 6 if p == 4 else 10)
        else:
            if d & (crd | cwr): n = max(n, 8 if p == 4 else 12)
        if isvalu(cons) and set(prod.srcc) & cwr: n = max(n, 3 if p == 4 else 7)
    if prod.cls == "salu" and ("m", 0) in pw and cons.lds_dma: n = max(n, 1)
    if prod.store_data and set(prod.store_data) & cwr:
        n = max(n, 2 if isvalu(cons) or cons.cls == "mfma" else 1)
    return n

class Asm:
    def __init__(self):
        self.out = []
        self.hist = []
        self.nops = 0
    def raw(self, s): self.out.append(s)
    def label(self, name):
        self.out.append(name + ":")
    def e(self, text):
        for line in text.split("\n"):
            line = line.strip()
            if not line or line.startswith(";"): continue
            if line.endswith(":"): self.label(line[:-1]); continue
            ins = Inst(line)
            mo = re.search(r"offset:(-?\d+)", line)
            if mo:
                ov = int(mo.group(1))
                if ins.op.startswith("buffer_"): assert 0 <= ov <= 4095, line
                elif ins.op.startswith("global_"): assert -4096 <= ov <= 4095, line
                elif ins.op.startswith("ds_"): assert 0 <= ov <= 65535, line
            req = 0; dist = 0
            for p in reversed(self.hist):
                k = need(p, ins)
                if k > dist: req = max(req, k - dist)
                dist += p.states
                if dist >= 12: break
            if req > 0 and ins.cls != "nop":
                nop = Inst(f"s_nop {req-1}")
                self.out.append("    " + nop.text); self.hist.append(nop); self.nops += 1
            self.out.append("    " + line)
            self.hist.append(ins)
            if len(self.hist) > 24: self.hist = self.hist[-24:]
    def text(self): return "\n".join(self.out) + "\n"

def kernel_header(name):
    return f".text\n.globl {name}\n.p2align 8\n.type {name},@function\n{name}:\n"
def kernel_desc(name, vgpr, agpr=0, sgpr=100):
    acc = (vgpr + 3) // 4 * 4
    nfv = acc + agpr if agpr else vgpr
    return f""".section .rodata,"a"
.p2align 6
.amdhsa_kernel {name}
  .amdhsa_next_free_vgpr {nfv}
  .amdhsa_next_free_sgpr {sgpr}
  .amdhsa_accum_offset {acc}
  .amdhsa_group_segment_fixed_size 0
  .amdhsa_kernarg_size 96
  .amdhsa_user_sgpr_count 2
  .amdhsa_user_sgpr_kernarg_segment_ptr 1
  .amdhsa_system_sgpr_workgroup_id_x 1
  .amdhsa_float_denorm_mode_32 3
.end_amdhsa_kernel
"""

class VM:
    def __init__(self, a): self.a = a; self.q = []
    def issue(self, text, tag):
        self.a.e(text); self.q.append(tag)
    def wait(self, tag, extra=""):
        idx = max(i for i, t in enumerate(self.q) if t == tag)
        n = len(self.q) - 1 - idx
        assert n <= 63, n
        self.a.e(f"s_waitcnt vmcnt({n}){extra}")
        self.q = self.q[idx+1:]
    def wait_all(self):
        self.a.e("s_waitcnt vmcnt(0)"); self.q = []

def srd(a, s, base_lo, base_hi, off, size):
    if isinstance(off, str):
        a.e(f"s_add_u32 s{s}, s{base_lo}, {off}"); a.e(f"s_addc_u32 s{s+1}, s{base_hi}, 0")
    elif off:
        a.e(f"s_add_u32 s{s}, s{base_lo}, {off}"); a.e(f"s_addc_u32 s{s+1}, s{base_hi}, 0")
    else:
        a.e(f"s_mov_b32 s{s}, s{base_lo}"); a.e(f"s_mov_b32 s{s+1}, s{base_hi}")
    a.e(f"s_mov_b32 s{s+2}, {size}")
    a.e(f"s_mov_b32 s{s+3}, 0x20000")

def wg_to_rc(a, sR, sC, tmp):
    e = a.e
    e(f"s_and_b32 s{tmp}, s2, 7"); e(f"s_lshr_b32 s{tmp+1}, s2, 3")
    e(f"s_lshr_b32 s{sR}, s{tmp}, 1"); e(f"s_lshl_b32 s{sR}, s{sR}, 2"); e(f"s_and_b32 s{sC}, s{tmp+1}, 3"); e(f"s_add_u32 s{sR}, s{sR}, s{sC}")
    e(f"s_and_b32 s{sC}, s{tmp}, 1"); e(f"s_lshl_b32 s{sC}, s{sC}, 3"); e(f"s_lshr_b32 s{tmp+1}, s{tmp+1}, 2"); e(f"s_add_u32 s{sC}, s{sC}, s{tmp+1}")

LOG2E = 1.4426950408889634

def softmax_pair(a, K, vC, Ep, tmp, P):
    e = a.e
    mx, mn, sp, sm = tmp, tmp + 1, tmp + 2, tmp + 3
    e(f"v_max3_f32 v{mx}, v{K[0]}, v{K[1]}, v{K[2]}")
    e(f"v_min3_f32 v{mn}, v{K[0]}, v{K[1]}, v{K[2]}")
    for u in range(3, 19, 2):
        e(f"v_max3_f32 v{mx}, v{mx}, v{K[u]}, v{K[u+1]}")
        e(f"v_min3_f32 v{mn}, v{mn}, v{K[u]}, v{K[u+1]}")
    e(f"v_max_f32 v{mx}, v{mx}, v{K[19]}")
    e(f"v_min_f32 v{mn}, v{mn}, v{K[19]}")
    e(f"v_mul_f32 v{mx}, v{vC}, v{mx}")
    e(f"v_mul_f32 v{mn}, v{vC}, v{mn}")
    for u in range(20):
        e(f"v_fma_f32 v{Ep+u}, v{K[u]}, v{vC}, -v{mx}")
        e(f"v_fma_f32 v{K[u]}, -v{K[u]}, v{vC}, v{mn}")
    for u in range(20):
        e(f"v_exp_f32 v{Ep+u}, v{Ep+u}")
        e(f"v_exp_f32 v{K[u]}, v{K[u]}")
    e(f"v_add_f32 v{sp}, v{Ep}, v{Ep+1}")
    e(f"v_add_f32 v{sm}, v{K[0]}, v{K[1]}")
    for u in range(2, 20):
        e(f"v_add_f32 v{sp}, v{sp}, v{Ep+u}")
        e(f"v_add_f32 v{sm}, v{sm}, v{K[u]}")
    e(f"v_rcp_f32 v{sp}, v{sp}")
    e(f"v_rcp_f32 v{sm}, v{sm}")
    for u in range(20):
        e(f"v_mul_f32 v{Ep+u}, v{sp}, v{Ep+u}")
        e(f"v_mul_f32 v{K[u]}, v{sm}, v{K[u]}")
    for q in range(10):
        e(f"v_cvt_pk_bf16_f32 v{P+q}, v{Ep+2*q}, v{Ep+2*q+1}")
        e(f"v_cvt_pk_bf16_f32 v{P+10+q}, v{K[2*q]}, v{K[2*q+1]}")

STAMP_OFF = 200 * 1024 * 1024
class Stamps:
    def __init__(self, a, on, kid): self.a = a; self.on = on; self.n = 0; self.kid = kid; self.names = []
    def mark(self, nm):
        if not self.on: return
        r = 70 + 2 * self.n; self.n += 1; self.names.append(nm)
        assert r + 1 <= 101
        if self.n == 1: self.a.e("s_memrealtime s[62:63]")
        self.a.e(f"s_memtime s[{r}:{r+1}]"); self.a.e("s_waitcnt lgkmcnt(0)")
    def flush(self, ws_lo, ws_hi, wave_sgpr):
        if not self.on: return
        e = self.a.e
        e("s_memrealtime s[68:69]"); e("s_waitcnt lgkmcnt(0)")
        e(f"s_cmp_lg_u32 s{wave_sgpr}, 0"); lab = f"Lstamp_{self.kid}"
        e(f"s_cbranch_scc1 {lab}")
        e(f"s_lshl_b32 s66, s2, 7"); e(f"s_add_u32 s66, s66, {STAMP_OFF + self.kid * 65536}")
        e(f"s_add_u32 s64, s{ws_lo}, s66"); e(f"s_addc_u32 s65, s{ws_hi}, 0")
        e("v_mov_b32 v160, 0")
        for i in range(self.n):
            e(f"v_mov_b32 v161, s{70+2*i}")
            e(f"global_store_dword v160, v161, s[64:65] offset:{4*i}")
        e("v_mov_b32 v161, s68"); e(f"global_store_dword v160, v161, s[64:65] offset:120")
        e("v_mov_b32 v161, s62"); e(f"global_store_dword v160, v161, s[64:65] offset:116")
        self.a.label(lab)

def softmax_pair_pk(a, K, vC, Ep, tmp, P):
    e = a.e
    assert K % 2 == 0 and Ep % 2 == 0 and tmp % 2 == 0 and vC % 2 == 0
    mx, mn, sp, sm = tmp, tmp + 2, tmp + 4, tmp + 6
    e(f"v_max3_f32 v{mx}, v{K}, v{K+1}, v{K+2}")
    e(f"v_min3_f32 v{mn}, v{K}, v{K+1}, v{K+2}")
    for u in range(3, 19, 2):
        e(f"v_max3_f32 v{mx}, v{mx}, v{K+u}, v{K+u+1}")
        e(f"v_min3_f32 v{mn}, v{mn}, v{K+u}, v{K+u+1}")
    e(f"v_max_f32 v{mx}, v{mx}, v{K+19}")
    e(f"v_min_f32 v{mn}, v{mn}, v{K+19}")
    e(f"v_mul_f32 v{mx}, v{vC}, v{mx}")
    e(f"v_mul_f32 v{mn}, v{vC}, v{mn}")
    for u in range(0, 20, 2):
        e(f"v_pk_fma_f32 v[{Ep+u}:{Ep+u+1}], v[{K+u}:{K+u+1}], v[{vC}:{vC+1}], v[{mx}:{mx+1}] op_sel_hi:[1,0,0] neg_lo:[0,0,1] neg_hi:[0,0,1]")
        e(f"v_pk_fma_f32 v[{K+u}:{K+u+1}], v[{K+u}:{K+u+1}], v[{vC}:{vC+1}], v[{mn}:{mn+1}] op_sel_hi:[1,0,0] neg_lo:[1,0,0] neg_hi:[1,0,0]")
    for u in range(20):
        e(f"v_exp_f32 v{Ep+u}, v{Ep+u}")
        e(f"v_exp_f32 v{K+u}, v{K+u}")
    e(f"v_pk_add_f32 v[{sp}:{sp+1}], v[{Ep}:{Ep+1}], v[{Ep+2}:{Ep+3}]")
    e(f"v_pk_add_f32 v[{sm}:{sm+1}], v[{K}:{K+1}], v[{K+2}:{K+3}]")
    for u in range(4, 20, 2):
        e(f"v_pk_add_f32 v[{sp}:{sp+1}], v[{sp}:{sp+1}], v[{Ep+u}:{Ep+u+1}]")
        e(f"v_pk_add_f32 v[{sm}:{sm+1}], v[{sm}:{sm+1}], v[{K+u}:{K+u+1}]")
    e(f"v_add_f32 v{sp}, v{sp}, v{sp+1}")
    e(f"v_add_f32 v{sm}, v{sm}, v{sm+1}")
    e(f"v_rcp_f32 v{sp}, v{sp}")
    e(f"v_rcp_f32 v{sm}, v{sm}")
    for u in range(0, 20, 2):
        e(f"v_pk_mul_f32 v[{Ep+u}:{Ep+u+1}], v[{Ep+u}:{Ep+u+1}], v[{sp}:{sp+1}] op_sel_hi:[1,0]")
        e(f"v_pk_mul_f32 v[{K+u}:{K+u+1}], v[{K+u}:{K+u+1}], v[{sm}:{sm+1}] op_sel_hi:[1,0]")
    for q in range(10):
        e(f"v_cvt_pk_bf16_f32 v{P+q}, v{Ep+2*q}, v{Ep+2*q+1}")
        e(f"v_cvt_pk_bf16_f32 v{P+10+q}, v{K+2*q}, v{K+2*q+1}")

class Rec:
    def __init__(self): self.items = []
    def e(self, text):
        for line in text.split("\n"):
            line = line.strip()
            if line and not line.startswith(";"): self.items.append(line)
    def mark(self, m): self.items.append(("MARK", m))

def slot_cost(line):
    op = line.split()[0]
    if op in TRANS or op.startswith("v_permlane"): return 2
    if op.startswith("v_mfma"): return 0
    return 1

class Side:
    def __init__(self, a, vm, vm_gap=4):
        self.a, self.vm, self.q, self.vm_gap = a, vm, [], vm_gap
        self.since_vm = 99; self.blocked = False; self.want_barrier = False
    def add(self, items): self.q += list(items)
    def step_boundary(self):
        if self.want_barrier: self.a.e("s_barrier"); self.want_barrier = False
        self.blocked = False
    def fill(self, slots):
        self.since_vm += 1
        while self.q and slots > 0 and not self.blocked:
            it = self.q[0]
            if isinstance(it, tuple) and it[0] == "STAMP":
                self.q.pop(0); continue
            if isinstance(it, tuple) and it[0] == "MARK":
                self.q.pop(0); self.blocked = True
                if it[1] == "barrier": self.want_barrier = True
                continue
            if isinstance(it, tuple) and it[0] == "VM":
                if self.since_vm < self.vm_gap: return
                self.q.pop(0)
                for pre in it[3]: self.a.e(pre)
                self.vm.issue(it[1], it[2]); self.since_vm = 0; slots -= 1 + len(it[3]); continue
            c = slot_cost(it)
            if c > slots and slots < 2: return
            self.q.pop(0); self.a.e(it); slots -= c
            if " m0," in it: return
    def flush(self):
        while self.q:
            it = self.q.pop(0)
            if isinstance(it, tuple) and it[0] == "STAMP":
                if getattr(self, "st", None): self.st.mark(it[1])
                continue
            if isinstance(it, tuple) and it[0] == "MARK":
                self.a.e("s_waitcnt lgkmcnt(0)")
                if it[1] == "barrier": self.a.e("s_barrier")
            elif isinstance(it, tuple) and it[0] == "VM":
                for pre in it[3]: self.a.e(pre)
                self.vm.issue(it[1], it[2])
            else: self.a.e(it)
        if self.want_barrier: self.a.e("s_waitcnt lgkmcnt(0)"); self.a.e("s_barrier"); self.want_barrier = False
        self.blocked = False

def gemm2(a, nsteps, lds_of, acc, abuf, xreg, first_zero, sides, extra=None, pre=None, slots=2):
    e = a.e
    def read(s, T):
        vb, imm = lds_of(s, T); r = abuf[s & 1] + 4 * T
        e(f"ds_read_b128 v[{r}:{r+3}], v{vb} offset:{imm}")
    for T in range(5): read(0, T)
    for s in range(nsteps):
        e("s_waitcnt lgkmcnt(0)")
        for sd in sides: sd.step_boundary()
        if pre: pre(s)
        mf = []
        for T in range(5):
            r = abuf[s & 1] + 4 * T
            for tt in range(2):
                d = acc(tt, T); c = "0" if (s == 0 and first_zero) else f"v[{d}:{d+3}]"
                mf.append(f"v_mfma_f32_16x16x32_bf16 v[{d}:{d+3}], v[{r}:{r+3}], {xreg(tt, s)}, {c}")
        if extra: mf += extra(s)
        for i, m in enumerate(mf):
            e(m)
            left = slots
            if s + 1 < nsteps and i < 5: read(s + 1, i); left -= 1
            for sd in sides:
                n0 = len(sd.q)
                if left > 0: sd.fill(left)
                if len(sd.q) != n0: break
```

```python
from asm import *
from layout import *

OOB = 0x40000000
XL = 143360
WP = 0
K0_LDS = XL + 10240

def ident_frag(a, dst, vdiff, tmp):
    for q in range(4):
        a.e(f"v_cmp_eq_u32 vcc, {2*q}, v{vdiff}")
        a.e(f"v_cndmask_b32 v{dst+q}, 0, v{tmp}, vcc")
        a.e(f"v_cmp_eq_u32 vcc, {2*q+1}, v{vdiff}")
        a.e(f"v_cndmask_b32 v{dst+q}, v{dst+q}, v{tmp+1}, vcc")

def xconv_finish(a, name, nyounger):
    e = a.e
    e(f"s_waitcnt vmcnt({nyounger})")
    e("buffer_store_dwordx4 v[232:235], v219, s[24:27], s58 offen")
    for r in range(3):
        if r == 2:
            e("v_cmp_gt_u32 vcc, 128, v0"); e("s_and_saveexec_b64 s[52:53], vcc")
        e(f"ds_write_b128 v{216+r}, v[{220+4*r}:{223+4*r}]")
        if r == 2: e("s_mov_b64 exec, s[52:53]")
    e("s_waitcnt lgkmcnt(0)"); e("s_barrier")
    e("v_lshlrev_b32 v236, 4, v0"); e(f"v_add_u32 v237, {XL}, v236")
    for r in range(3): e(f"ds_read_b128 v[{220+4*r}:{223+4*r}], v237 offset:{4096*r}")
    e(f"v_mov_b32 v238, {OOB}"); e("v_cmp_gt_u32 vcc, 128, v0"); e("v_cndmask_b32 v237, v238, v236, vcc")
    e("s_waitcnt lgkmcnt(0)")
    e("buffer_store_dwordx4 v[220:223], v236, s[24:27], s46 offen")
    e("s_add_u32 s46, s46, 4096"); e("buffer_store_dwordx4 v[224:227], v236, s[24:27], s46 offen")
    e("s_add_u32 s46, s46, 4096"); e("buffer_store_dwordx4 v[228:231], v237, s[24:27], s46 offen")

def gen_k0(name, code_bytes, stamps=False):
    a = Asm(); e = a.e
    st = Stamps(a, stamps, 0)
    e(f"s_cmp_ge_u32 s2, 256")
    e(f"s_cbranch_scc1 {name}_exit")
    st.mark("start")
    e("s_load_dwordx4 s[4:7], s[0:1], 8")
    e("s_load_dwordx2 s[8:9], s[0:1], 24")
    e("s_load_dwordx4 s[12:15], s[0:1], 56")
    e("s_load_dwordx2 s[16:17], s[0:1], 88")
    e("s_load_dwordx2 s[44:45], s[0:1], 0")
    e("v_and_b32 v1, 63, v0")
    e("v_lshrrev_b32 v2, 6, v0")
    e("v_and_b32 v3, 15, v1")
    e("v_lshrrev_b32 v4, 4, v1")
    e("v_readfirstlane_b32 s18, v2")
    e(f"v_mov_b32 v14, {OOB}")
    e("s_lshr_b32 s28, s2, 1"); e("s_and_b32 s29, s2, 1")
    e("s_lshr_b32 s30, s28, 3"); e("s_bfe_u32 s31, s28, 0x20001"); e("s_and_b32 s46, s28, 1")
    e("s_and_b32 s47, s30, 1"); e("s_lshl_b32 s47, s47, 10"); e("s_lshl_b32 s46, s46, 5"); e("s_add_u32 s47, s47, s46")
    e("s_lshr_b32 s30, s30, 1"); e("s_lshl_b32 s30, s30, 2"); e("s_add_u32 s47, s47, s30"); e("s_add_u32 s47, s47, s31")
    e("s_mul_i32 s47, s47, 1280"); e("s_mul_i32 s46, s29, 640"); e("s_add_u32 s47, s47, s46")
    e(f"s_mul_i32 s46, s28, {AF_WT}"); e("s_mul_i32 s30, s29, 10240"); e("s_add_u32 s46, s46, s30"); e(f"s_add_u32 s46, s46, {XIN_OFF[0]}")
    for r in range(3):
        e(f"v_add_u32 v8, {256*r}, v0"); e("v_mul_u32_u24 v9, 52429, v8"); e("v_lshrrev_b32 v9, 21, v9")
        e("v_mul_u32_u24 v10, 40, v9"); e("v_sub_u32 v10, v8, v10")
        e("v_mul_u32_u24 v11, 81920, v9"); e(f"v_lshl_add_u32 v{212+r}, v10, 4, v11")
        e("v_lshlrev_b32 v12, 4, v9"); e(f"v_lshl_add_u32 v12, v10, 8, v12"); e(f"v_add_u32 v{216+r}, {XL}, v12")
        if r == 2:
            e("v_cmp_gt_u32 vcc, 640, v8"); e(f"v_cndmask_b32 v{212+r}, v14, v{212+r}, vcc")
    e("s_lshr_b32 s56, s2, 4"); e("s_and_b32 s57, s2, 15"); e("s_mul_i32 s30, s57, 200")
    e("v_add_u32 v8, s30, v0")
    e("v_lshrrev_b32 v9, 4, v8"); e("v_mul_u32_u24 v10, 52429, v9"); e("v_lshrrev_b32 v10, 20, v10")
    e("v_mul_u32_u24 v11, 20, v10"); e("v_sub_u32 v11, v9, v11")
    e("s_lshr_b32 s57, s57, 3")
    e("s_mul_i32 s30, s57, 5"); e("v_subrev_u32 v10, s30, v10")
    e("v_and_b32 v12, 3, v8"); e("v_bfe_u32 v13, v8, 2, 2")
    e("v_lshl_add_u32 v9, v10, 2, v12"); e("v_mul_u32_u24 v9, 1280, v9")
    e("v_lshl_add_u32 v9, v11, 6, v9"); e("v_lshl_add_u32 v215, v13, 4, v9")
    e("v_mul_u32_u24 v9, 5, v11"); e("v_add_u32 v9, v9, v10"); e("v_lshlrev_b32 v9, 10, v9")
    e("v_lshl_add_u32 v12, v13, 4, v12"); e("v_lshl_add_u32 v219, v12, 4, v9")
    e("v_cmp_gt_u32 vcc, 200, v0"); e("v_cndmask_b32 v215, v14, v215, vcc"); e("v_cndmask_b32 v219, v14, v219, vcc")
    e("s_mul_i32 s59, s56, 20"); e("s_add_u32 s59, s59, 1"); e("s_mul_i32 s59, s59, 1280")
    e(f"s_mul_i32 s58, s56, {W1_C}"); e("s_add_u32 s58, s58, 102400"); e("s_add_u32 s30, s57, 2"); e("s_lshl_b32 s30, s30, 6"); e("s_add_u32 s58, s58, s30")
    e("s_waitcnt lgkmcnt(0)")
    srd(a, 24, 16, 17, 0, WS_USED)
    e(f"s_mov_b32 s48, s44"); e("s_mov_b32 s49, s45"); e(f"s_mov_b32 s50, {ACT}"); e("s_mov_b32 s51, 0x20000")
    for r in range(3): e(f"buffer_load_dwordx4 v[{220+4*r}:{223+4*r}], v{212+r}, s[48:51], s47 offen")
    e("s_cmp_eq_u32 s57, 1"); e("s_cselect_b32 s40, s14, s12"); e("s_cselect_b32 s41, s15, s13"); e(f"s_mov_b32 s42, {640*1280}"); e("s_mov_b32 s43, 0x20000")
    e("buffer_load_dwordx4 v[232:235], v215, s[40:43], s59 offen")
    e("s_lshl_b32 s19, s2, 10"); e(f"s_add_u32 s19, s19, {ZERO_OFF}")
    e("v_lshlrev_b32 v6, 2, v0"); e("v_mov_b32 v7, 0")
    e("buffer_store_dword v7, v6, s[24:27], s19 offen")
    st.mark("common")
    e("s_and_b32 s33, s2, 7"); e("s_lshr_b32 s34, s2, 3")
    e("s_cmp_ge_u32 s34, 12")
    e(f"s_cbranch_scc1 {name}_wf")

    e("s_lshr_b32 s28, s34, 2")
    e("s_and_b32 s29, s34, 3"); e("s_lshl_b32 s30, s33, 2"); e("s_add_u32 s29, s29, s30")
    srd(a, 32, 4, 5, 0, 640 * 3840)
    srd(a, 36, 6, 7, 0, 32 * 400 * 2)
    e("s_mul_i32 s30, s18, 160")
    e("v_add_u32 v8, s30, v3")
    e("s_movk_i32 s31, 3840")
    e("v_mul_lo_u32 v8, v8, s31")
    e("s_mul_i32 s30, s28, 640"); e("s_mul_i32 s31, s29, 20"); e("s_add_u32 s30, s30, s31"); e("s_lshl_b32 s30, s30, 1")
    e("v_lshlrev_b32 v9, 4, v4")
    e("v_add3_u32 v8, v8, v9, s30")
    e("v_lshlrev_b32 v10, 4, v0"); e("v_cmp_gt_u32 vcc, 50, v0"); e("v_cndmask_b32 v11, v14, v10, vcc")
    e("s_mul_i32 s30, s29, 800")
    e("buffer_load_dwordx4 v[64:67], v11, s[36:39], s30 offen")
    e("s_mov_b32 s31, 0")
    for m in range(10):
        e(f"buffer_load_dwordx4 v[{16+4*m}:{19+4*m}], v8, s[32:35], s31 offen")
        if m < 9: e("s_add_u32 s31, s31, 61440")
    for r in range(68, 72): e(f"v_mov_b32 v{r}, 0")
    e("v_cmp_gt_u32 vcc, 84, v0"); e("s_and_saveexec_b64 s[52:53], vcc")
    e("ds_write_b128 v10, v[68:71]"); e("s_mov_b64 exec, s[52:53]")
    xconv_finish(a, name, 11 + 1)
    e("s_cmp_eq_u32 s28, 2"); e(f"s_cbranch_scc1 {name}_bid")
    e("s_waitcnt vmcnt(14)")
    e("v_cmp_gt_u32 vcc, 50, v0"); e("s_and_saveexec_b64 s[52:53], vcc")
    e("ds_write_b128 v10, v[64:67]"); e("s_mov_b64 exec, s[52:53]")
    e(f"s_branch {name}_bdone")
    a.label(f"{name}_bid")
    e("v_mul_u32_u24 v10, 42, v0"); e("v_mov_b32 v11, 0x3f80")
    e("v_cmp_gt_u32 vcc, 20, v0"); e("s_and_saveexec_b64 s[52:53], vcc")
    e("ds_write_b16 v10, v11"); e("s_mov_b64 exec, s[52:53]")
    a.label(f"{name}_bdone")
    e("s_waitcnt lgkmcnt(0)"); e("s_barrier")
    e("v_lshrrev_b32 v10, 2, v3"); e("v_lshl_add_u32 v10, v4, 3, v10"); e("v_mul_u32_u24 v10, 40, v10"); e("v_and_b32 v11, 3, v1"); e("v_lshl_add_u32 v10, v11, 3, v10")
    for nt in range(2):
        e(f"ds_read_b64_tr_b16 v[{56+4*nt}:{57+4*nt}], v10 offset:{32*nt}")
        e(f"ds_read_b64_tr_b16 v[{58+4*nt}:{59+4*nt}], v10 offset:{32*nt + 160}")
    e("s_waitcnt vmcnt(4) lgkmcnt(0)")
    st.mark("f_loads")
    for m in range(10):
        for nt in range(2):
            d = 80 + 8 * m + 4 * nt
            e(f"v_mfma_f32_16x16x32_bf16 v[{d}:{d+3}], v[{16+4*m}:{19+4*m}], v[{56+4*nt}:{59+4*nt}], 0")
    for nt in range(2):
        r = 64 + 2*nt
        e(f"v_pk_add_f32 v[{r}:{r+1}], v[{80+4*nt}:{81+4*nt}], v[{82+4*nt}:{83+4*nt}]")
        for m in range(1, 10):
            for hb in range(2):
                s0 = 80 + 8*m + 4*nt + 2*hb
                e(f"v_pk_add_f32 v[{r}:{r+1}], v[{r}:{r+1}], v[{s0}:{s0+1}]")
        e(f"v_add_f32 v{r}, v{r}, v{r+1}")
    for nt in range(2):
        r = 64 + 2*nt
        e(f"v_mov_b32 v68, v{r}"); e(f"v_permlane32_swap_b32 v{r}, v68"); e(f"v_add_f32 v{r}, v{r}, v68")
        e(f"v_mov_b32 v68, v{r}"); e(f"v_permlane16_swap_b32 v{r}, v68"); e(f"v_add_f32 v{r}, v{r}, v68")
    e("v_lshlrev_b32 v69, 4, v3"); e("v_add_u32 v69, 2048, v69")
    e("s_lshl_b32 s30, s18, 2"); e("v_add_u32 v70, s30, v69")
    e("ds_write_b32 v70, v64"); e("ds_write_b32 v70, v66 offset:256")
    e("s_and_b32 s30, s29, 1")
    e("s_cmp_eq_u32 s28, 2"); e("s_cselect_b32 s31, 2, 0"); e("s_add_u32 s30, s30, s31")
    e("s_lshl_b32 s30, s30, 6")
    e("v_lshrrev_b32 v8, 1, v4"); e("v_lshlrev_b32 v8, 8, v8")
    e("v_and_b32 v9, 1, v4"); e("v_lshlrev_b32 v9, 3, v9")
    e("v_add3_u32 v8, v8, v9, s30")
    for nt in range(2):
        e(f"v_add_u32 v9, {16*nt}, v3")
        e("v_lshrrev_b32 v10, 2, v9"); e("v_lshlrev_b32 v10, 10, v10")
        e("v_and_b32 v11, 3, v9"); e("v_lshlrev_b32 v11, 4, v11")
        e(f"v_add3_u32 v{72+nt}, v8, v10, v11")
    e("v_cmp_gt_u32 vcc, 4, v3"); e("v_cndmask_b32 v73, v14, v73, vcc")
    e("s_lshr_b32 s30, s29, 1"); e(f"s_mul_i32 s30, s30, {W1_C}")
    e("s_cmp_eq_u32 s28, 0"); e("s_cselect_b32 s31, 102400, 0"); e("s_add_u32 s30, s30, s31")
    e("s_mul_i32 s31, s18, 25600"); e("s_add_u32 s30, s30, s31")
    e("s_waitcnt lgkmcnt(0)"); e("s_barrier")
    e("ds_read_b128 v[68:71], v69"); e("ds_read_b128 v[74:77], v69 offset:256")
    e("s_waitcnt lgkmcnt(0)")
    for nt, b in ((0, 68), (1, 74)):
        e(f"v_pk_add_f32 v[{b}:{b+1}], v[{b}:{b+1}], v[{b+2}:{b+3}]"); e(f"v_add_f32 v{b}, v{b}, v{b+1}")
        e(f"v_mul_f32 v{64+2*nt}, {1.0/640.0!r}, v{b}")
    st.mark("f_sums")
    for m in range(10):
        for nt in range(2):
            d = 80 + 8 * m + 4 * nt
            for hb in range(2):
                e(f"v_pk_add_f32 v[{d+2*hb}:{d+2*hb+1}], v[{d+2*hb}:{d+2*hb+1}], v[{64+2*nt}:{65+2*nt}] op_sel_hi:[1,0] neg_lo:[0,1] neg_hi:[0,1]")
            e(f"v_cvt_pk_bf16_f32 v{d}, v{d}, v{d+1}")
            e(f"v_cvt_pk_bf16_f32 v{d+1}, v{d+2}, v{d+3}")
            e(f"buffer_store_dwordx2 v[{d}:{d+1}], v{72+nt}, s[24:27], s30 offen offset:{(m&1)*512}")
        if m & 1: e("s_add_u32 s30, s30, 5120")
    st.mark("f_stores")
    e("s_cmp_eq_u32 s28, 2")
    e(f"s_cbranch_scc1 {name}_tables")
    e(f"s_branch {name}_end")

    a.label(f"{name}_wf")
    e("s_sub_u32 s34, s34, 12")
    e("s_and_b32 s28, s33, 1"); e("s_mul_i32 s28, s28, 5"); e("s_lshr_b32 s30, s34, 2"); e("s_add_u32 s28, s28, s30")
    e("s_lshr_b32 s29, s33, 1"); e("s_lshl_b32 s29, s29, 2"); e("s_and_b32 s30, s34, 3"); e("s_add_u32 s29, s29, s30")
    srd(a, 32, 8, 9, 0, 640 * 1280)
    srd(a, 36, 12, 13, 0, 640 * 1280)
    srd(a, 40, 14, 15, 0, 640 * 1280)
    e("s_and_b32 s54, s18, 1"); e("s_lshl_b32 s54, s54, 2")
    for n in range(5):
        e(f"v_add_u32 v8, {64*n}, v1"); e("v_mul_u32_u24 v9, 52429, v8"); e("v_lshrrev_b32 v9, 22, v9")
        e("v_mul_u32_u24 v20, 80, v9"); e("v_sub_u32 v20, v8, v20")
        e("v_mul_u32_u24 v21, 1280, v9"); e("v_add_u32 v9, s54, v9")
        e("v_xor_b32 v22, v20, v9"); e(f"v_lshl_add_u32 v{24+n}, v22, 4, v21")
    nd = 0
    for gi in range(4):
        e(f"s_lshl_b32 s30, s28, 6"); e("s_lshl_b32 s31, s18, 2"); e("s_add_u32 s30, s30, s31"); e(f"s_add_u32 s30, s30, {16*gi}")
        e("s_mul_i32 s31, s30, 52429"); e("s_lshr_b32 s31, s31, 21"); e("s_mul_i32 s31, s31, 40"); e("s_sub_u32 s31, s30, s31")
        e("s_cmp_eq_u32 s31, 20"); e("s_cselect_b32 s55, 16, 0"); e("s_add_u32 s30, s30, s55")
        e("s_cmp_ge_u32 s31, 24"); e("s_cselect_b32 s55, 4, 0"); e("s_sub_u32 s30, s30, s55")
        e("s_mul_i32 s30, s30, 1280")
        e(f"s_add_u32 s31, s18, {4*gi}"); e("s_mul_i32 s31, s31, 5120")
        for n in range(5):
            e(f"s_add_u32 m0, s31, {1024*n}"); e(f"buffer_load_dwordx4 v{24+n}, s[32:35], s30 offen lds"); nd += 1
    e("s_mul_i32 s55, s29, 20"); e("s_add_u32 s55, s55, 1")
    e("s_lshl_b32 s31, s18, 2"); e("s_add_u32 s30, s55, s31"); e("s_mul_i32 s30, s30, 1280")
    e("s_mul_i32 s31, s18, 5120"); e("s_add_u32 s31, s31, 81920")
    for n in range(5):
        e(f"s_add_u32 m0, s31, {1024*n}"); e(f"buffer_load_dwordx4 v{24+n}, s[36:39], s30 offen lds"); nd += 1
    e("s_add_u32 s31, s31, 20480")
    for n in range(5):
        e(f"s_add_u32 m0, s31, {1024*n}"); e(f"buffer_load_dwordx4 v{24+n}, s[40:43], s30 offen lds"); nd += 1
    e("s_add_u32 s30, s55, 16"); e("s_mul_i32 s30, s30, 1280"); e("s_add_u32 s33, s31, 20480")
    e("s_cmp_eq_u32 s18, 0"); e("s_cselect_b32 s64, s36, s40"); e("s_cselect_b32 s65, s37, s41"); e(f"s_mov_b32 s66, {640*1280}"); e("s_mov_b32 s67, 0x20000")
    e("s_cmp_ge_u32 s18, 2"); e(f"s_cbranch_scc1 {name}_wfb")
    for n in range(5):
        e(f"s_add_u32 m0, s33, {1024*n}"); e(f"buffer_load_dwordx4 v{24+n}, s[64:67], s30 offen lds")
    a.label(f"{name}_wfb")
    e("s_cmp_lt_u32 s2, 248"); e(f"s_cbranch_scc1 {name}_nopf")
    e("s_cmp_lg_u32 s18, 3"); e(f"s_cbranch_scc1 {name}_nopf")
    e("s_getpc_b64 s[20:21]")
    a.label(f"{name}_pc")
    e(f"s_sub_u32 s20, s20, {name}_pc-prog_start"); e("s_subb_u32 s21, s21, 0")
    e("v_lshlrev_b32 v5, 7, v1")
    for q in range((code_bytes + 8191) // 8192):
        e(f"v_min_u32 v6, prog_end-prog_start-4, v5"); e(f"global_load_dword v{240+q}, v6, s[20:21]"); e(f"v_add_u32 v5, 8192, v5")
    a.label(f"{name}_nopf")
    st.mark("w_issue")
    xconv_finish(a, name, 31)
    e("v_and_b32 v8, 7, v3")
    e("v_xor_b32 v9, v4, v8"); e("v_lshlrev_b32 v9, 4, v9")
    e("v_add_u32 v20, 4, v4"); e("v_xor_b32 v20, v20, v8"); e("v_lshlrev_b32 v20, 4, v20")
    e("v_mul_u32_u24 v21, 1280, v3")
    e("s_mul_i32 s30, s18, 20480")
    e("v_add3_u32 v10, v21, v9, s30"); e("v_add3_u32 v11, v21, v20, s30")
    e("s_mov_b32 s30, 81920"); e("v_add3_u32 v12, v21, v9, s30"); e("v_add3_u32 v13, v21, v20, s30")
    e("s_mul_i32 s31, s29, 5"); e("v_add_u32 v16, s31, v4"); e("v_xor_b32 v15, v16, v8"); e("v_lshlrev_b32 v15, 4, v15")
    e("v_add_u32 v16, 4, v16"); e("v_xor_b32 v16, v16, v8"); e("v_lshlrev_b32 v16, 4, v16")
    e("s_mul_i32 s30, s18, 20480"); e("v_add3_u32 v15, v21, v15, s30"); e("v_add3_u32 v16, v21, v16, s30")
    e("v_mov_b32 v22, 0x3f80"); e("v_mov_b32 v23, 0x3f800000")
    e("v_lshlrev_b32 v9, 3, v4"); e("v_sub_u32 v17, v3, v9"); e("v_add_u32 v18, 16, v17")
    ident_frag(a, 112, 17, 22)
    ident_frag(a, 116, 18, 22)
    e("s_waitcnt vmcnt(4)")
    e("s_barrier")
    st.mark("w_loads")
    e("ds_read_b128 v[104:107], v15"); e("ds_read_b128 v[108:111], v16")
    def rd(s):
        p = s & 1; b0 = 144 + 16*p
        e(f"ds_read_b128 v[{b0}:{b0+3}], v{10+p} offset:{(s>>1)*128}")
        for nt in range(3):
            e(f"ds_read_b128 v[{b0+4+4*nt}:{b0+7+4*nt}], v{12+p} offset:{nt*20480 + (s>>1)*128}")
    rd(0)
    for s in range(20):
        if s + 1 < 20: rd(s + 1); e("s_waitcnt lgkmcnt(4)")
        else: e("s_waitcnt lgkmcnt(0)")
        b0 = 144 + 16*(s & 1)
        for nt in range(3):
            c = "0" if s == 0 else f"v[{120+4*nt}:{123+4*nt}]"
            e(f"v_mfma_f32_16x16x32_bf16 v[{120+4*nt}:{123+4*nt}], v[{b0}:{b0+3}], v[{b0+4+4*nt}:{b0+7+4*nt}], {c}")
    e("v_mfma_f32_16x16x32_bf16 v[132:135], v[104:107], v[112:115], 0")
    e("v_mfma_f32_16x16x32_bf16 v[136:139], v[104:107], v[116:119], 0")
    e("v_mfma_f32_16x16x32_bf16 v[140:143], v[108:111], v[112:115], 0")
    st.mark("w_mfma")
    e("s_lshl_b32 s28, s28, 2"); e("s_add_u32 s28, s28, s18")
    e(f"s_mul_i32 s30, s29, {W2_C}"); e("s_lshr_b32 s31, s28, 1"); e("s_mul_i32 s31, s31, 5120"); e("s_add_u32 s30, s30, s31")
    e("s_and_b32 s31, s28, 1"); e("s_lshl_b32 s31, s31, 9"); e("s_add_u32 s30, s30, s31"); e(f"s_add_u32 s30, s30, {W2_OFF}")
    e("v_lshrrev_b32 v8, 1, v4"); e("v_lshlrev_b32 v8, 8, v8"); e("v_and_b32 v9, 1, v4"); e("v_lshl_add_u32 v8, v9, 3, v8")
    def xf_addr(dst, vu, ri_const=None, vri=None):
        e(f"v_lshrrev_b32 v10, 2, v{vu}"); e("v_lshlrev_b32 v10, 10, v10")
        e(f"v_and_b32 v11, 3, v{vu}")
        if ri_const is not None: e(f"v_add_u32 v11, {4*(2+ri_const)}, v11")
        else: e(f"v_lshl_add_u32 v11, v{vri}, 2, v11"); e("v_add_u32 v11, 8, v11")
        e("v_lshlrev_b32 v11, 4, v11")
        e(f"v_add3_u32 v{dst}, v8, v10, v11")
    xf_addr(16, 3, 0); xf_addr(17, 3, 1)
    e("v_and_b32 v12, 3, v3"); e("v_add_u32 v12, 16, v12"); e("v_lshrrev_b32 v13, 2, v3")
    xf_addr(18, 12, None, 13)
    e("v_cmp_gt_u32 vcc, 8, v3"); e("v_cndmask_b32 v18, v14, v18, vcc")
    for nt in range(3):
        e(f"v_add_u32 v12, {16*nt}, v3")
        e("v_cmp_le_u32 vcc, 20, v12"); e("v_cndmask_b32 v13, 0, 1, vcc")
        e("v_lshlrev_b32 v15, 2, v13"); e("v_sub_u32 v15, v12, v15")
        e("v_cmp_le_u32 vcc, 24, v12"); e("v_subrev_u32 v12, 24, v12"); e("v_cndmask_b32 v12, v15, v12, vcc")
        e("v_lshrrev_b32 v10, 2, v12"); e("v_lshlrev_b32 v10, 10, v10")
        e("v_and_b32 v11, 3, v12"); e("v_lshl_add_u32 v11, v13, 2, v11"); e("v_lshlrev_b32 v11, 4, v11")
        e(f"v_add3_u32 v{19+nt}, v8, v10, v11")
    e("v_cmp_gt_u32 vcc, 8, v3"); e("v_cndmask_b32 v21, v14, v21, vcc")
    for t in range(6):
        d = 120 + 4 * t
        e(f"v_cvt_pk_bf16_f32 v{d}, v{d}, v{d+1}")
        e(f"v_cvt_pk_bf16_f32 v{d+1}, v{d+2}, v{d+3}")
        e(f"buffer_store_dwordx2 v[{d}:{d+1}], v{16+t}, s[24:27], s30 offen")
    e(f"s_branch {name}_end")

    a.label(f"{name}_tables")
    e("s_mov_b32 s28, s29")
    e("s_cmp_gt_u32 s28, 4")
    e(f"s_cbranch_scc1 {name}_end")
    e("v_lshlrev_b32 v9, 4, v1")
    e("s_cmp_eq_u32 s28, 4")
    e(f"s_cbranch_scc1 {name}_tab2")
    e("s_lshl_b32 s29, s28, 4"); e("v_add_u32 v8, s29, v3")
    e("s_cmp_ge_u32 s18, 2")
    e(f"s_cbranch_scc1 {name}_tabtw")
    e("s_lshl_b32 s29, s18, 5"); e("v_lshlrev_b32 v10, 3, v4"); e("v_add_u32 v10, s29, v10")
    for jj in range(8):
        e(f"v_add_u32 v11, {jj}, v10"); e("v_mul_u32_u24 v11, v11, v8"); e("v_and_b32 v11, 63, v11")
        e("v_cvt_f32_u32 v11, v11"); e(f"v_mul_f32 v11, {1.0/64!r}, v11")
        e(f"v_cos_f32 v{16+jj}, v11"); e(f"v_sin_f32 v{24+jj}, v11")
    for q in range(4):
        e(f"v_cvt_pk_bf16_f32 v{32+q}, v{16+2*q}, v{17+2*q}")
        e(f"v_cvt_pk_bf16_f32 v{40+q}, v{24+2*q}, v{25+2*q}")
        e(f"v_xor_b32 v{36+q}, 0x80008000, v{40+q}")
    e("s_mul_i32 s29, s28, 6144"); e("s_lshl_b32 s30, s18, 10"); e("s_add_u32 s29, s29, s30"); e(f"s_add_u32 s29, s29, {TAB_OFF + TAB_W64}")
    for var in range(3):
        if var == 2: e("s_add_u32 s29, s29, 4096")
        e(f"buffer_store_dwordx4 v[{32+4*var}:{35+4*var}], v9, s[24:27], s29 offen offset:{2048*(var&1)}")
    e(f"s_branch {name}_end")
    a.label(f"{name}_tabtw")
    e("s_cmp_lg_u32 s18, 2")
    e(f"s_cbranch_scc1 {name}_end")
    for T in range(2):
        for b in range(4):
            e(f"v_lshlrev_b32 v11, 2, v4"); e(f"v_add_u32 v11, {16*T+b}, v11"); e("v_mul_u32_u24 v11, v11, v8")
            e("v_cvt_f32_u32 v11, v11"); e(f"v_mul_f32 v11, {1.0/2048!r}, v11")
            e(f"v_cos_f32 v{16+4*T+b}, v11"); e(f"v_sin_f32 v{24+4*T+b}, v11")
    e("s_lshl_b32 s29, s28, 12"); e(f"s_add_u32 s29, s29, {TAB_OFF + TAB_TW}")
    for q in range(4):
        e(f"buffer_store_dwordx4 v[{16+4*q}:{19+4*q}], v9, s[24:27], s29 offen offset:{1024*q}")
    e(f"s_branch {name}_end")
    a.label(f"{name}_tab2")
    e("s_cmp_ge_u32 s18, 2")
    e(f"s_cbranch_scc1 {name}_end")
    e("s_lshl_b32 s29, s18, 4"); e("v_add_u32 v8, s29, v3")
    for jj in range(8):
        e(f"v_lshlrev_b32 v11, 2, v4"); e(f"v_add_u32 v11, {16*(jj>>2) + (jj&3)}, v11"); e("v_mul_u32_u24 v11, v11, v8"); e("v_and_b32 v11, 31, v11")
        e("v_cvt_f32_u32 v11, v11"); e(f"v_mul_f32 v11, {1.0/32!r}, v11")
        e(f"v_cos_f32 v{16+jj}, v11"); e(f"v_sin_f32 v{24+jj}, v11")
    for q in range(4):
        e(f"v_cvt_pk_bf16_f32 v{32+q}, v{16+2*q}, v{17+2*q}")
        e(f"v_cvt_pk_bf16_f32 v{36+q}, v{24+2*q}, v{25+2*q}")
    e("s_lshl_b32 s29, s18, 11"); e(f"s_add_u32 s29, s29, {TAB_OFF + TAB_S2}")
    e("buffer_store_dwordx4 v[32:35], v9, s[24:27], s29 offen")
    e("buffer_store_dwordx4 v[36:39], v9, s[24:27], s29 offen offset:1024")
    a.label(f"{name}_end")
    if stamps:
        e("s_waitcnt vmcnt(0)"); st.mark("end"); st.flush(16, 17, 18)
    a.label(f"{name}_exit")
    e("s_endpgm")
    gen_k0.names = st.names
    return kernel_header(name) + a.text() + kernel_desc(name, 256, 0, 102 if stamps else 72)
```

```python
from asm import *
from layout import *
OOB = 0x40000000
TB = 40960
ROWP = 272

def x_items(X, s, srd="s[4:7]", extra=""):
    it = []
    if s % 4 == 0 and s > 0:
        it += ["s_add_u32 s20, s20, 4096", "s_add_u32 s35, s35, 4096"]
    it.append(("VM", f"buffer_load_dwordx4 {X(0,s)}, v5, {srd}, s20 offen offset:{1024*(s%4)}{extra}", f"s{s}", []))
    it.append(("VM", f"buffer_load_dwordx4 {X(1,s)}, v5, {srd}, s35 offen offset:{1024*(s%4)}{extra}", f"s{s}", []))
    return it
def dma_item(off, srd, tag):
    return [f"s_add_u32 m0, s21, {off}", ("VM", f"buffer_load_dwordx4 v5, {srd}, m0 offen lds", tag, [])]
def w_items(s, base, srd, tagf):
    G, r = divmod(s, 4)
    js = [0, 1] if r == 0 else [r + 1]
    it = []
    for j in js: it += dma_item(base + G*20480 + j*4096, srd, tagf(s))
    return it
def emit_now(a, vm, items):
    for it in items:
        if isinstance(it, tuple): vm.issue(it[1], it[2])
        else: a.e(it)

def epiA_items(layer, packed=False):
    r = Rec(); e = r.e
    e("v_permlane32_swap_b32 v136, v140")
    for tt in range(2):
        g0 = 144 + 4*tt
        e(f"v_cndmask_b32 v{g0}, v{g0}, v{g0+1}, s[24:25]")
        e(f"v_cndmask_b32 v{g0}, v{g0}, v{g0+2}, s[26:27]")
        e(f"v_cndmask_b32 v{g0}, v{g0}, v{g0+3}, s[28:29]")
    e("ds_bpermute_b32 v145, v9, v144"); e("ds_bpermute_b32 v149, v9, v148")
    for u in range(20): e(f"v_permlane32_swap_b32 v{56+u}, v{76+u}")
    r.mark("step"); r.items.append(("STAMP", "swaps"))
    e("v_permlane32_swap_b32 v145, v149")
    e(f"v_mul_f32 v136, {1/640!r}, v136")
    e(f"v_mul_f32 v145, {1/640!r}, v145")
    e("v_fma_f32 v145, -v136, v136, v145")
    e("v_max_f32 v145, 0, v145")
    e("v_add_f32 v145, 0x3727c5ac, v145")
    e("v_rsq_f32 v8, v145")
    e("v_lshrrev_b32 v12, 5, v1"); e("v_lshl_add_u32 v12, v12, 4, v2"); e("s_lshl_b32 s19, s18, 5"); e("v_add_u32 v12, s19, v12")
    e(f"v_mul_f32 v10, {LOG2E!r}, v8")
    e(f"v_mul_u32_u24 v12, {ROWP}, v12"); e(f"v_add_u32 v12, {TB}, v12")
    e("v_and_b32 v13, 1, v3")
    e("v_mul_u32_u24 v14, 48, v13"); e("v_add_u32 v14, v12, v14")
    e("v_mul_u32_u24 v13, 80, v13"); e("v_add_u32 v13, v12, v13")
    for u in range(20): e(f"v_mul_f32 v{76+u}, v8, v{76+u}")
    for q in range(10): e(f"v_cvt_pk_bf16_f32 v{196+q}, v{76+2*q}, v{77+2*q}")
    e("v_mov_b32 v206, 0x3f80"); e("v_mov_b32 v207, 0")
    for q in range(3): e(f"ds_write_b128 v14, v[{196+4*q}:{199+4*q}] offset:{160+16*q}")
    r.items.append(("STAMP", "vpart"))
    if packed: softmax_pair_pk(r, 56, 10, 156, 208, 176)
    else: softmax_pair(r, list(range(56, 76)), 10, 156, 208, 176)
    r.items.append(("STAMP", "softmax"))
    for q in range(5): e(f"ds_write_b128 v13, v[{176+4*q}:{179+4*q}] offset:{16*q}")
    e("v_lshrrev_b32 v12, 2, v2"); e("v_lshl_add_u32 v12, v3, 3, v12")
    e(f"v_mul_u32_u24 v12, {ROWP}, v12"); e("v_and_b32 v13, 3, v1"); e("v_lshl_add_u32 v12, v13, 3, v12"); e(f"v_add_u32 v12, {TB}, v12")
    e("s_lshr_b32 s19, s18, 1"); e("s_and_b32 s23, s18, 1")
    e("s_mul_i32 s3, s19, 48"); e("s_lshl_b32 s33, s23, 5"); e("s_add_u32 s3, s3, s33"); e("s_add_u32 s3, s3, 160")
    e("v_add_u32 v13, s3, v12")
    e("s_mul_i32 s3, s19, 80"); e("v_add_u32 v12, s3, v12")
    r.mark("barrier"); r.items.append(("STAMP", "wbar"))
    B = lambda nt, ks: (56 + 16*nt + 4*ks) if nt < 2 else (156 + 4*ks)
    for ks in range(4):
        e(f"ds_read_b64_tr_b16 v[{216+4*ks}:{217+4*ks}], v13 offset:{ks*32*ROWP}")
        e(f"ds_read_b64_tr_b16 v[{218+4*ks}:{219+4*ks}], v13 offset:{ks*32*ROWP + 4*ROWP}")
        for nt in range(3):
            b = B(nt, ks)
            e(f"ds_read_b64_tr_b16 v[{b}:{b+1}], v12 offset:{ks*32*ROWP + 32*nt}")
            e(f"ds_read_b64_tr_b16 v[{b+2}:{b+3}], v12 offset:{ks*32*ROWP + 4*ROWP + 32*nt}")
    e("s_lshl_b32 s3, s23, 4"); e("v_lshlrev_b32 v14, 2, v3"); e("v_add_u32 v14, s3, v14")
    e("v_mul_u32_u24 v15, 160, v14"); e("v_lshl_add_u32 v15, v2, 2, v15")
    e("s_lshl_b32 s3, s17, 1"); e("s_add_u32 s3, s3, s19"); e("s_mul_i32 s3, s3, 3360"); e(f"s_add_u32 s33, s3, {KV_OFF[layer]}")
    e(f"v_mov_b32 v212, {OOB}")
    e("v_cmp_ge_u32 vcc, 20, v14"); e("v_cndmask_b32 v208, v212, v15, vcc")
    e("v_cmp_ge_u32 vcc, 17, v14"); e("v_cndmask_b32 v209, v212, v15, vcc")
    e("v_cmp_gt_u32 vcc, 8, v2"); e("v_cndmask_b32 v210, v212, v208, vcc"); e("v_cndmask_b32 v211, v212, v209, vcc")
    r.mark("step"); r.items.append(("STAMP", "trread"))
    for ks in range(4):
        for nt in range(3):
            b = B(nt, ks); d = 176 + 4*nt
            c = "0" if ks == 0 else f"v[{d}:{d+3}]"
            e(f"v_mfma_f32_16x16x32_bf16 v[{d}:{d+3}], v[{216+4*ks}:{219+4*ks}], v[{b}:{b+3}], {c}")
    r.mark("step"); r.items.append(("STAMP", "kvmfma"))
    for nt in range(3):
        for b in range(4):
            vo = 208 + (0 if b == 0 else 1) + (2 if nt == 2 else 0)
            r.items.append(("VM", f"buffer_atomic_add_f32 v{176+4*nt+b}, v{vo}, s[12:15], s33 offen offset:{160*b + 64*nt}", "at", []))
    return r.items

def gen_k1(name, layer, stamps=False, LEAD=4, BAR=1, interleave=True, VMGAP=4):
    a = Asm(); e = a.e; vm = VM(a); st = Stamps(a, stamps, 1 + 4*layer)
    e("s_cmp_ge_u32 s2, 256")
    e(f"s_cbranch_scc1 {name}_end")
    st.mark("start")
    e("s_load_dwordx2 s[30:31], s[0:1], 88")
    wg_to_rc(a, 16, 17, 19)
    e("v_and_b32 v1, 63, v0"); e("v_lshrrev_b32 v2, 6, v0")
    e("v_readfirstlane_b32 s18, v2")
    e("v_and_b32 v2, 15, v1"); e("v_lshrrev_b32 v3, 4, v1")
    e("v_lshlrev_b32 v5, 4, v1")
    e("v_add_u32 v6, 61440, v5"); e("v_add_u32 v7, 102400, v5")
    e("s_lshl_b32 s19, s16, 2"); e("s_add_u32 s19, s19, s18"); e(f"s_mul_i32 s19, s19, {2*AF_WT}"); e(f"s_add_u32 s19, s19, {XIN_OFF[layer]}")
    e(f"s_mul_i32 s34, s17, {W1_C}")
    e("s_lshl_b32 s21, s18, 10")
    e("s_mov_b32 s20, 0"); e(f"s_mov_b32 s35, {AF_WT}")
    e("s_waitcnt lgkmcnt(0)")
    e("s_add_u32 s4, s30, s19"); e("s_addc_u32 s5, s31, 0"); e(f"s_mov_b32 s6, {2*AF_WT}"); e("s_mov_b32 s7, 0x20000")
    e("s_add_u32 s8, s30, s34"); e("s_addc_u32 s9, s31, 0"); e(f"s_mov_b32 s10, {163840}"); e("s_mov_b32 s11, 0x20000")
    X = lambda tt, s: f"a[{(2*s+tt)*4}:{(2*s+tt)*4+3}]"
    tag = lambda s: f"s{s}"
    L = lambda s: w_items(s, 0, "s[8:11]", tag) + x_items(X, s)
    for s in range(LEAD): emit_now(a, vm, L(s))
    e("s_add_u32 s36, s8, 163840"); e("s_addc_u32 s37, s9, 0"); e("s_mov_b32 s38, 40960"); e("s_mov_b32 s39, 0x20000")
    srd(a, 12, 30, 31, 0, WS_USED)
    for r in range(152, 156): e(f"v_mov_b32 v{r}, 0x3f803f80")
    e("v_and_b32 v8, 3, v2")
    e("v_cmp_eq_u32 s[24:25], 1, v8"); e("v_cmp_eq_u32 s[26:27], 2, v8"); e("v_cmp_eq_u32 s[28:29], 3, v8")
    e("v_lshrrev_b32 v9, 2, v2"); e("v_lshl_add_u32 v9, v9, 4, v2"); e("v_lshlrev_b32 v9, 2, v9")
    sideA = Side(a, vm, VMGAP)
    for s in range(LEAD, 20): sideA.add(L(s))
    for s in range(12): sideA.add(w_items(s, 102400, "s[8:11]", lambda s: f"p{s//4}"))
    st.mark("issued")
    vm.wait("s0" if BAR == 1 else "s1"); e("s_barrier")
    st.mark("c0")
    accA = lambda tt, T: 56 + 20*tt + 4*T
    accB = lambda tt, T: 96 + 20*tt + 4*T
    def lds0(s, T):
        off = (s*5+T)*1024
        return (5, off) if s < 12 else (6, off - 61440)
    def pre0(s):
        if BAR == 1:
            if s + 1 < 20: need = s + 1
            else: return
        else:
            if s % 2 == 1 and s + 1 < 20: need = min(s + 2, 19)
            else: return
        while f"s{need}" not in vm.q and any(isinstance(i, tuple) and i[0] == "VM" and i[2] == f"s{need}" for i in sideA.q):
            sideA.since_vm = 99; sideA.fill(4)
        while any(isinstance(i, tuple) and i[0] == "VM" and i[2] == f"s{need}" for i in sideA.q):
            sideA.since_vm = 99; sideA.fill(4)
        if f"s{need}" in vm.q: vm.wait(f"s{need}")
        e("s_barrier")
    def extra0(s):
        out = []
        for tt in range(2):
            c0 = "0" if s == 0 else f"v[{136+4*tt}:{139+4*tt}]"
            c1 = "0" if s == 0 else f"v[{144+4*tt}:{147+4*tt}]"
            out.append(f"v_mfma_f32_16x16x32_bf16 v[{136+4*tt}:{139+4*tt}], v[152:155], {X(tt,s)}, {c0}")
            out.append(f"v_mfma_f32_16x16x32_bf16 v[{144+4*tt}:{147+4*tt}], {X(tt,s)}, {X(tt,s)}, {c1}")
        return out
    gemm2(a, 20, lds0, accA, (16, 36), X, True, [sideA], extra0, pre0)
    sideA.flush()
    st.mark("passA")
    vm.wait("p0"); e("s_barrier")
    sideB = Side(a, vm, VMGAP)
    for s in range(12, 20): sideB.add(w_items(s, -61440, "s[36:39]", lambda s: f"p{s//4}"))
    if interleave: sideB.add(epiA_items(layer))
    else:
        tmp = Side(a, vm, VMGAP); tmp.add(sideB.q); sideB.q = []; tmp.add([("STAMP", "dma34")]); tmp.add(epiA_items(layer, True)); tmp.st = st; tmp.flush()
    st.mark("epiA")
    def lds1(s, T):
        off = (s*5+T)*1024
        return (7, off) if s < 12 else (5, off - 61440)
    def pre1(s):
        if s % 4 == 3 and s < 19:
            t = f"p{(s+1)//4}"
            while any(isinstance(i, tuple) and i[0] == "VM" and i[2] == t for i in sideB.q):
                sideB.since_vm = 99; sideB.fill(4)
            if t in vm.q: vm.wait(t)
            e("s_barrier")
    gemm2(a, 20, lds1, accB, (16, 36), X, True, [sideB], None, pre1)
    st.mark("passB")
    sideB.flush()
    st.mark("flushB")
    for u in range(20): e(f"v_permlane32_swap_b32 v{96+u}, v{116+u}")
    e("s_lshl_b32 s3, s16, 4"); e("s_add_u32 s3, s3, s17"); e("s_lshl_b32 s3, s3, 2"); e("s_add_u32 s3, s3, s18"); e("s_mul_i32 s3, s3, 5120")
    e(f"s_add_u32 s19, s3, {XF0_OFF[layer]}"); e(f"s_add_u32 s23, s3, {PHIQ_OFF[layer]}")
    e("s_add_u32 s33, s19, 4096"); e("s_add_u32 s34, s23, 4096")
    for q in range(5):
        so, im = ("s19", 1024*q) if q < 4 else ("s33", 0)
        e(f"buffer_store_dwordx4 v[{116+4*q}:{119+4*q}], v5, s[12:15], {so} offen offset:{im}")
    softmax_pair_pk(a, 96, 10, 156, 208, 176)
    for q in range(5):
        so, im = ("s23", 1024*q) if q < 4 else ("s34", 0)
        e(f"buffer_store_dwordx4 v[{176+4*q}:{179+4*q}], v5, s[12:15], {so} offen offset:{im}")
    st.mark("epiB")
    if stamps: e("s_waitcnt vmcnt(0)"); st.mark("drain")
    st.flush(30, 31, 18)
    a.label(f"{name}_end")
    e("s_endpgm")
    gen_k1.names = st.names
    return kernel_header(name) + a.text() + kernel_desc(name, 232, 160, 102 if stamps else 64)
```

```python
from asm import *
from layout import *
OOB = 0x40000000
RB = 0
YB = 8704
TBL = 34048

def af_addr(a, dst, vt, t0, t1):
    e = a.e
    e(f"v_and_b32 v{t0}, 31, v{vt}")
    e(f"v_lshrrev_b32 v{t1}, 5, v{vt}")
    e(f"v_lshrrev_b32 v{dst}, 2, v{t0}"); e(f"v_lshlrev_b32 v{dst}, 4, v{dst}")
    e(f"v_and_b32 v{t0}, 3, v{t0}"); e(f"v_lshl_add_u32 v{dst}, v{t0}, 1, v{dst}")
    e(f"v_lshrrev_b32 v{t0}, 5, v{t1}"); e(f"v_lshl_add_u32 v{dst}, v{t0}, 3, v{dst}")
    e(f"v_and_b32 v{t0}, 1, v{t1}"); e(f"v_add_u32 v{dst}, v{dst}, v{t0}")
    e(f"v_mul_u32_u24 v{dst}, {AF_WT}, v{dst}")
    e(f"v_bfe_u32 v{t0}, v{t1}, 1, 4"); e(f"v_lshl_add_u32 v{dst}, v{t0}, 4, v{dst}")

def gen_k3(name, layer, stamps=False):
    a = Asm(); e = a.e; vm = VM(a); sm = Stamps(a, stamps, 3 + 4*layer)
    e("s_cmp_ge_u32 s2, 160")
    e(f"s_cbranch_scc1 {name}_end")
    sm.mark("start")
    e("s_load_dwordx2 s[30:31], s[0:1], 88")
    if layer == 1: e("s_load_dwordx2 s[24:25], s[0:1], 72")
    e("s_and_b32 s16, s2, 7"); e("s_lshr_b32 s17, s2, 3"); e("s_lshr_b32 s19, s17, 2"); e("s_lshl_b32 s19, s19, 3")
    e("s_add_u32 s16, s16, s19")
    e("s_and_b32 s17, s17, 3")
    e("v_and_b32 v1, 63, v0"); e("v_lshrrev_b32 v2, 6, v0")
    e("v_readfirstlane_b32 s18, v2")
    e("v_and_b32 v2, 15, v1"); e("v_lshrrev_b32 v3, 4, v1")
    e("v_lshlrev_b32 v5, 4, v1")
    e("v_lshlrev_b32 v6, 4, v0")
    e(f"v_mov_b32 v20, {OOB}"); e("v_cmp_gt_u32 vcc, 512, v0"); e("v_cndmask_b32 v7, v20, v6, vcc")
    e("s_lshl_b32 s3, s16, 3"); e("s_add_u32 s3, s3, s18"); e("s_sub_u32 s20, s3, 1"); e("s_lshl_b32 s20, s20, 13"); e(f"s_add_u32 s20, s20, {XF_OFF[layer]}")
    e("s_cmp_eq_u32 s3, 0"); e(f"s_cselect_b32 s3, {OOB}, 0"); e("v_add_u32 v4, s3, v5"); e("s_add_u32 s21, s20, 4096")
    e(f"s_mov_b32 s22, {ST_OFF[layer]}"); e(f"s_mov_b32 s23, {ST_OFF[layer] + 8192}")
    e("s_waitcnt lgkmcnt(0)")
    srd(a, 12, 30, 31, 0, WS_USED)
    vm.issue("buffer_load_dwordx4 v[8:11], v7, s[12:15], s22 offen", "st")
    vm.issue("buffer_load_dwordx4 v[12:15], v7, s[12:15], s23 offen", "st")
    e("s_cmp_ge_u32 s18, 7"); e(f"s_cbranch_scc1 {name}_notab")
    for h in range(2):
        e(f"s_lshl_b32 s3, s18, 1");
        if h: e("s_add_u32 s3, s3, 1")
        e("s_lshl_b32 s19, s3, 10")
        e("s_mul_i32 s33, s17, 6144"); e(f"s_add_u32 s33, s33, {TAB_OFF + TAB_W64}")
        e("s_lshl_b32 s34, s17, 12"); e(f"s_add_u32 s34, s34, {TAB_OFF + TAB_TW - 6144}")
        e("s_cmp_ge_u32 s3, 6"); e("s_cselect_b32 s33, s34, s33")
        e("s_cmp_ge_u32 s3, 10"); e(f"s_cselect_b32 s33, {TAB_OFF + TAB_S2 - 10240}, s33")
        e("s_add_u32 s33, s33, s19")
        e(f"s_add_u32 m0, s19, {TBL}")
        e("buffer_load_dwordx4 v5, s[12:15], s33 offen lds")
    a.label(f"{name}_notab")
    Xr = lambda T, st, ri: 32 + ((T*2+st)*2+ri)*4
    for T in range(2):
        for st in range(2):
            for ri in range(2):
                r = Xr(T, st, ri)
                vm.issue(f"buffer_load_dwordx4 v[{r}:{r+3}], v4, s[12:15], {'s21' if ri else 's20'} offen offset:{T*2048 + st*1024}", f"d{T}{st}")
    e("v_lshrrev_b32 v16, 5, v0"); e("v_and_b32 v17, 31, v0"); e("v_lshl_add_u32 v16, v17, 6, v16"); e("s_lshl_b32 s3, s17, 4"); e("v_add_u32 v16, s3, v16")
    e("v_sub_u32 v17, 2048, v16"); e("v_and_b32 v17, 2047, v17")
    af_addr(a, 18, 16, 22, 21); af_addr(a, 19, 17, 22, 21)
    e("v_cmp_gt_u32 vcc, 512, v0"); e("v_cndmask_b32 v18, v20, v18, vcc"); e("v_cndmask_b32 v19, v20, v19, vcc")
    e("s_lshl_b32 s20, s16, 8"); e("s_sub_u32 s22, 20224, s20")
    e(f"s_add_u32 s21, s20, {X1_OFF[layer]}"); e(f"s_add_u32 s23, s22, {X1_OFF[layer]}")
    e("buffer_load_dwordx4 v[24:27], v18, s[12:15], s21 offen")
    e("buffer_load_dwordx4 v[28:31], v19, s[12:15], s23 offen")
    sm.mark("issued")
    e("s_waitcnt vmcnt(10)")
    for q in range(4):
        e(f"v_mul_f32 v{8+q}, {1/640!r}, v{8+q}")
        e(f"v_mul_f32 v{12+q}, {1/640!r}, v{12+q}")
        e(f"v_fma_f32 v{12+q}, -v{8+q}, v{8+q}, v{12+q}")
        e(f"v_max_f32 v{12+q}, 0, v{12+q}")
        e(f"v_add_f32 v{12+q}, 0x3727c5ac, v{12+q}")
        e(f"v_rsq_f32 v{12+q}, v{12+q}")
    e("v_lshrrev_b32 v8, 4, v0"); e("v_mul_u32_u24 v8, 272, v8"); e("v_and_b32 v9, 15, v0"); e("v_lshl_add_u32 v8, v9, 4, v8")
    e("s_cmp_eq_u32 s18, 8"); e(f"s_cbranch_scc1 {name}_nor")
    e("ds_write_b128 v8, v[12:15]")
    a.label(f"{name}_nor")
    e("s_waitcnt lgkmcnt(0)"); e("s_barrier")
    sm.mark("rtab")
    e("v_mul_u32_u24 v8, 272, v2"); e("v_lshl_add_u32 v8, v3, 5, v8")
    e(f"v_add_u32 v9, {TBL}, v5")
    RR = lambda T, st: 64 + (T*2+st)*8
    for T in range(2):
        for st in range(2):
            r = RR(T, st)
            e(f"ds_read_b128 v[{r}:{r+3}], v8 offset:{T*16*272 + st*128}")
            e(f"ds_read_b128 v[{r+4}:{r+7}], v8 offset:{T*16*272 + st*128 + 16}")
    for k in range(6): e(f"ds_read_b128 v[{96+4*k}:{99+4*k}], v9 offset:{k*1024}")
    W = lambda var, st: 96 + (var*2+st)*4
    ng = 0
    for T in range(2):
        for st in range(2):
            e(f"s_waitcnt vmcnt({2*(3-ng) + 2})" + (" lgkmcnt(6)" if ng == 0 else ""))
            if ng == 1:
                for k in range(8): e(f"ds_read_b128 v[{120+4*k}:{123+4*k}], v9 offset:{6144 + k*1024}")
            for ri in range(2):
                d = Xr(T, st, ri); r = RR(T, st)
                for q in range(4):
                    t0 = 20 + 2*(q & 1)
                    e(f"v_lshlrev_b32 v{t0}, 16, v{d+q}"); e(f"v_and_b32 v{t0+1}, 0xffff0000, v{d+q}")
                    e(f"v_pk_mul_f32 v[{t0}:{t0+1}], v[{t0}:{t0+1}], v[{r+2*q}:{r+2*q+1}]")
                    e(f"v_cvt_pk_bf16_f32 v{d+q}, v{t0}, v{t0+1}")
            ng += 1
    sm.mark("scaled")
    e("s_waitcnt lgkmcnt(0)")
    G = lambda T, ri: 152 + (T*2+ri)*4
    def mf(d, A, B, first):
        c = "0" if first else f"v[{d}:{d+3}]"
        e(f"v_mfma_f32_16x16x32_bf16 v[{d}:{d+3}], v[{A}:{A+3}], v[{B}:{B+3}], {c}")
    for T in range(2):
        for st in range(2):
            mf(G(T,0), Xr(T,st,0), W(0,st), st == 0)
            mf(G(T,1), Xr(T,st,0), W(1,st), st == 0)
        for st in range(2):
            mf(G(T,0), Xr(T,st,1), W(2,st), False)
            mf(G(T,1), Xr(T,st,1), W(0,st), False)
    for T in range(2):
        for b in range(4):
            c, s = 120 + 4*T + b, 128 + 4*T + b
            gr, gi = G(T,0) + b, G(T,1) + b
            e(f"v_mul_f32 v{32+4*T+b}, v{gr}, v{c}"); e(f"v_mul_f32 v{40+4*T+b}, v{gi}, v{c}")
            e(f"v_fmac_f32 v{32+4*T+b}, v{gi}, v{s}"); e(f"v_fma_f32 v{40+4*T+b}, -v{gr}, v{s}, v{40+4*T+b}")
    for q in range(4):
        e(f"v_cvt_pk_bf16_f32 v{48+q}, v{32+2*q}, v{33+2*q}")
        e(f"v_cvt_pk_bf16_f32 v{52+q}, v{40+2*q}, v{41+2*q}")
    e("v_mul_u32_u24 v8, 33, v2"); e("v_lshl_add_u32 v8, v3, 2, v8"); e("v_mul_u32_u24 v8, 48, v8"); e("s_lshl_b32 s3, s18, 2"); e(f"s_add_u32 s3, s3, {YB}"); e("v_add_u32 v8, s3, v8")
    for T2 in range(2):
        mf(56 + 4*T2, 136 + 8*T2, 48, True)
    for T2 in range(2):
        mf(56 + 4*T2, 140 + 8*T2, 52, False)
    sm.mark("fft")
    for T2 in range(2):
        for b in range(4):
            e(f"ds_write_b32 v8, v{56+4*T2+b} offset:{768*T2 + 48*b}")
    e("s_waitcnt lgkmcnt(0)"); e("s_barrier")
    sm.mark("ybar")
    e("s_cmp_eq_u32 s18, 8"); e(f"s_cbranch_scc1 {name}_end")
    e("v_lshrrev_b32 v8, 5, v0"); e("v_mul_u32_u24 v8, 33, v8"); e("v_and_b32 v9, 31, v0"); e("v_add_u32 v8, v8, v9"); e("v_mul_u32_u24 v8, 48, v8")
    e(f"ds_read_b128 v[32:35], v8 offset:{YB}"); e(f"ds_read_b128 v[36:39], v8 offset:{YB+16}"); e(f"ds_read_b32 v64, v8 offset:{YB+32}")
    e("s_waitcnt vmcnt(0)")
    for q in range(4):
        e(f"v_lshlrev_b32 v{40+2*q}, 16, v{24+q}"); e(f"v_and_b32 v{41+2*q}, 0xffff0000, v{24+q}")
        e(f"v_lshlrev_b32 v{48+2*q}, 16, v{28+q}"); e(f"v_and_b32 v{49+2*q}, 0xffff0000, v{28+q}")
    e("s_waitcnt lgkmcnt(0)")
    for q in range(8):
        e(f"v_add_f32 v{40+q}, v{40+q}, v{32+q}")
        e(f"v_add_f32 v{48+q}, v{48+q}, v{64 if q == 0 else 40-q}")
    for q in range(4):
        e(f"v_cvt_pk_bf16_f32 v{56+q}, v{40+2*q}, v{41+2*q}")
        e(f"v_cvt_pk_bf16_f32 v{60+q}, v{48+2*q}, v{49+2*q}")
    if layer == 0:
        e(f"s_add_u32 s21, s20, {XIN_OFF[1]}"); e(f"s_add_u32 s23, s22, {XIN_OFF[1]}")
        e("buffer_store_dwordx4 v[56:59], v18, s[12:15], s21 offen sc1")
        e("buffer_store_dwordx4 v[60:63], v19, s[12:15], s23 offen sc1")
    else:
        e(f"s_mov_b32 s26, {ACT}"); e("s_mov_b32 s27, 0x20000")
        e("v_mul_u32_u24 v18, 1280, v16"); e("v_mul_u32_u24 v19, 1280, v17")
        e("s_lshl_b32 s20, s16, 4"); e("s_sub_u32 s22, 1264, s20")
        e("buffer_store_dwordx4 v[56:59], v18, s[24:27], s20 offen")
        e("buffer_store_dwordx4 v[60:63], v19, s[24:27], s22 offen")
    if stamps:
        sm.mark("stored"); e("s_waitcnt vmcnt(0)"); sm.mark("drain"); sm.flush(30, 31, 18)
    a.label(f"{name}_end")
    e("s_endpgm")
    gen_k3.names = sm.names
    return kernel_header(name) + a.text() + kernel_desc(name, 168, 0, 102 if stamps else 64)
K3_LDS = TBL + 14336
```

```python
from asm import *
from layout import *
from k1b import x_items, dma_item, w_items, emit_now
OOB = 0x40000000
TB = 40960
ROWP = 272
KVT = 75776
XB = 81920
SPIN = 1 << 16

def signal(a, s_off, lab):
    e = a.e
    e("s_barrier")
    e("s_cmp_lg_u32 s18, 0"); e(f"s_cbranch_scc1 {lab}")
    e("v_mov_b32 v240, 0"); e("v_mov_b32 v241, 1")
    e("s_mov_b64 s[40:41], exec"); e("s_mov_b64 exec, 1")
    e(f"buffer_atomic_add v241, v240, s[12:15], {s_off} offen sc1")
    e("s_mov_b64 exec, s[40:41]")
    a.label(lab)
def wait_cnt(a, s_off, target, lab):
    e = a.e
    e("s_cmp_lg_u32 s18, 0"); e(f"s_cbranch_scc1 {lab}_done")
    e("v_mov_b32 v240, 0"); e(f"s_mov_b32 s42, {SPIN}")
    a.label(f"{lab}_loop")
    e(f"buffer_load_dword v241, v240, s[12:15], {s_off} offen sc1")
    e("s_waitcnt vmcnt(0)")
    e("v_readfirstlane_b32 s43, v241")
    e(f"s_cmp_ge_u32 s43, {target}"); e(f"s_cbranch_scc1 {lab}_done")
    e("s_sub_u32 s42, s42, 1"); e("s_cmp_lg_u32 s42, 0"); e(f"s_cbranch_scc1 {lab}_loop")
    a.label(f"{lab}_done")
    e("s_barrier")

def epiA_head(r):
    e = r.e
    e("v_permlane32_swap_b32 v136, v140")
    for tt in range(2):
        g0 = 144 + 4*tt
        e(f"v_cndmask_b32 v{g0}, v{g0}, v{g0+1}, s[24:25]")
        e(f"v_cndmask_b32 v{g0}, v{g0}, v{g0+2}, s[26:27]")
        e(f"v_cndmask_b32 v{g0}, v{g0}, v{g0+3}, s[28:29]")
    e("ds_bpermute_b32 v145, v9, v144"); e("ds_bpermute_b32 v149, v9, v148")
    for u in range(20): e(f"v_permlane32_swap_b32 v{56+u}, v{76+u}")
    r.mark("step")
    e("v_permlane32_swap_b32 v145, v149")
    e(f"v_mul_f32 v136, {1/640!r}, v136")
    e(f"v_mul_f32 v145, {1/640!r}, v145")
    e("v_fma_f32 v145, -v136, v136, v145")
    e("v_max_f32 v145, 0, v145")
    e("v_add_f32 v145, 0x3727c5ac, v145")
    e("v_rsq_f32 v8, v145")
    e("v_lshrrev_b32 v12, 5, v1"); e("v_lshl_add_u32 v12, v12, 4, v2"); e("s_lshl_b32 s19, s18, 5"); e("v_add_u32 v12, s19, v12")
    e(f"v_mul_f32 v10, {LOG2E!r}, v8")
    e(f"v_mul_u32_u24 v12, {ROWP}, v12"); e(f"v_add_u32 v12, {TB}, v12")
    e("v_and_b32 v13, 1, v3")
    e("v_mul_u32_u24 v14, 48, v13"); e("v_add_u32 v14, v12, v14")
    e("v_mul_u32_u24 v13, 80, v13"); e("v_add_u32 v13, v12, v13")
    for u in range(0, 20, 2): e(f"v_pk_mul_f32 v[{76+u}:{77+u}], v[{76+u}:{77+u}], v[8:9] op_sel_hi:[1,0]")
    for q in range(10): e(f"v_cvt_pk_bf16_f32 v{196+q}, v{76+2*q}, v{77+2*q}")
    e("v_mov_b32 v206, 0x3f80"); e("v_mov_b32 v207, 0")
    for q in range(3): e(f"ds_write_b128 v14, v[{196+4*q}:{199+4*q}] offset:{160+16*q}")
    softmax_pair_pk(r, 56, 10, 156, 208, 176)
    for q in range(5): e(f"ds_write_b128 v13, v[{176+4*q}:{179+4*q}] offset:{16*q}")
    e("v_lshrrev_b32 v12, 2, v2"); e("v_lshl_add_u32 v12, v3, 3, v12")
    e(f"v_mul_u32_u24 v12, {ROWP}, v12"); e("v_and_b32 v13, 3, v1"); e("v_lshl_add_u32 v12, v13, 3, v12"); e(f"v_add_u32 v12, {TB}, v12")
    e("s_lshr_b32 s19, s18, 1"); e("s_and_b32 s23, s18, 1")
    e("s_mul_i32 s3, s19, 48"); e("s_lshl_b32 s33, s23, 5"); e("s_add_u32 s3, s3, s33"); e("s_add_u32 s3, s3, 160")
    e("v_add_u32 v13, s3, v12")
    e("s_mul_i32 s3, s19, 80"); e("v_add_u32 v12, s3, v12")
KVS = 81920
def epiA_tail(r, layer):
    e = r.e
    B = lambda nt, ks: (56 + 16*nt + 4*ks) if nt < 2 else (156 + 4*ks)
    for ks in range(4):
        e(f"ds_read_b64_tr_b16 v[{216+4*ks}:{217+4*ks}], v13 offset:{ks*32*ROWP}")
        e(f"ds_read_b64_tr_b16 v[{218+4*ks}:{219+4*ks}], v13 offset:{ks*32*ROWP + 4*ROWP}")
        for nt in range(3):
            b = B(nt, ks)
            e(f"ds_read_b64_tr_b16 v[{b}:{b+1}], v12 offset:{ks*32*ROWP + 32*nt}")
            e(f"ds_read_b64_tr_b16 v[{b+2}:{b+3}], v12 offset:{ks*32*ROWP + 4*ROWP + 32*nt}")
    e("s_lshl_b32 s3, s23, 4"); e("v_add_u32 v14, s3, v2")
    e("v_mul_u32_u24 v15, 80, v14"); e("v_lshl_add_u32 v15, v3, 3, v15")
    e("s_mul_i32 s3, s19, 1680"); e(f"s_add_u32 s3, s3, {KVS}"); e("v_add_u32 v15, s3, v15")
    e(f"v_mov_b32 v212, {KVS + 3520}")
    e("v_cmp_ge_u32 vcc, 20, v14"); e("v_cndmask_b32 v208, v212, v15, vcc")
    e("v_cmp_gt_u32 vcc, 2, v3"); e(f"v_subrev_u32 v212, 64, v212"); e("v_add_u32 v212, 0, v212"); e("v_cndmask_b32 v209, v212, v208, vcc")
    r.mark("step")
    for ks in range(4):
        for nt in range(3):
            b = B(nt, ks); d = 176 + 4*nt
            c = "0" if ks == 0 else f"v[{d}:{d+3}]"
            e(f"v_mfma_f32_16x16x32_bf16 v[{d}:{d+3}], v[{b}:{b+3}], v[{216+4*ks}:{219+4*ks}], {c}")
    r.mark("step")
    for nt in range(3):
        d = 176 + 4*nt
        e(f"v_cvt_pk_bf16_f32 v{d}, v{d}, v{d+1}"); e(f"v_cvt_pk_bf16_f32 v{d+1}, v{d+2}, v{d+3}")
        e(f"ds_write_b64 v{209 if nt == 2 else 208}, v[{d}:{d+1}] offset:{32*nt}")
    e("v_lshlrev_b32 v14, 4, v0"); e(f"v_add_u32 v15, {KVS}, v14")
    e(f"v_mov_b32 v212, {OOB}"); e("v_cmp_gt_u32 vcc, 210, v0"); e("v_cndmask_b32 v14, v212, v14, vcc")
    e("s_lshl_b32 s3, s17, 4"); e("s_add_u32 s3, s3, s16"); e("s_mul_i32 s3, s3, 3584"); e(f"s_add_u32 s33, s3, {KVP_OFF[layer]}")
    r.mark("barrier")
    e("ds_read_b128 v[176:179], v15")
    r.mark("step")
    r.items.append(("VM", "buffer_store_dwordx4 v[176:179], v14, s[12:15], s33 offen sc1", "kvst", []))

def force(side, vm, tag):
    while any(isinstance(i, tuple) and i[0] == "VM" and i[2] == tag for i in side.q):
        side.since_vm = 99; side.blocked = False; side.fill(4)

def gen_kA(name, layer, stamps=False, LEAD=4, VMGAP=4, fine=False, SIGSTEP=14, WT=True):
    a = Asm(); e = a.e; vm = VM(a); st = Stamps(a, stamps, 1 + 4*layer)
    e("s_cmp_ge_u32 s2, 256")
    e(f"s_cbranch_scc1 {name}_end")
    st.mark("start")
    e("s_load_dwordx2 s[30:31], s[0:1], 88")
    wg_to_rc(a, 16, 17, 19)
    e("v_and_b32 v1, 63, v0"); e("v_lshrrev_b32 v2, 6, v0")
    e("v_readfirstlane_b32 s18, v2")
    e("v_and_b32 v2, 15, v1"); e("v_lshrrev_b32 v3, 4, v1")
    e("v_lshlrev_b32 v5, 4, v1")
    e("v_add_u32 v6, 61440, v5"); e("v_add_u32 v7, 102400, v5")
    e("s_lshl_b32 s44, s16, 2"); e("s_add_u32 s44, s44, s18"); e(f"s_mul_i32 s44, s44, {2*AF_WT}")
    e(f"s_add_u32 s19, s44, {XIN_OFF[layer]}")
    e(f"s_mul_i32 s34, s17, {W1_C}")
    e("s_lshl_b32 s21, s18, 10")
    e("s_mov_b32 s20, 0"); e(f"s_mov_b32 s35, {AF_WT}")
    e("s_waitcnt lgkmcnt(0)")
    e("s_add_u32 s4, s30, s19"); e("s_addc_u32 s5, s31, 0"); e(f"s_mov_b32 s6, {2*AF_WT}"); e("s_mov_b32 s7, 0x20000")
    e("s_add_u32 s8, s30, s34"); e("s_addc_u32 s9, s31, 0"); e(f"s_mov_b32 s10, {163840}"); e("s_mov_b32 s11, 0x20000")
    X = lambda tt, s: f"a[{(2*s+tt)*4}:{(2*s+tt)*4+3}]"
    tag = lambda s: f"s{s}"
    L = lambda s: w_items(s, 0, "s[8:11]", tag) + x_items(X, s)
    for s in range(LEAD): emit_now(a, vm, L(s))
    e("s_add_u32 s36, s8, 163840"); e("s_addc_u32 s37, s9, 0"); e("s_mov_b32 s38, 40960"); e("s_mov_b32 s39, 0x20000")
    srd(a, 12, 30, 31, 0, WS_USED)
    e(f"s_mul_i32 s34, s17, {W2_C}"); e(f"s_add_u32 s34, s34, {W2_OFF - 102400}")
    e("s_add_u32 s48, s30, s34"); e("s_addc_u32 s49, s31, 0"); e("s_mov_b32 s50, 163840"); e("s_mov_b32 s51, 0x20000")
    e("s_add_u32 s52, s48, 163840"); e("s_addc_u32 s53, s49, 0"); e("s_mov_b32 s54, 40960"); e("s_mov_b32 s55, 0x20000")
    for r in range(152, 156): e(f"v_mov_b32 v{r}, 0x3f803f80")
    e("v_and_b32 v8, 3, v2")
    e("v_cmp_eq_u32 s[24:25], 1, v8"); e("v_cmp_eq_u32 s[26:27], 2, v8"); e("v_cmp_eq_u32 s[28:29], 3, v8")
    e("v_lshrrev_b32 v9, 2, v2"); e("v_lshl_add_u32 v9, v9, 4, v2"); e("v_lshlrev_b32 v9, 2, v9")
    sideA = Side(a, vm, VMGAP)
    for s in range(LEAD, 20): sideA.add(L(s))
    for s in range(12): sideA.add(w_items(s, 102400, "s[8:11]", lambda s: f"p{s//4}"))
    if not fine: st.mark("issued")
    vm.wait("s0"); e("s_barrier")
    accA = lambda tt, T: 56 + 20*tt + 4*T
    accB = lambda tt, T: 96 + 20*tt + 4*T
    def lds0(s, T):
        off = (s*5+T)*1024
        return (5, off) if s < 12 else (6, off - 61440)
    def pre0(s):
        if s + 1 < 20:
            force(sideA, vm, f"s{s+1}")
            if f"s{s+1}" in vm.q: vm.wait(f"s{s+1}")
            e("s_barrier")
    def extra0(s):
        out = []
        for tt in range(2):
            c0 = "0" if s == 0 else f"v[{136+4*tt}:{139+4*tt}]"
            c1 = "0" if s == 0 else f"v[{144+4*tt}:{147+4*tt}]"
            out.append(f"v_mfma_f32_16x16x32_bf16 v[{136+4*tt}:{139+4*tt}], v[152:155], {X(tt,s)}, {c0}")
            out.append(f"v_mfma_f32_16x16x32_bf16 v[{144+4*tt}:{147+4*tt}], {X(tt,s)}, {X(tt,s)}, {c1}")
        return out
    gemm2(a, 20, lds0, accA, (16, 36), X, True, [sideA], extra0, pre0)
    st.mark("passA")
    e("s_barrier")
    pend = list(sideA.q)
    for s in range(12, 20): pend += w_items(s, -61440, "s[36:39]", lambda s: f"p{s//4}")
    r = Rec(); epiA_head(r)
    k = 0
    for i, it in enumerate(r.items):
        if isinstance(it, tuple):
            e("s_waitcnt lgkmcnt(0)")
        else:
            e(it)
        if i % 12 == 11 and pend:
            while pend:
                p = pend.pop(0)
                if isinstance(p, tuple): vm.issue(p[1], p[2]); break
                e(p)
    emit_now(a, vm, pend)
    for q in range(4): e(f"v_mov_b32 v{232+q}, 0")
    e("v_lshlrev_b32 v15, 4, v0"); e(f"v_add_u32 v15, {KVT + 3840}, v15")
    e("v_cmp_gt_u32 vcc, 128, v0"); e("s_and_saveexec_b64 s[40:41], vcc")
    e("ds_write_b128 v15, v[232:235]")
    e("s_mov_b64 exec, s[40:41]")
    e("s_waitcnt lgkmcnt(0)")
    vm.wait("p0"); e("s_barrier")
    st.mark("epiAhead")
    sideB = Side(a, vm, VMGAP)
    r = Rec(); epiA_tail(r, layer); sideB.add(r.items)
    sideW = Side(a, vm, VMGAP)
    def lds1(s, T):
        off = (s*5+T)*1024
        return (7, off) if s < 12 else (5, off - 61440)
    state = {"sig": False}
    e(f"s_lshl_b32 s45, s17, 7"); e(f"s_add_u32 s45, s45, {CNT_OFF + layer*4096}")
    def pre1(s):
        if fine and s in (3, 6, 9, 12, 16): st.mark(f"B{s}")
        if s % 4 == 3 and s < 19:
            t = f"p{(s+1)//4}"
            if t in vm.q: vm.wait(t)
            e("s_barrier")
        if s == 12:
            e("s_barrier")
            for s2 in range(12): sideW.add(w_items(s2, 102400, "s[48:51]", lambda s: f"w{s//4}"))
        if s == SIGSTEP:
            assert "kvst" in vm.q and not sideB.q, (vm.q, sideB.q)
            vm.wait("kvst"); signal(a, "s45", f"{name}_sig1"); state["sig"] = True
            vm.q = ["?"] * 0 + vm.q
    gemm2(a, 20, lds1, accB, (16, 36), X, True, [sideB, sideW], None, pre1)
    sideB.flush()
    assert state["sig"]
    st.mark("passB")
    wait_cnt(a, "s45", 16, f"{name}_w1")
    st.mark("kvwait")
    e("v_lshlrev_b32 v12, 4, v0"); e(f"v_mov_b32 v13, {OOB}"); e("v_cmp_gt_u32 vcc, 210, v0"); e("v_cndmask_b32 v12, v13, v12, vcc")
    e("s_lshl_b32 s3, s17, 4"); e("s_mul_i32 s3, s3, 3584"); e(f"s_add_u32 s3, s3, {KVP_OFF[layer]}")
    KP = lambda R: (56 + 4*R) if R < 10 else (216 + 4*(R-10)) if R < 14 else (136 + 4*(R-14))
    for R in range(16):
        e(f"buffer_load_dwordx4 v[{KP(R)}:{KP(R)+3}], v12, s[12:15], s3 offen sc1")
        if R < 15: e("s_add_u32 s3, s3, 3584")
    pendW = list(sideW.q)
    npendW = sum(isinstance(p, tuple) for p in pendW)
    lateW = []
    for s2 in range(12, 20): lateW += w_items(s2, -61440, "s[52:55]", lambda s: f"w{s//4}")
    r = Rec()
    for u in range(20): r.e(f"v_permlane32_swap_b32 v{96+u}, v{116+u}")
    softmax_pair_pk(r, 96, 10, 156, 208, 176)
    for i, it in enumerate(r.items):
        e(it)
        if i % 8 == 7 and pendW:
            while pendW:
                p = pendW.pop(0)
                if isinstance(p, tuple): vm.issue(p[1], p[2]); break
                e(p)
    emit_now(a, vm, pendW)
    st.mark("epiB")
    nW = npendW
    e(f"s_waitcnt vmcnt({nW})")
    for R in range(16):
        for q in range(4):
            src = KP(R) + q
            if R == 0:
                e(f"v_lshlrev_b32 v{196+2*q}, 16, v{src}"); e(f"v_and_b32 v{197+2*q}, 0xffff0000, v{src}")
            else:
                t0 = 204 + 2*(q & 1)
                e(f"v_lshlrev_b32 v{t0}, 16, v{src}"); e(f"v_and_b32 v{t0+1}, 0xffff0000, v{src}")
                e(f"v_pk_add_f32 v[{196+2*q}:{197+2*q}], v[{196+2*q}:{197+2*q}], v[{t0}:{t0+1}]")
    for q in range(4): e(f"v_cvt_pk_bf16_f32 v{196+q}, v{196+2*q}, v{197+2*q}")
    e("v_lshlrev_b32 v13, 4, v0")
    e("v_cmp_le_u32 vcc, 105, v0"); e("v_cndmask_b32 v14, 0, 1, vcc"); e("v_mul_u32_u24 v14, 240, v14"); e("v_add_u32 v14, v14, v13"); e(f"v_add_u32 v14, {KVT}, v14")
    e("v_cmp_gt_u32 vcc, 210, v0"); e("s_and_saveexec_b64 s[40:41], vcc")
    e("ds_write_b128 v14, v[196:199]")
    e("s_mov_b64 exec, s[40:41]")
    e("v_and_b32 v12, 1, v3"); e("v_mul_u32_u24 v12, 1920, v12"); e("v_and_b32 v13, 3, v2"); e("v_mul_u32_u24 v13, 80, v13"); e("v_add_u32 v12, v12, v13")
    e("v_lshrrev_b32 v13, 2, v2"); e("v_cmp_eq_u32 vcc, v13, v3"); e("v_mov_b32 v13, 3840"); e("v_cndmask_b32 v12, v13, v12, vcc"); e(f"v_add_u32 v12, {KVT}, v12")
    e("v_lshrrev_b32 v226, 5, v1"); e(f"v_mul_u32_u24 v224, {AF_WT}, v226"); e("v_lshl_add_u32 v224, v2, 4, v224")
    e("v_and_b32 v227, 1, v3"); e("v_lshl_add_u32 v225, v227, 3, v224"); e("v_mul_u32_u24 v227, 768, v227"); e("v_add_u32 v224, v224, v227")
    e("s_mul_i32 s46, s17, 1280"); e("s_add_u32 s46, s46, s44")
    e(f"s_add_u32 s3, s46, {XIN_OFF[layer]}")
    e("buffer_load_dwordx4 v[136:139], v224, s[12:15], s3 offen")
    e("buffer_load_dwordx4 v[140:143], v224, s[12:15], s3 offen offset:256")
    e("buffer_load_dwordx2 v[144:145], v225, s[12:15], s3 offen offset:512")
    e("s_waitcnt lgkmcnt(0)"); e("s_barrier")
    st.mark("kvsum")
    order = [5, 0, 1, 2, 3, 4]
    def t4read(i):
        for ch in range(5):
            rr = (16, 36)[i & 1] + 4*ch
            e(f"ds_read_b128 v[{rr}:{rr+3}], v12 offset:{order[i]*320 + ch*16}")
    t4read(0)
    for i, Tp in enumerate(order):
        if i + 1 < 6:
            t4read(i + 1); e("s_waitcnt lgkmcnt(5)")
        else: e("s_waitcnt lgkmcnt(0)")
        d = 56 + 4*Tp
        for ch in range(5):
            rr = (16, 36)[i & 1] + 4*ch
            c = "0" if ch == 0 else f"v[{d}:{d+3}]"
            e(f"v_mfma_f32_16x16x32_bf16 v[{d}:{d+3}], v[{rr}:{rr+3}], v[{176+4*ch}:{179+4*ch}], {c}")
        if i == 2:
            e("v_add_f32 v76, 0x358637bd, v76"); e("v_rcp_f32 v80, v76")
    for u in range(0, 20, 2): e(f"v_pk_mul_f32 v[{56+u}:{57+u}], v[{56+u}:{57+u}], v[80:81] op_sel_hi:[1,0]")
    for q in range(10): e(f"v_cvt_pk_bf16_f32 v{156+q}, v{56+2*q}, v{57+2*q}")
    e(f"s_add_u32 s3, s46, {O_OFF[layer]}")
    e("buffer_store_dwordx4 v[156:159], v224, s[12:15], s3 offen sc1")
    e("buffer_store_dwordx4 v[160:163], v224, s[12:15], s3 offen offset:256 sc1")
    e("buffer_store_dwordx2 v[164:165], v225, s[12:15], s3 offen offset:512 sc1")
    st.mark("T4")
    e("s_waitcnt vmcnt(3)")
    for q in range(10):
        e(f"v_lshlrev_b32 v{96+2*q}, 16, v{136+q}")
        e(f"v_and_b32 v{97+2*q}, 0xffff0000, v{136+q}")
    for u in range(20): e(f"v_permlane32_swap_b32 v{96+u}, v{116+u}")
    e("s_waitcnt vmcnt(0)")
    e(f"s_lshl_b32 s45, s16, 7"); e(f"s_add_u32 s45, s45, {CNT_OFF + layer*4096 + 2048}")
    signal(a, "s45", f"{name}_sig2")
    emit_now(a, vm, lateW)
    e("s_waitcnt vmcnt(0)")
    wait_cnt(a, "s45", 16, f"{name}_w2")
    st.mark("owait")
    e(f"s_add_u32 s19, s44, {O_OFF[layer]}")
    e("s_add_u32 s4, s30, s19"); e("s_addc_u32 s5, s31, 0")
    e("s_mov_b32 s20, 0"); e(f"s_mov_b32 s35, {AF_WT}")
    vm.q = []
    LEAD5 = 6
    for s in range(LEAD5): emit_now(a, vm, x_items(X, s, extra=" sc1"))
    sideO = Side(a, vm, VMGAP)
    for s in range(LEAD5, 20): sideO.add(x_items(X, s, extra=" sc1"))
    vm.wait("s0")
    def pre5(s):
        if s + 1 < 20:
            force(sideO, vm, f"s{s+1}")
            if f"s{s+1}" in vm.q: vm.wait(f"s{s+1}")
    gemm2(a, 20, lds1, accB, (16, 36), X, False, [sideO], None, pre5)
    st.mark("T5")
    for u in range(20): e(f"v_cvt_pk_bf16_f32 v{56+u}, v{96+u}, v{116+u}")
    for u in range(0, 20, 2): e(f"v_permlane32_swap_b32 v{56+u}, v{57+u}")
    e("v_lshlrev_b32 v10, 9, v226"); e("v_and_b32 v11, 1, v3"); e("v_lshl_add_u32 v10, v11, 8, v10")
    e("v_lshrrev_b32 v11, 2, v2"); e("v_lshl_add_u32 v10, v11, 6, v10"); e("v_and_b32 v11, 3, v2"); e("v_lshl_add_u32 v10, v11, 2, v10")
    e("s_lshl_b32 s3, s18, 4"); e(f"s_add_u32 s3, s3, {XB}"); e("v_add_u32 v10, s3, v10")
    for u in range(0, 20, 2): e(f"ds_write_b32 v10, v{57+u} offset:{u*512}")
    for u in range(20): e(f"v_permlane32_swap_b32 v{96+u}, v{116+u}")
    e("v_pk_mul_f32 v[138:139], v[96:97], v[96:97]"); e("v_pk_add_f32 v[136:137], v[96:97], v[98:99]"); e("v_pk_fma_f32 v[138:139], v[98:99], v[98:99], v[138:139]")
    for u in range(4, 20, 2):
        e(f"v_pk_add_f32 v[136:137], v[136:137], v[{96+u}:{97+u}]"); e(f"v_pk_fma_f32 v[138:139], v[{96+u}:{97+u}], v[{96+u}:{97+u}], v[138:139]")
    e("v_add_f32 v136, v136, v137"); e("v_add_f32 v138, v138, v139")
    for rr in (136, 138):
        e(f"v_mov_b32 v140, v{rr}"); e(f"v_permlane16_swap_b32 v{rr}, v140"); e(f"v_add_f32 v{rr}, v{rr}, v140")
    e("s_lshr_b32 s19, s16, 1"); e("s_lshl_b32 s19, s19, 2"); e("s_add_u32 s19, s19, s18")
    e("s_and_b32 s23, s16, 1")
    e("s_lshl_b32 s33, s19, 6"); e("s_lshl_b32 s34, s23, 5"); e("s_add_u32 s33, s33, s34"); e("s_lshl_b32 s33, s33, 2"); e(f"s_add_u32 s33, s33, {ST_OFF[layer]}")
    e("v_lshl_add_u32 v11, v2, 1, v226"); e("v_lshlrev_b32 v11, 2, v11"); e(f"v_mov_b32 v12, {OOB}")
    e("v_and_b32 v13, 1, v3"); e("v_cmp_eq_u32 vcc, 0, v13"); e("v_cndmask_b32 v11, v12, v11, vcc")
    e("s_add_u32 s34, s33, 8192")
    e("buffer_atomic_add_f32 v136, v11, s[12:15], s33 offen")
    e("buffer_atomic_add_f32 v138, v11, s[12:15], s34 offen")
    for q in range(10): e(f"v_cvt_pk_bf16_f32 v{156+q}, v{96+2*q}, v{97+2*q}")
    e(f"s_add_u32 s3, s46, {X1_OFF[layer]}")
    wt = " sc1" if WT else ""
    e("buffer_store_dwordx4 v[156:159], v224, s[12:15], s3 offen" + wt)
    e("buffer_store_dwordx4 v[160:163], v224, s[12:15], s3 offen offset:256" + wt)
    e("buffer_store_dwordx2 v[164:165], v225, s[12:15], s3 offen offset:512" + wt)
    e("s_waitcnt lgkmcnt(0)"); e("s_barrier")
    e("v_lshlrev_b32 v10, 4, v0"); e(f"v_add_u32 v10, {XB}, v10")
    for rr in range(3): e(f"ds_read_b128 v[{56+4*rr}:{59+4*rr}], v10 offset:{4096*rr}")
    e("v_lshrrev_b32 v11, 4, v0"); e("v_lshlrev_b32 v11, 12, v11"); e("v_bfe_u32 v12, v0, 2, 2"); e("v_lshl_add_u32 v11, v12, 8, v11")
    e("v_and_b32 v12, 3, v0"); e("v_lshl_add_u32 v11, v12, 4, v11")
    e("s_lshr_b32 s19, s16, 1"); e("s_lshr_b32 s33, s19, 2"); e("s_lshl_b32 s33, s33, 11")
    e("s_and_b32 s19, s19, 3"); e("s_lshl_b32 s19, s19, 6"); e("s_add_u32 s33, s33, s19")
    e("s_lshl_b32 s23, s23, 10"); e("s_add_u32 s33, s33, s23"); e("s_mul_i32 s19, s17, 163840"); e("s_add_u32 s33, s33, s19"); e(f"s_add_u32 s33, s33, {XF_OFF[layer]}")
    e(f"v_mov_b32 v12, {OOB}"); e("v_cmp_gt_u32 vcc, 128, v0"); e("v_cndmask_b32 v12, v12, v11, vcc")
    e("s_waitcnt lgkmcnt(0)")
    e("buffer_store_dwordx4 v[56:59], v11, s[12:15], s33 offen" + wt)
    e("s_add_u32 s33, s33, 65536")
    e("buffer_store_dwordx4 v[60:63], v11, s[12:15], s33 offen" + wt)
    e("s_add_u32 s33, s33, 65536")
    e("buffer_store_dwordx4 v[64:67], v12, s[12:15], s33 offen" + wt)
    if not fine: st.mark("epi5")
    if stamps: e("s_waitcnt vmcnt(0)"); st.mark("drain")
    st.flush(30, 31, 18)
    a.label(f"{name}_end")
    e("s_endpgm")
    gen_kA.names = st.names
    return kernel_header(name) + a.text() + kernel_desc(name, 244, 160, 102 if stamps else 64)
```

```python
import sys; sys.path.insert(0,'gen')
from gen_all import *
from k0 import gen_k0, K0_LDS
import kA
from k3 import gen_k3, K3_LDS
def build_v4(out, stamps=False, **kw):
    launches = [("k0_kernel", 256, 256, K0_LDS)]
    bodies = [gen_k0("k0_kernel", 65536, stamps)]
    for L in range(2):
        launches += [(f"kAl{L}_kernel", 256, 256, 163840), (f"k3l{L}_kernel", 160, 576, K3_LDS)]
        bodies += [kA.gen_kA(f"kAl{L}_kernel", L, stamps, **kw), gen_k3(f"k3l{L}_kernel", L, stamps)]
    print(assemble(launches, bodies, out), ",".join(kA.gen_kA.names), "|", ",".join(gen_k0.names), "|", ",".join(gen_k3.names))
if __name__ == "__main__":
    build_v4("v6.s")
    build_v4("v6s.s", True)
    build_v4("v6f.s", True, fine=True)
    for lead in (6, 8):
        build_v4(f"v6s_l{lead}.s", True, LEAD=lead)
```

```python
import re

TRANS = ("v_exp_f32", "v_log_f32", "v_rcp_f32", "v_rsq_f32", "v_sqrt_f32", "v_sin_f32", "v_cos_f32", "v_rcp_iflag_f32")
REG_RE = re.compile(r"(?<![\w.])([vas])(\d+)(?![\w\[])|(?<![\w.])([vas])\[(\d+):(\d+)\]|(?<![\w.])(vcc|exec|m0|scc)(_lo|_hi)?(?![\w])")

def regs_of(tok):
    out = []
    for m in REG_RE.finditer(tok):
        if m.group(1): out.append((m.group(1), int(m.group(2))))
        elif m.group(3):
            for i in range(int(m.group(4)), int(m.group(5)) + 1): out.append((m.group(3), i))
        else:
            nm = m.group(6)
            if nm == "vcc":
                if m.group(7) == "_lo": out.append(("s", 106))
                elif m.group(7) == "_hi": out.append(("s", 107))
                else: out += [("s", 106), ("s", 107)]
            elif nm == "exec": out += [("x", 0)]
            elif nm == "m0": out.append(("m", 0))
    return out

def split_ops(s):
    ops, depth, cur = [], 0, ""
    for ch in s:
        if ch == "[" or ch == "(": depth += 1
        if ch == "]" or ch == ")": depth -= 1
        if ch == "," and depth == 0: ops.append(cur.strip()); cur = ""
        else: cur += ch
    if cur.strip(): ops.append(cur.strip())
    return ops

class Inst:
    __slots__ = ("text", "op", "cls", "wr", "rd", "states", "passes", "srcc", "store_data", "isdpp", "lds_dma", "mask_rd", "sgpr_valu_wr", "ab")
    def __init__(self, text):
        self.text = text
        t = text.split(";")[0].strip()
        parts = t.split(None, 1)
        self.op = op = parts[0]
        rest = parts[1] if len(parts) > 1 else ""
        ops = split_ops(rest)
        self.wr, self.rd = [], []
        self.states = 1; self.passes = 0; self.srcc = []; self.store_data = []; self.ab = []
        self.isdpp = ("row_" in rest or "quad_perm" in rest or "wave_" in rest or "dpp" in op)
        self.lds_dma = False; self.mask_rd = []; self.sgpr_valu_wr = []
        R = lambda i: regs_of(ops[i].split(" ")[0] if i == len(ops) - 1 else ops[i]) if i < len(ops) else []
        if op == "s_nop":
            self.cls = "nop"; self.states = int(ops[0], 0) + 1
        elif op.startswith("v_mfma"):
            self.cls = "mfma"; self.wr = R(0); self.ab = R(1) + R(2); self.srcc = R(3); self.rd = self.ab + self.srcc
            self.passes = 8 if "32x32" in op else 4
        elif op.startswith("v_"):
            self.cls = "trans" if op.replace("_e32", "").replace("_e64", "") in TRANS else "valu"
            base = op.replace("_e32", "").replace("_e64", "")
            if base.startswith("v_cmp"):
                self.wr = R(0); self.rd = R(1) + R(2)
            elif base.startswith("v_permlane") and "swap" in base:
                self.wr = R(0) + R(1); self.rd = R(0) + R(1)
            elif base in ("v_readfirstlane_b32", "v_readlane_b32"):
                self.wr = R(0); self.rd = sum((R(i) for i in range(1, len(ops))), [])
            elif base in ("v_add_co_u32", "v_sub_co_u32", "v_addc_co_u32", "v_subb_co_u32", "v_mad_u64_u32"):
                self.wr = R(0) + R(1); self.rd = sum((R(i) for i in range(2, len(ops))), [])
            else:
                self.wr = R(0); self.rd = sum((R(i) for i in range(1, len(ops))), [])
                if base.startswith("v_fmac") or base.startswith("v_pk_fmac") or base.startswith("v_dot2c") or base in ("v_writelane_b32",): self.rd += R(0)
                if base == "v_cndmask_b32":
                    if len(ops) == 3: self.rd += [("s", 106), ("s", 107)]; self.mask_rd = [("s", 106), ("s", 107)]
                    else: self.mask_rd = R(3)
            self.sgpr_valu_wr = [r for r in self.wr if r[0] == "s"]
        elif op.startswith("ds_"):
            self.cls = "ds"
            if op.startswith("ds_read") or op.startswith("ds_bpermute") or op.startswith("ds_permute") or op.startswith("ds_swizzle"):
                self.wr = R(0); self.rd = sum((R(i) for i in range(1, len(ops))), [])
            else:
                self.rd = sum((R(i) for i in range(len(ops))), [])
        elif op.startswith("buffer_") or op.startswith("global_"):
            self.cls = "vmem"
            words = rest.replace(",", " ").split()
            islds = ("lds" in words) or ("_lds_" in op)
            allr = sum((R(i) for i in range(len(ops))), [])
            if op in ("buffer_wbl2", "buffer_inv"): pass
            elif islds:
                self.lds_dma = True; self.rd = allr + [("m", 0)]
            elif "_load" in op:
                self.wr = R(0); self.rd = sum((R(i) for i in range(1, len(ops))), [])
            elif "_store" in op:
                self.rd = allr
                d = R(0) if op.startswith("buffer_") else R(1)
                if "x4" in op or "x3" in op: self.store_data = d
            elif "_atomic" in op:
                self.rd = allr
                if "sc0" in words: self.wr = R(0)
        elif op.startswith("s_"):
            self.cls = "salu"
            if op.startswith(("s_waitcnt", "s_barrier", "s_branch", "s_cbranch", "s_endpgm", "s_setprio", "s_sleep")):
                self.cls = "sctl"
            elif op.startswith("s_cmp"):
                self.rd = sum((R(i) for i in range(len(ops))), [])
            elif op.startswith("s_load") or op.startswith("s_memtime") or op.startswith("s_memrealtime") or op.startswith("s_getreg") or op.startswith("s_getpc"):
                self.wr = R(0); self.rd = sum((R(i) for i in range(1, len(ops))), [])
            else:
                self.wr = R(0); self.rd = sum((R(i) for i in range(1, len(ops))), [])
                if "saveexec" in op: self.wr += [("x", 0)]
        else:
            raise ValueError("unknown instruction: " + text)

def need(prod, cons):
    n = 0
    pw = set(prod.wr);
    isvalu = lambda i: i.cls in ("valu", "trans")
    crd = set(cons.rd); cwr = set(cons.wr)
    if isvalu(prod):
        vw = {r for r in pw if r[0] in "va"}
        if vw & crd:
            if cons.cls == "mfma": n = max(n, 2)
            if cons.op.startswith("v_permlane"): n = max(n, 2)
            if cons.op.startswith(("v_readlane", "v_readfirstlane")): n = max(n, 1)
            if cons.isdpp: n = max(n, 2)
            if prod.cls == "trans" and cons.cls != "trans": n = max(n, 1)
        sw = {r for r in pw if r[0] == "s"}
        if sw & crd:
            if cons.cls == "vmem": n = max(n, 5)
            elif cons.op.startswith(("v_readlane", "v_writelane")): n = max(n, 4)
            elif isvalu(cons) or cons.cls == "mfma": n = max(n, 2)
            elif cons.cls in ("salu",): n = max(n, 1)
    if prod.cls == "mfma":
        p = prod.passes
        d = set(prod.wr)
        if cons.cls == "mfma":
            if d & set(cons.ab): n = max(n, 8 if p == 4 else 12)
            c = set(cons.srcc)
            if d & c and not (c == d and cons.passes == p): n = max(n, 6 if p == 4 else 10)
            if d & cwr and not (d & c): n = max(n, 6 if p == 4 else 10)
        else:
            if d & (crd | cwr): n = max(n, 8 if p == 4 else 12)
        if isvalu(cons) and set(prod.srcc) & cwr: n = max(n, 3 if p == 4 else 7)
    if prod.cls == "salu" and ("m", 0) in pw and cons.lds_dma: n = max(n, 1)
    if prod.store_data and set(prod.store_data) & cwr:
        n = max(n, 2 if isvalu(cons) or cons.cls == "mfma" else 1)
    return n

class Asm:
    def __init__(self):
        self.out = []
        self.hist = []
        self.nops = 0
    def raw(self, s): self.out.append(s)
    def label(self, name):
        self.out.append(name + ":")
    def e(self, text):
        for line in text.split("\n"):
            line = line.strip()
            if not line or line.startswith(";"): continue
            if line.endswith(":"): self.label(line[:-1]); continue
            ins = Inst(line)
            mo = re.search(r"offset:(-?\d+)", line)
            if mo:
                ov = int(mo.group(1))
                if ins.op.startswith("buffer_"): assert 0 <= ov <= 4095, line
                elif ins.op.startswith("global_"): assert -4096 <= ov <= 4095, line
                elif ins.op.startswith("ds_"): assert 0 <= ov <= 65535, line
            req = 0; dist = 0
            for p in reversed(self.hist):
                k = need(p, ins)
                if k > dist: req = max(req, k - dist)
                dist += p.states
                if dist >= 12: break
            if req > 0 and ins.cls != "nop":
                nop = Inst(f"s_nop {req-1}")
                self.out.append("    " + nop.text); self.hist.append(nop); self.nops += 1
            self.out.append("    " + line)
            self.hist.append(ins)
            if len(self.hist) > 24: self.hist = self.hist[-24:]
    def text(self): return "\n".join(self.out) + "\n"

def kernel_header(name):
    return f".text\n.globl {name}\n.p2align 8\n.type {name},@function\n{name}:\n"
def kernel_desc(name, vgpr, agpr=0, sgpr=100):
    acc = (vgpr + 3) // 4 * 4
    nfv = acc + agpr if agpr else vgpr
    return f""".section .rodata,"a"
.p2align 6
.amdhsa_kernel {name}
  .amdhsa_next_free_vgpr {nfv}
  .amdhsa_next_free_sgpr {sgpr}
  .amdhsa_accum_offset {acc}
  .amdhsa_group_segment_fixed_size 0
  .amdhsa_kernarg_size 96
  .amdhsa_user_sgpr_count 2
  .amdhsa_user_sgpr_kernarg_segment_ptr 1
  .amdhsa_system_sgpr_workgroup_id_x 1
  .amdhsa_float_denorm_mode_32 3
.end_amdhsa_kernel
"""

class VM:
    def __init__(self, a): self.a = a; self.q = []
    def issue(self, text, tag):
        self.a.e(text); self.q.append(tag)
    def wait(self, tag, extra=""):
        idx = max(i for i, t in enumerate(self.q) if t == tag)
        n = len(self.q) - 1 - idx
        assert n <= 63, n
        self.a.e(f"s_waitcnt vmcnt({n}){extra}")
        self.q = self.q[idx+1:]
    def wait_all(self):
        self.a.e("s_waitcnt vmcnt(0)"); self.q = []

def srd(a, s, base_lo, base_hi, off, size):
    if isinstance(off, str):
        a.e(f"s_add_u32 s{s}, s{base_lo}, {off}"); a.e(f"s_addc_u32 s{s+1}, s{base_hi}, 0")
    elif off:
        a.e(f"s_add_u32 s{s}, s{base_lo}, {off}"); a.e(f"s_addc_u32 s{s+1}, s{base_hi}, 0")
    else:
        a.e(f"s_mov_b32 s{s}, s{base_lo}"); a.e(f"s_mov_b32 s{s+1}, s{base_hi}")
    a.e(f"s_mov_b32 s{s+2}, {size}")
    a.e(f"s_mov_b32 s{s+3}, 0x20000")

def wg_to_rc(a, sR, sC, tmp):
    e = a.e
    e(f"s_and_b32 s{tmp}, s2, 7"); e(f"s_lshr_b32 s{tmp+1}, s2, 3")
    e(f"s_lshr_b32 s{sR}, s{tmp}, 1"); e(f"s_lshl_b32 s{sR}, s{sR}, 2"); e(f"s_and_b32 s{sC}, s{tmp+1}, 3"); e(f"s_add_u32 s{sR}, s{sR}, s{sC}")
    e(f"s_and_b32 s{sC}, s{tmp}, 1"); e(f"s_lshl_b32 s{sC}, s{sC}, 3"); e(f"s_lshr_b32 s{tmp+1}, s{tmp+1}, 2"); e(f"s_add_u32 s{sC}, s{sC}, s{tmp+1}")

LOG2E = 1.4426950408889634

def softmax_pair(a, K, vC, Ep, tmp, P):
    e = a.e
    mx, mn, sp, sm = tmp, tmp + 1, tmp + 2, tmp + 3
    e(f"v_max3_f32 v{mx}, v{K[0]}, v{K[1]}, v{K[2]}")
    e(f"v_min3_f32 v{mn}, v{K[0]}, v{K[1]}, v{K[2]}")
    for u in range(3, 19, 2):
        e(f"v_max3_f32 v{mx}, v{mx}, v{K[u]}, v{K[u+1]}")
        e(f"v_min3_f32 v{mn}, v{mn}, v{K[u]}, v{K[u+1]}")
    e(f"v_max_f32 v{mx}, v{mx}, v{K[19]}")
    e(f"v_min_f32 v{mn}, v{mn}, v{K[19]}")
    e(f"v_mul_f32 v{mx}, v{vC}, v{mx}")
    e(f"v_mul_f32 v{mn}, v{vC}, v{mn}")
    for u in range(20):
        e(f"v_fma_f32 v{Ep+u}, v{K[u]}, v{vC}, -v{mx}")
        e(f"v_fma_f32 v{K[u]}, -v{K[u]}, v{vC}, v{mn}")
    for u in range(20):
        e(f"v_exp_f32 v{Ep+u}, v{Ep+u}")
        e(f"v_exp_f32 v{K[u]}, v{K[u]}")
    e(f"v_add_f32 v{sp}, v{Ep}, v{Ep+1}")
    e(f"v_add_f32 v{sm}, v{K[0]}, v{K[1]}")
    for u in range(2, 20):
        e(f"v_add_f32 v{sp}, v{sp}, v{Ep+u}")
        e(f"v_add_f32 v{sm}, v{sm}, v{K[u]}")
    e(f"v_rcp_f32 v{sp}, v{sp}")
    e(f"v_rcp_f32 v{sm}, v{sm}")
    for u in range(20):
        e(f"v_mul_f32 v{Ep+u}, v{sp}, v{Ep+u}")
        e(f"v_mul_f32 v{K[u]}, v{sm}, v{K[u]}")
    for q in range(10):
        e(f"v_cvt_pk_bf16_f32 v{P+q}, v{Ep+2*q}, v{Ep+2*q+1}")
        e(f"v_cvt_pk_bf16_f32 v{P+10+q}, v{K[2*q]}, v{K[2*q+1]}")

STAMP_OFF = 200 * 1024 * 1024
class Stamps:
    def __init__(self, a, on, kid): self.a = a; self.on = on; self.n = 0; self.kid = kid; self.names = []
    def mark(self, nm):
        if not self.on: return
        r = 70 + 2 * self.n; self.n += 1; self.names.append(nm)
        assert r + 1 <= 101
        if self.n == 1: self.a.e("s_memrealtime s[62:63]")
        self.a.e(f"s_memtime s[{r}:{r+1}]"); self.a.e("s_waitcnt lgkmcnt(0)")
    def flush(self, ws_lo, ws_hi, wave_sgpr):
        if not self.on: return
        e = self.a.e
        e("s_memrealtime s[68:69]"); e("s_waitcnt lgkmcnt(0)")
        e(f"s_cmp_lg_u32 s{wave_sgpr}, 0"); lab = f"Lstamp_{self.kid}"
        e(f"s_cbranch_scc1 {lab}")
        e(f"s_lshl_b32 s66, s2, 7"); e(f"s_add_u32 s66, s66, {STAMP_OFF + self.kid * 65536}")
        e(f"s_add_u32 s64, s{ws_lo}, s66"); e(f"s_addc_u32 s65, s{ws_hi}, 0")
        e("v_mov_b32 v160, 0")
        for i in range(self.n):
            e(f"v_mov_b32 v161, s{70+2*i}")
            e(f"global_store_dword v160, v161, s[64:65] offset:{4*i}")
        e("v_mov_b32 v161, s68"); e(f"global_store_dword v160, v161, s[64:65] offset:120")
        e("v_mov_b32 v161, s62"); e(f"global_store_dword v160, v161, s[64:65] offset:116")
        for k, r in enumerate(getattr(self, "extra", [])):
            e(f"v_mov_b32 v161, {r}"); e(f"global_store_dword v160, v161, s[64:65] offset:{112 - 4*k}")
        self.a.label(lab)

def softmax_pair_pk(a, K, vC, Ep, tmp, P):
    e = a.e
    assert K % 2 == 0 and Ep % 2 == 0 and tmp % 2 == 0 and vC % 2 == 0
    mx, mn, sp, sm = tmp, tmp + 2, tmp + 4, tmp + 6
    e(f"v_max3_f32 v{mx}, v{K}, v{K+1}, v{K+2}")
    e(f"v_min3_f32 v{mn}, v{K}, v{K+1}, v{K+2}")
    for u in range(3, 19, 2):
        e(f"v_max3_f32 v{mx}, v{mx}, v{K+u}, v{K+u+1}")
        e(f"v_min3_f32 v{mn}, v{mn}, v{K+u}, v{K+u+1}")
    e(f"v_max_f32 v{mx}, v{mx}, v{K+19}")
    e(f"v_min_f32 v{mn}, v{mn}, v{K+19}")
    e(f"v_mul_f32 v{mx}, v{vC}, v{mx}")
    e(f"v_mul_f32 v{mn}, v{vC}, v{mn}")
    for u in range(0, 20, 2):
        e(f"v_pk_fma_f32 v[{Ep+u}:{Ep+u+1}], v[{K+u}:{K+u+1}], v[{vC}:{vC+1}], v[{mx}:{mx+1}] op_sel_hi:[1,0,0] neg_lo:[0,0,1] neg_hi:[0,0,1]")
        e(f"v_pk_fma_f32 v[{K+u}:{K+u+1}], v[{K+u}:{K+u+1}], v[{vC}:{vC+1}], v[{mn}:{mn+1}] op_sel_hi:[1,0,0] neg_lo:[1,0,0] neg_hi:[1,0,0]")
    for u in range(20):
        e(f"v_exp_f32 v{Ep+u}, v{Ep+u}")
        e(f"v_exp_f32 v{K+u}, v{K+u}")
    e(f"v_pk_add_f32 v[{sp}:{sp+1}], v[{Ep}:{Ep+1}], v[{Ep+2}:{Ep+3}]")
    e(f"v_pk_add_f32 v[{sm}:{sm+1}], v[{K}:{K+1}], v[{K+2}:{K+3}]")
    for u in range(4, 20, 2):
        e(f"v_pk_add_f32 v[{sp}:{sp+1}], v[{sp}:{sp+1}], v[{Ep+u}:{Ep+u+1}]")
        e(f"v_pk_add_f32 v[{sm}:{sm+1}], v[{sm}:{sm+1}], v[{K+u}:{K+u+1}]")
    e(f"v_add_f32 v{sp}, v{sp}, v{sp+1}")
    e(f"v_add_f32 v{sm}, v{sm}, v{sm+1}")
    e(f"v_rcp_f32 v{sp}, v{sp}")
    e(f"v_rcp_f32 v{sm}, v{sm}")
    for u in range(0, 20, 2):
        e(f"v_pk_mul_f32 v[{Ep+u}:{Ep+u+1}], v[{Ep+u}:{Ep+u+1}], v[{sp}:{sp+1}] op_sel_hi:[1,0]")
        e(f"v_pk_mul_f32 v[{K+u}:{K+u+1}], v[{K+u}:{K+u+1}], v[{sm}:{sm+1}] op_sel_hi:[1,0]")
    for q in range(10):
        e(f"v_cvt_pk_bf16_f32 v{P+q}, v{Ep+2*q}, v{Ep+2*q+1}")
        e(f"v_cvt_pk_bf16_f32 v{P+10+q}, v{K+2*q}, v{K+2*q+1}")

class Rec:
    def __init__(self): self.items = []
    def e(self, text):
        for line in text.split("\n"):
            line = line.strip()
            if line and not line.startswith(";"): self.items.append(line)
    def mark(self, m): self.items.append(("MARK", m))

def slot_cost(line):
    op = line.split()[0]
    if op in TRANS or op.startswith("v_permlane"): return 2
    if op.startswith("v_mfma"): return 0
    return 1

class Side:
    def __init__(self, a, vm, vm_gap=4):
        self.a, self.vm, self.q, self.vm_gap = a, vm, [], vm_gap
        self.since_vm = 99; self.blocked = False; self.want_barrier = False
    def add(self, items): self.q += list(items)
    def step_boundary(self):
        if self.want_barrier: self.a.e("s_barrier"); self.want_barrier = False
        self.blocked = False
    def fill(self, slots):
        self.since_vm += 1
        while self.q and slots > 0 and not self.blocked:
            it = self.q[0]
            if isinstance(it, tuple) and it[0] == "STAMP":
                self.q.pop(0); continue
            if isinstance(it, tuple) and it[0] == "MARK":
                self.q.pop(0); self.blocked = True
                if it[1] == "barrier": self.want_barrier = True
                continue
            if isinstance(it, tuple) and it[0] == "VM":
                if self.since_vm < self.vm_gap: return
                self.q.pop(0)
                for pre in it[3]: self.a.e(pre)
                self.vm.issue(it[1], it[2]); self.since_vm = 0; slots -= 1 + len(it[3]); continue
            c = slot_cost(it)
            if c > slots and slots < 2: return
            self.q.pop(0); self.a.e(it); slots -= c
            if " m0," in it: return
    def flush(self):
        while self.q:
            it = self.q.pop(0)
            if isinstance(it, tuple) and it[0] == "STAMP":
                if getattr(self, "st", None): self.st.mark(it[1])
                continue
            if isinstance(it, tuple) and it[0] == "MARK":
                self.a.e("s_waitcnt lgkmcnt(0)")
                if it[1] == "barrier": self.a.e("s_barrier")
            elif isinstance(it, tuple) and it[0] == "VM":
                for pre in it[3]: self.a.e(pre)
                self.vm.issue(it[1], it[2])
            else: self.a.e(it)
        if self.want_barrier: self.a.e("s_waitcnt lgkmcnt(0)"); self.a.e("s_barrier"); self.want_barrier = False
        self.blocked = False

def gemm2(a, nsteps, lds_of, acc, abuf, xreg, first_zero, sides, extra=None, pre=None, slots=2, mid=None):
    e = a.e
    def read(s, T):
        vb, imm = lds_of(s, T); r = abuf[s & 1] + 4 * T
        e(f"ds_read_b128 v[{r}:{r+3}], v{vb} offset:{imm}")
    for T in range(5): read(0, T)
    for s in range(nsteps):
        e("s_waitcnt lgkmcnt(0)")
        for sd in sides: sd.step_boundary()
        if pre: pre(s)
        mf = []
        for T in range(5):
            r = abuf[s & 1] + 4 * T
            for tt in range(2):
                d = acc(tt, T); c = "0" if (s == 0 and first_zero) else f"v[{d}:{d+3}]"
                mf.append(f"v_mfma_f32_16x16x32_bf16 v[{d}:{d+3}], v[{r}:{r+3}], {xreg(tt, s)}, {c}")
        if extra: mf += extra(s)
        for i, m in enumerate(mf):
            e(m)
            if mid: mid(s, i)
            left = slots
            if s + 1 < nsteps and i < 5: read(s + 1, i); left -= 1
            for sd in sides: sd.since_vm += 1
            for sd in sides:
                n0 = len(sd.q); sv = sd.since_vm
                if left > 0:
                    sd.since_vm -= 1; sd.fill(left)
                if len(sd.q) != n0: break
```

```python
import sys; sys.path.insert(0,'gen')
from gen_all import *
from k0 import gen_k0, K0_LDS
import kA
from k3 import gen_k3, K3_LDS
def build_v4(out, stamps=False, tag=(False, False), k0kw={}, **kw):
    launches = [("k0_kernel", 256, 256, K0_LDS)]
    bodies = [gen_k0("k0_kernel", 65536, stamps, clear_o0=tag[0], **k0kw)]
    for L in range(2):
        launches += [(f"kAl{L}_kernel", 256, 256, 163840), (f"k3l{L}_kernel", 160, 576, K3_LDS)]
        bodies += [kA.gen_kA(f"kAl{L}_kernel", L, stamps, TAG=tag[L], CLEAR1=tag[1], **kw), gen_k3(f"k3l{L}_kernel", L, stamps)]
    print(assemble(launches, bodies, out), ",".join(kA.gen_kA.names), "|", ",".join(gen_k0.names), "|", ",".join(gen_k3.names))
if __name__ == "__main__":
    build_v4("v7.s")
    build_v4("v7s.s", True)
    build_v4("v7s_nt.s", True, k0kw=dict(ntm=" nt"))
    build_v4("v7s_ntf.s", True, k0kw=dict(ntm=" nt", ntw="f"))
    build_v4("v7s_ntfw.s", True, k0kw=dict(ntm=" nt", ntw="fw"))
```

```python
from asm import *
from layout import *

OOB = 0x40000000
XL = 143360
WP = 0
K0_LDS = XL + 10240 + 64

def ident_frag(a, dst, vdiff, tmp):
    for q in range(4):
        a.e(f"v_cmp_eq_u32 vcc, {2*q}, v{vdiff}")
        a.e(f"v_cndmask_b32 v{dst+q}, 0, v{tmp}, vcc")
        a.e(f"v_cmp_eq_u32 vcc, {2*q+1}, v{vdiff}")
        a.e(f"v_cndmask_b32 v{dst+q}, v{dst+q}, v{tmp+1}, vcc")

def xconv_finish(a, name, nyounger):
    e = a.e
    e(f"s_waitcnt vmcnt({nyounger})")
    e("buffer_store_dwordx4 v[232:235], v219, s[24:27], s58 offen sc1")
    for r in range(3):
        if r == 2:
            e("v_cmp_gt_u32 vcc, 128, v0"); e("s_and_saveexec_b64 s[52:53], vcc")
        e(f"ds_write_b128 v{216+r}, v[{220+4*r}:{223+4*r}]")
        if r == 2: e("s_mov_b64 exec, s[52:53]")
    e("s_waitcnt lgkmcnt(0)"); e("s_barrier")
    e("v_lshlrev_b32 v236, 4, v0"); e(f"v_add_u32 v237, {XL}, v236")
    for r in range(3): e(f"ds_read_b128 v[{220+4*r}:{223+4*r}], v237 offset:{4096*r}")
    e(f"v_mov_b32 v238, {OOB}"); e("v_cmp_gt_u32 vcc, 128, v0"); e("v_cndmask_b32 v237, v238, v236, vcc")
    e("s_waitcnt lgkmcnt(0)")
    e("buffer_store_dwordx4 v[220:223], v236, s[24:27], s46 offen sc1")
    e("s_add_u32 s46, s46, 4096"); e("buffer_store_dwordx4 v[224:227], v236, s[24:27], s46 offen sc1")
    e("s_add_u32 s46, s46, 4096"); e("buffer_store_dwordx4 v[228:231], v237, s[24:27], s46 offen sc1")

def gen_k0(name, code_bytes, stamps=False, clear_o0=False, ntm='', ntw=''):
    a = Asm(); e = a.e
    st = Stamps(a, stamps, 0)
    e(f"s_cmp_ge_u32 s2, 256")
    e(f"s_cbranch_scc1 {name}_exit")
    st.mark("start")
    e("s_load_dwordx4 s[4:7], s[0:1], 8")
    e("s_load_dwordx2 s[8:9], s[0:1], 24")
    e("s_load_dwordx4 s[12:15], s[0:1], 56")
    e("s_load_dwordx2 s[16:17], s[0:1], 88")
    e("s_load_dwordx2 s[44:45], s[0:1], 0")
    e("v_and_b32 v1, 63, v0")
    e("v_lshrrev_b32 v2, 6, v0")
    e("v_and_b32 v3, 15, v1")
    e("v_lshrrev_b32 v4, 4, v1")
    e("v_readfirstlane_b32 s18, v2")
    e(f"v_mov_b32 v14, {OOB}")
    e("s_lshr_b32 s28, s2, 1"); e("s_and_b32 s29, s2, 1")
    e("s_lshr_b32 s30, s28, 3"); e("s_bfe_u32 s31, s28, 0x20001"); e("s_and_b32 s46, s28, 1")
    e("s_and_b32 s47, s30, 1"); e("s_lshl_b32 s47, s47, 10"); e("s_lshl_b32 s46, s46, 5"); e("s_add_u32 s47, s47, s46")
    e("s_lshr_b32 s30, s30, 1"); e("s_lshl_b32 s30, s30, 2"); e("s_add_u32 s47, s47, s30"); e("s_add_u32 s47, s47, s31")
    e("s_mul_i32 s47, s47, 1280"); e("s_mul_i32 s46, s29, 640"); e("s_add_u32 s47, s47, s46")
    e(f"s_mul_i32 s46, s28, {AF_WT}"); e("s_mul_i32 s30, s29, 10240"); e("s_add_u32 s46, s46, s30"); e(f"s_add_u32 s46, s46, {XIN_OFF[0]}")
    for r in range(3):
        e(f"v_add_u32 v8, {256*r}, v0"); e("v_mul_u32_u24 v9, 52429, v8"); e("v_lshrrev_b32 v9, 21, v9")
        e("v_mul_u32_u24 v10, 40, v9"); e("v_sub_u32 v10, v8, v10")
        e("v_mul_u32_u24 v11, 81920, v9"); e(f"v_lshl_add_u32 v{212+r}, v10, 4, v11")
        e("v_lshlrev_b32 v12, 4, v9"); e(f"v_lshl_add_u32 v12, v10, 8, v12"); e(f"v_add_u32 v{216+r}, {XL}, v12")
        if r == 2:
            e("v_cmp_gt_u32 vcc, 640, v8"); e(f"v_cndmask_b32 v{212+r}, v14, v{212+r}, vcc")
    e("s_lshr_b32 s56, s2, 4"); e("s_and_b32 s57, s2, 15"); e("s_mul_i32 s30, s57, 200")
    e("v_add_u32 v8, s30, v0")
    e("v_lshrrev_b32 v9, 4, v8"); e("v_mul_u32_u24 v10, 52429, v9"); e("v_lshrrev_b32 v10, 20, v10")
    e("v_mul_u32_u24 v11, 20, v10"); e("v_sub_u32 v11, v9, v11")
    e("s_lshr_b32 s57, s57, 3")
    e("s_mul_i32 s30, s57, 5"); e("v_subrev_u32 v10, s30, v10")
    e("v_and_b32 v12, 3, v8"); e("v_bfe_u32 v13, v8, 2, 2")
    e("v_lshl_add_u32 v9, v10, 2, v12"); e("v_mul_u32_u24 v9, 1280, v9")
    e("v_lshl_add_u32 v9, v11, 6, v9"); e("v_lshl_add_u32 v215, v13, 4, v9")
    e("v_mul_u32_u24 v9, 5, v11"); e("v_add_u32 v9, v9, v10"); e("v_lshlrev_b32 v9, 10, v9")
    e("v_lshl_add_u32 v12, v13, 4, v12"); e("v_lshl_add_u32 v219, v12, 4, v9")
    e("v_cmp_gt_u32 vcc, 200, v0"); e("v_cndmask_b32 v215, v14, v215, vcc"); e("v_cndmask_b32 v219, v14, v219, vcc")
    e("s_mul_i32 s59, s56, 20"); e("s_add_u32 s59, s59, 1"); e("s_mul_i32 s59, s59, 1280")
    e(f"s_mul_i32 s58, s56, {W1_C}"); e("s_add_u32 s58, s58, 102400"); e("s_add_u32 s30, s57, 2"); e("s_lshl_b32 s30, s30, 6"); e("s_add_u32 s58, s58, s30")
    e("s_waitcnt lgkmcnt(0)")
    srd(a, 24, 16, 17, 0, WS_USED)
    e(f"s_mov_b32 s48, s44"); e("s_mov_b32 s49, s45"); e(f"s_mov_b32 s50, {ACT}"); e("s_mov_b32 s51, 0x20000")
    for r in range(3): e(f"buffer_load_dwordx4 v[{220+4*r}:{223+4*r}], v{212+r}, s[48:51], s47 offen" + ntm)
    e("s_cmp_eq_u32 s57, 1"); e("s_cselect_b32 s40, s14, s12"); e("s_cselect_b32 s41, s15, s13"); e(f"s_mov_b32 s42, {640*1280}"); e("s_mov_b32 s43, 0x20000")
    e("buffer_load_dwordx4 v[232:235], v215, s[40:43], s59 offen")
    e("s_lshl_b32 s19, s2, 10"); e(f"s_add_u32 s19, s19, {ZERO_OFF}")
    for r in range(4): e(f"v_mov_b32 v{200+r}, 0")
    e("v_lshlrev_b32 v6, 4, v0"); e("v_cmp_gt_u32 vcc, 64, v0"); e("v_cndmask_b32 v7, v14, v6, vcc")
    e("buffer_store_dwordx4 v[200:203], v7, s[24:27], s19 offen sc1")
    NS = 0
    if clear_o0:
        for r in range(4): e(f"v_mov_b32 v{204+r}, -1")
        e("s_mul_i32 s19, s2, 10240"); e(f"s_add_u32 s19, s19, {O_OFF[0]}")
        e("v_cmp_gt_u32 vcc, 128, v0"); e("v_cndmask_b32 v7, v14, v6, vcc")
        e("buffer_store_dwordx4 v[204:207], v6, s[24:27], s19 offen sc1")
        e("s_add_u32 s19, s19, 4096"); e("buffer_store_dwordx4 v[204:207], v6, s[24:27], s19 offen sc1")
        e("s_add_u32 s19, s19, 4096"); e("buffer_store_dwordx4 v[204:207], v7, s[24:27], s19 offen sc1")
        NS = 3
    st.mark("common")
    e("s_and_b32 s33, s2, 7"); e("s_lshr_b32 s34, s2, 3")
    e("s_cmp_ge_u32 s34, 12")
    e(f"s_cbranch_scc1 {name}_wf")

    e("s_mul_i32 s30, s33, 12"); e("s_add_u32 s30, s30, s34")
    e("s_lshr_b32 s28, s30, 5"); e("s_and_b32 s29, s30, 31")
    srd(a, 32, 4, 5, 0, 640 * 3840)
    srd(a, 36, 6, 7, 0, 32 * 400 * 2)
    e("s_mul_i32 s30, s18, 160")
    e("v_add_u32 v8, s30, v3")
    e("s_movk_i32 s31, 3840")
    e("v_mul_lo_u32 v8, v8, s31")
    e("s_mul_i32 s30, s28, 640"); e("s_mul_i32 s31, s29, 20"); e("s_add_u32 s30, s30, s31"); e("s_lshl_b32 s30, s30, 1")
    e("v_lshlrev_b32 v9, 4, v4")
    e("v_add3_u32 v8, v8, v9, s30")
    e("v_lshlrev_b32 v10, 4, v0"); e("v_cmp_gt_u32 vcc, 50, v0"); e("v_cndmask_b32 v11, v14, v10, vcc")
    e("s_mul_i32 s30, s29, 800")
    e("buffer_load_dwordx4 v[64:67], v11, s[36:39], s30 offen")
    e("s_mov_b32 s31, 0")
    for m in range(10):
        e(f"buffer_load_dwordx4 v[{16+4*m}:{19+4*m}], v8, s[32:35], s31 offen" + (ntm if "f" in ntw else ""))
        if m < 9: e("s_add_u32 s31, s31, 61440")
    for r in range(68, 72): e(f"v_mov_b32 v{r}, 0")
    e("v_cmp_gt_u32 vcc, 84, v0"); e("s_and_saveexec_b64 s[52:53], vcc")
    e("ds_write_b128 v10, v[68:71]"); e("s_mov_b64 exec, s[52:53]")
    xconv_finish(a, name, 11 + 1 + NS)
    e("s_cmp_eq_u32 s28, 2"); e(f"s_cbranch_scc1 {name}_bid")
    e("s_waitcnt vmcnt(14)")
    e("v_cmp_gt_u32 vcc, 50, v0"); e("s_and_saveexec_b64 s[52:53], vcc")
    e("ds_write_b128 v10, v[64:67]"); e("s_mov_b64 exec, s[52:53]")
    e(f"s_branch {name}_bdone")
    a.label(f"{name}_bid")
    e("v_mul_u32_u24 v10, 42, v0"); e("v_mov_b32 v11, 0x3f80")
    e("v_cmp_gt_u32 vcc, 20, v0"); e("s_and_saveexec_b64 s[52:53], vcc")
    e("ds_write_b16 v10, v11"); e("s_mov_b64 exec, s[52:53]")
    a.label(f"{name}_bdone")
    e("s_waitcnt lgkmcnt(0)"); e("s_barrier")
    e("v_lshrrev_b32 v10, 2, v3"); e("v_lshl_add_u32 v10, v4, 3, v10"); e("v_mul_u32_u24 v10, 40, v10"); e("v_and_b32 v11, 3, v1"); e("v_lshl_add_u32 v10, v11, 3, v10")
    for nt in range(2):
        e(f"ds_read_b64_tr_b16 v[{56+4*nt}:{57+4*nt}], v10 offset:{32*nt}")
        e(f"ds_read_b64_tr_b16 v[{58+4*nt}:{59+4*nt}], v10 offset:{32*nt + 160}")
    e("s_waitcnt vmcnt(4) lgkmcnt(0)")
    st.mark("f_loads")
    for m in range(10):
        for nt in range(2):
            d = 80 + 8 * m + 4 * nt
            e(f"v_mfma_f32_16x16x32_bf16 v[{d}:{d+3}], v[{16+4*m}:{19+4*m}], v[{56+4*nt}:{59+4*nt}], 0")
    for nt in range(2):
        r = 64 + 2*nt
        e(f"v_pk_add_f32 v[{r}:{r+1}], v[{80+4*nt}:{81+4*nt}], v[{82+4*nt}:{83+4*nt}]")
        for m in range(1, 10):
            for hb in range(2):
                s0 = 80 + 8*m + 4*nt + 2*hb
                e(f"v_pk_add_f32 v[{r}:{r+1}], v[{r}:{r+1}], v[{s0}:{s0+1}]")
        e(f"v_add_f32 v{r}, v{r}, v{r+1}")
    for nt in range(2):
        r = 64 + 2*nt
        e(f"v_mov_b32 v68, v{r}"); e(f"v_permlane32_swap_b32 v{r}, v68"); e(f"v_add_f32 v{r}, v{r}, v68")
        e(f"v_mov_b32 v68, v{r}"); e(f"v_permlane16_swap_b32 v{r}, v68"); e(f"v_add_f32 v{r}, v{r}, v68")
    e("v_lshlrev_b32 v69, 4, v3"); e("v_add_u32 v69, 2048, v69")
    e("s_lshl_b32 s30, s18, 2"); e("v_add_u32 v70, s30, v69")
    e("ds_write_b32 v70, v64"); e("ds_write_b32 v70, v66 offset:256")
    e("s_and_b32 s30, s29, 1")
    e("s_cmp_eq_u32 s28, 2"); e("s_cselect_b32 s31, 2, 0"); e("s_add_u32 s30, s30, s31")
    e("s_lshl_b32 s30, s30, 6")
    e("v_and_b32 v8, 1, v4"); e("v_lshlrev_b32 v8, 9, v8")
    e("v_lshrrev_b32 v9, 1, v4"); e("v_lshlrev_b32 v9, 8, v9")
    e("v_add3_u32 v8, v8, v9, s30")
    for nt in range(2):
        e(f"v_add_u32 v9, {16*nt}, v3")
        e("v_lshrrev_b32 v10, 2, v9"); e("v_lshlrev_b32 v10, 10, v10")
        e("v_and_b32 v11, 3, v9"); e("v_lshlrev_b32 v11, 4, v11")
        e(f"v_add3_u32 v{72+nt}, v8, v10, v11")
    e("v_cmp_gt_u32 vcc, 4, v3"); e("v_cndmask_b32 v73, v14, v73, vcc")
    e("s_lshr_b32 s30, s29, 1"); e(f"s_mul_i32 s30, s30, {W1_C}")
    e("s_cmp_eq_u32 s28, 0"); e("s_cselect_b32 s31, 102400, 0"); e("s_add_u32 s30, s30, s31")
    e("s_mul_i32 s31, s18, 25600"); e("s_add_u32 s30, s30, s31")
    e("s_waitcnt lgkmcnt(0)"); e("s_barrier")
    e("ds_read_b128 v[68:71], v69"); e("ds_read_b128 v[74:77], v69 offset:256")
    e("s_waitcnt lgkmcnt(0)")
    for nt, b in ((0, 68), (1, 74)):
        e(f"v_pk_add_f32 v[{b}:{b+1}], v[{b}:{b+1}], v[{b+2}:{b+3}]"); e(f"v_add_f32 v{b}, v{b}, v{b+1}")
        e(f"v_mul_f32 v{64+2*nt}, {1.0/640.0!r}, v{b}")
    st.mark("f_sums")
    for mp in range(5):
        for nt in range(2):
            dA = 80 + 8 * (2*mp) + 4 * nt; dB = 80 + 8 * (2*mp+1) + 4 * nt
            for d in (dA, dB):
                for hb in range(2):
                    e(f"v_pk_add_f32 v[{d+2*hb}:{d+2*hb+1}], v[{d+2*hb}:{d+2*hb+1}], v[{64+2*nt}:{65+2*nt}] op_sel_hi:[1,0] neg_lo:[0,1] neg_hi:[0,1]")
            r0 = 16 + 4 * (2*mp + nt)
            e(f"v_cvt_pk_bf16_f32 v{r0}, v{dA}, v{dA+1}"); e(f"v_cvt_pk_bf16_f32 v{r0+1}, v{dA+2}, v{dA+3}")
            e(f"v_cvt_pk_bf16_f32 v{r0+2}, v{dB}, v{dB+1}"); e(f"v_cvt_pk_bf16_f32 v{r0+3}, v{dB+2}, v{dB+3}")
            e(f"v_permlane16_swap_b32 v{r0}, v{r0+2}"); e(f"v_permlane16_swap_b32 v{r0+1}, v{r0+3}")
            e(f"buffer_store_dwordx4 v[{r0}:{r0+3}], v{72+nt}, s[24:27], s30 offen sc1")
        e("s_add_u32 s30, s30, 5120")
    st.mark("f_stores")
    e("s_cmp_eq_u32 s28, 2")
    e(f"s_cbranch_scc1 {name}_tables")
    e(f"s_branch {name}_end")

    a.label(f"{name}_wf")
    e("s_sub_u32 s34, s34, 12")
    e("s_and_b32 s28, s33, 1"); e("s_mul_i32 s28, s28, 5"); e("s_lshr_b32 s30, s34, 2"); e("s_add_u32 s28, s28, s30")
    e("s_lshr_b32 s29, s33, 1"); e("s_lshl_b32 s29, s29, 2"); e("s_and_b32 s30, s34, 3"); e("s_add_u32 s29, s29, s30")
    srd(a, 32, 8, 9, 0, 640 * 1280)
    srd(a, 36, 12, 13, 0, 640 * 1280)
    srd(a, 40, 14, 15, 0, 640 * 1280)
    e("s_lshl_b32 s54, s18, 2")
    for n in range(5):
        e(f"v_add_u32 v8, {64*n}, v1"); e("v_mul_u32_u24 v9, 52429, v8"); e("v_lshrrev_b32 v9, 22, v9")
        e("v_mul_u32_u24 v20, 80, v9"); e("v_sub_u32 v20, v8, v20")
        e("v_mul_u32_u24 v21, 1280, v9"); e("v_add_u32 v9, s54, v9")
        e("v_xor_b32 v22, v20, v9"); e(f"v_lshl_add_u32 v{24+n}, v22, 4, v21")
    nd = 0
    for gi in range(4):
        e(f"s_lshl_b32 s30, s28, 6"); e("s_lshl_b32 s31, s18, 2"); e("s_add_u32 s30, s30, s31"); e(f"s_add_u32 s30, s30, {16*gi}")
        e("s_mul_i32 s31, s30, 52429"); e("s_lshr_b32 s31, s31, 21"); e("s_mul_i32 s31, s31, 40"); e("s_sub_u32 s31, s30, s31")
        e("s_cmp_eq_u32 s31, 20"); e("s_cselect_b32 s55, 16, 0"); e("s_add_u32 s30, s30, s55")
        e("s_cmp_ge_u32 s31, 24"); e("s_cselect_b32 s55, 4, 0"); e("s_sub_u32 s30, s30, s55")
        e("s_mul_i32 s30, s30, 1280")
        e(f"s_add_u32 s31, s18, {4*gi}"); e("s_mul_i32 s31, s31, 5120")
        for n in range(5):
            e(f"s_add_u32 m0, s31, {1024*n}"); e(f"buffer_load_dwordx4 v{24+n}, s[32:35], s30 offen" + (ntm if "w" in ntw else "") + " lds"); nd += 1
    e("s_mul_i32 s55, s29, 20"); e("s_add_u32 s55, s55, 1")
    e("s_lshl_b32 s31, s18, 2"); e("s_add_u32 s30, s55, s31"); e("s_mul_i32 s30, s30, 1280")
    e("s_mul_i32 s31, s18, 5120"); e("s_add_u32 s31, s31, 81920")
    for n in range(5):
        e(f"s_add_u32 m0, s31, {1024*n}"); e(f"buffer_load_dwordx4 v{24+n}, s[36:39], s30 offen" + (ntm if "w" in ntw else "") + " lds"); nd += 1
    e("s_add_u32 s31, s31, 20480")
    for n in range(5):
        e(f"s_add_u32 m0, s31, {1024*n}"); e(f"buffer_load_dwordx4 v{24+n}, s[40:43], s30 offen" + (ntm if "w" in ntw else "") + " lds"); nd += 1
    e("s_add_u32 s30, s55, 16"); e("s_mul_i32 s30, s30, 1280"); e("s_add_u32 s33, s31, 20480")
    e("s_cmp_eq_u32 s18, 0"); e("s_cselect_b32 s64, s36, s40"); e("s_cselect_b32 s65, s37, s41"); e(f"s_mov_b32 s66, {640*1280}"); e("s_mov_b32 s67, 0x20000")
    e("s_cmp_ge_u32 s18, 2"); e(f"s_cbranch_scc1 {name}_wfb")
    for n in range(5):
        e(f"s_add_u32 m0, s33, {1024*n}"); e(f"buffer_load_dwordx4 v{24+n}, s[64:67], s30 offen lds")
    a.label(f"{name}_wfb")
    e("s_cmp_lt_u32 s2, 248"); e(f"s_cbranch_scc1 {name}_nopf")
    e("s_cmp_lg_u32 s18, 3"); e(f"s_cbranch_scc1 {name}_nopf")
    e("s_getpc_b64 s[20:21]")
    a.label(f"{name}_pc")
    e(f"s_sub_u32 s20, s20, {name}_pc-prog_start"); e("s_subb_u32 s21, s21, 0")
    e("v_lshlrev_b32 v5, 7, v1")
    for q in range((code_bytes + 8191) // 8192):
        e(f"v_min_u32 v6, prog_end-prog_start-4, v5"); e(f"global_load_dword v{240+q}, v6, s[20:21]"); e(f"v_add_u32 v5, 8192, v5")
    a.label(f"{name}_nopf")
    st.mark("w_issue")
    xconv_finish(a, name, 31 + NS)
    e("v_mul_u32_u24 v21, 1280, v3")
    e("s_mul_i32 s30, s18, 20480"); e("s_mov_b32 s31, 81920")
    for p in range(4):
        e(f"v_add_u32 v9, {4*p}, v4"); e("v_xor_b32 v9, v9, v3"); e("v_lshlrev_b32 v9, 4, v9")
        e(f"v_add3_u32 v{184+p}, v21, v9, s30"); e(f"v_add3_u32 v{188+p}, v21, v9, s31")
    e("s_mul_i32 s31, s29, 5"); e("v_add_u32 v16, s31, v4"); e("v_xor_b32 v15, v16, v3"); e("v_lshlrev_b32 v15, 4, v15")
    e("v_add_u32 v16, 4, v16"); e("v_xor_b32 v16, v16, v3"); e("v_lshlrev_b32 v16, 4, v16")
    e("s_mul_i32 s30, s18, 20480"); e("v_add3_u32 v15, v21, v15, s30"); e("v_add3_u32 v16, v21, v16, s30")
    e("v_mov_b32 v22, 0x3f80"); e("v_mov_b32 v23, 0x3f800000")
    e("v_lshlrev_b32 v9, 3, v4"); e("v_sub_u32 v17, v3, v9"); e("v_add_u32 v18, 16, v17")
    ident_frag(a, 112, 17, 22)
    ident_frag(a, 116, 18, 22)
    e("s_waitcnt vmcnt(4)")
    e("s_barrier")
    st.mark("w_loads")
    e("ds_read_b128 v[104:107], v15"); e("ds_read_b128 v[108:111], v16")
    def rd(s):
        b0 = 144 + 16*(s & 1)
        e(f"ds_read_b128 v[{b0}:{b0+3}], v{184+(s&3)} offset:{(s>>2)*256}")
        for nt in range(3):
            e(f"ds_read_b128 v[{b0+4+4*nt}:{b0+7+4*nt}], v{188+(s&3)} offset:{nt*20480 + (s>>2)*256}")
    rd(0)
    for s in range(20):
        if s + 1 < 20: rd(s + 1); e("s_waitcnt lgkmcnt(4)")
        else: e("s_waitcnt lgkmcnt(0)")
        b0 = 144 + 16*(s & 1)
        for nt in range(3):
            c = "0" if s == 0 else f"v[{120+4*nt}:{123+4*nt}]"
            e(f"v_mfma_f32_16x16x32_bf16 v[{120+4*nt}:{123+4*nt}], v[{b0}:{b0+3}], v[{b0+4+4*nt}:{b0+7+4*nt}], {c}")
    e("v_mfma_f32_16x16x32_bf16 v[132:135], v[104:107], v[112:115], 0")
    e("v_mfma_f32_16x16x32_bf16 v[136:139], v[104:107], v[116:119], 0")
    e("v_mfma_f32_16x16x32_bf16 v[140:143], v[108:111], v[112:115], 0")
    st.mark("w_mfma")
    e("s_lshr_b32 s31, s18, 1"); e("s_mul_i32 s31, s31, 5120"); e("s_and_b32 s30, s18, 1"); e("s_lshl_b32 s30, s30, 9"); e("s_add_u32 s30, s30, s31"); e(f"s_add_u32 s30, s30, {XL}")
    e("v_lshrrev_b32 v8, 1, v4"); e("v_lshlrev_b32 v8, 8, v8"); e("v_and_b32 v9, 1, v4"); e("v_lshl_add_u32 v8, v9, 3, v8"); e("v_add_u32 v8, s30, v8")
    e(f"v_mov_b32 v14, {XL + 10240}")
    def xf_addr(dst, vu, ri_const=None, vri=None):
        e(f"v_lshrrev_b32 v10, 2, v{vu}"); e("v_lshlrev_b32 v10, 10, v10")
        e(f"v_and_b32 v11, 3, v{vu}")
        if ri_const is not None: e(f"v_add_u32 v11, {4*(2+ri_const)}, v11")
        else: e(f"v_lshl_add_u32 v11, v{vri}, 2, v11"); e("v_add_u32 v11, 8, v11")
        e("v_lshlrev_b32 v11, 4, v11")
        e(f"v_add3_u32 v{dst}, v8, v10, v11")
    xf_addr(16, 3, 0); xf_addr(17, 3, 1)
    e("v_and_b32 v12, 3, v3"); e("v_add_u32 v12, 16, v12"); e("v_lshrrev_b32 v13, 2, v3")
    xf_addr(18, 12, None, 13)
    e("v_cmp_gt_u32 vcc, 8, v3"); e("v_cndmask_b32 v18, v14, v18, vcc")
    for nt in range(3):
        e(f"v_add_u32 v12, {16*nt}, v3")
        e("v_cmp_le_u32 vcc, 20, v12"); e("v_cndmask_b32 v13, 0, 1, vcc")
        e("v_lshlrev_b32 v15, 2, v13"); e("v_sub_u32 v15, v12, v15")
        e("v_cmp_le_u32 vcc, 24, v12"); e("v_subrev_u32 v12, 24, v12"); e("v_cndmask_b32 v12, v15, v12, vcc")
        e("v_lshrrev_b32 v10, 2, v12"); e("v_lshlrev_b32 v10, 10, v10")
        e("v_and_b32 v11, 3, v12"); e("v_lshl_add_u32 v11, v13, 2, v11"); e("v_lshlrev_b32 v11, 4, v11")
        e(f"v_add3_u32 v{19+nt}, v8, v10, v11")
    e("v_cmp_gt_u32 vcc, 8, v3"); e("v_cndmask_b32 v21, v14, v21, vcc")
    for t in range(6):
        d = 120 + 4 * t
        e(f"v_cvt_pk_bf16_f32 v{d}, v{d}, v{d+1}")
        e(f"v_cvt_pk_bf16_f32 v{d+1}, v{d+2}, v{d+3}")
        e(f"ds_write_b64 v{16+t}, v[{d}:{d+1}]")
    e("s_waitcnt lgkmcnt(0)"); e("s_barrier")
    e("v_lshlrev_b32 v8, 4, v0"); e(f"v_add_u32 v9, {XL}, v8")
    for r in range(3): e(f"ds_read_b128 v[{120+4*r}:{123+4*r}], v9 offset:{4096*r}")
    e(f"s_mul_i32 s30, s29, {W2_C}"); e("s_mul_i32 s31, s28, 10240"); e("s_add_u32 s30, s30, s31"); e(f"s_add_u32 s30, s30, {W2_OFF}")
    e(f"v_mov_b32 v14, {OOB}"); e("v_cmp_gt_u32 vcc, 128, v0"); e("v_cndmask_b32 v9, v14, v8, vcc")
    e("s_waitcnt lgkmcnt(0)")
    e("buffer_store_dwordx4 v[120:123], v8, s[24:27], s30 offen sc1")
    e("s_add_u32 s30, s30, 4096"); e("buffer_store_dwordx4 v[124:127], v8, s[24:27], s30 offen sc1")
    e("s_add_u32 s30, s30, 4096"); e("buffer_store_dwordx4 v[128:131], v9, s[24:27], s30 offen sc1")
    e(f"s_branch {name}_end")

    a.label(f"{name}_tables")
    e("s_mov_b32 s28, s29")
    e("s_cmp_gt_u32 s28, 4")
    e(f"s_cbranch_scc1 {name}_end")
    e("v_lshlrev_b32 v9, 4, v1")
    e("s_cmp_eq_u32 s28, 4")
    e(f"s_cbranch_scc1 {name}_tab2")
    e("s_lshl_b32 s29, s28, 4"); e("v_add_u32 v8, s29, v3")
    e("s_cmp_ge_u32 s18, 2")
    e(f"s_cbranch_scc1 {name}_tabtw")
    e("s_lshl_b32 s29, s18, 5"); e("v_lshlrev_b32 v10, 3, v4"); e("v_add_u32 v10, s29, v10")
    for jj in range(8):
        e(f"v_add_u32 v11, {jj}, v10"); e("v_mul_u32_u24 v11, v11, v8"); e("v_and_b32 v11, 63, v11")
        e("v_cvt_f32_u32 v11, v11"); e(f"v_mul_f32 v11, {1.0/64!r}, v11")
        e(f"v_cos_f32 v{16+jj}, v11"); e(f"v_sin_f32 v{24+jj}, v11")
    for q in range(4):
        e(f"v_cvt_pk_bf16_f32 v{32+q}, v{16+2*q}, v{17+2*q}")
        e(f"v_cvt_pk_bf16_f32 v{40+q}, v{24+2*q}, v{25+2*q}")
        e(f"v_xor_b32 v{36+q}, 0x80008000, v{40+q}")
    e("s_mul_i32 s29, s28, 6144"); e("s_lshl_b32 s30, s18, 10"); e("s_add_u32 s29, s29, s30"); e(f"s_add_u32 s29, s29, {TAB_OFF + TAB_W64}")
    for var in range(3):
        if var == 2: e("s_add_u32 s29, s29, 4096")
        e(f"buffer_store_dwordx4 v[{32+4*var}:{35+4*var}], v9, s[24:27], s29 offen offset:{2048*(var&1)}")
    e(f"s_branch {name}_end")
    a.label(f"{name}_tabtw")
    e("s_cmp_lg_u32 s18, 2")
    e(f"s_cbranch_scc1 {name}_end")
    for T in range(2):
        for b in range(4):
            e(f"v_lshlrev_b32 v11, 2, v4"); e(f"v_add_u32 v11, {16*T+b}, v11"); e("v_mul_u32_u24 v11, v11, v8")
            e("v_cvt_f32_u32 v11, v11"); e(f"v_mul_f32 v11, {1.0/2048!r}, v11")
            e(f"v_cos_f32 v{16+4*T+b}, v11"); e(f"v_sin_f32 v{24+4*T+b}, v11")
    e("s_lshl_b32 s29, s28, 12"); e(f"s_add_u32 s29, s29, {TAB_OFF + TAB_TW}")
    for q in range(4):
        e(f"buffer_store_dwordx4 v[{16+4*q}:{19+4*q}], v9, s[24:27], s29 offen offset:{1024*q}")
    e(f"s_branch {name}_end")
    a.label(f"{name}_tab2")
    e("s_cmp_ge_u32 s18, 2")
    e(f"s_cbranch_scc1 {name}_end")
    e("s_lshl_b32 s29, s18, 4"); e("v_add_u32 v8, s29, v3")
    for jj in range(8):
        e(f"v_lshlrev_b32 v11, 2, v4"); e(f"v_add_u32 v11, {16*(jj>>2) + (jj&3)}, v11"); e("v_mul_u32_u24 v11, v11, v8"); e("v_and_b32 v11, 31, v11")
        e("v_cvt_f32_u32 v11, v11"); e(f"v_mul_f32 v11, {1.0/32!r}, v11")
        e(f"v_cos_f32 v{16+jj}, v11"); e(f"v_sin_f32 v{24+jj}, v11")
    for q in range(4):
        e(f"v_cvt_pk_bf16_f32 v{32+q}, v{16+2*q}, v{17+2*q}")
        e(f"v_cvt_pk_bf16_f32 v{36+q}, v{24+2*q}, v{25+2*q}")
    e("s_lshl_b32 s29, s18, 11"); e(f"s_add_u32 s29, s29, {TAB_OFF + TAB_S2}")
    e("buffer_store_dwordx4 v[32:35], v9, s[24:27], s29 offen")
    e("buffer_store_dwordx4 v[36:39], v9, s[24:27], s29 offen offset:1024")
    a.label(f"{name}_end")
    if stamps:
        e("s_waitcnt vmcnt(0)"); st.mark("end"); st.flush(16, 17, 18)
    a.label(f"{name}_exit")
    e("s_endpgm")
    gen_k0.names = st.names
    return kernel_header(name) + a.text() + kernel_desc(name, 256, 0, 102 if stamps else 72)
```

```python
from asm import *
from layout import *
from k1b import x_items, dma_item, w_items, emit_now
OOB = 0x40000000
TB = 40960
ROWP = 272
KVT = 75776
XB = 81920
SPIN = 1 << 16

def signal(a, s_off, lab):
    e = a.e
    e("s_barrier")
    e("s_cmp_lg_u32 s18, 0"); e(f"s_cbranch_scc1 {lab}")
    e("v_mov_b32 v240, 0"); e("v_mov_b32 v241, 1")
    e("s_mov_b64 s[40:41], exec"); e("s_mov_b64 exec, 1")
    e(f"buffer_atomic_add v241, v240, s[12:15], {s_off} offen sc1")
    e("s_mov_b64 exec, s[40:41]")
    a.label(lab)
def wait_cnt(a, s_off, target, lab):
    e = a.e
    e("s_cmp_lg_u32 s18, 0"); e(f"s_cbranch_scc1 {lab}_done")
    e("v_mov_b32 v240, 0"); e(f"s_mov_b32 s42, {SPIN}")
    a.label(f"{lab}_loop")
    e(f"buffer_load_dword v241, v240, s[12:15], {s_off} offen sc1")
    e("s_waitcnt vmcnt(0)")
    e("v_readfirstlane_b32 s43, v241")
    e(f"s_cmp_ge_u32 s43, {target}"); e(f"s_cbranch_scc1 {lab}_done")
    e("s_sub_u32 s42, s42, 1"); e("s_cmp_lg_u32 s42, 0"); e(f"s_cbranch_scc1 {lab}_loop")
    a.label(f"{lab}_done")
    e("s_barrier")

def wait_all16(a, s_off, target, lab):
    e = a.e
    e("s_cmp_lg_u32 s18, 0"); e(f"s_cbranch_scc1 {lab}_done")
    e("s_mov_b64 s[40:41], exec"); e("s_mov_b64 exec, 0xffff")
    e("v_lshlrev_b32 v240, 7, v1"); e(f"s_mov_b32 s42, {SPIN}")
    a.label(f"{lab}_loop")
    e(f"buffer_load_dword v241, v240, s[12:15], {s_off} offen sc1")
    e("s_waitcnt vmcnt(0)")
    e(f"v_cmp_gt_u32 vcc, {target}, v241")
    e(f"s_cbranch_vccz {lab}_ok")
    e("s_sub_u32 s42, s42, 1"); e("s_cmp_lg_u32 s42, 0"); e(f"s_cbranch_scc1 {lab}_loop")
    a.label(f"{lab}_ok")
    e("s_mov_b64 exec, s[40:41]")
    a.label(f"{lab}_done")
    e("s_barrier")

def epiA_head(r):
    e = r.e
    e("v_permlane32_swap_b32 v136, v140")
    for tt in range(2):
        g0 = 144 + 4*tt
        e(f"v_cndmask_b32 v{g0}, v{g0}, v{g0+1}, s[24:25]")
        e(f"v_cndmask_b32 v{g0}, v{g0}, v{g0+2}, s[26:27]")
        e(f"v_cndmask_b32 v{g0}, v{g0}, v{g0+3}, s[28:29]")
    e("ds_bpermute_b32 v145, v9, v144"); e("ds_bpermute_b32 v149, v9, v148")
    for u in range(20): e(f"v_permlane32_swap_b32 v{56+u}, v{76+u}")
    r.mark("step")
    e("v_permlane32_swap_b32 v145, v149")
    e(f"v_mul_f32 v136, {1/640!r}, v136")
    e(f"v_mul_f32 v145, {1/640!r}, v145")
    e("v_fma_f32 v145, -v136, v136, v145")
    e("v_max_f32 v145, 0, v145")
    e("v_add_f32 v145, 0x3727c5ac, v145")
    e("v_rsq_f32 v8, v145")
    e("v_lshrrev_b32 v12, 5, v1"); e("v_lshl_add_u32 v12, v12, 4, v2"); e("s_lshl_b32 s19, s18, 5"); e("v_add_u32 v12, s19, v12")
    e(f"v_mul_f32 v10, {LOG2E!r}, v8")
    e(f"v_mul_u32_u24 v12, {ROWP}, v12"); e(f"v_add_u32 v12, {TB}, v12")
    e("v_and_b32 v13, 1, v3")
    e("v_mul_u32_u24 v14, 48, v13"); e("v_add_u32 v14, v12, v14")
    e("v_mul_u32_u24 v13, 80, v13"); e("v_add_u32 v13, v12, v13")
    for u in range(0, 20, 2): e(f"v_pk_mul_f32 v[{76+u}:{77+u}], v[{76+u}:{77+u}], v[8:9] op_sel_hi:[1,0]")
    for q in range(10): e(f"v_cvt_pk_bf16_f32 v{196+q}, v{76+2*q}, v{77+2*q}")
    e("v_mov_b32 v206, 0x3f80"); e("v_mov_b32 v207, 0")
    for q in range(3): e(f"ds_write_b128 v14, v[{196+4*q}:{199+4*q}] offset:{160+16*q}")
    softmax_pair_pk(r, 56, 10, 156, 208, 176)
    for q in range(5): e(f"ds_write_b128 v13, v[{176+4*q}:{179+4*q}] offset:{16*q}")
    e("v_lshrrev_b32 v12, 2, v2"); e("v_lshl_add_u32 v12, v3, 3, v12")
    e(f"v_mul_u32_u24 v12, {ROWP}, v12"); e("v_and_b32 v13, 3, v1"); e("v_lshl_add_u32 v12, v13, 3, v12"); e(f"v_add_u32 v12, {TB}, v12")
    e("s_lshr_b32 s19, s18, 1"); e("s_and_b32 s23, s18, 1")
    e("s_mul_i32 s3, s19, 48"); e("s_lshl_b32 s33, s23, 5"); e("s_add_u32 s3, s3, s33"); e("s_add_u32 s3, s3, 160")
    e("v_add_u32 v13, s3, v12")
    e("s_mul_i32 s3, s19, 80"); e("v_add_u32 v12, s3, v12")
KVS = 81920
def epiA_tail(r, layer):
    e = r.e
    B = lambda nt, ks: (56 + 16*nt + 4*ks) if nt < 2 else (156 + 4*ks)
    for ks in range(4):
        e(f"ds_read_b64_tr_b16 v[{216+4*ks}:{217+4*ks}], v13 offset:{ks*32*ROWP}")
        e(f"ds_read_b64_tr_b16 v[{218+4*ks}:{219+4*ks}], v13 offset:{ks*32*ROWP + 4*ROWP}")
        for nt in range(3):
            b = B(nt, ks)
            e(f"ds_read_b64_tr_b16 v[{b}:{b+1}], v12 offset:{ks*32*ROWP + 32*nt}")
            e(f"ds_read_b64_tr_b16 v[{b+2}:{b+3}], v12 offset:{ks*32*ROWP + 4*ROWP + 32*nt}")
    e("s_lshl_b32 s3, s23, 4"); e("v_add_u32 v14, s3, v2")
    e("v_mul_u32_u24 v15, 80, v14"); e("v_lshl_add_u32 v15, v3, 3, v15")
    e("s_mul_i32 s3, s19, 1680"); e(f"s_add_u32 s3, s3, {KVS}"); e("v_add_u32 v15, s3, v15")
    e(f"v_mov_b32 v212, {KVS + 3520}")
    e("v_cmp_ge_u32 vcc, 20, v14"); e("v_cndmask_b32 v208, v212, v15, vcc")
    e("v_cmp_gt_u32 vcc, 2, v3"); e(f"v_subrev_u32 v212, 64, v212"); e("v_add_u32 v212, 0, v212"); e("v_cndmask_b32 v209, v212, v208, vcc")
    r.mark("step")
    for ks in range(4):
        for nt in range(3):
            b = B(nt, ks); d = 176 + 4*nt
            c = "0" if ks == 0 else f"v[{d}:{d+3}]"
            e(f"v_mfma_f32_16x16x32_bf16 v[{d}:{d+3}], v[{b}:{b+3}], v[{216+4*ks}:{219+4*ks}], {c}")
    r.mark("step")
    for nt in range(3):
        d = 176 + 4*nt
        e(f"v_cvt_pk_bf16_f32 v{d}, v{d}, v{d+1}"); e(f"v_cvt_pk_bf16_f32 v{d+1}, v{d+2}, v{d+3}")
        e(f"ds_write_b64 v{209 if nt == 2 else 208}, v[{d}:{d+1}] offset:{32*nt}")
    e("v_lshlrev_b32 v14, 4, v0"); e(f"v_add_u32 v15, {KVS}, v14")
    e(f"v_mov_b32 v212, {OOB}"); e("v_cmp_gt_u32 vcc, 210, v0"); e("v_cndmask_b32 v14, v212, v14, vcc")
    e("s_lshl_b32 s3, s17, 4"); e("s_add_u32 s3, s3, s16"); e("s_mul_i32 s3, s3, 3584"); e(f"s_add_u32 s33, s3, {KVP_OFF[layer]}")
    r.mark("barrier")
    e("ds_read_b128 v[176:179], v15")
    r.mark("step")
    r.items.append(("VM", "buffer_store_dwordx4 v[176:179], v14, s[12:15], s33 offen sc1", "kvst", []))

def force(side, vm, tag):
    while any(isinstance(i, tuple) and i[0] == "VM" and i[2] == tag for i in side.q):
        side.since_vm = 99; side.blocked = False; side.fill(4)

def gen_kA(name, layer, stamps=False, LEAD=4, VMGAP=4, fine=False, SIGSTEP=14, WT=True, TAG=True, CLEAR1=True, LEAD5=6, fine5=False):
    a = Asm(); e = a.e; vm = VM(a); st = Stamps(a, stamps, 1 + 4*layer)
    e("s_cmp_ge_u32 s2, 256")
    e(f"s_cbranch_scc1 {name}_end")
    st.mark("start")
    if stamps: e("s_mov_b32 s57, 0"); e("s_mov_b32 s58, 0")
    e("s_load_dwordx2 s[30:31], s[0:1], 88")
    wg_to_rc(a, 16, 17, 19)
    e("v_and_b32 v1, 63, v0"); e("v_lshrrev_b32 v2, 6, v0")
    e("v_readfirstlane_b32 s18, v2")
    e("v_and_b32 v2, 15, v1"); e("v_lshrrev_b32 v3, 4, v1")
    e("v_lshlrev_b32 v5, 4, v1")
    e("v_add_u32 v6, 61440, v5"); e("v_add_u32 v7, 102400, v5")
    e("s_lshl_b32 s44, s16, 2"); e("s_add_u32 s44, s44, s18"); e(f"s_mul_i32 s44, s44, {2*AF_WT}")
    e(f"s_add_u32 s19, s44, {XIN_OFF[layer]}")
    e(f"s_mul_i32 s34, s17, {W1_C}")
    e("s_lshl_b32 s21, s18, 10")
    e("s_mov_b32 s20, 0"); e(f"s_mov_b32 s35, {AF_WT}")
    e("s_waitcnt lgkmcnt(0)")
    e("s_add_u32 s4, s30, s19"); e("s_addc_u32 s5, s31, 0"); e(f"s_mov_b32 s6, {2*AF_WT}"); e("s_mov_b32 s7, 0x20000")
    e("s_add_u32 s8, s30, s34"); e("s_addc_u32 s9, s31, 0"); e(f"s_mov_b32 s10, {163840}"); e("s_mov_b32 s11, 0x20000")
    X = lambda tt, s: f"a[{(2*s+tt)*4}:{(2*s+tt)*4+3}]"
    tag = lambda s: f"s{s}"
    L = lambda s: w_items(s, 0, "s[8:11]", tag) + x_items(X, s)
    for s in range(LEAD): emit_now(a, vm, L(s))
    e("s_add_u32 s36, s8, 163840"); e("s_addc_u32 s37, s9, 0"); e("s_mov_b32 s38, 40960"); e("s_mov_b32 s39, 0x20000")
    srd(a, 12, 30, 31, 0, WS_USED)
    e(f"s_mul_i32 s34, s17, {W2_C}"); e(f"s_add_u32 s34, s34, {W2_OFF - 102400}")
    e("s_add_u32 s48, s30, s34"); e("s_addc_u32 s49, s31, 0"); e("s_mov_b32 s50, 163840"); e("s_mov_b32 s51, 0x20000")
    e("s_add_u32 s52, s48, 163840"); e("s_addc_u32 s53, s49, 0"); e("s_mov_b32 s54, 40960"); e("s_mov_b32 s55, 0x20000")
    for r in range(152, 156): e(f"v_mov_b32 v{r}, 0x3f803f80")
    e("v_and_b32 v8, 3, v2")
    e("v_cmp_eq_u32 s[24:25], 1, v8"); e("v_cmp_eq_u32 s[26:27], 2, v8"); e("v_cmp_eq_u32 s[28:29], 3, v8")
    e("v_lshrrev_b32 v9, 2, v2"); e("v_lshl_add_u32 v9, v9, 4, v2"); e("v_lshlrev_b32 v9, 2, v9")
    sideA = Side(a, vm, VMGAP)
    for s in range(LEAD, 20): sideA.add(L(s))
    for s in range(12): sideA.add(w_items(s, 102400, "s[8:11]", lambda s: f"p{s//4}"))
    if not fine: st.mark("issued")
    vm.wait("s0"); e("s_barrier")
    accA = lambda tt, T: 56 + 20*tt + 4*T
    accB = lambda tt, T: 96 + 20*tt + 4*T
    def lds0(s, T):
        off = (s*5+T)*1024
        return (5, off) if s < 12 else (6, off - 61440)
    def pre0(s):
        if s + 1 < 20:
            force(sideA, vm, f"s{s+1}")
            if f"s{s+1}" in vm.q: vm.wait(f"s{s+1}")
            e("s_barrier")
    def extra0(s):
        out = []
        for tt in range(2):
            c0 = "0" if s == 0 else f"v[{136+4*tt}:{139+4*tt}]"
            c1 = "0" if s == 0 else f"v[{144+4*tt}:{147+4*tt}]"
            out.append(f"v_mfma_f32_16x16x32_bf16 v[{136+4*tt}:{139+4*tt}], v[152:155], {X(tt,s)}, {c0}")
            out.append(f"v_mfma_f32_16x16x32_bf16 v[{144+4*tt}:{147+4*tt}], {X(tt,s)}, {X(tt,s)}, {c1}")
        return out
    gemm2(a, 20, lds0, accA, (16, 36), X, True, [sideA], extra0, pre0)
    if not fine5: st.mark("passA")
    e("s_barrier")
    pend = list(sideA.q)
    for s in range(12, 20): pend += w_items(s, -61440, "s[36:39]", lambda s: f"p{s//4}")
    r = Rec(); epiA_head(r)
    k = 0
    for i, it in enumerate(r.items):
        if isinstance(it, tuple):
            e("s_waitcnt lgkmcnt(0)")
        else:
            e(it)
        if i % 12 == 11 and pend:
            while pend:
                p = pend.pop(0)
                if isinstance(p, tuple): vm.issue(p[1], p[2]); break
                e(p)
    emit_now(a, vm, pend)
    e("v_lshrrev_b32 v238, 5, v1"); e(f"v_mul_u32_u24 v236, {AF_WT}, v238"); e("v_lshl_add_u32 v236, v2, 4, v236")
    e("v_and_b32 v239, 1, v3"); e("v_lshl_add_u32 v237, v239, 3, v236"); e("v_mul_u32_u24 v239, 768, v239"); e("v_add_u32 v236, v236, v239")
    e("s_mul_i32 s46, s17, 1280"); e("s_add_u32 s46, s46, s44")
    for q in range(4): e(f"v_mov_b32 v{232+q}, 0")
    e("v_lshlrev_b32 v15, 4, v0"); e(f"v_add_u32 v15, {KVT + 3840}, v15")
    e("v_cmp_gt_u32 vcc, 128, v0"); e("s_and_saveexec_b64 s[40:41], vcc")
    e("ds_write_b128 v15, v[232:235]")
    e("s_mov_b64 exec, s[40:41]")
    e("s_waitcnt lgkmcnt(0)")
    vm.wait("p0"); e("s_barrier")
    if not fine5: st.mark("epiAhead")
    sideB = Side(a, vm, VMGAP)
    if CLEAR1 and layer == 0:
        for q in range(4): e(f"v_mov_b32 v{232+q}, -1")
        e("s_mul_i32 s47, s2, 10240"); e(f"s_add_u32 s47, s47, {O_OFF[1]}")
        e("v_lshlrev_b32 v243, 4, v0"); e(f"v_mov_b32 v242, {OOB}"); e("v_cmp_gt_u32 vcc, 128, v0"); e("v_cndmask_b32 v242, v242, v243, vcc")
        e("s_add_u32 s59, s47, 4096"); e("s_add_u32 s60, s47, 8192")
        sideB.add([("VM", "buffer_store_dwordx4 v[232:235], v243, s[12:15], s47 offen sc1", "clr", []),
                   ("VM", "buffer_store_dwordx4 v[232:235], v243, s[12:15], s59 offen sc1", "clr", []),
                   ("VM", "buffer_store_dwordx4 v[232:235], v242, s[12:15], s60 offen sc1", "clr", [])])
    r = Rec(); epiA_tail(r, layer); sideB.add(r.items)
    sideW = Side(a, vm, VMGAP)
    def lds1(s, T):
        off = (s*5+T)*1024
        return (7, off) if s < 12 else (5, off - 61440)
    state = {"sig": False}
    e(f"s_lshl_b32 s45, s17, 7"); e(f"s_add_u32 s45, s45, {CNT_OFF + layer*4096}")
    def pre1(s):
        if fine and s in (3, 6, 9, 12, 16): st.mark(f"B{s}")
        if s % 4 == 3 and s < 19:
            t = f"p{(s+1)//4}"
            if t in vm.q: vm.wait(t)
            e("s_barrier")
        if s == 12:
            e("s_barrier")
            for s2 in range(12): sideW.add(w_items(s2, 102400, "s[48:51]", lambda s: f"w{s//4}"))
        if s == SIGSTEP:
            assert "kvst" in vm.q and not sideB.q, (vm.q, sideB.q)
            vm.wait("kvst"); signal(a, "s45", f"{name}_sig1"); state["sig"] = True
            vm.q = ["?"] * 0 + vm.q
    gemm2(a, 20, lds1, accB, (16, 36), X, True, [sideB, sideW], None, pre1)
    sideB.flush()
    assert state["sig"]
    if not fine5: st.mark("passB")
    wait_cnt(a, "s45", 16, f"{name}_w1")
    st.mark("kvwait")
    e("v_lshlrev_b32 v12, 4, v0"); e(f"v_mov_b32 v13, {OOB}"); e("v_cmp_gt_u32 vcc, 210, v0"); e("v_cndmask_b32 v12, v13, v12, vcc")
    e("s_lshl_b32 s3, s17, 4"); e("s_mul_i32 s3, s3, 3584"); e(f"s_add_u32 s3, s3, {KVP_OFF[layer]}")
    KP = lambda R: (56 + 4*R) if R < 10 else (216 + 4*(R-10)) if R < 14 else (136 + 4*(R-14))
    for R in range(16):
        e(f"buffer_load_dwordx4 v[{KP(R)}:{KP(R)+3}], v12, s[12:15], s3 offen sc1")
        if R < 15: e("s_add_u32 s3, s3, 3584")
    pendW = list(sideW.q)
    npendW = sum(isinstance(p, tuple) for p in pendW)
    lateW = []
    for s2 in range(12, 20): lateW += w_items(s2, -61440, "s[52:55]", lambda s: f"w{s//4}")
    r = Rec()
    for u in range(20): r.e(f"v_permlane32_swap_b32 v{96+u}, v{116+u}")
    softmax_pair_pk(r, 96, 10, 156, 208, 176)
    for i, it in enumerate(r.items):
        e(it)
        if i % 8 == 7 and pendW:
            while pendW:
                p = pendW.pop(0)
                if isinstance(p, tuple): vm.issue(p[1], p[2]); break
                e(p)
    emit_now(a, vm, pendW)
    if not fine5: st.mark("epiB")
    nW = npendW
    e(f"s_waitcnt vmcnt({nW})")
    for R in range(16):
        for q in range(4):
            src = KP(R) + q
            if R == 0:
                e(f"v_lshlrev_b32 v{196+2*q}, 16, v{src}"); e(f"v_and_b32 v{197+2*q}, 0xffff0000, v{src}")
            else:
                t0 = 204 + 2*(q & 1)
                e(f"v_lshlrev_b32 v{t0}, 16, v{src}"); e(f"v_and_b32 v{t0+1}, 0xffff0000, v{src}")
                e(f"v_pk_add_f32 v[{196+2*q}:{197+2*q}], v[{196+2*q}:{197+2*q}], v[{t0}:{t0+1}]")
    for q in range(4): e(f"v_cvt_pk_bf16_f32 v{196+q}, v{196+2*q}, v{197+2*q}")
    e("v_lshlrev_b32 v13, 4, v0")
    e("v_cmp_le_u32 vcc, 105, v0"); e("v_cndmask_b32 v14, 0, 1, vcc"); e("v_mul_u32_u24 v14, 240, v14"); e("v_add_u32 v14, v14, v13"); e(f"v_add_u32 v14, {KVT}, v14")
    e("v_cmp_gt_u32 vcc, 210, v0"); e("s_and_saveexec_b64 s[40:41], vcc")
    e("ds_write_b128 v14, v[196:199]")
    e("s_mov_b64 exec, s[40:41]")
    e("v_and_b32 v12, 1, v3"); e("v_mul_u32_u24 v12, 1920, v12"); e("v_and_b32 v13, 3, v2"); e("v_mul_u32_u24 v13, 80, v13"); e("v_add_u32 v12, v12, v13")
    e("v_lshrrev_b32 v13, 2, v2"); e("v_cmp_eq_u32 vcc, v13, v3"); e("v_mov_b32 v13, 3840"); e("v_cndmask_b32 v12, v13, v12, vcc"); e(f"v_add_u32 v12, {KVT}, v12")
    e(f"s_add_u32 s3, s46, {XIN_OFF[layer]}")
    e("buffer_load_dwordx4 v[136:139], v236, s[12:15], s3 offen")
    e("buffer_load_dwordx4 v[140:143], v236, s[12:15], s3 offen offset:256")
    e("buffer_load_dwordx2 v[144:145], v237, s[12:15], s3 offen offset:512")
    e("s_waitcnt lgkmcnt(0)"); e("s_barrier")
    if not fine5: st.mark("kvsum")
    order = [5, 0, 1, 2, 3, 4]
    def t4read(i):
        for ch in range(5):
            rr = (16, 36)[i & 1] + 4*ch
            e(f"ds_read_b128 v[{rr}:{rr+3}], v12 offset:{order[i]*320 + ch*16}")
    t4read(0)
    for i, Tp in enumerate(order):
        if i + 1 < 6:
            t4read(i + 1); e("s_waitcnt lgkmcnt(5)")
        else: e("s_waitcnt lgkmcnt(0)")
        d = 56 + 4*Tp
        for ch in range(5):
            rr = (16, 36)[i & 1] + 4*ch
            c = "0" if ch == 0 else f"v[{d}:{d+3}]"
            e(f"v_mfma_f32_16x16x32_bf16 v[{d}:{d+3}], v[{rr}:{rr+3}], v[{176+4*ch}:{179+4*ch}], {c}")
        if i == 2:
            e("v_add_f32 v76, 0x358637bd, v76"); e("v_rcp_f32 v80, v76")
    for u in range(0, 20, 2): e(f"v_pk_mul_f32 v[{56+u}:{57+u}], v[{56+u}:{57+u}], v[80:81] op_sel_hi:[1,0]")
    for q in range(10): e(f"v_cvt_pk_bf16_f32 v{156+q}, v{56+2*q}, v{57+2*q}")
    e(f"s_add_u32 s3, s46, {O_OFF[layer]}")
    e("buffer_store_dwordx4 v[156:159], v236, s[12:15], s3 offen sc1")
    e("buffer_store_dwordx4 v[160:163], v236, s[12:15], s3 offen offset:256 sc1")
    e("buffer_store_dwordx2 v[164:165], v237, s[12:15], s3 offen offset:512 sc1")
    st.mark("T4")
    e("s_waitcnt vmcnt(3)")
    for q in range(10):
        e(f"v_lshlrev_b32 v{96+2*q}, 16, v{136+q}")
        e(f"v_and_b32 v{97+2*q}, 0xffff0000, v{136+q}")
    for u in range(20): e(f"v_permlane32_swap_b32 v{96+u}, v{116+u}")
    if not TAG:
        e("s_waitcnt vmcnt(0)")
        e(f"s_lshl_b32 s45, s16, 7"); e(f"s_add_u32 s45, s45, {CNT_OFF + layer*4096 + 2048}")
        signal(a, "s45", f"{name}_sig2")
        emit_now(a, vm, lateW)
        e("s_waitcnt vmcnt(0)")
        wait_cnt(a, "s45", 16, f"{name}_w2")
        vm.q = []
    else:
        vm.q = []
        emit_now(a, vm, lateW)
    st.mark("owait")
    e(f"s_add_u32 s19, s44, {O_OFF[layer]}")
    e("s_add_u32 s4, s30, s19"); e("s_addc_u32 s5, s31, 0")
    e("s_mov_b32 s20, 0"); e(f"s_mov_b32 s35, {AF_WT}")
    for s in range(LEAD5): emit_now(a, vm, x_items(X, s, extra=" sc1"))
    sideO = Side(a, vm, VMGAP)
    for s in range(LEAD5, 20): sideO.add(x_items(X, s, extra=" sc1"))
    stubs = []
    def check_items(s):
        b0, b1 = (2*s)*4, (2*s+1)*4
        return [f"v_accvgpr_read_b32 v8, a{b0}", f"v_accvgpr_read_b32 v9, a{b0+2}", f"v_accvgpr_read_b32 v10, a{b1}", f"v_accvgpr_read_b32 v11, a{b1+2}",
                "v_max_u32 v8, v8, v9", "v_max3_u32 v8, v8, v10, v11", "v_cmp_eq_u32 vcc, -1, v8"]
    issued = set(range(LEAD5))
    def branch(s):
        e(f"s_cbranch_vccnz {name}_rt{s}")
        a.label(f"{name}_c{s}")
        pend = {i[2] for i in sideO.q if isinstance(i, tuple) and i[0] == "VM"}
        stubs.append((s, [s2 for s2 in range(s, 20) if f"s{s2}" not in pend]))
    sideC = Side(a, vm, VMGAP)
    if TAG:
        vm.wait("s0")
        for it in check_items(0): e(it)
        branch(0)
    else:
        vm.wait("s0")
    def pre5(s):
        if fine5 and s in (1, 2, 4, 8, 12, 16): st.mark(f"T{s}")
        if s == 11: e("s_barrier")
        if TAG:
            if s > 0:
                sideC.flush(); branch(s)
        elif s + 1 < 20:
            force(sideO, vm, f"s{s+1}")
            if f"s{s+1}" in vm.q: vm.wait(f"s{s+1}")
    def mid5(s, i):
        if TAG and i == 4 and s + 1 < 20:
            force(sideO, vm, f"s{s+1}")
            if f"s{s+1}" in vm.q: vm.wait(f"s{s+1}")
            sideC.add(check_items(s + 1))
    gemm2(a, 20, lds1, accB, (16, 36), X, False, [sideC, sideO], None, pre5, mid=mid5)
    st.mark("T5")
    for u in range(20): e(f"v_cvt_pk_bf16_f32 v{56+u}, v{96+u}, v{116+u}")
    for u in range(0, 20, 2): e(f"v_permlane32_swap_b32 v{56+u}, v{57+u}")
    e("v_lshlrev_b32 v10, 9, v238"); e("v_and_b32 v11, 1, v3"); e("v_lshl_add_u32 v10, v11, 8, v10")
    e("v_lshrrev_b32 v11, 2, v2"); e("v_lshl_add_u32 v10, v11, 6, v10"); e("v_and_b32 v11, 3, v2"); e("v_lshl_add_u32 v10, v11, 2, v10")
    e("s_lshl_b32 s3, s18, 4"); e(f"s_add_u32 s3, s3, {XB}"); e("v_add_u32 v10, s3, v10")
    for u in range(0, 20, 2): e(f"ds_write_b32 v10, v{57+u} offset:{u*512}")
    for u in range(20): e(f"v_permlane32_swap_b32 v{96+u}, v{116+u}")
    e("v_pk_mul_f32 v[138:139], v[96:97], v[96:97]"); e("v_pk_add_f32 v[136:137], v[96:97], v[98:99]"); e("v_pk_fma_f32 v[138:139], v[98:99], v[98:99], v[138:139]")
    for u in range(4, 20, 2):
        e(f"v_pk_add_f32 v[136:137], v[136:137], v[{96+u}:{97+u}]"); e(f"v_pk_fma_f32 v[138:139], v[{96+u}:{97+u}], v[{96+u}:{97+u}], v[138:139]")
    e("v_add_f32 v136, v136, v137"); e("v_add_f32 v138, v138, v139")
    for rr in (136, 138):
        e(f"v_mov_b32 v140, v{rr}"); e(f"v_permlane16_swap_b32 v{rr}, v140"); e(f"v_add_f32 v{rr}, v{rr}, v140")
    e("s_lshr_b32 s19, s16, 1"); e("s_lshl_b32 s19, s19, 2"); e("s_add_u32 s19, s19, s18")
    e("s_and_b32 s23, s16, 1")
    e("s_lshl_b32 s33, s19, 6"); e("s_lshl_b32 s34, s23, 5"); e("s_add_u32 s33, s33, s34"); e("s_lshl_b32 s33, s33, 2"); e(f"s_add_u32 s33, s33, {ST_OFF[layer]}")
    e("v_lshl_add_u32 v11, v2, 1, v238"); e("v_lshlrev_b32 v11, 2, v11"); e(f"v_mov_b32 v12, {OOB}")
    e("v_and_b32 v13, 1, v3"); e("v_cmp_eq_u32 vcc, 0, v13"); e("v_cndmask_b32 v11, v12, v11, vcc")
    e("s_add_u32 s34, s33, 8192")
    e("buffer_atomic_add_f32 v136, v11, s[12:15], s33 offen")
    e("buffer_atomic_add_f32 v138, v11, s[12:15], s34 offen")
    for q in range(10): e(f"v_cvt_pk_bf16_f32 v{156+q}, v{96+2*q}, v{97+2*q}")
    e(f"s_add_u32 s3, s46, {X1_OFF[layer]}")
    wt = " sc1" if WT else ""
    e("buffer_store_dwordx4 v[156:159], v236, s[12:15], s3 offen" + wt)
    e("buffer_store_dwordx4 v[160:163], v236, s[12:15], s3 offen offset:256" + wt)
    e("buffer_store_dwordx2 v[164:165], v237, s[12:15], s3 offen offset:512" + wt)
    e("s_waitcnt lgkmcnt(0)"); e("s_barrier")
    e("v_lshlrev_b32 v10, 4, v0"); e(f"v_add_u32 v10, {XB}, v10")
    for rr in range(3): e(f"ds_read_b128 v[{56+4*rr}:{59+4*rr}], v10 offset:{4096*rr}")
    e("v_lshrrev_b32 v11, 4, v0"); e("v_lshlrev_b32 v11, 12, v11"); e("v_bfe_u32 v12, v0, 2, 2"); e("v_lshl_add_u32 v11, v12, 8, v11")
    e("v_and_b32 v12, 3, v0"); e("v_lshl_add_u32 v11, v12, 4, v11")
    e("s_lshr_b32 s19, s16, 1"); e("s_lshr_b32 s33, s19, 2"); e("s_lshl_b32 s33, s33, 11")
    e("s_and_b32 s19, s19, 3"); e("s_lshl_b32 s19, s19, 6"); e("s_add_u32 s33, s33, s19")
    e("s_lshl_b32 s23, s23, 10"); e("s_add_u32 s33, s33, s23"); e("s_mul_i32 s19, s17, 163840"); e("s_add_u32 s33, s33, s19"); e(f"s_add_u32 s33, s33, {XF_OFF[layer]}")
    e(f"v_mov_b32 v12, {OOB}"); e("v_cmp_gt_u32 vcc, 128, v0"); e("v_cndmask_b32 v12, v12, v11, vcc")
    e("s_waitcnt lgkmcnt(0)")
    e("buffer_store_dwordx4 v[56:59], v11, s[12:15], s33 offen" + wt)
    e("s_add_u32 s33, s33, 65536")
    e("buffer_store_dwordx4 v[60:63], v11, s[12:15], s33 offen" + wt)
    e("s_add_u32 s33, s33, 65536")
    e("buffer_store_dwordx4 v[64:67], v12, s[12:15], s33 offen" + wt)
    if not fine: st.mark("epi5")
    if stamps: e("s_waitcnt vmcnt(0)"); st.mark("drain")
    st.extra = ["s57", "s58"]
    st.flush(30, 31, 18)
    a.label(f"{name}_end")
    e("s_endpgm")
    for s, lst in stubs:
        a.label(f"{name}_rt{s}")
        e(f"s_mov_b32 s42, {1 << 14}")
        a.label(f"{name}_rl{s}")
        if stamps: e(f"s_add_u32 s57, s57, 1"); e(f"s_or_b32 s58, s58, {1 << s}")
        e("s_waitcnt vmcnt(0)")
        for s2 in lst:
            e(f"s_mov_b32 s47, {s2*1024}"); e(f"s_mov_b32 s43, {AF_WT + s2*1024}")
            e(f"buffer_load_dwordx4 {X(0,s2)}, v5, s[4:7], s47 offen sc1")
            e(f"buffer_load_dwordx4 {X(1,s2)}, v5, s[4:7], s43 offen sc1")
        e("s_waitcnt vmcnt(0)")
        for it in check_items(s): e(it)
        e(f"s_cbranch_vccz {name}_c{s}")
        e("s_sub_u32 s42, s42, 1"); e("s_cmp_lg_u32 s42, 0"); e(f"s_cbranch_scc1 {name}_rl{s}")
        e(f"s_branch {name}_c{s}")
    gen_kA.names = st.names
    return kernel_header(name) + a.text() + kernel_desc(name, 244, 160, 102 if stamps else 64)
```

```python
import sys; sys.path.insert(0,'gen')
from gen_v7 import build_v4
build_v4("h_base.s")
build_v4("h_nt.s", k0kw=dict(ntm=" nt", ntw="fw"))
build_v4("h_tag01.s", tag=(False, True))
build_v4("h_tag11.s", tag=(True, True))
```

```python
from asm import *
from layout import *

OOB = 0x40000000
XL = 143360
WP = 0
K0_LDS = XL + 10240 + 64

def ident_frag(a, dst, vdiff, tmp):
    for q in range(4):
        a.e(f"v_cmp_eq_u32 vcc, {2*q}, v{vdiff}")
        a.e(f"v_cndmask_b32 v{dst+q}, 0, v{tmp}, vcc")
        a.e(f"v_cmp_eq_u32 vcc, {2*q+1}, v{vdiff}")
        a.e(f"v_cndmask_b32 v{dst+q}, v{dst+q}, v{tmp+1}, vcc")

def xconv_finish(a, name, nyounger):
    e = a.e
    e(f"s_waitcnt vmcnt({nyounger})")
    e("buffer_store_dwordx4 v[232:235], v219, s[24:27], s58 offen sc1")
    for r in range(3):
        if r == 2:
            e("v_cmp_gt_u32 vcc, 128, v0"); e("s_and_saveexec_b64 s[52:53], vcc")
        e(f"ds_write_b128 v{216+r}, v[{220+4*r}:{223+4*r}]")
        if r == 2: e("s_mov_b64 exec, s[52:53]")
    e("s_waitcnt lgkmcnt(0)"); e("s_barrier")
    e("v_lshlrev_b32 v236, 4, v0"); e(f"v_add_u32 v237, {XL}, v236")
    for r in range(3): e(f"ds_read_b128 v[{220+4*r}:{223+4*r}], v237 offset:{4096*r}")
    e(f"v_mov_b32 v238, {OOB}"); e("v_cmp_gt_u32 vcc, 128, v0"); e("v_cndmask_b32 v237, v238, v236, vcc")
    e("s_waitcnt lgkmcnt(0)")
    e("buffer_store_dwordx4 v[220:223], v236, s[24:27], s46 offen sc1")
    e("s_add_u32 s46, s46, 4096"); e("buffer_store_dwordx4 v[224:227], v236, s[24:27], s46 offen sc1")
    e("s_add_u32 s46, s46, 4096"); e("buffer_store_dwordx4 v[228:231], v237, s[24:27], s46 offen sc1")

def gen_k0(name, code_bytes, stamps=False, clear_o0=False, ntm='', ntw=''):
    a = Asm(); e = a.e
    st = Stamps(a, stamps, 0)
    e(f"s_cmp_ge_u32 s2, 256")
    e(f"s_cbranch_scc1 {name}_exit")
    e("s_getpc_b64 s[20:21]")
    a.label(f"{name}_pc")
    e(f"s_sub_u32 s20, s20, {name}_pc-prog_start"); e("s_subb_u32 s21, s21, 0")
    e("s_lshr_b32 s3, s2, 3"); e(f"s_mul_i32 s3, s3, {code_bytes // 32}")
    e("v_lshlrev_b32 v5, 7, v0"); e("v_add_u32 v5, s3, v5"); e("v_min_u32 v5, prog_end-prog_start-4, v5")
    e(f"v_cmp_gt_u32 vcc, {code_bytes // 32 // 128}, v0"); e("s_and_saveexec_b64 s[22:23], vcc")
    e(f"s_cbranch_execz {name}_nopf")
    e("global_load_dword v239, v5, s[20:21]")
    a.label(f"{name}_nopf")
    e("s_mov_b64 exec, s[22:23]")
    st.mark("start")
    e("s_load_dwordx4 s[4:7], s[0:1], 8")
    e("s_load_dwordx2 s[8:9], s[0:1], 24")
    e("s_load_dwordx4 s[12:15], s[0:1], 56")
    e("s_load_dwordx2 s[16:17], s[0:1], 88")
    e("s_load_dwordx2 s[44:45], s[0:1], 0")
    e("v_and_b32 v1, 63, v0")
    e("v_lshrrev_b32 v2, 6, v0")
    e("v_and_b32 v3, 15, v1")
    e("v_lshrrev_b32 v4, 4, v1")
    e("v_readfirstlane_b32 s18, v2")
    e(f"v_mov_b32 v14, {OOB}")
    e("s_lshr_b32 s28, s2, 1"); e("s_and_b32 s29, s2, 1")
    e("s_lshr_b32 s30, s28, 3"); e("s_bfe_u32 s31, s28, 0x20001"); e("s_and_b32 s46, s28, 1")
    e("s_and_b32 s47, s30, 1"); e("s_lshl_b32 s47, s47, 10"); e("s_lshl_b32 s46, s46, 5"); e("s_add_u32 s47, s47, s46")
    e("s_lshr_b32 s30, s30, 1"); e("s_lshl_b32 s30, s30, 2"); e("s_add_u32 s47, s47, s30"); e("s_add_u32 s47, s47, s31")
    e("s_mul_i32 s47, s47, 1280"); e("s_mul_i32 s46, s29, 640"); e("s_add_u32 s47, s47, s46")
    e(f"s_mul_i32 s46, s28, {AF_WT}"); e("s_mul_i32 s30, s29, 10240"); e("s_add_u32 s46, s46, s30"); e(f"s_add_u32 s46, s46, {XIN_OFF[0]}")
    for r in range(3):
        e(f"v_add_u32 v8, {256*r}, v0"); e("v_mul_u32_u24 v9, 52429, v8"); e("v_lshrrev_b32 v9, 21, v9")
        e("v_mul_u32_u24 v10, 40, v9"); e("v_sub_u32 v10, v8, v10")
        e("v_mul_u32_u24 v11, 81920, v9"); e(f"v_lshl_add_u32 v{212+r}, v10, 4, v11")
        e("v_lshlrev_b32 v12, 4, v9"); e(f"v_lshl_add_u32 v12, v10, 8, v12"); e(f"v_add_u32 v{216+r}, {XL}, v12")
        if r == 2:
            e("v_cmp_gt_u32 vcc, 640, v8"); e(f"v_cndmask_b32 v{212+r}, v14, v{212+r}, vcc")
    e("s_lshr_b32 s56, s2, 4"); e("s_and_b32 s57, s2, 15"); e("s_mul_i32 s30, s57, 200")
    e("v_add_u32 v8, s30, v0")
    e("v_lshrrev_b32 v9, 4, v8"); e("v_mul_u32_u24 v10, 52429, v9"); e("v_lshrrev_b32 v10, 20, v10")
    e("v_mul_u32_u24 v11, 20, v10"); e("v_sub_u32 v11, v9, v11")
    e("s_lshr_b32 s57, s57, 3")
    e("s_mul_i32 s30, s57, 5"); e("v_subrev_u32 v10, s30, v10")
    e("v_and_b32 v12, 3, v8"); e("v_bfe_u32 v13, v8, 2, 2")
    e("v_lshl_add_u32 v9, v10, 2, v12"); e("v_mul_u32_u24 v9, 1280, v9")
    e("v_lshl_add_u32 v9, v11, 6, v9"); e("v_lshl_add_u32 v215, v13, 4, v9")
    e("v_mul_u32_u24 v9, 5, v11"); e("v_add_u32 v9, v9, v10"); e("v_lshlrev_b32 v9, 10, v9")
    e("v_lshl_add_u32 v12, v13, 4, v12"); e("v_lshl_add_u32 v219, v12, 4, v9")
    e("v_cmp_gt_u32 vcc, 200, v0"); e("v_cndmask_b32 v215, v14, v215, vcc"); e("v_cndmask_b32 v219, v14, v219, vcc")
    e("s_mul_i32 s59, s56, 20"); e("s_add_u32 s59, s59, 1"); e("s_mul_i32 s59, s59, 1280")
    e(f"s_mul_i32 s58, s56, {W1_C}"); e("s_add_u32 s58, s58, 102400"); e("s_add_u32 s30, s57, 2"); e("s_lshl_b32 s30, s30, 6"); e("s_add_u32 s58, s58, s30")
    e("s_waitcnt lgkmcnt(0)")
    srd(a, 24, 16, 17, 0, WS_USED)
    e(f"s_mov_b32 s48, s44"); e("s_mov_b32 s49, s45"); e(f"s_mov_b32 s50, {ACT}"); e("s_mov_b32 s51, 0x20000")
    for r in range(3): e(f"buffer_load_dwordx4 v[{220+4*r}:{223+4*r}], v{212+r}, s[48:51], s47 offen" + ntm)
    e("s_cmp_eq_u32 s57, 1"); e("s_cselect_b32 s40, s14, s12"); e("s_cselect_b32 s41, s15, s13"); e(f"s_mov_b32 s42, {640*1280}"); e("s_mov_b32 s43, 0x20000")
    e("buffer_load_dwordx4 v[232:235], v215, s[40:43], s59 offen")
    e("s_lshl_b32 s19, s2, 10"); e(f"s_add_u32 s19, s19, {ZERO_OFF}")
    for r in range(4): e(f"v_mov_b32 v{200+r}, 0")
    e("v_lshlrev_b32 v6, 4, v0"); e("v_cmp_gt_u32 vcc, 64, v0"); e("v_cndmask_b32 v7, v14, v6, vcc")
    e("buffer_store_dwordx4 v[200:203], v7, s[24:27], s19 offen sc1")
    NS = 0
    if clear_o0:
        for r in range(4): e(f"v_mov_b32 v{204+r}, -1")
        e("s_mul_i32 s19, s2, 10240"); e(f"s_add_u32 s19, s19, {O_OFF[0]}")
        e("v_cmp_gt_u32 vcc, 128, v0"); e("v_cndmask_b32 v7, v14, v6, vcc")
        e("buffer_store_dwordx4 v[204:207], v6, s[24:27], s19 offen sc1")
        e("s_add_u32 s19, s19, 4096"); e("buffer_store_dwordx4 v[204:207], v6, s[24:27], s19 offen sc1")
        e("s_add_u32 s19, s19, 4096"); e("buffer_store_dwordx4 v[204:207], v7, s[24:27], s19 offen sc1")
        NS = 3
    st.mark("common")
    e("s_and_b32 s33, s2, 7"); e("s_lshr_b32 s34, s2, 3")
    e("s_cmp_ge_u32 s34, 12")
    e(f"s_cbranch_scc1 {name}_wf")

    e("s_mul_i32 s30, s33, 12"); e("s_add_u32 s30, s30, s34")
    e("s_lshr_b32 s28, s30, 5"); e("s_and_b32 s29, s30, 31")
    srd(a, 32, 4, 5, 0, 640 * 3840)
    srd(a, 36, 6, 7, 0, 32 * 400 * 2)
    e("s_mul_i32 s30, s18, 160")
    e("v_add_u32 v8, s30, v3")
    e("s_movk_i32 s31, 3840")
    e("v_mul_lo_u32 v8, v8, s31")
    e("s_mul_i32 s30, s28, 640"); e("s_mul_i32 s31, s29, 20"); e("s_add_u32 s30, s30, s31"); e("s_lshl_b32 s30, s30, 1")
    e("v_lshlrev_b32 v9, 4, v4")
    e("v_add3_u32 v8, v8, v9, s30")
    e("v_lshlrev_b32 v10, 4, v0"); e("v_cmp_gt_u32 vcc, 50, v0"); e("v_cndmask_b32 v11, v14, v10, vcc")
    e("s_mul_i32 s30, s29, 800")
    e("buffer_load_dwordx4 v[64:67], v11, s[36:39], s30 offen")
    e("s_mov_b32 s31, 0")
    for m in range(10):
        e(f"buffer_load_dwordx4 v[{16+4*m}:{19+4*m}], v8, s[32:35], s31 offen" + (ntm if "f" in ntw else ""))
        if m < 9: e("s_add_u32 s31, s31, 61440")
    for r in range(68, 72): e(f"v_mov_b32 v{r}, 0")
    e("v_cmp_gt_u32 vcc, 84, v0"); e("s_and_saveexec_b64 s[52:53], vcc")
    e("ds_write_b128 v10, v[68:71]"); e("s_mov_b64 exec, s[52:53]")
    xconv_finish(a, name, 11 + 1 + NS)
    e("s_cmp_eq_u32 s28, 2"); e(f"s_cbranch_scc1 {name}_bid")
    e("s_waitcnt vmcnt(14)")
    e("v_cmp_gt_u32 vcc, 50, v0"); e("s_and_saveexec_b64 s[52:53], vcc")
    e("ds_write_b128 v10, v[64:67]"); e("s_mov_b64 exec, s[52:53]")
    e(f"s_branch {name}_bdone")
    a.label(f"{name}_bid")
    e("v_mul_u32_u24 v10, 42, v0"); e("v_mov_b32 v11, 0x3f80")
    e("v_cmp_gt_u32 vcc, 20, v0"); e("s_and_saveexec_b64 s[52:53], vcc")
    e("ds_write_b16 v10, v11"); e("s_mov_b64 exec, s[52:53]")
    a.label(f"{name}_bdone")
    e("s_waitcnt lgkmcnt(0)"); e("s_barrier")
    e("v_lshrrev_b32 v10, 2, v3"); e("v_lshl_add_u32 v10, v4, 3, v10"); e("v_mul_u32_u24 v10, 40, v10"); e("v_and_b32 v11, 3, v1"); e("v_lshl_add_u32 v10, v11, 3, v10")
    for nt in range(2):
        e(f"ds_read_b64_tr_b16 v[{56+4*nt}:{57+4*nt}], v10 offset:{32*nt}")
        e(f"ds_read_b64_tr_b16 v[{58+4*nt}:{59+4*nt}], v10 offset:{32*nt + 160}")
    e("s_waitcnt vmcnt(4) lgkmcnt(0)")
    st.mark("f_loads")
    for m in range(10):
        for nt in range(2):
            d = 80 + 8 * m + 4 * nt
            e(f"v_mfma_f32_16x16x32_bf16 v[{d}:{d+3}], v[{16+4*m}:{19+4*m}], v[{56+4*nt}:{59+4*nt}], 0")
    for nt in range(2):
        r = 64 + 2*nt
        e(f"v_pk_add_f32 v[{r}:{r+1}], v[{80+4*nt}:{81+4*nt}], v[{82+4*nt}:{83+4*nt}]")
        for m in range(1, 10):
            for hb in range(2):
                s0 = 80 + 8*m + 4*nt + 2*hb
                e(f"v_pk_add_f32 v[{r}:{r+1}], v[{r}:{r+1}], v[{s0}:{s0+1}]")
        e(f"v_add_f32 v{r}, v{r}, v{r+1}")
    for nt in range(2):
        r = 64 + 2*nt
        e(f"v_mov_b32 v68, v{r}"); e(f"v_permlane32_swap_b32 v{r}, v68"); e(f"v_add_f32 v{r}, v{r}, v68")
        e(f"v_mov_b32 v68, v{r}"); e(f"v_permlane16_swap_b32 v{r}, v68"); e(f"v_add_f32 v{r}, v{r}, v68")
    e("v_lshlrev_b32 v69, 4, v3"); e("v_add_u32 v69, 2048, v69")
    e("s_lshl_b32 s30, s18, 2"); e("v_add_u32 v70, s30, v69")
    e("ds_write_b32 v70, v64"); e("ds_write_b32 v70, v66 offset:256")
    e("s_and_b32 s30, s29, 1")
    e("s_cmp_eq_u32 s28, 2"); e("s_cselect_b32 s31, 2, 0"); e("s_add_u32 s30, s30, s31")
    e("s_lshl_b32 s30, s30, 6")
    e("v_and_b32 v8, 1, v4"); e("v_lshlrev_b32 v8, 9, v8")
    e("v_lshrrev_b32 v9, 1, v4"); e("v_lshlrev_b32 v9, 8, v9")
    e("v_add3_u32 v8, v8, v9, s30")
    for nt in range(2):
        e(f"v_add_u32 v9, {16*nt}, v3")
        e("v_lshrrev_b32 v10, 2, v9"); e("v_lshlrev_b32 v10, 10, v10")
        e("v_and_b32 v11, 3, v9"); e("v_lshlrev_b32 v11, 4, v11")
        e(f"v_add3_u32 v{72+nt}, v8, v10, v11")
    e("v_cmp_gt_u32 vcc, 4, v3"); e("v_cndmask_b32 v73, v14, v73, vcc")
    e("s_lshr_b32 s30, s29, 1"); e(f"s_mul_i32 s30, s30, {W1_C}")
    e("s_cmp_eq_u32 s28, 0"); e("s_cselect_b32 s31, 102400, 0"); e("s_add_u32 s30, s30, s31")
    e("s_mul_i32 s31, s18, 25600"); e("s_add_u32 s30, s30, s31")
    e("s_waitcnt lgkmcnt(0)"); e("s_barrier")
    e("ds_read_b128 v[68:71], v69"); e("ds_read_b128 v[74:77], v69 offset:256")
    e("s_waitcnt lgkmcnt(0)")
    for nt, b in ((0, 68), (1, 74)):
        e(f"v_pk_add_f32 v[{b}:{b+1}], v[{b}:{b+1}], v[{b+2}:{b+3}]"); e(f"v_add_f32 v{b}, v{b}, v{b+1}")
        e(f"v_mul_f32 v{64+2*nt}, {1.0/640.0!r}, v{b}")
    st.mark("f_sums")
    for mp in range(5):
        for nt in range(2):
            dA = 80 + 8 * (2*mp) + 4 * nt; dB = 80 + 8 * (2*mp+1) + 4 * nt
            for d in (dA, dB):
                for hb in range(2):
                    e(f"v_pk_add_f32 v[{d+2*hb}:{d+2*hb+1}], v[{d+2*hb}:{d+2*hb+1}], v[{64+2*nt}:{65+2*nt}] op_sel_hi:[1,0] neg_lo:[0,1] neg_hi:[0,1]")
            r0 = 16 + 4 * (2*mp + nt)
            e(f"v_cvt_pk_bf16_f32 v{r0}, v{dA}, v{dA+1}"); e(f"v_cvt_pk_bf16_f32 v{r0+1}, v{dA+2}, v{dA+3}")
            e(f"v_cvt_pk_bf16_f32 v{r0+2}, v{dB}, v{dB+1}"); e(f"v_cvt_pk_bf16_f32 v{r0+3}, v{dB+2}, v{dB+3}")
            e(f"v_permlane16_swap_b32 v{r0}, v{r0+2}"); e(f"v_permlane16_swap_b32 v{r0+1}, v{r0+3}")
            e(f"buffer_store_dwordx4 v[{r0}:{r0+3}], v{72+nt}, s[24:27], s30 offen sc1")
        e("s_add_u32 s30, s30, 5120")
    st.mark("f_stores")
    e("s_cmp_eq_u32 s28, 2")
    e(f"s_cbranch_scc1 {name}_tables")
    e(f"s_branch {name}_end")

    a.label(f"{name}_wf")
    e("s_sub_u32 s34, s34, 12")
    e("s_and_b32 s28, s33, 1"); e("s_mul_i32 s28, s28, 5"); e("s_lshr_b32 s30, s34, 2"); e("s_add_u32 s28, s28, s30")
    e("s_lshr_b32 s29, s33, 1"); e("s_lshl_b32 s29, s29, 2"); e("s_and_b32 s30, s34, 3"); e("s_add_u32 s29, s29, s30")
    srd(a, 32, 8, 9, 0, 640 * 1280)
    srd(a, 36, 12, 13, 0, 640 * 1280)
    srd(a, 40, 14, 15, 0, 640 * 1280)
    e("s_lshl_b32 s54, s18, 2")
    for n in range(5):
        e(f"v_add_u32 v8, {64*n}, v1"); e("v_mul_u32_u24 v9, 52429, v8"); e("v_lshrrev_b32 v9, 22, v9")
        e("v_mul_u32_u24 v20, 80, v9"); e("v_sub_u32 v20, v8, v20")
        e("v_mul_u32_u24 v21, 1280, v9"); e("v_add_u32 v9, s54, v9")
        e("v_xor_b32 v22, v20, v9"); e(f"v_lshl_add_u32 v{24+n}, v22, 4, v21")
    nd = 0
    for gi in range(4):
        e(f"s_lshl_b32 s30, s28, 6"); e("s_lshl_b32 s31, s18, 2"); e("s_add_u32 s30, s30, s31"); e(f"s_add_u32 s30, s30, {16*gi}")
        e("s_mul_i32 s31, s30, 52429"); e("s_lshr_b32 s31, s31, 21"); e("s_mul_i32 s31, s31, 40"); e("s_sub_u32 s31, s30, s31")
        e("s_cmp_eq_u32 s31, 20"); e("s_cselect_b32 s55, 16, 0"); e("s_add_u32 s30, s30, s55")
        e("s_cmp_ge_u32 s31, 24"); e("s_cselect_b32 s55, 4, 0"); e("s_sub_u32 s30, s30, s55")
        e("s_mul_i32 s30, s30, 1280")
        e(f"s_add_u32 s31, s18, {4*gi}"); e("s_mul_i32 s31, s31, 5120")
        for n in range(5):
            e(f"s_add_u32 m0, s31, {1024*n}"); e(f"buffer_load_dwordx4 v{24+n}, s[32:35], s30 offen" + (ntm if "w" in ntw else "") + " lds"); nd += 1
    e("s_mul_i32 s55, s29, 20"); e("s_add_u32 s55, s55, 1")
    e("s_lshl_b32 s31, s18, 2"); e("s_add_u32 s30, s55, s31"); e("s_mul_i32 s30, s30, 1280")
    e("s_mul_i32 s31, s18, 5120"); e("s_add_u32 s31, s31, 81920")
    for n in range(5):
        e(f"s_add_u32 m0, s31, {1024*n}"); e(f"buffer_load_dwordx4 v{24+n}, s[36:39], s30 offen" + (ntm if "w" in ntw else "") + " lds"); nd += 1
    e("s_add_u32 s31, s31, 20480")
    for n in range(5):
        e(f"s_add_u32 m0, s31, {1024*n}"); e(f"buffer_load_dwordx4 v{24+n}, s[40:43], s30 offen" + (ntm if "w" in ntw else "") + " lds"); nd += 1
    e("s_add_u32 s30, s55, 16"); e("s_mul_i32 s30, s30, 1280"); e("s_add_u32 s33, s31, 20480")
    e("s_cmp_eq_u32 s18, 0"); e("s_cselect_b32 s64, s36, s40"); e("s_cselect_b32 s65, s37, s41"); e(f"s_mov_b32 s66, {640*1280}"); e("s_mov_b32 s67, 0x20000")
    e("s_cmp_ge_u32 s18, 2"); e(f"s_cbranch_scc1 {name}_wfb")
    for n in range(5):
        e(f"s_add_u32 m0, s33, {1024*n}"); e(f"buffer_load_dwordx4 v{24+n}, s[64:67], s30 offen lds")
    a.label(f"{name}_wfb")
    st.mark("w_issue")
    xconv_finish(a, name, 31 + NS)
    e("v_mul_u32_u24 v21, 1280, v3")
    e("s_mul_i32 s30, s18, 20480"); e("s_mov_b32 s31, 81920")
    for p in range(4):
        e(f"v_add_u32 v9, {4*p}, v4"); e("v_xor_b32 v9, v9, v3"); e("v_lshlrev_b32 v9, 4, v9")
        e(f"v_add3_u32 v{184+p}, v21, v9, s30"); e(f"v_add3_u32 v{188+p}, v21, v9, s31")
    e("s_mul_i32 s31, s29, 5"); e("v_add_u32 v16, s31, v4"); e("v_xor_b32 v15, v16, v3"); e("v_lshlrev_b32 v15, 4, v15")
    e("v_add_u32 v16, 4, v16"); e("v_xor_b32 v16, v16, v3"); e("v_lshlrev_b32 v16, 4, v16")
    e("s_mul_i32 s30, s18, 20480"); e("v_add3_u32 v15, v21, v15, s30"); e("v_add3_u32 v16, v21, v16, s30")
    e("v_mov_b32 v22, 0x3f80"); e("v_mov_b32 v23, 0x3f800000")
    e("v_lshlrev_b32 v9, 3, v4"); e("v_sub_u32 v17, v3, v9"); e("v_add_u32 v18, 16, v17")
    ident_frag(a, 112, 17, 22)
    ident_frag(a, 116, 18, 22)
    e("s_waitcnt vmcnt(4)")
    e("s_barrier")
    st.mark("w_loads")
    e("ds_read_b128 v[104:107], v15"); e("ds_read_b128 v[108:111], v16")
    def rd(s):
        b0 = 144 + 16*(s & 1)
        e(f"ds_read_b128 v[{b0}:{b0+3}], v{184+(s&3)} offset:{(s>>2)*256}")
        for nt in range(3):
            e(f"ds_read_b128 v[{b0+4+4*nt}:{b0+7+4*nt}], v{188+(s&3)} offset:{nt*20480 + (s>>2)*256}")
    rd(0)
    for s in range(20):
        if s + 1 < 20: rd(s + 1); e("s_waitcnt lgkmcnt(4)")
        else: e("s_waitcnt lgkmcnt(0)")
        b0 = 144 + 16*(s & 1)
        for nt in range(3):
            c = "0" if s == 0 else f"v[{120+4*nt}:{123+4*nt}]"
            e(f"v_mfma_f32_16x16x32_bf16 v[{120+4*nt}:{123+4*nt}], v[{b0}:{b0+3}], v[{b0+4+4*nt}:{b0+7+4*nt}], {c}")
    e("v_mfma_f32_16x16x32_bf16 v[132:135], v[104:107], v[112:115], 0")
    e("v_mfma_f32_16x16x32_bf16 v[136:139], v[104:107], v[116:119], 0")
    e("v_mfma_f32_16x16x32_bf16 v[140:143], v[108:111], v[112:115], 0")
    st.mark("w_mfma")
    e("s_lshr_b32 s31, s18, 1"); e("s_mul_i32 s31, s31, 5120"); e("s_and_b32 s30, s18, 1"); e("s_lshl_b32 s30, s30, 9"); e("s_add_u32 s30, s30, s31"); e(f"s_add_u32 s30, s30, {XL}")
    e("v_lshrrev_b32 v8, 1, v4"); e("v_lshlrev_b32 v8, 8, v8"); e("v_and_b32 v9, 1, v4"); e("v_lshl_add_u32 v8, v9, 3, v8"); e("v_add_u32 v8, s30, v8")
    e(f"v_mov_b32 v14, {XL + 10240}")
    def xf_addr(dst, vu, ri_const=None, vri=None):
        e(f"v_lshrrev_b32 v10, 2, v{vu}"); e("v_lshlrev_b32 v10, 10, v10")
        e(f"v_and_b32 v11, 3, v{vu}")
        if ri_const is not None: e(f"v_add_u32 v11, {4*(2+ri_const)}, v11")
        else: e(f"v_lshl_add_u32 v11, v{vri}, 2, v11"); e("v_add_u32 v11, 8, v11")
        e("v_lshlrev_b32 v11, 4, v11")
        e(f"v_add3_u32 v{dst}, v8, v10, v11")
    xf_addr(16, 3, 0); xf_addr(17, 3, 1)
    e("v_and_b32 v12, 3, v3"); e("v_add_u32 v12, 16, v12"); e("v_lshrrev_b32 v13, 2, v3")
    xf_addr(18, 12, None, 13)
    e("v_cmp_gt_u32 vcc, 8, v3"); e("v_cndmask_b32 v18, v14, v18, vcc")
    for nt in range(3):
        e(f"v_add_u32 v12, {16*nt}, v3")
        e("v_cmp_le_u32 vcc, 20, v12"); e("v_cndmask_b32 v13, 0, 1, vcc")
        e("v_lshlrev_b32 v15, 2, v13"); e("v_sub_u32 v15, v12, v15")
        e("v_cmp_le_u32 vcc, 24, v12"); e("v_subrev_u32 v12, 24, v12"); e("v_cndmask_b32 v12, v15, v12, vcc")
        e("v_lshrrev_b32 v10, 2, v12"); e("v_lshlrev_b32 v10, 10, v10")
        e("v_and_b32 v11, 3, v12"); e("v_lshl_add_u32 v11, v13, 2, v11"); e("v_lshlrev_b32 v11, 4, v11")
        e(f"v_add3_u32 v{19+nt}, v8, v10, v11")
    e("v_cmp_gt_u32 vcc, 8, v3"); e("v_cndmask_b32 v21, v14, v21, vcc")
    for t in range(6):
        d = 120 + 4 * t
        e(f"v_cvt_pk_bf16_f32 v{d}, v{d}, v{d+1}")
        e(f"v_cvt_pk_bf16_f32 v{d+1}, v{d+2}, v{d+3}")
        e(f"ds_write_b64 v{16+t}, v[{d}:{d+1}]")
    e("s_waitcnt lgkmcnt(0)"); e("s_barrier")
    e("v_lshlrev_b32 v8, 4, v0"); e(f"v_add_u32 v9, {XL}, v8")
    for r in range(3): e(f"ds_read_b128 v[{120+4*r}:{123+4*r}], v9 offset:{4096*r}")
    e(f"s_mul_i32 s30, s29, {W2_C}"); e("s_mul_i32 s31, s28, 10240"); e("s_add_u32 s30, s30, s31"); e(f"s_add_u32 s30, s30, {W2_OFF}")
    e(f"v_mov_b32 v14, {OOB}"); e("v_cmp_gt_u32 vcc, 128, v0"); e("v_cndmask_b32 v9, v14, v8, vcc")
    e("s_waitcnt lgkmcnt(0)")
    e("buffer_store_dwordx4 v[120:123], v8, s[24:27], s30 offen sc1")
    e("s_add_u32 s30, s30, 4096"); e("buffer_store_dwordx4 v[124:127], v8, s[24:27], s30 offen sc1")
    e("s_add_u32 s30, s30, 4096"); e("buffer_store_dwordx4 v[128:131], v9, s[24:27], s30 offen sc1")
    e(f"s_branch {name}_end")

    a.label(f"{name}_tables")
    e("s_mov_b32 s28, s29")
    e("s_cmp_gt_u32 s28, 4")
    e(f"s_cbranch_scc1 {name}_end")
    e("v_lshlrev_b32 v9, 4, v1")
    e("s_cmp_eq_u32 s28, 4")
    e(f"s_cbranch_scc1 {name}_tab2")
    e("s_lshl_b32 s29, s28, 4"); e("v_add_u32 v8, s29, v3")
    e("s_cmp_ge_u32 s18, 2")
    e(f"s_cbranch_scc1 {name}_tabtw")
    e("s_lshl_b32 s29, s18, 5"); e("v_lshlrev_b32 v10, 3, v4"); e("v_add_u32 v10, s29, v10")
    for jj in range(8):
        e(f"v_add_u32 v11, {jj}, v10"); e("v_mul_u32_u24 v11, v11, v8"); e("v_and_b32 v11, 63, v11")
        e("v_cvt_f32_u32 v11, v11"); e(f"v_mul_f32 v11, {1.0/64!r}, v11")
        e(f"v_cos_f32 v{16+jj}, v11"); e(f"v_sin_f32 v{24+jj}, v11")
    for q in range(4):
        e(f"v_cvt_pk_bf16_f32 v{32+q}, v{16+2*q}, v{17+2*q}")
        e(f"v_cvt_pk_bf16_f32 v{40+q}, v{24+2*q}, v{25+2*q}")
        e(f"v_xor_b32 v{36+q}, 0x80008000, v{40+q}")
    e("s_mul_i32 s29, s28, 6144"); e("s_lshl_b32 s30, s18, 10"); e("s_add_u32 s29, s29, s30"); e(f"s_add_u32 s29, s29, {TAB_OFF + TAB_W64}")
    for var in range(3):
        if var == 2: e("s_add_u32 s29, s29, 4096")
        e(f"buffer_store_dwordx4 v[{32+4*var}:{35+4*var}], v9, s[24:27], s29 offen offset:{2048*(var&1)}")
    e(f"s_branch {name}_end")
    a.label(f"{name}_tabtw")
    e("s_cmp_lg_u32 s18, 2")
    e(f"s_cbranch_scc1 {name}_end")
    for T in range(2):
        for b in range(4):
            e(f"v_lshlrev_b32 v11, 2, v4"); e(f"v_add_u32 v11, {16*T+b}, v11"); e("v_mul_u32_u24 v11, v11, v8")
            e("v_cvt_f32_u32 v11, v11"); e(f"v_mul_f32 v11, {1.0/2048!r}, v11")
            e(f"v_cos_f32 v{16+4*T+b}, v11"); e(f"v_sin_f32 v{24+4*T+b}, v11")
    e("s_lshl_b32 s29, s28, 12"); e(f"s_add_u32 s29, s29, {TAB_OFF + TAB_TW}")
    for q in range(4):
        e(f"buffer_store_dwordx4 v[{16+4*q}:{19+4*q}], v9, s[24:27], s29 offen offset:{1024*q}")
    e(f"s_branch {name}_end")
    a.label(f"{name}_tab2")
    e("s_cmp_ge_u32 s18, 2")
    e(f"s_cbranch_scc1 {name}_end")
    e("s_lshl_b32 s29, s18, 4"); e("v_add_u32 v8, s29, v3")
    for jj in range(8):
        e(f"v_lshlrev_b32 v11, 2, v4"); e(f"v_add_u32 v11, {16*(jj>>2) + (jj&3)}, v11"); e("v_mul_u32_u24 v11, v11, v8"); e("v_and_b32 v11, 31, v11")
        e("v_cvt_f32_u32 v11, v11"); e(f"v_mul_f32 v11, {1.0/32!r}, v11")
        e(f"v_cos_f32 v{16+jj}, v11"); e(f"v_sin_f32 v{24+jj}, v11")
    for q in range(4):
        e(f"v_cvt_pk_bf16_f32 v{32+q}, v{16+2*q}, v{17+2*q}")
        e(f"v_cvt_pk_bf16_f32 v{36+q}, v{24+2*q}, v{25+2*q}")
    e("s_lshl_b32 s29, s18, 11"); e(f"s_add_u32 s29, s29, {TAB_OFF + TAB_S2}")
    e("buffer_store_dwordx4 v[32:35], v9, s[24:27], s29 offen")
    e("buffer_store_dwordx4 v[36:39], v9, s[24:27], s29 offen offset:1024")
    a.label(f"{name}_end")
    if stamps:
        e("s_waitcnt vmcnt(0)"); st.mark("end"); st.flush(16, 17, 18)
    a.label(f"{name}_exit")
    e("s_endpgm")
    gen_k0.names = st.names
    return kernel_header(name) + a.text() + kernel_desc(name, 256, 0, 102 if stamps else 72)
```

```python
import re

TRANS = ("v_exp_f32", "v_log_f32", "v_rcp_f32", "v_rsq_f32", "v_sqrt_f32", "v_sin_f32", "v_cos_f32", "v_rcp_iflag_f32")
REG_RE = re.compile(r"(?<![\w.])([vas])(\d+)(?![\w\[])|(?<![\w.])([vas])\[(\d+):(\d+)\]|(?<![\w.])(vcc|exec|m0|scc)(_lo|_hi)?(?![\w])")

def regs_of(tok):
    out = []
    for m in REG_RE.finditer(tok):
        if m.group(1): out.append((m.group(1), int(m.group(2))))
        elif m.group(3):
            for i in range(int(m.group(4)), int(m.group(5)) + 1): out.append((m.group(3), i))
        else:
            nm = m.group(6)
            if nm == "vcc":
                if m.group(7) == "_lo": out.append(("s", 106))
                elif m.group(7) == "_hi": out.append(("s", 107))
                else: out += [("s", 106), ("s", 107)]
            elif nm == "exec": out += [("x", 0)]
            elif nm == "m0": out.append(("m", 0))
    return out

def split_ops(s):
    ops, depth, cur = [], 0, ""
    for ch in s:
        if ch == "[" or ch == "(": depth += 1
        if ch == "]" or ch == ")": depth -= 1
        if ch == "," and depth == 0: ops.append(cur.strip()); cur = ""
        else: cur += ch
    if cur.strip(): ops.append(cur.strip())
    return ops

class Inst:
    __slots__ = ("text", "op", "cls", "wr", "rd", "states", "passes", "srcc", "store_data", "isdpp", "lds_dma", "mask_rd", "sgpr_valu_wr", "ab")
    def __init__(self, text):
        self.text = text
        t = text.split(";")[0].strip()
        parts = t.split(None, 1)
        self.op = op = parts[0]
        rest = parts[1] if len(parts) > 1 else ""
        ops = split_ops(rest)
        self.wr, self.rd = [], []
        self.states = 1; self.passes = 0; self.srcc = []; self.store_data = []; self.ab = []
        self.isdpp = ("row_" in rest or "quad_perm" in rest or "wave_" in rest or "dpp" in op)
        self.lds_dma = False; self.mask_rd = []; self.sgpr_valu_wr = []
        R = lambda i: regs_of(ops[i].split(" ")[0] if i == len(ops) - 1 else ops[i]) if i < len(ops) else []
        if op == "s_nop":
            self.cls = "nop"; self.states = int(ops[0], 0) + 1
        elif op.startswith("v_mfma"):
            self.cls = "mfma"; self.wr = R(0); self.ab = R(1) + R(2); self.srcc = R(3); self.rd = self.ab + self.srcc
            self.passes = 8 if "32x32" in op else 4
        elif op.startswith("v_"):
            self.cls = "trans" if op.replace("_e32", "").replace("_e64", "") in TRANS else "valu"
            base = op.replace("_e32", "").replace("_e64", "")
            if base.startswith("v_cmp"):
                self.wr = R(0); self.rd = R(1) + R(2)
            elif base.startswith("v_permlane") and "swap" in base:
                self.wr = R(0) + R(1); self.rd = R(0) + R(1)
            elif base in ("v_readfirstlane_b32", "v_readlane_b32"):
                self.wr = R(0); self.rd = sum((R(i) for i in range(1, len(ops))), [])
            elif base in ("v_add_co_u32", "v_sub_co_u32", "v_addc_co_u32", "v_subb_co_u32", "v_mad_u64_u32"):
                self.wr = R(0) + R(1); self.rd = sum((R(i) for i in range(2, len(ops))), [])
            else:
                self.wr = R(0); self.rd = sum((R(i) for i in range(1, len(ops))), [])
                if base.startswith("v_fmac") or base.startswith("v_pk_fmac") or base.startswith("v_dot2c") or base in ("v_writelane_b32",): self.rd += R(0)
                if base == "v_cndmask_b32":
                    if len(ops) == 3: self.rd += [("s", 106), ("s", 107)]; self.mask_rd = [("s", 106), ("s", 107)]
                    else: self.mask_rd = R(3)
            self.sgpr_valu_wr = [r for r in self.wr if r[0] == "s"]
        elif op.startswith("ds_"):
            self.cls = "ds"
            if op.startswith("ds_read") or op.startswith("ds_bpermute") or op.startswith("ds_permute") or op.startswith("ds_swizzle"):
                self.wr = R(0); self.rd = sum((R(i) for i in range(1, len(ops))), [])
            else:
                self.rd = sum((R(i) for i in range(len(ops))), [])
        elif op.startswith("buffer_") or op.startswith("global_"):
            self.cls = "vmem"
            words = rest.replace(",", " ").split()
            islds = ("lds" in words) or ("_lds_" in op)
            allr = sum((R(i) for i in range(len(ops))), [])
            if op in ("buffer_wbl2", "buffer_inv"): pass
            elif islds:
                self.lds_dma = True; self.rd = allr + [("m", 0)]
            elif "_load" in op:
                self.wr = R(0); self.rd = sum((R(i) for i in range(1, len(ops))), [])
            elif "_store" in op:
                self.rd = allr
                d = R(0) if op.startswith("buffer_") else R(1)
                if "x4" in op or "x3" in op: self.store_data = d
            elif "_atomic" in op:
                self.rd = allr
                if "sc0" in words: self.wr = R(0)
        elif op.startswith("s_"):
            self.cls = "salu"
            if op.startswith(("s_waitcnt", "s_barrier", "s_branch", "s_cbranch", "s_endpgm", "s_setprio", "s_sleep")):
                self.cls = "sctl"
            elif op.startswith("s_cmp"):
                self.rd = sum((R(i) for i in range(len(ops))), [])
            elif op.startswith("s_load") or op.startswith("s_memtime") or op.startswith("s_memrealtime") or op.startswith("s_getreg") or op.startswith("s_getpc"):
                self.wr = R(0); self.rd = sum((R(i) for i in range(1, len(ops))), [])
            else:
                self.wr = R(0); self.rd = sum((R(i) for i in range(1, len(ops))), [])
                if "saveexec" in op: self.wr += [("x", 0)]
        else:
            raise ValueError("unknown instruction: " + text)

def need(prod, cons):
    n = 0
    pw = set(prod.wr);
    isvalu = lambda i: i.cls in ("valu", "trans")
    crd = set(cons.rd); cwr = set(cons.wr)
    if isvalu(prod):
        vw = {r for r in pw if r[0] in "va"}
        if vw & crd:
            if cons.cls == "mfma": n = max(n, 2)
            if cons.op.startswith("v_permlane"): n = max(n, 2)
            if cons.op.startswith(("v_readlane", "v_readfirstlane")): n = max(n, 1)
            if cons.isdpp: n = max(n, 2)
            if prod.cls == "trans" and cons.cls != "trans": n = max(n, 1)
        sw = {r for r in pw if r[0] == "s"}
        if sw & crd:
            if cons.cls == "vmem": n = max(n, 5)
            elif cons.op.startswith(("v_readlane", "v_writelane")): n = max(n, 4)
            elif isvalu(cons) or cons.cls == "mfma": n = max(n, 2)
            elif cons.cls in ("salu",): n = max(n, 1)
    if prod.cls == "mfma":
        p = prod.passes
        d = set(prod.wr)
        if cons.cls == "mfma":
            if d & set(cons.ab): n = max(n, 8 if p == 4 else 12)
            c = set(cons.srcc)
            if d & c and not (c == d and cons.passes == p): n = max(n, 6 if p == 4 else 10)
            if d & cwr and not (d & c): n = max(n, 6 if p == 4 else 10)
        else:
            if d & (crd | cwr): n = max(n, 8 if p == 4 else 12)
        if isvalu(cons) and set(prod.srcc) & cwr: n = max(n, 3 if p == 4 else 7)
    if prod.cls == "salu" and ("m", 0) in pw and cons.lds_dma: n = max(n, 1)
    if prod.store_data and set(prod.store_data) & cwr:
        n = max(n, 2 if isvalu(cons) or cons.cls == "mfma" else 1)
    return n

class Asm:
    def __init__(self):
        self.out = []
        self.hist = []
        self.nops = 0
        self.nds = 0
    def raw(self, s): self.out.append(s)
    def label(self, name):
        self.out.append(name + ":")
    def e(self, text):
        for line in text.split("\n"):
            line = line.strip()
            if not line or line.startswith(";"): continue
            if line.endswith(":"): self.label(line[:-1]); continue
            ins = Inst(line)
            mo = re.search(r"offset:(-?\d+)", line)
            if mo:
                ov = int(mo.group(1))
                if ins.op.startswith("buffer_"): assert 0 <= ov <= 4095, line
                elif ins.op.startswith("global_"): assert -4096 <= ov <= 4095, line
                elif ins.op.startswith("ds_"): assert 0 <= ov <= 65535, line
            req = 0; dist = 0
            for p in reversed(self.hist):
                k = need(p, ins)
                if k > dist: req = max(req, k - dist)
                dist += p.states
                if dist >= 12: break
            if req > 0 and ins.cls != "nop":
                nop = Inst(f"s_nop {req-1}")
                self.out.append("    " + nop.text); self.hist.append(nop); self.nops += 1
            self.out.append("    " + line)
            if ins.cls == "ds": self.nds += 1
            self.hist.append(ins)
            if len(self.hist) > 24: self.hist = self.hist[-24:]
    def text(self): return "\n".join(self.out) + "\n"

def kernel_header(name):
    return f".text\n.globl {name}\n.p2align 8\n.type {name},@function\n{name}:\n"
def kernel_desc(name, vgpr, agpr=0, sgpr=100):
    acc = (vgpr + 3) // 4 * 4
    nfv = acc + agpr if agpr else vgpr
    return f""".section .rodata,"a"
.p2align 6
.amdhsa_kernel {name}
  .amdhsa_next_free_vgpr {nfv}
  .amdhsa_next_free_sgpr {sgpr}
  .amdhsa_accum_offset {acc}
  .amdhsa_group_segment_fixed_size 0
  .amdhsa_kernarg_size 96
  .amdhsa_user_sgpr_count 2
  .amdhsa_user_sgpr_kernarg_segment_ptr 1
  .amdhsa_system_sgpr_workgroup_id_x 1
  .amdhsa_float_denorm_mode_32 3
.end_amdhsa_kernel
"""

class VM:
    def __init__(self, a): self.a = a; self.q = []
    def issue(self, text, tag):
        self.a.e(text); self.q.append(tag)
    def wait(self, tag, extra=""):
        idx = max(i for i, t in enumerate(self.q) if t == tag)
        n = len(self.q) - 1 - idx
        assert n <= 63, n
        self.a.e(f"s_waitcnt vmcnt({n}){extra}")
        self.q = self.q[idx+1:]
    def wait_all(self):
        self.a.e("s_waitcnt vmcnt(0)"); self.q = []

def srd(a, s, base_lo, base_hi, off, size):
    if isinstance(off, str):
        a.e(f"s_add_u32 s{s}, s{base_lo}, {off}"); a.e(f"s_addc_u32 s{s+1}, s{base_hi}, 0")
    elif off:
        a.e(f"s_add_u32 s{s}, s{base_lo}, {off}"); a.e(f"s_addc_u32 s{s+1}, s{base_hi}, 0")
    else:
        a.e(f"s_mov_b32 s{s}, s{base_lo}"); a.e(f"s_mov_b32 s{s+1}, s{base_hi}")
    a.e(f"s_mov_b32 s{s+2}, {size}")
    a.e(f"s_mov_b32 s{s+3}, 0x20000")

def wg_to_rc(a, sR, sC, tmp):
    e = a.e
    e(f"s_and_b32 s{tmp}, s2, 7"); e(f"s_lshr_b32 s{tmp+1}, s2, 3")
    e(f"s_lshr_b32 s{sR}, s{tmp}, 1"); e(f"s_lshl_b32 s{sR}, s{sR}, 2"); e(f"s_and_b32 s{sC}, s{tmp+1}, 3"); e(f"s_add_u32 s{sR}, s{sR}, s{sC}")
    e(f"s_and_b32 s{sC}, s{tmp}, 1"); e(f"s_lshl_b32 s{sC}, s{sC}, 3"); e(f"s_lshr_b32 s{tmp+1}, s{tmp+1}, 2"); e(f"s_add_u32 s{sC}, s{sC}, s{tmp+1}")

LOG2E = 1.4426950408889634

def softmax_pair(a, K, vC, Ep, tmp, P):
    e = a.e
    mx, mn, sp, sm = tmp, tmp + 1, tmp + 2, tmp + 3
    e(f"v_max3_f32 v{mx}, v{K[0]}, v{K[1]}, v{K[2]}")
    e(f"v_min3_f32 v{mn}, v{K[0]}, v{K[1]}, v{K[2]}")
    for u in range(3, 19, 2):
        e(f"v_max3_f32 v{mx}, v{mx}, v{K[u]}, v{K[u+1]}")
        e(f"v_min3_f32 v{mn}, v{mn}, v{K[u]}, v{K[u+1]}")
    e(f"v_max_f32 v{mx}, v{mx}, v{K[19]}")
    e(f"v_min_f32 v{mn}, v{mn}, v{K[19]}")
    e(f"v_mul_f32 v{mx}, v{vC}, v{mx}")
    e(f"v_mul_f32 v{mn}, v{vC}, v{mn}")
    for u in range(20):
        e(f"v_fma_f32 v{Ep+u}, v{K[u]}, v{vC}, -v{mx}")
        e(f"v_fma_f32 v{K[u]}, -v{K[u]}, v{vC}, v{mn}")
    for u in range(20):
        e(f"v_exp_f32 v{Ep+u}, v{Ep+u}")
        e(f"v_exp_f32 v{K[u]}, v{K[u]}")
    e(f"v_add_f32 v{sp}, v{Ep}, v{Ep+1}")
    e(f"v_add_f32 v{sm}, v{K[0]}, v{K[1]}")
    for u in range(2, 20):
        e(f"v_add_f32 v{sp}, v{sp}, v{Ep+u}")
        e(f"v_add_f32 v{sm}, v{sm}, v{K[u]}")
    e(f"v_rcp_f32 v{sp}, v{sp}")
    e(f"v_rcp_f32 v{sm}, v{sm}")
    for u in range(20):
        e(f"v_mul_f32 v{Ep+u}, v{sp}, v{Ep+u}")
        e(f"v_mul_f32 v{K[u]}, v{sm}, v{K[u]}")
    for q in range(10):
        e(f"v_cvt_pk_bf16_f32 v{P+q}, v{Ep+2*q}, v{Ep+2*q+1}")
        e(f"v_cvt_pk_bf16_f32 v{P+10+q}, v{K[2*q]}, v{K[2*q+1]}")

STAMP_OFF = 200 * 1024 * 1024
class Stamps:
    def __init__(self, a, on, kid): self.a = a; self.on = on; self.n = 0; self.kid = kid; self.names = []
    def mark(self, nm):
        if not self.on: return
        r = 70 + 2 * self.n; self.n += 1; self.names.append(nm)
        assert r + 1 <= 101
        if self.n == 1: self.a.e("s_memrealtime s[62:63]")
        self.a.e(f"s_memtime s[{r}:{r+1}]"); self.a.e("s_waitcnt lgkmcnt(0)")
    def flush(self, ws_lo, ws_hi, wave_sgpr):
        if not self.on: return
        e = self.a.e
        e("s_memrealtime s[68:69]"); e("s_waitcnt lgkmcnt(0)")
        e(f"s_cmp_lg_u32 s{wave_sgpr}, 0"); lab = f"Lstamp_{self.kid}"
        e(f"s_cbranch_scc1 {lab}")
        e(f"s_lshl_b32 s66, s2, 7"); e(f"s_add_u32 s66, s66, {STAMP_OFF + self.kid * 65536}")
        e(f"s_add_u32 s64, s{ws_lo}, s66"); e(f"s_addc_u32 s65, s{ws_hi}, 0")
        e("v_mov_b32 v160, 0")
        for i in range(self.n):
            e(f"v_mov_b32 v161, s{70+2*i}")
            e(f"global_store_dword v160, v161, s[64:65] offset:{4*i}")
        e("v_mov_b32 v161, s68"); e(f"global_store_dword v160, v161, s[64:65] offset:120")
        e("v_mov_b32 v161, s62"); e(f"global_store_dword v160, v161, s[64:65] offset:116")
        for k, r in enumerate(getattr(self, "extra", [])):
            e(f"v_mov_b32 v161, {r}"); e(f"global_store_dword v160, v161, s[64:65] offset:{112 - 4*k}")
        self.a.label(lab)

def softmax_pair_pk(a, K, vC, Ep, tmp, P):
    e = a.e
    assert K % 2 == 0 and Ep % 2 == 0 and tmp % 2 == 0 and vC % 2 == 0
    mx, mn, sp, sm = tmp, tmp + 2, tmp + 4, tmp + 6
    e(f"v_max3_f32 v{mx}, v{K}, v{K+1}, v{K+2}")
    e(f"v_min3_f32 v{mn}, v{K}, v{K+1}, v{K+2}")
    for u in range(3, 19, 2):
        e(f"v_max3_f32 v{mx}, v{mx}, v{K+u}, v{K+u+1}")
        e(f"v_min3_f32 v{mn}, v{mn}, v{K+u}, v{K+u+1}")
    e(f"v_max_f32 v{mx}, v{mx}, v{K+19}")
    e(f"v_min_f32 v{mn}, v{mn}, v{K+19}")
    e(f"v_mul_f32 v{mx}, v{vC}, v{mx}")
    e(f"v_mul_f32 v{mn}, v{vC}, v{mn}")
    for u in range(0, 20, 2):
        e(f"v_pk_fma_f32 v[{Ep+u}:{Ep+u+1}], v[{K+u}:{K+u+1}], v[{vC}:{vC+1}], v[{mx}:{mx+1}] op_sel_hi:[1,0,0] neg_lo:[0,0,1] neg_hi:[0,0,1]")
        e(f"v_pk_fma_f32 v[{K+u}:{K+u+1}], v[{K+u}:{K+u+1}], v[{vC}:{vC+1}], v[{mn}:{mn+1}] op_sel_hi:[1,0,0] neg_lo:[1,0,0] neg_hi:[1,0,0]")
    for u in range(20):
        e(f"v_exp_f32 v{Ep+u}, v{Ep+u}")
        e(f"v_exp_f32 v{K+u}, v{K+u}")
    e(f"v_pk_add_f32 v[{sp}:{sp+1}], v[{Ep}:{Ep+1}], v[{Ep+2}:{Ep+3}]")
    e(f"v_pk_add_f32 v[{sm}:{sm+1}], v[{K}:{K+1}], v[{K+2}:{K+3}]")
    for u in range(4, 20, 2):
        e(f"v_pk_add_f32 v[{sp}:{sp+1}], v[{sp}:{sp+1}], v[{Ep+u}:{Ep+u+1}]")
        e(f"v_pk_add_f32 v[{sm}:{sm+1}], v[{sm}:{sm+1}], v[{K+u}:{K+u+1}]")
    e(f"v_add_f32 v{sp}, v{sp}, v{sp+1}")
    e(f"v_add_f32 v{sm}, v{sm}, v{sm+1}")
    e(f"v_rcp_f32 v{sp}, v{sp}")
    e(f"v_rcp_f32 v{sm}, v{sm}")
    for u in range(0, 20, 2):
        e(f"v_pk_mul_f32 v[{Ep+u}:{Ep+u+1}], v[{Ep+u}:{Ep+u+1}], v[{sp}:{sp+1}] op_sel_hi:[1,0]")
        e(f"v_pk_mul_f32 v[{K+u}:{K+u+1}], v[{K+u}:{K+u+1}], v[{sm}:{sm+1}] op_sel_hi:[1,0]")
    for q in range(10):
        e(f"v_cvt_pk_bf16_f32 v{P+q}, v{Ep+2*q}, v{Ep+2*q+1}")
        e(f"v_cvt_pk_bf16_f32 v{P+10+q}, v{K+2*q}, v{K+2*q+1}")

class Rec:
    def __init__(self): self.items = []
    def e(self, text):
        for line in text.split("\n"):
            line = line.strip()
            if line and not line.startswith(";"): self.items.append(line)
    def mark(self, m): self.items.append(("MARK", m))

def slot_cost(line):
    op = line.split()[0]
    if op in TRANS or op.startswith("v_permlane"): return 2
    if op.startswith("v_mfma"): return 0
    return 1

class Side:
    def __init__(self, a, vm, vm_gap=4):
        self.a, self.vm, self.q, self.vm_gap = a, vm, [], vm_gap
        self.since_vm = 99; self.blocked = False; self.want_barrier = False
    def add(self, items): self.q += list(items)
    def step_boundary(self):
        if self.want_barrier: self.a.e("s_barrier"); self.want_barrier = False
        self.blocked = False
    def fill(self, slots):
        self.since_vm += 1
        while self.q and slots > 0 and not self.blocked:
            it = self.q[0]
            if isinstance(it, tuple) and it[0] == "STAMP":
                self.q.pop(0); continue
            if isinstance(it, tuple) and it[0] == "MARK":
                self.q.pop(0); self.blocked = True
                if it[1] == "barrier": self.want_barrier = True
                continue
            if isinstance(it, tuple) and it[0] == "VM":
                if self.since_vm < self.vm_gap: return
                self.q.pop(0)
                for pre in it[3]: self.a.e(pre)
                self.vm.issue(it[1], it[2]); self.since_vm = 0; slots -= 1 + len(it[3]); continue
            c = slot_cost(it)
            if c > slots and slots < 2: return
            self.q.pop(0); self.a.e(it); slots -= c
            if " m0," in it: return
    def flush(self):
        while self.q:
            it = self.q.pop(0)
            if isinstance(it, tuple) and it[0] == "STAMP":
                if getattr(self, "st", None): self.st.mark(it[1])
                continue
            if isinstance(it, tuple) and it[0] == "MARK":
                self.a.e("s_waitcnt lgkmcnt(0)")
                if it[1] == "barrier": self.a.e("s_barrier")
            elif isinstance(it, tuple) and it[0] == "VM":
                for pre in it[3]: self.a.e(pre)
                self.vm.issue(it[1], it[2])
            else: self.a.e(it)
        if self.want_barrier: self.a.e("s_waitcnt lgkmcnt(0)"); self.a.e("s_barrier"); self.want_barrier = False
        self.blocked = False

def gemm2(a, nsteps, lds_of, acc, abuf, xreg, first_zero, sides, extra=None, pre=None, slots=2, mid=None, counted=True):
    e = a.e
    def read(s, T):
        vb, imm = lds_of(s, T); r = abuf[s & 1] + 4 * T
        e(f"ds_read_b128 v[{r}:{r+3}], v{vb} offset:{imm}")
    for T in range(5): read(0, T)
    mark = a.nds
    for s in range(nsteps):
        n = a.nds - mark
        if any(sd.blocked or sd.want_barrier for sd in sides) or n > 15 or not counted: n = 0
        e(f"s_waitcnt lgkmcnt({n})")
        for sd in sides: sd.step_boundary()
        if pre: pre(s)
        mf = []
        for T in range(5):
            r = abuf[s & 1] + 4 * T
            for tt in range(2):
                d = acc(tt, T); c = "0" if (s == 0 and first_zero) else f"v[{d}:{d+3}]"
                mf.append(f"v_mfma_f32_16x16x32_bf16 v[{d}:{d+3}], v[{r}:{r+3}], {xreg(tt, s)}, {c}")
        if extra: mf += extra(s)
        for i, m in enumerate(mf):
            e(m)
            if mid: mid(s, i)
            left = slots
            if s + 1 < nsteps and i < 5:
                read(s + 1, i); left -= 1
                if i == 4: mark = a.nds
            for sd in sides: sd.since_vm += 1
            for sd in sides:
                n0 = len(sd.q); sv = sd.since_vm
                if left > 0:
                    sd.since_vm -= 1; sd.fill(left)
                if len(sd.q) != n0: break
```

```python
from asm import *
from layout import *
from k1b import x_items, dma_item, w_items, emit_now
from kA import signal, wait_cnt, force
OOB = 0x40000000
TB = 40960
ROWP = 272
KVT = 75776
KVS = 81920
XB = 81920

def hoisted(a, layer):
    e = a.e
    e("v_lshrrev_b32 v238, 5, v1"); e(f"v_mul_u32_u24 v236, {AF_WT}, v238"); e("v_lshl_add_u32 v236, v2, 4, v236")
    e("v_and_b32 v8, 1, v3"); e("v_lshl_add_u32 v237, v8, 3, v236"); e("v_mul_u32_u24 v9, 768, v8"); e("v_add_u32 v236, v236, v9")
    e("s_mul_i32 s46, s17, 1280"); e("s_add_u32 s46, s46, s44")
    e("v_lshl_add_u32 v9, v238, 4, v2"); e("s_lshl_b32 s19, s18, 5"); e("v_add_u32 v9, s19, v9"); e(f"v_mul_u32_u24 v9, {ROWP}, v9"); e(f"v_add_u32 v9, {TB}, v9")
    e("v_mul_u32_u24 v10, 80, v8"); e("v_add_u32 v244, v9, v10")
    e("v_mul_u32_u24 v10, 48, v8"); e("v_add_u32 v245, v9, v10")
    e("v_lshrrev_b32 v9, 2, v2"); e("v_lshl_add_u32 v9, v3, 3, v9"); e(f"v_mul_u32_u24 v9, {ROWP}, v9"); e("v_and_b32 v10, 3, v1"); e("v_lshl_add_u32 v9, v10, 3, v9"); e(f"v_add_u32 v9, {TB}, v9")
    e("s_lshr_b32 s19, s18, 1"); e("s_and_b32 s23, s18, 1")
    e("s_mul_i32 s3, s19, 80"); e("v_add_u32 v246, s3, v9")
    e("s_mul_i32 s3, s19, 48"); e("s_lshl_b32 s33, s23, 5"); e("s_add_u32 s3, s3, s33"); e("s_add_u32 s3, s3, 160"); e("v_add_u32 v247, s3, v9")
    e("s_lshl_b32 s3, s23, 4"); e("v_add_u32 v9, s3, v2"); e("v_mul_u32_u24 v10, 80, v9"); e("v_lshl_add_u32 v10, v3, 3, v10")
    e("s_mul_i32 s3, s19, 1680"); e(f"s_add_u32 s3, s3, {KVS}"); e("v_add_u32 v10, s3, v10")
    e(f"v_mov_b32 v11, {KVS + 3520}"); e("v_cmp_ge_u32 vcc, 20, v9"); e("s_nop 1"); e("v_cndmask_b32 v248, v11, v10, vcc")
    e(f"v_mov_b32 v11, {KVS + 3520 - 64}"); e("v_cmp_gt_u32 vcc, 2, v3"); e("s_nop 1"); e("v_cndmask_b32 v249, v11, v248, vcc")
    e("v_lshlrev_b32 v9, 4, v0"); e(f"v_add_u32 v251, {KVS}, v9")
    e(f"v_mov_b32 v11, {OOB}"); e("v_cmp_gt_u32 vcc, 210, v0"); e("s_nop 1"); e("v_cndmask_b32 v250, v11, v9, vcc")
    e("s_lshl_b32 s3, s17, 4"); e("s_mul_i32 s61, s3, 3584"); e(f"s_add_u32 s61, s61, {KVP_OFF[layer]}")
    e("s_mul_i32 s56, s16, 3584"); e("s_add_u32 s56, s56, s61")
    e("v_cmp_le_u32 vcc, 105, v0"); e("s_nop 1"); e("v_cndmask_b32 v10, 0, 1, vcc"); e("v_mul_u32_u24 v10, 240, v10"); e("v_add_u32 v10, v10, v9"); e(f"v_add_u32 v252, {KVT}, v10")
    e("v_mul_u32_u24 v10, 1920, v8"); e("v_and_b32 v11, 3, v2"); e("v_mul_u32_u24 v11, 80, v11"); e("v_add_u32 v10, v10, v11")
    e("v_lshrrev_b32 v11, 2, v2"); e("v_cmp_eq_u32 vcc, v11, v3"); e("v_mov_b32 v11, 3840"); e("v_cndmask_b32 v10, v11, v10, vcc"); e(f"v_add_u32 v253, {KVT}, v10")
    e("v_lshlrev_b32 v10, 9, v238"); e("v_lshl_add_u32 v10, v8, 8, v10")
    e("v_lshrrev_b32 v11, 2, v2"); e("v_lshl_add_u32 v10, v11, 6, v10"); e("v_and_b32 v11, 3, v2"); e("v_lshl_add_u32 v10, v11, 2, v10")
    e("s_lshl_b32 s3, s18, 4"); e(f"s_add_u32 s3, s3, {XB}"); e("v_add_u32 v254, s3, v10")
    e(f"v_add_u32 v239, {XB}, v9")
    e("v_lshrrev_b32 v10, 4, v0"); e("v_lshlrev_b32 v10, 12, v10"); e("v_bfe_u32 v11, v0, 2, 2"); e("v_lshl_add_u32 v10, v11, 8, v10")
    e("v_and_b32 v11, 3, v0"); e("v_lshl_add_u32 v255, v11, 4, v10")
    e(f"v_mov_b32 v11, {OOB}"); e("v_cmp_gt_u32 vcc, 128, v0"); e("s_nop 1"); e("v_cndmask_b32 v243, v11, v255, vcc")
    e("s_lshr_b32 s19, s16, 1"); e("s_lshr_b32 s60, s19, 2"); e("s_lshl_b32 s60, s60, 11")
    e("s_and_b32 s3, s19, 3"); e("s_lshl_b32 s3, s3, 6"); e("s_add_u32 s60, s60, s3")
    e("s_and_b32 s23, s16, 1"); e("s_lshl_b32 s3, s23, 10"); e("s_add_u32 s60, s60, s3"); e("s_mul_i32 s3, s17, 163840"); e("s_add_u32 s60, s60, s3"); e(f"s_add_u32 s60, s60, {XF_OFF[layer]}")
    e("s_lshl_b32 s19, s19, 2"); e("s_add_u32 s19, s19, s18"); e("s_lshl_b32 s59, s19, 6"); e("s_lshl_b32 s3, s23, 5"); e("s_add_u32 s59, s59, s3"); e("s_lshl_b32 s59, s59, 2"); e(f"s_add_u32 s59, s59, {ST_OFF[layer]}")
    e("v_lshl_add_u32 v10, v2, 1, v238"); e("v_lshlrev_b32 v10, 2, v10"); e(f"v_mov_b32 v11, {OOB}"); e("v_cmp_eq_u32 vcc, 0, v8"); e("s_nop 1"); e("v_cndmask_b32 v242, v11, v10, vcc")
    for r in range(152, 156): e(f"v_mov_b32 v{r}, 0x3f803f80")
    e("v_and_b32 v8, 3, v2")
    e("v_cmp_eq_u32 s[24:25], 1, v8"); e("v_cmp_eq_u32 s[26:27], 2, v8"); e("v_cmp_eq_u32 s[28:29], 3, v8")
    e("v_lshrrev_b32 v9, 2, v2"); e("v_lshl_add_u32 v9, v9, 4, v2"); e("v_lshlrev_b32 v9, 2, v9")

def epiA_head(r):
    e = r.e
    e("v_permlane32_swap_b32 v136, v140")
    for tt in range(2):
        g0 = 144 + 4*tt
        e(f"v_cndmask_b32 v{g0}, v{g0}, v{g0+1}, s[24:25]")
        e(f"v_cndmask_b32 v{g0+2}, v{g0+2}, v{g0+3}, s[28:29]")
        e(f"v_cndmask_b32 v{g0+2}, v{g0}, v{g0+2}, s[22:23]")
    e("ds_bpermute_b32 v145, v9, v146"); e("ds_bpermute_b32 v149, v9, v150")
    for u in range(20): e(f"v_permlane32_swap_b32 v{56+u}, v{76+u}")
    r.mark("step")
    e("v_permlane32_swap_b32 v145, v149")
    e(f"v_mul_f32 v136, {1/640!r}, v136")
    e(f"v_mul_f32 v145, {1/640!r}, v145")
    e("v_fma_f32 v145, -v136, v136, v145")
    e("v_max_f32 v145, 0, v145")
    e("v_add_f32 v145, 0x3727c5ac, v145")
    e("v_rsq_f32 v8, v145")
    e("v_mov_b32 v206, 0x3f80"); e("v_mov_b32 v207, 0")
    e(f"v_mul_f32 v10, {LOG2E!r}, v8")
    for u in range(0, 20, 2): e(f"v_pk_mul_f32 v[{76+u}:{77+u}], v[{76+u}:{77+u}], v[8:9] op_sel_hi:[1,0]")
    for q in range(10): e(f"v_cvt_pk_bf16_f32 v{196+q}, v{76+2*q}, v{77+2*q}")
    for q in range(3): e(f"ds_write_b128 v245, v[{196+4*q}:{199+4*q}] offset:{160+16*q}")
    softmax_pair_pk(r, 56, 10, 156, 208, 176)
    for q in range(5): e(f"ds_write_b128 v244, v[{176+4*q}:{179+4*q}] offset:{16*q}")
def epiA_tail(r):
    e = r.e
    B = lambda nt, ks: (56 + 16*nt + 4*ks) if nt < 2 else (156 + 4*ks)
    for ks in range(4):
        e(f"ds_read_b64_tr_b16 v[{216+4*ks}:{217+4*ks}], v247 offset:{ks*32*ROWP}")
        e(f"ds_read_b64_tr_b16 v[{218+4*ks}:{219+4*ks}], v247 offset:{ks*32*ROWP + 4*ROWP}")
        for nt in range(3):
            b = B(nt, ks)
            e(f"ds_read_b64_tr_b16 v[{b}:{b+1}], v246 offset:{ks*32*ROWP + 32*nt}")
            e(f"ds_read_b64_tr_b16 v[{b+2}:{b+3}], v246 offset:{ks*32*ROWP + 4*ROWP + 32*nt}")
    r.mark("step")
    for ks in range(4):
        for nt in range(3):
            b = B(nt, ks); d = 176 + 4*nt
            c = "0" if ks == 0 else f"v[{d}:{d+3}]"
            e(f"v_mfma_f32_16x16x32_bf16 v[{d}:{d+3}], v[{b}:{b+3}], v[{216+4*ks}:{219+4*ks}], {c}")
    r.mark("step")
    for nt in range(3):
        d = 176 + 4*nt
        e(f"v_cvt_pk_bf16_f32 v{d}, v{d}, v{d+1}"); e(f"v_cvt_pk_bf16_f32 v{d+1}, v{d+2}, v{d+3}")
        e(f"ds_write_b64 v{249 if nt == 2 else 248}, v[{d}:{d+1}] offset:{32*nt}")
    r.mark("barrier")
    e("ds_read_b128 v[176:179], v251")
    r.mark("step")
    r.items.append(("VM", "buffer_store_dwordx4 v[176:179], v250, s[12:15], s56 offen sc1", "kvst", []))

def gen_kA(name, layer, stamps=False, LEAD=6, VMGAP=4, fine=False, SIGSTEP=13, WT=True, TAG=False, CLEAR1=False, LEAD5=6):
    a = Asm(); e = a.e; vm = VM(a); st = Stamps(a, stamps, 1 + 4*layer)
    e("s_cmp_ge_u32 s2, 256")
    e(f"s_cbranch_scc1 {name}_end")
    st.mark("start")
    if stamps: e("s_mov_b32 s57, 0"); e("s_mov_b32 s58, 0")
    e("s_load_dwordx2 s[30:31], s[0:1], 88")
    wg_to_rc(a, 16, 17, 19)
    e("v_and_b32 v1, 63, v0"); e("v_lshrrev_b32 v2, 6, v0")
    e("v_readfirstlane_b32 s18, v2")
    e("v_lshlrev_b32 v5, 4, v1")
    e("s_lshl_b32 s44, s16, 2"); e("s_add_u32 s44, s44, s18"); e(f"s_mul_i32 s44, s44, {2*AF_WT}")
    e(f"s_add_u32 s19, s44, {XIN_OFF[layer]}")
    e(f"s_mul_i32 s34, s17, {W1_C}")
    e("s_lshl_b32 s21, s18, 10")
    e("s_mov_b32 s20, 0"); e(f"s_mov_b32 s35, {AF_WT}")
    e(f"s_mov_b32 s6, {2*AF_WT}"); e("s_mov_b32 s7, 0x20000"); e(f"s_mov_b32 s10, {163840}"); e("s_mov_b32 s11, 0x20000")
    e("s_waitcnt lgkmcnt(0)")
    e("s_add_u32 s4, s30, s19"); e("s_addc_u32 s5, s31, 0")
    e("s_add_u32 s8, s30, s34"); e("s_addc_u32 s9, s31, 0")
    X = lambda tt, s: f"a[{(2*s+tt)*4}:{(2*s+tt)*4+3}]"
    tag = lambda s: f"s{s}"
    L = lambda s: w_items(s, 0, "s[8:11]", tag) + x_items(X, s)
    r = Rec()
    r.e("v_and_b32 v2, 15, v1"); r.e("v_lshrrev_b32 v3, 4, v1")
    r.e("v_add_u32 v6, 61440, v5"); r.e("v_add_u32 v7, 102400, v5")
    r.e("s_add_u32 s36, s8, 163840"); r.e("s_addc_u32 s37, s9, 0"); r.e("s_mov_b32 s38, 40960"); r.e("s_mov_b32 s39, 0x20000")
    srd(r, 12, 30, 31, 0, WS_USED)
    r.e(f"s_mul_i32 s34, s17, {W2_C}"); r.e(f"s_add_u32 s34, s34, {W2_OFF - 102400}")
    r.e("s_add_u32 s48, s30, s34"); r.e("s_addc_u32 s49, s31, 0"); r.e("s_mov_b32 s50, 163840"); r.e("s_mov_b32 s51, 0x20000")
    r.e("s_add_u32 s52, s48, 163840"); r.e("s_addc_u32 s53, s49, 0"); r.e("s_mov_b32 s54, 40960"); r.e("s_mov_b32 s55, 0x20000")
    hoisted(r, layer)
    r.e("v_and_b32 v8, 2, v2"); r.e("v_cmp_eq_u32 s[22:23], 2, v8")
    r.e(f"s_lshl_b32 s45, s17, 7"); r.e(f"s_add_u32 s45, s45, {CNT_OFF + layer*4096}")
    setup = [i for i in r.items if not i.startswith("s_nop")]
    loads = []
    for s in range(LEAD): loads += L(s)
    nvm = sum(isinstance(i, tuple) for i in loads); per = -(-len(setup) // max(1, nvm - 2)); k = 0
    scc_busy = False
    for it in loads:
        if isinstance(it, tuple):
            vm.issue(it[1], it[2]); k += 1
            if k > 2:
                n = 0
                while setup and (n < per or setup[0].startswith("s_addc") or setup[0].startswith("s_cselect")):
                    e(setup.pop(0)); n += 1
        else: e(it)
    for it in setup: e(it)
    sideA = Side(a, vm, VMGAP)
    for s in range(LEAD, 20): sideA.add(L(s))
    for s in range(12): sideA.add(w_items(s, 102400, "s[8:11]", lambda s: f"p{s//4}"))
    if not fine: st.mark("issued")
    vm.wait("s0"); e("s_barrier")
    accA = lambda tt, T: 56 + 20*tt + 4*T
    accB = lambda tt, T: 96 + 20*tt + 4*T
    def lds0(s, T):
        off = (s*5+T)*1024
        return (5, off) if s < 12 else (6, off - 61440)
    def pre0(s):
        if s + 1 < 20:
            force(sideA, vm, f"s{s+1}")
            if f"s{s+1}" in vm.q: vm.wait(f"s{s+1}")
            e("s_barrier")
    def extra0(s):
        out = []
        for tt in range(2):
            c0 = "0" if s == 0 else f"v[{136+4*tt}:{139+4*tt}]"
            c1 = "0" if s == 0 else f"v[{144+4*tt}:{147+4*tt}]"
            out.append(f"v_mfma_f32_16x16x32_bf16 v[{136+4*tt}:{139+4*tt}], v[152:155], {X(tt,s)}, {c0}")
            out.append(f"v_mfma_f32_16x16x32_bf16 v[{144+4*tt}:{147+4*tt}], {X(tt,s)}, {X(tt,s)}, {c1}")
        return out
    gemm2(a, 20, lds0, accA, (16, 36), X, True, [sideA], extra0, pre0)
    st.mark("passA")
    e("s_barrier")
    pend = list(sideA.q)
    r = Rec(); epiA_head(r)
    for i, it in enumerate(r.items):
        if isinstance(it, tuple): e("s_waitcnt lgkmcnt(0)")
        else: e(it)
        if i % 14 == 13 and pend:
            while pend:
                p = pend.pop(0)
                if isinstance(p, tuple): vm.issue(p[1], p[2]); break
                e(p)
    emit_now(a, vm, pend)
    for q in range(4): e(f"v_mov_b32 v{232+q}, 0")
    e(f"v_add_u32 v8, {KVT + 3840 - KVS}, v251")
    e("v_cmp_gt_u32 vcc, 128, v0"); e("s_and_saveexec_b64 s[40:41], vcc")
    e("ds_write_b128 v8, v[232:235]")
    e("s_mov_b64 exec, s[40:41]")
    e("s_waitcnt lgkmcnt(0)")
    vm.wait("p0"); e("s_barrier")
    st.mark("epiAhead")
    sideB = Side(a, vm, VMGAP); sideW = Side(a, vm, VMGAP)
    r = Rec(); epiA_tail(r); sideB.add(r.items)
    for s in range(12, 20): sideW.add(w_items(s, -61440, "s[36:39]", lambda s: f"p{s//4}"))
    if CLEAR1 and layer == 0:
        for q in range(4): e(f"v_mov_b32 v{232+q}, -1")
        e("s_mul_i32 s47, s2, 10240"); e(f"s_add_u32 s47, s47, {O_OFF[1] - KVS}")
        e(f"v_mov_b32 v12, {OOB}"); e("v_cmp_gt_u32 vcc, 128, v0"); e("v_cndmask_b32 v12, v12, v251, vcc")
        e("s_add_u32 s42, s47, 4096"); e("s_add_u32 s43, s47, 8192")
        sideW.add([("VM", "buffer_store_dwordx4 v[232:235], v251, s[12:15], s47 offen sc1", "clr", []),
                   ("VM", "buffer_store_dwordx4 v[232:235], v251, s[12:15], s42 offen sc1", "clr", []),
                   ("VM", "buffer_store_dwordx4 v[232:235], v12, s[12:15], s43 offen sc1", "clr", [])])
    def lds1(s, T):
        off = (s*5+T)*1024
        return (7, off) if s < 12 else (5, off - 61440)
    state = {"sig": False}
    def pre1(s):
        if fine and s in (3, 6, 9, 12, 16): st.mark(f"B{s}")
        if s % 4 == 3 and s < 19:
            t = f"p{(s+1)//4}"
            force(sideW, vm, t)
            if t in vm.q: vm.wait(t)
            e("s_barrier")
        if s == 12:
            e("s_barrier")
            for s2 in range(12): sideW.add(w_items(s2, 102400, "s[48:51]", lambda s: f"w{s//4}"))
        if s == SIGSTEP:
            assert "kvst" in vm.q and not sideB.q, (vm.q, sideB.q)
            vm.wait("kvst"); signal(a, "s45", f"{name}_sig1"); state["sig"] = True
    gemm2(a, 20, lds1, accB, (16, 36), X, True, [sideB, sideW], None, pre1)
    sideB.flush()
    assert state["sig"]
    st.mark("passB")
    wait_cnt(a, "s45", 16, f"{name}_w1")
    st.mark("kvwait")
    KP = lambda R: (56 + 4*R) if R < 10 else (216 + 4*(R-10)) if R < 14 else (136 + 4*(R-14))
    pend = []
    for R in range(16):
        pend.append(("VM", f"buffer_load_dwordx4 v[{KP(R)}:{KP(R)+3}], v250, s[12:15], s61 offen sc1", "kp"))
        if R < 15: pend.append("s_add_u32 s61, s61, 3584")
    vm.q = []
    later = list(sideW.q) + [f"s_add_u32 s3, s46, {XIN_OFF[layer]}",
             ("VM", "buffer_load_dwordx4 v[224:227], v236, s[12:15], s3 offen", "res", []),
             ("VM", "buffer_load_dwordx4 v[228:231], v236, s[12:15], s3 offen offset:256", "res", []),
             ("VM", "buffer_load_dwordx2 v[232:233], v237, s[12:15], s3 offen offset:512", "res", [])]
    r = Rec()
    for u in range(20): r.e(f"v_permlane32_swap_b32 v{96+u}, v{116+u}")
    softmax_pair_pk(r, 96, 10, 156, 208, 176)
    for i, it in enumerate(r.items):
        e(it)
        if i % 9 == 0 and pend:
            while pend:
                p = pend.pop(0)
                if isinstance(p, tuple): vm.issue(p[1], p[2]); break
                e(p)
    emit_now(a, vm, pend)
    st.mark("epiB")
    e("v_mov_b32 v12, 0x3f80"); e("v_mov_b32 v13, 0x3f800000")
    for q in range(8): e(f"v_mov_b32 v{196+q}, 0")
    done = -1
    for R in range(16):
        if R % 4 == 0:
            e(f"s_waitcnt vmcnt({12 - R})")
        for q in range(4):
            e(f"v_dot2c_f32_bf16 v{196+2*q}, v{KP(R)+q}, v12"); e(f"v_dot2c_f32_bf16 v{197+2*q}, v{KP(R)+q}, v13")
    vm.q = []
    for q in range(4): e(f"v_cvt_pk_bf16_f32 v{196+q}, v{196+2*q}, v{197+2*q}")
    e("v_cmp_gt_u32 vcc, 210, v0"); e("s_and_saveexec_b64 s[40:41], vcc")
    e("ds_write_b128 v252, v[196:199]")
    e("s_mov_b64 exec, s[40:41]")
    emit_now(a, vm, later)
    e("s_waitcnt lgkmcnt(0)"); e("s_barrier")
    if not fine: st.mark("kvsum")
    order = [5, 0, 1, 2, 3, 4]
    def t4read(i):
        for ch in range(5):
            rr = (16, 36)[i & 1] + 4*ch
            e(f"ds_read_b128 v[{rr}:{rr+3}], v253 offset:{order[i]*320 + ch*16}")
    t4read(0)
    for i, Tp in enumerate(order):
        if i + 1 < 6:
            t4read(i + 1); e("s_waitcnt lgkmcnt(5)")
        else: e("s_waitcnt lgkmcnt(0)")
        d = 56 + 4*Tp
        for ch in range(5):
            rr = (16, 36)[i & 1] + 4*ch
            c = "0" if ch == 0 else f"v[{d}:{d+3}]"
            e(f"v_mfma_f32_16x16x32_bf16 v[{d}:{d+3}], v[{rr}:{rr+3}], v[{176+4*ch}:{179+4*ch}], {c}")
        if i == 2:
            e("v_add_f32 v76, 0x358637bd, v76"); e("v_rcp_f32 v80, v76")
    for u in range(0, 20, 2): e(f"v_pk_mul_f32 v[{56+u}:{57+u}], v[{56+u}:{57+u}], v[80:81] op_sel_hi:[1,0]")
    for q in range(10): e(f"v_cvt_pk_bf16_f32 v{156+q}, v{56+2*q}, v{57+2*q}")
    e(f"s_add_u32 s3, s46, {O_OFF[layer]}")
    vm.issue("buffer_store_dwordx4 v[156:159], v236, s[12:15], s3 offen sc1", "ost")
    vm.issue("buffer_store_dwordx4 v[160:163], v236, s[12:15], s3 offen offset:256 sc1", "ost")
    vm.issue("buffer_store_dwordx2 v[164:165], v237, s[12:15], s3 offen offset:512 sc1", "ost")
    st.mark("T4")
    vm.wait("res")
    for q in range(10):
        e(f"v_lshlrev_b32 v{96+2*q}, 16, v{224+q}")
        e(f"v_and_b32 v{97+2*q}, 0xffff0000, v{224+q}")
    for u in range(20): e(f"v_permlane32_swap_b32 v{96+u}, v{116+u}")
    lateW = []
    for s2 in range(12, 20): lateW += w_items(s2, -61440, "s[52:55]", lambda s: f"w{s//4}")
    if not TAG:
        e("s_waitcnt vmcnt(0)")
        e(f"s_lshl_b32 s45, s16, 7"); e(f"s_add_u32 s45, s45, {CNT_OFF + layer*4096 + 2048}")
        signal(a, "s45", f"{name}_sig2")
        emit_now(a, vm, lateW)
        e("s_waitcnt vmcnt(0)")
        wait_cnt(a, "s45", 16, f"{name}_w2")
        vm.q = []
    else:
        e("s_waitcnt vmcnt(3)"); e("s_barrier")
        vm.q = ["ost"] * 3
        emit_now(a, vm, lateW)
    st.mark("owait")
    e(f"s_add_u32 s19, s44, {O_OFF[layer]}")
    e("s_add_u32 s4, s30, s19"); e("s_addc_u32 s5, s31, 0")
    e("s_mov_b32 s20, 0"); e(f"s_mov_b32 s35, {AF_WT}")
    for s in range(LEAD5): emit_now(a, vm, x_items(X, s, extra=" sc1"))
    sideO = Side(a, vm, VMGAP)
    for s in range(LEAD5, 20): sideO.add(x_items(X, s, extra=" sc1"))
    stubs = []
    def check_items(s):
        b0, b1 = (2*s)*4, (2*s+1)*4
        return [f"v_accvgpr_read_b32 v8, a{b0}", f"v_accvgpr_read_b32 v9, a{b0+2}", f"v_accvgpr_read_b32 v10, a{b1}", f"v_accvgpr_read_b32 v11, a{b1+2}",
                "v_max_u32 v8, v8, v9", "v_max3_u32 v8, v8, v10, v11", "v_cmp_eq_u32 vcc, -1, v8"]
    def branch(s):
        e(f"s_cbranch_vccnz {name}_rt{s}")
        a.label(f"{name}_c{s}")
        pendt = {i[2] for i in sideO.q if isinstance(i, tuple) and i[0] == "VM"}
        stubs.append((s, [s2 for s2 in range(s, 20) if f"s{s2}" not in pendt]))
    sideC = Side(a, vm, VMGAP)
    vm.wait("s0")
    if TAG:
        for it in check_items(0): e(it)
        branch(0)
    def pre5(s):
        if s == 11: e("s_barrier")
        if TAG:
            if s > 0:
                sideC.flush(); branch(s)
        elif s + 1 < 20:
            force(sideO, vm, f"s{s+1}")
            if f"s{s+1}" in vm.q: vm.wait(f"s{s+1}")
    def mid5(s, i):
        if TAG and i == 4 and s + 1 < 20:
            force(sideO, vm, f"s{s+1}")
            if f"s{s+1}" in vm.q: vm.wait(f"s{s+1}")
            sideC.add(check_items(s + 1))
    gemm2(a, 20, lds1, accB, (16, 36), X, False, [sideC, sideO], None, pre5, mid=mid5)
    st.mark("T5")
    wt = " sc1" if WT else ""
    for u in range(20): e(f"v_cvt_pk_bf16_f32 v{56+u}, v{96+u}, v{116+u}")
    for u in range(20): e(f"v_permlane32_swap_b32 v{96+u}, v{116+u}")
    for q in range(10): e(f"v_cvt_pk_bf16_f32 v{156+q}, v{96+2*q}, v{97+2*q}")
    e(f"s_add_u32 s3, s46, {X1_OFF[layer]}")
    e("buffer_store_dwordx4 v[156:159], v236, s[12:15], s3 offen" + wt)
    e("buffer_store_dwordx4 v[160:163], v236, s[12:15], s3 offen offset:256" + wt)
    e("buffer_store_dwordx2 v[164:165], v237, s[12:15], s3 offen offset:512" + wt)
    for u in range(0, 20, 2): e(f"v_permlane32_swap_b32 v{56+u}, v{57+u}")
    for u in range(0, 20, 2): e(f"ds_write_b32 v254, v{57+u} offset:{u*512}")
    e("v_pk_mul_f32 v[138:139], v[96:97], v[96:97]"); e("v_pk_add_f32 v[136:137], v[96:97], v[98:99]"); e("v_pk_fma_f32 v[138:139], v[98:99], v[98:99], v[138:139]")
    for u in range(4, 20, 2):
        e(f"v_pk_add_f32 v[136:137], v[136:137], v[{96+u}:{97+u}]"); e(f"v_pk_fma_f32 v[138:139], v[{96+u}:{97+u}], v[{96+u}:{97+u}], v[138:139]")
    e("v_add_f32 v136, v136, v137"); e("v_add_f32 v138, v138, v139")
    e("s_waitcnt lgkmcnt(0)"); e("s_barrier")
    for rr in range(3): e(f"ds_read_b128 v[{76+4*rr}:{79+4*rr}], v239 offset:{4096*rr}")
    for rr in (136, 138):
        e(f"v_mov_b32 v140, v{rr}"); e(f"v_permlane16_swap_b32 v{rr}, v140"); e(f"v_add_f32 v{rr}, v{rr}, v140")
    e("s_add_u32 s34, s59, 8192")
    e("buffer_atomic_add_f32 v136, v242, s[12:15], s59 offen")
    e("buffer_atomic_add_f32 v138, v242, s[12:15], s34 offen")
    e("s_waitcnt lgkmcnt(0)")
    e("buffer_store_dwordx4 v[76:79], v255, s[12:15], s60 offen" + wt)
    e("s_add_u32 s60, s60, 65536")
    e("buffer_store_dwordx4 v[80:83], v255, s[12:15], s60 offen" + wt)
    e("s_add_u32 s60, s60, 65536")
    e("buffer_store_dwordx4 v[84:87], v243, s[12:15], s60 offen" + wt)
    if not fine: st.mark("epi5")
    if stamps: e("s_waitcnt vmcnt(0)"); st.mark("drain")
    st.extra = ["s57", "s58"]
    st.flush(30, 31, 18)
    a.label(f"{name}_end")
    e("s_endpgm")
    for s, lst in stubs:
        a.label(f"{name}_rt{s}")
        e(f"s_mov_b32 s42, {1 << 14}")
        a.label(f"{name}_rl{s}")
        if stamps: e(f"s_add_u32 s57, s57, 1"); e(f"s_or_b32 s58, s58, {1 << s}")
        e("s_waitcnt vmcnt(0)")
        for s2 in lst:
            e(f"s_mov_b32 s47, {s2*1024}"); e(f"s_mov_b32 s43, {AF_WT + s2*1024}")
            e(f"buffer_load_dwordx4 {X(0,s2)}, v5, s[4:7], s47 offen sc1")
            e(f"buffer_load_dwordx4 {X(1,s2)}, v5, s[4:7], s43 offen sc1")
        e("s_waitcnt vmcnt(0)")
        for it in check_items(s): e(it)
        e(f"s_cbranch_vccz {name}_c{s}")
        e("s_sub_u32 s42, s42, 1"); e("s_cmp_lg_u32 s42, 0"); e(f"s_cbranch_scc1 {name}_rl{s}")
        e(f"s_branch {name}_c{s}")
    gen_kA.names = st.names
    return kernel_header(name) + a.text() + kernel_desc(name, 256, 160, 102 if stamps else 64)
```

```python
import sys; sys.path.insert(0,'gen')
from gen_all import *
from k0 import gen_k0, K0_LDS
import kA2
from k3 import gen_k3, K3_LDS
def build_v8(out, stamps=False, tag=(False, False), k0kw={}, k3kw={}, **kw):
    launches = [("k0_kernel", 256, 256, K0_LDS)]
    bodies = [gen_k0("k0_kernel", 65536, stamps, clear_o0=tag[0], **k0kw)]
    for L in range(2):
        launches += [(f"kAl{L}_kernel", 256, 256, 163840), (f"k3l{L}_kernel", 160, 576, K3_LDS)]
        bodies += [kA2.gen_kA(f"kAl{L}_kernel", L, stamps, TAG=tag[L], CLEAR1=tag[1], **kw), gen_k3(f"k3l{L}_kernel", L, stamps, **k3kw)]
    print(assemble(launches, bodies, out), ",".join(kA2.gen_kA.names))
if __name__ == "__main__":
    build_v8("v8.s", tag=(False, True))
    build_v8("v8s.s", True, tag=(False, True))
    build_v8("v8s_l5.s", True, tag=(False, True), LEAD=5)
    build_v8("v8s_l8.s", True, tag=(False, True), LEAD=8)
    build_v8("v8f.s", True, tag=(False, False), fine=True)
```

```python
import sys, re; sys.path.insert(0,'gen')
from gen_all import *
from k0 import gen_k0, K0_LDS
import kA2
from k3 import gen_k3, K3_LDS
TS = 201 * 1024 * 1024
def add_diag(body, name, idx, last):
    pre = f"""    s_cmp_lg_u32 s2, 0
    s_cbranch_scc1 {name}_dg0
    s_memrealtime s[96:97]
    s_load_dwordx2 s[98:99], s[0:1], 88
    s_waitcnt lgkmcnt(0)
    s_add_u32 s98, s98, {TS + idx*8}
    s_addc_u32 s99, s99, 0
    s_mov_b64 s[94:95], exec
    s_mov_b64 exec, 1
    v_mov_b32 v100, 0
    v_mov_b32 v101, s96
    global_store_dword v100, v101, s[98:99]
    s_mov_b64 exec, s[94:95]
{name}_dg0:
"""
    body = body.replace(f"{name}:\n", f"{name}:\n" + pre, 1)
    return body
def diag_kernel(n):
    a = Asm(); e = a.e
    e("s_cmp_lg_u32 s2, 0"); e("s_cbranch_scc1 dg_end")
    e("s_memrealtime s[10:11]")
    e("s_load_dwordx2 s[4:5], s[0:1], 88"); e("s_load_dwordx2 s[6:7], s[0:1], 80"); e("s_waitcnt lgkmcnt(0)")
    e(f"s_add_u32 s4, s4, {TS}"); e("s_addc_u32 s5, s5, 0")
    e(f"s_sub_u32 s6, s6, {512*n}"); e("s_subb_u32 s7, s7, 0")
    e("v_lshlrev_b32 v1, 3, v0"); e("v_lshlrev_b32 v4, 2, v0")
    e(f"v_cmp_gt_u32 vcc, {n}, v0"); e("s_and_saveexec_b64 s[12:13], vcc"); e("s_cbranch_execz dg_end")
    e("global_load_dword v2, v1, s[4:5] sc1"); e("s_waitcnt vmcnt(0)")
    e("v_sub_u32 v3, s10, v2")
    e("global_store_dword v4, v3, s[6:7]")
    for k in range(1, n + 1):
        e(f"global_store_dword v4, v3, s[6:7] offset:{512*k}")
    a.label("dg_end"); e("s_endpgm")
    return kernel_header("dg_kernel") + a.text() + kernel_desc("dg_kernel", 8, 0, 32)
tag = (False, True)
launches = [("k0_kernel", 256, 256, K0_LDS)]
bodies = [add_diag(gen_k0("k0_kernel", 65536, False, clear_o0=tag[0]), "k0_kernel", 0, False).replace(".amdhsa_next_free_sgpr 72", ".amdhsa_next_free_sgpr 102")]
i = 1
for L in range(2):
    launches += [(f"kAl{L}_kernel", 256, 256, 163840), (f"k3l{L}_kernel", 160, 576, K3_LDS)]
    bodies += [add_diag(kA2.gen_kA(f"kAl{L}_kernel", L, False, TAG=tag[L], CLEAR1=tag[1]), f"kAl{L}_kernel", i, False).replace(".amdhsa_next_free_sgpr 64", ".amdhsa_next_free_sgpr 102"),
               add_diag(gen_k3(f"k3l{L}_kernel", L, False), f"k3l{L}_kernel", i+1, L == 1).replace(".amdhsa_next_free_sgpr 64", ".amdhsa_next_free_sgpr 102")]
    i += 2
launches.append(("dg_kernel", 1, 64, 0)); bodies.append(diag_kernel(5))
print(assemble(launches, bodies, "diag.s"))
```

```python
import sys, re; sys.path.insert(0,'gen')
from gen_all import *
from k0 import gen_k0, K0_LDS
import kA2
from k3 import gen_k3, K3_LDS
def diag_kernel(n, kid, wga, ia, wgb, ib):
    a = Asm(); e = a.e
    e("s_cmp_lg_u32 s2, 0"); e("s_cbranch_scc1 dg_end")
    e("s_load_dwordx2 s[4:5], s[0:1], 88"); e("s_load_dwordx2 s[6:7], s[0:1], 80"); e("s_waitcnt lgkmcnt(0)")
    e(f"s_add_u32 s4, s4, {STAMP_OFF + kid*65536}"); e("s_addc_u32 s5, s5, 0")
    e("v_mov_b32 v1, 0"); e("v_mov_b32 v5, 0")
    for l in range(16):
        wg, idx = (wga, ia[l]) if l < 8 else (wgb, ib[l-8])
        e(f"v_cmp_eq_u32 vcc, {l}, v0"); e(f"v_mov_b32 v6, {wg*128 + idx*4}"); e("v_cndmask_b32 v1, v1, v6, vcc"); e(f"v_mov_b32 v6, {wg*128}"); e("v_cndmask_b32 v5, v5, v6, vcc")
    e("v_lshlrev_b32 v4, 2, v0")
    e(f"v_cmp_gt_u32 vcc, 16, v0"); e("s_and_saveexec_b64 s[12:13], vcc"); e("s_cbranch_execz dg_end")
    e("global_load_dword v2, v1, s[4:5] sc1"); e("global_load_dword v7, v5, s[4:5] sc1"); e("s_waitcnt vmcnt(0)")
    e("v_sub_u32 v3, v2, v7")
    e("global_store_dword v4, v3, s[6:7]")
    a.label("dg_end"); e("s_endpgm")
    return kernel_header("dg_kernel") + a.text() + kernel_desc("dg_kernel", 8, 0, 32)
def build(out, which):
    tag = (False, True)
    launches = [("k0_kernel", 256, 256, K0_LDS)]
    bodies = [gen_k0("k0_kernel", 65536, which == "k0", clear_o0=tag[0])]
    for L in range(2):
        launches += [(f"kAl{L}_kernel", 256, 256, 163840), (f"k3l{L}_kernel", 160, 576, K3_LDS)]
        bodies += [kA2.gen_kA(f"kAl{L}_kernel", L, which == f"a{L}", TAG=tag[L], CLEAR1=tag[1]), gen_k3(f"k3l{L}_kernel", L, which == f"f{L}")]
    launches.append(("dg_kernel", 1, 64, 0))
    if which == "k0": bodies.append(diag_kernel(5, 0, 8, [1,2,3,4,8,8,8,8], 200, [1,5,6,7,8,8,8,8]))
    elif which[0] == "a": bodies.append(diag_kernel(5, 1 + 4*int(which[1]), 8, [1,2,3,4,5,6,7,8], 8, [9,10,11,12,12,12,12,12]))
    else: bodies.append(diag_kernel(5, 3 + 4*int(which[1]), 8, [1,2,3,4,5,6,7,7], 100, [1,2,3,4,5,6,7,7]))
    print(assemble(launches, bodies, out))
build("diag_k0.s", "k0"); build("diag_a0.s", "a0"); build("diag_f1.s", "f1")
```

```python
import sys, re; sys.path.insert(0,'gen')
from gen_all import *
from k0 import gen_k0, K0_LDS
import kA2
from k3 import gen_k3, K3_LDS
def diag_kernel():
    a = Asm(); e = a.e
    e("s_cmp_lg_u32 s2, 0"); e("s_cbranch_scc1 dg_end")
    e("s_memrealtime s[20:21]")
    e("s_load_dwordx2 s[4:5], s[0:1], 88"); e("s_load_dwordx2 s[6:7], s[0:1], 80"); e("s_waitcnt lgkmcnt(0)")
    e(f"s_add_u32 s4, s4, {STAMP_OFF}"); e("s_addc_u32 s5, s5, 0")
    kids = [(0, 256), (1, 256), (3, 160), (5, 256), (7, 160)]
    res = 30
    for ki, (kid, n) in enumerate(kids):
        e("s_mov_b32 s10, -1"); e("s_mov_b32 s11, 0"); e("s_mov_b32 s12, 0")
        for q in range((n + 63)//64):
            e(f"v_add_u32 v1, {64*q}, v0"); e(f"v_min_u32 v1, {n-1}, v1"); e("v_lshlrev_b32 v1, 7, v1"); e(f"v_add_u32 v1, {kid*65536}, v1")
            e("global_load_dword v2, v1, s[4:5] offset:116 sc1"); e("global_load_dword v3, v1, s[4:5] offset:120 sc1"); e("s_waitcnt vmcnt(0)")
            for l in range(64):
                e(f"v_readlane_b32 s13, v2, {l}"); e(f"v_readlane_b32 s14, v3, {l}"); e("s_nop 0")
                e("s_min_u32 s10, s10, s13"); e("s_max_u32 s11, s11, s13"); e("s_max_u32 s12, s12, s14")
        e(f"s_mov_b32 s{res+3*ki}, s10"); e(f"s_mov_b32 s{res+3*ki+1}, s11"); e(f"s_mov_b32 s{res+3*ki+2}, s12")
    e("v_mov_b32 v4, 0")
    for k in range(15):
        e(f"s_sub_u32 s13, s{res+k}, s{res}"); e("v_mov_b32 v5, s13"); e(f"global_store_dword v4, v5, s[6:7] offset:{4*k}")
    e(f"s_sub_u32 s13, s20, s{res}"); e("v_mov_b32 v5, s13"); e(f"global_store_dword v4, v5, s[6:7] offset:60")
    a.label("dg_end"); e("s_endpgm")
    return kernel_header("dg_kernel") + a.text() + kernel_desc("dg_kernel", 8, 0, 64)
def build(out, **kw):
    tag = (False, True)
    launches = [("k0_kernel", 256, 256, K0_LDS)]
    bodies = [gen_k0("k0_kernel", 65536 + 32768, True, clear_o0=tag[0])]
    for L in range(2):
        launches += [(f"kAl{L}_kernel", 256, 256, 163840), (f"k3l{L}_kernel", 160, 576, K3_LDS)]
        bodies += [kA2.gen_kA(f"kAl{L}_kernel", L, True, TAG=tag[L], CLEAR1=tag[1]), gen_k3(f"k3l{L}_kernel", L, True, **kw)]
    launches.append(("dg_kernel", 1, 64, 0)); bodies.append(diag_kernel())
    print(assemble(launches, bodies, out))
if __name__ == "__main__":
    build("diag3.s")
```

```python
from asm import *
from layout import *
OOB = 0x40000000
RB = 0
YB = 8704
TBL = 34048

def af_addr(a, dst, vt, t0, t1):
    e = a.e
    e(f"v_and_b32 v{t0}, 31, v{vt}")
    e(f"v_lshrrev_b32 v{t1}, 5, v{vt}")
    e(f"v_lshrrev_b32 v{dst}, 2, v{t0}"); e(f"v_lshlrev_b32 v{dst}, 4, v{dst}")
    e(f"v_and_b32 v{t0}, 3, v{t0}"); e(f"v_lshl_add_u32 v{dst}, v{t0}, 1, v{dst}")
    e(f"v_lshrrev_b32 v{t0}, 5, v{t1}"); e(f"v_lshl_add_u32 v{dst}, v{t0}, 3, v{dst}")
    e(f"v_and_b32 v{t0}, 1, v{t1}"); e(f"v_add_u32 v{dst}, v{dst}, v{t0}")
    e(f"v_mul_u32_u24 v{dst}, {AF_WT}, v{dst}")
    e(f"v_bfe_u32 v{t0}, v{t1}, 1, 4"); e(f"v_lshl_add_u32 v{dst}, v{t0}, 4, v{dst}")

def gen_k3(name, layer, stamps=False, linemap=False):
    a = Asm(); e = a.e; vm = VM(a); sm = Stamps(a, stamps, 3 + 4*layer)
    if linemap:
        e("s_cmp_ge_u32 s2, 256"); e(f"s_cbranch_scc1 {name}_end")
        e("s_and_b32 s16, s2, 7"); e("s_cmp_ge_u32 s16, 5"); e(f"s_cbranch_scc1 {name}_end")
    else:
        e("s_cmp_ge_u32 s2, 160"); e(f"s_cbranch_scc1 {name}_end")
    sm.mark("start")
    e("s_load_dwordx2 s[30:31], s[0:1], 88")
    if layer == 1: e("s_load_dwordx2 s[24:25], s[0:1], 72")
    if linemap:
        e("s_lshr_b32 s17, s2, 3"); e("s_lshl_b32 s16, s16, 3"); e("s_and_b32 s19, s17, 7"); e("s_add_u32 s16, s16, s19"); e("s_lshr_b32 s17, s17, 3")
    else:
        e("s_and_b32 s16, s2, 7"); e("s_lshr_b32 s17, s2, 3"); e("s_lshr_b32 s19, s17, 2"); e("s_lshl_b32 s19, s19, 3")
        e("s_add_u32 s16, s16, s19")
        e("s_and_b32 s17, s17, 3")
    e("v_and_b32 v1, 63, v0"); e("v_lshrrev_b32 v2, 6, v0")
    e("v_readfirstlane_b32 s18, v2")
    e("v_and_b32 v2, 15, v1"); e("v_lshrrev_b32 v3, 4, v1")
    e("v_lshlrev_b32 v5, 4, v1")
    e("v_lshlrev_b32 v6, 4, v0")
    e(f"v_mov_b32 v20, {OOB}"); e("v_cmp_gt_u32 vcc, 512, v0"); e("v_cndmask_b32 v7, v20, v6, vcc")
    e("s_lshl_b32 s3, s16, 3"); e("s_add_u32 s3, s3, s18"); e("s_sub_u32 s20, s3, 1"); e("s_lshl_b32 s20, s20, 13"); e(f"s_add_u32 s20, s20, {XF_OFF[layer]}")
    e("s_cmp_eq_u32 s3, 0"); e(f"s_cselect_b32 s3, {OOB}, 0"); e("v_add_u32 v4, s3, v5"); e("s_add_u32 s21, s20, 4096")
    e(f"s_mov_b32 s22, {ST_OFF[layer]}"); e(f"s_mov_b32 s23, {ST_OFF[layer] + 8192}")
    e("s_waitcnt lgkmcnt(0)")
    srd(a, 12, 30, 31, 0, WS_USED)
    vm.issue("buffer_load_dwordx4 v[8:11], v7, s[12:15], s22 offen", "st")
    vm.issue("buffer_load_dwordx4 v[12:15], v7, s[12:15], s23 offen", "st")
    e("s_cmp_ge_u32 s18, 7"); e(f"s_cbranch_scc1 {name}_notab")
    for h in range(2):
        e(f"s_lshl_b32 s3, s18, 1");
        if h: e("s_add_u32 s3, s3, 1")
        e("s_lshl_b32 s19, s3, 10")
        e("s_mul_i32 s33, s17, 6144"); e(f"s_add_u32 s33, s33, {TAB_OFF + TAB_W64}")
        e("s_lshl_b32 s34, s17, 12"); e(f"s_add_u32 s34, s34, {TAB_OFF + TAB_TW - 6144}")
        e("s_cmp_ge_u32 s3, 6"); e("s_cselect_b32 s33, s34, s33")
        e("s_cmp_ge_u32 s3, 10"); e(f"s_cselect_b32 s33, {TAB_OFF + TAB_S2 - 10240}, s33")
        e("s_add_u32 s33, s33, s19")
        e(f"s_add_u32 m0, s19, {TBL}")
        e("buffer_load_dwordx4 v5, s[12:15], s33 offen lds")
    a.label(f"{name}_notab")
    Xr = lambda T, st, ri: 32 + ((T*2+st)*2+ri)*4
    for T in range(2):
        for st in range(2):
            for ri in range(2):
                r = Xr(T, st, ri)
                vm.issue(f"buffer_load_dwordx4 v[{r}:{r+3}], v4, s[12:15], {'s21' if ri else 's20'} offen offset:{T*2048 + st*1024}", f"d{T}{st}")
    e("v_lshrrev_b32 v16, 5, v0"); e("v_and_b32 v17, 31, v0"); e("v_lshl_add_u32 v16, v17, 6, v16"); e("s_lshl_b32 s3, s17, 4"); e("v_add_u32 v16, s3, v16")
    e("v_sub_u32 v17, 2048, v16"); e("v_and_b32 v17, 2047, v17")
    af_addr(a, 18, 16, 22, 21); af_addr(a, 19, 17, 22, 21)
    e("v_cmp_gt_u32 vcc, 512, v0"); e("v_cndmask_b32 v18, v20, v18, vcc"); e("v_cndmask_b32 v19, v20, v19, vcc")
    e("s_lshl_b32 s20, s16, 8"); e("s_sub_u32 s22, 20224, s20")
    e(f"s_add_u32 s21, s20, {X1_OFF[layer]}"); e(f"s_add_u32 s23, s22, {X1_OFF[layer]}")
    e("buffer_load_dwordx4 v[24:27], v18, s[12:15], s21 offen")
    e("buffer_load_dwordx4 v[28:31], v19, s[12:15], s23 offen")
    sm.mark("issued")
    e("s_waitcnt vmcnt(10)")
    for q in range(4):
        e(f"v_mul_f32 v{8+q}, {1/640!r}, v{8+q}")
        e(f"v_mul_f32 v{12+q}, {1/640!r}, v{12+q}")
        e(f"v_fma_f32 v{12+q}, -v{8+q}, v{8+q}, v{12+q}")
        e(f"v_max_f32 v{12+q}, 0, v{12+q}")
        e(f"v_add_f32 v{12+q}, 0x3727c5ac, v{12+q}")
        e(f"v_rsq_f32 v{12+q}, v{12+q}")
    e("v_lshrrev_b32 v8, 4, v0"); e("v_mul_u32_u24 v8, 272, v8"); e("v_and_b32 v9, 15, v0"); e("v_lshl_add_u32 v8, v9, 4, v8")
    e("s_cmp_eq_u32 s18, 8"); e(f"s_cbranch_scc1 {name}_nor")
    e("ds_write_b128 v8, v[12:15]")
    a.label(f"{name}_nor")
    e("s_waitcnt lgkmcnt(0)"); e("s_barrier")
    sm.mark("rtab")
    e("v_mul_u32_u24 v8, 272, v2"); e("v_lshl_add_u32 v8, v3, 5, v8")
    e(f"v_add_u32 v9, {TBL}, v5")
    RR = lambda T, st: 64 + (T*2+st)*8
    for T in range(2):
        for st in range(2):
            r = RR(T, st)
            e(f"ds_read_b128 v[{r}:{r+3}], v8 offset:{T*16*272 + st*128}")
            e(f"ds_read_b128 v[{r+4}:{r+7}], v8 offset:{T*16*272 + st*128 + 16}")
    for k in range(6): e(f"ds_read_b128 v[{96+4*k}:{99+4*k}], v9 offset:{k*1024}")
    W = lambda var, st: 96 + (var*2+st)*4
    ng = 0
    for T in range(2):
        for st in range(2):
            e(f"s_waitcnt vmcnt({2*(3-ng) + 2})" + (" lgkmcnt(6)" if ng == 0 else ""))
            if ng == 1:
                for k in range(8): e(f"ds_read_b128 v[{120+4*k}:{123+4*k}], v9 offset:{6144 + k*1024}")
            for ri in range(2):
                d = Xr(T, st, ri); r = RR(T, st)
                for q in range(4):
                    t0 = 20 + 2*(q & 1)
                    e(f"v_lshlrev_b32 v{t0}, 16, v{d+q}"); e(f"v_and_b32 v{t0+1}, 0xffff0000, v{d+q}")
                    e(f"v_pk_mul_f32 v[{t0}:{t0+1}], v[{t0}:{t0+1}], v[{r+2*q}:{r+2*q+1}]")
                    e(f"v_cvt_pk_bf16_f32 v{d+q}, v{t0}, v{t0+1}")
            ng += 1
    sm.mark("scaled")
    e("s_waitcnt lgkmcnt(0)")
    G = lambda T, ri: 152 + (T*2+ri)*4
    def mf(d, A, B, first):
        c = "0" if first else f"v[{d}:{d+3}]"
        e(f"v_mfma_f32_16x16x32_bf16 v[{d}:{d+3}], v[{A}:{A+3}], v[{B}:{B+3}], {c}")
    for T in range(2):
        for st in range(2):
            mf(G(T,0), Xr(T,st,0), W(0,st), st == 0)
            mf(G(T,1), Xr(T,st,0), W(1,st), st == 0)
        for st in range(2):
            mf(G(T,0), Xr(T,st,1), W(2,st), False)
            mf(G(T,1), Xr(T,st,1), W(0,st), False)
    for T in range(2):
        for b in range(4):
            c, s = 120 + 4*T + b, 128 + 4*T + b
            gr, gi = G(T,0) + b, G(T,1) + b
            e(f"v_mul_f32 v{32+4*T+b}, v{gr}, v{c}"); e(f"v_mul_f32 v{40+4*T+b}, v{gi}, v{c}")
            e(f"v_fmac_f32 v{32+4*T+b}, v{gi}, v{s}"); e(f"v_fma_f32 v{40+4*T+b}, -v{gr}, v{s}, v{40+4*T+b}")
    for q in range(4):
        e(f"v_cvt_pk_bf16_f32 v{48+q}, v{32+2*q}, v{33+2*q}")
        e(f"v_cvt_pk_bf16_f32 v{52+q}, v{40+2*q}, v{41+2*q}")
    e("v_mul_u32_u24 v8, 33, v2"); e("v_lshl_add_u32 v8, v3, 2, v8"); e("v_mul_u32_u24 v8, 48, v8"); e("s_lshl_b32 s3, s18, 2"); e(f"s_add_u32 s3, s3, {YB}"); e("v_add_u32 v8, s3, v8")
    for T2 in range(2):
        mf(56 + 4*T2, 136 + 8*T2, 48, True)
    for T2 in range(2):
        mf(56 + 4*T2, 140 + 8*T2, 52, False)
    sm.mark("fft")
    for T2 in range(2):
        for b in range(4):
            e(f"ds_write_b32 v8, v{56+4*T2+b} offset:{768*T2 + 48*b}")
    e("s_waitcnt lgkmcnt(0)"); e("s_barrier")
    sm.mark("ybar")
    e("s_cmp_eq_u32 s18, 8"); e(f"s_cbranch_scc1 {name}_end")
    e("v_lshrrev_b32 v8, 5, v0"); e("v_mul_u32_u24 v8, 33, v8"); e("v_and_b32 v9, 31, v0"); e("v_add_u32 v8, v8, v9"); e("v_mul_u32_u24 v8, 48, v8")
    e(f"ds_read_b128 v[32:35], v8 offset:{YB}"); e(f"ds_read_b128 v[36:39], v8 offset:{YB+16}"); e(f"ds_read_b32 v64, v8 offset:{YB+32}")
    e("s_waitcnt vmcnt(0)")
    for q in range(4):
        e(f"v_lshlrev_b32 v{40+2*q}, 16, v{24+q}"); e(f"v_and_b32 v{41+2*q}, 0xffff0000, v{24+q}")
        e(f"v_lshlrev_b32 v{48+2*q}, 16, v{28+q}"); e(f"v_and_b32 v{49+2*q}, 0xffff0000, v{28+q}")
    e("s_waitcnt lgkmcnt(0)")
    for q in range(8):
        e(f"v_add_f32 v{40+q}, v{40+q}, v{32+q}")
        e(f"v_add_f32 v{48+q}, v{48+q}, v{64 if q == 0 else 40-q}")
    for q in range(4):
        e(f"v_cvt_pk_bf16_f32 v{56+q}, v{40+2*q}, v{41+2*q}")
        e(f"v_cvt_pk_bf16_f32 v{60+q}, v{48+2*q}, v{49+2*q}")
    if layer == 0:
        e(f"s_add_u32 s21, s20, {XIN_OFF[1]}"); e(f"s_add_u32 s23, s22, {XIN_OFF[1]}")
        e("buffer_store_dwordx4 v[56:59], v18, s[12:15], s21 offen sc1")
        e("buffer_store_dwordx4 v[60:63], v19, s[12:15], s23 offen sc1")
    else:
        e(f"s_mov_b32 s26, {ACT}"); e("s_mov_b32 s27, 0x20000")
        e("v_mul_u32_u24 v18, 1280, v16"); e("v_mul_u32_u24 v19, 1280, v17")
        e("s_lshl_b32 s20, s16, 4"); e("s_sub_u32 s22, 1264, s20")
        e("buffer_store_dwordx4 v[56:59], v18, s[24:27], s20 offen")
        e("buffer_store_dwordx4 v[60:63], v19, s[24:27], s22 offen")
    if stamps:
        sm.mark("stored"); e("s_waitcnt vmcnt(0)"); sm.mark("drain"); sm.flush(30, 31, 18)
    a.label(f"{name}_end")
    e("s_endpgm")
    gen_k3.names = sm.names
    return kernel_header(name) + a.text() + kernel_desc(name, 168, 0, 102 if stamps else 64)
K3_LDS = TBL + 14336
```

```python
import sys; sys.path.insert(0,'gen')
from gen_all import *
from k0 import gen_k0, K0_LDS
import kA2
from k3 import gen_k3, K3_LDS
def build_v8(out, stamps=False, tag=(False, True), k0kw={}, lm=(False, True), **kw):
    launches = [("k0_kernel", 256, 256, K0_LDS)]
    bodies = [gen_k0("k0_kernel", 65536, stamps, clear_o0=tag[0], **k0kw)]
    for L in range(2):
        launches += [(f"kAl{L}_kernel", 256, 256, 163840), (f"k3l{L}_kernel", 256 if lm[L] else 160, 576, K3_LDS)]
        bodies += [kA2.gen_kA(f"kAl{L}_kernel", L, stamps, TAG=tag[L], CLEAR1=tag[1], **kw), gen_k3(f"k3l{L}_kernel", L, stamps, linemap=lm[L])]
    print(assemble(launches, bodies, out), ",".join(kA2.gen_kA.names))
if __name__ == "__main__":
    build_v8("h4_lm01.s")
    build_v8("h4_lm11.s", lm=(True, True))
    build_v8("h4_lm00.s", lm=(False, False))
    build_v8("v8.s")
```

```python
import sys; sys.path.insert(0,'gen')
from gen_all import *
from k0 import gen_k0, K0_LDS
import kA2
from k3 import gen_k3, K3_LDS
def empty(name, pad):
    return f".text\n.p2align 8\n" + "    s_endpgm\n" + "    s_nop 0\n" * (pad // 4) + kernel_header(name) + "    s_endpgm\n" + kernel_desc(name, 8, 0, 16)
def build(out, nE, distinct, lds=0, blk=256):
    tag = (False, True); lm = (False, True)
    launches = [("k0_kernel", 256, 256, K0_LDS)]
    bodies = [gen_k0("k0_kernel", 65536, False, clear_o0=tag[0])]
    for L in range(2):
        launches += [(f"kAl{L}_kernel", 256, 256, 163840), (f"k3l{L}_kernel", 256 if lm[L] else 160, 576, K3_LDS)]
        bodies += [kA2.gen_kA(f"kAl{L}_kernel", L, False, TAG=tag[L], CLEAR1=tag[1]), gen_k3(f"k3l{L}_kernel", L, False, linemap=lm[L])]
    ex = []
    if distinct:
        for i in range(nE): bodies.append(empty(f"e{i}_kernel", 8192)); ex.append((f"e{i}_kernel", 256, blk, lds))
    elif nE:
        bodies.append(empty("e0_kernel", 8192)); ex = [("e0_kernel", 256, blk, lds)] * nE
    launches = launches[:1] + ex + launches[1:]
    print(assemble(launches, bodies, out))
build("h5_0.s", 0, False)
build("h5_same5.s", 5, False)
build("h5_dist5.s", 5, True)
build("h5_dist5_big.s", 5, True, lds=163840)
```

```python
from asm import *
from layout import *

OOB = 0x40000000
XL = 143360
WP = 0
K0_LDS = XL + 10240 + 64

def ident_frag(a, dst, vdiff, tmp):
    for q in range(4):
        a.e(f"v_cmp_eq_u32 vcc, {2*q}, v{vdiff}")
        a.e(f"v_cndmask_b32 v{dst+q}, 0, v{tmp}, vcc")
        a.e(f"v_cmp_eq_u32 vcc, {2*q+1}, v{vdiff}")
        a.e(f"v_cndmask_b32 v{dst+q}, v{dst+q}, v{tmp+1}, vcc")

def xconv_finish(a, name, nyounger):
    e = a.e
    e(f"s_waitcnt vmcnt({nyounger})")
    e("buffer_store_dwordx4 v[232:235], v219, s[24:27], s58 offen sc1")
    for r in range(3):
        if r == 2:
            e("v_cmp_gt_u32 vcc, 128, v0"); e("s_and_saveexec_b64 s[52:53], vcc")
        e(f"ds_write_b128 v{216+r}, v[{220+4*r}:{223+4*r}]")
        if r == 2: e("s_mov_b64 exec, s[52:53]")
    e("s_waitcnt lgkmcnt(0)"); e("s_barrier")
    e("v_lshlrev_b32 v236, 4, v0"); e(f"v_add_u32 v237, {XL}, v236")
    for r in range(3): e(f"ds_read_b128 v[{220+4*r}:{223+4*r}], v237 offset:{4096*r}")
    e(f"v_mov_b32 v238, {OOB}"); e("v_cmp_gt_u32 vcc, 128, v0"); e("v_cndmask_b32 v237, v238, v236, vcc")
    e("s_waitcnt lgkmcnt(0)")
    e("buffer_store_dwordx4 v[220:223], v236, s[24:27], s46 offen sc1")
    e("s_add_u32 s46, s46, 4096"); e("buffer_store_dwordx4 v[224:227], v236, s[24:27], s46 offen sc1")
    e("s_add_u32 s46, s46, 4096"); e("buffer_store_dwordx4 v[228:231], v237, s[24:27], s46 offen sc1")

def gen_k0(name, code_bytes, stamps=False, clear_o0=False, ntm='', ntw=''):
    a = Asm(); e = a.e
    st = Stamps(a, stamps, 0)
    e(f"s_cmp_ge_u32 s2, 256")
    e(f"s_cbranch_scc1 {name}_exit")
    e("s_getpc_b64 s[20:21]")
    a.label(f"{name}_pc")
    e(f"s_sub_u32 s20, s20, {name}_pc-prog_start"); e("s_subb_u32 s21, s21, 0")
    e("s_lshr_b32 s3, s2, 3"); e(f"s_mul_i32 s3, s3, {code_bytes // 32}")
    e("v_lshlrev_b32 v5, 7, v0"); e("v_add_u32 v5, s3, v5"); e("v_min_u32 v5, prog_end-prog_start-4, v5")
    e(f"v_cmp_gt_u32 vcc, {code_bytes // 32 // 128}, v0"); e("s_and_saveexec_b64 s[22:23], vcc")
    e(f"s_cbranch_execz {name}_nopf")
    e("global_load_dword v239, v5, s[20:21]")
    a.label(f"{name}_nopf")
    e("s_mov_b64 exec, s[22:23]")
    st.mark("start")
    e("s_load_dwordx4 s[4:7], s[0:1], 8")
    e("s_load_dwordx2 s[8:9], s[0:1], 24")
    e("s_load_dwordx4 s[12:15], s[0:1], 56")
    e("s_load_dwordx2 s[16:17], s[0:1], 88")
    e("s_load_dwordx2 s[44:45], s[0:1], 0")
    e("v_and_b32 v1, 63, v0")
    e("v_lshrrev_b32 v2, 6, v0")
    e("v_and_b32 v3, 15, v1")
    e("v_lshrrev_b32 v4, 4, v1")
    e("v_readfirstlane_b32 s18, v2")
    e(f"v_mov_b32 v14, {OOB}")
    e("s_lshr_b32 s28, s2, 1"); e("s_and_b32 s29, s2, 1")
    e("s_lshr_b32 s30, s28, 3"); e("s_bfe_u32 s31, s28, 0x20001"); e("s_and_b32 s46, s28, 1")
    e("s_and_b32 s47, s30, 1"); e("s_lshl_b32 s47, s47, 10"); e("s_lshl_b32 s46, s46, 5"); e("s_add_u32 s47, s47, s46")
    e("s_lshr_b32 s30, s30, 1"); e("s_lshl_b32 s30, s30, 2"); e("s_add_u32 s47, s47, s30"); e("s_add_u32 s47, s47, s31")
    e("s_mul_i32 s47, s47, 1280"); e("s_mul_i32 s46, s29, 640"); e("s_add_u32 s47, s47, s46")
    e(f"s_mul_i32 s46, s28, {AF_WT}"); e("s_mul_i32 s30, s29, 10240"); e("s_add_u32 s46, s46, s30"); e(f"s_add_u32 s46, s46, {XIN_OFF[0]}")
    for r in range(3):
        e(f"v_add_u32 v8, {256*r}, v0"); e("v_mul_u32_u24 v9, 52429, v8"); e("v_lshrrev_b32 v9, 21, v9")
        e("v_mul_u32_u24 v10, 40, v9"); e("v_sub_u32 v10, v8, v10")
        e("v_mul_u32_u24 v11, 81920, v9"); e(f"v_lshl_add_u32 v{212+r}, v10, 4, v11")
        e("v_lshlrev_b32 v12, 4, v9"); e(f"v_lshl_add_u32 v12, v10, 8, v12"); e(f"v_add_u32 v{216+r}, {XL}, v12")
        if r == 2:
            e("v_cmp_gt_u32 vcc, 640, v8"); e(f"v_cndmask_b32 v{212+r}, v14, v{212+r}, vcc")
    e("s_lshr_b32 s56, s2, 4"); e("s_and_b32 s57, s2, 15"); e("s_mul_i32 s30, s57, 200")
    e("v_add_u32 v8, s30, v0")
    e("v_lshrrev_b32 v9, 4, v8"); e("v_mul_u32_u24 v10, 52429, v9"); e("v_lshrrev_b32 v10, 20, v10")
    e("v_mul_u32_u24 v11, 20, v10"); e("v_sub_u32 v11, v9, v11")
    e("s_lshr_b32 s57, s57, 3")
    e("s_mul_i32 s30, s57, 5"); e("v_subrev_u32 v10, s30, v10")
    e("v_and_b32 v12, 3, v8"); e("v_bfe_u32 v13, v8, 2, 2")
    e("v_lshl_add_u32 v9, v10, 2, v12"); e("v_mul_u32_u24 v9, 1280, v9")
    e("v_lshl_add_u32 v9, v11, 6, v9"); e("v_lshl_add_u32 v215, v13, 4, v9")
    e("v_mul_u32_u24 v9, 5, v11"); e("v_add_u32 v9, v9, v10"); e("v_lshlrev_b32 v9, 10, v9")
    e("v_lshl_add_u32 v12, v13, 4, v12"); e("v_lshl_add_u32 v219, v12, 4, v9")
    e("v_cmp_gt_u32 vcc, 200, v0"); e("v_cndmask_b32 v215, v14, v215, vcc"); e("v_cndmask_b32 v219, v14, v219, vcc")
    e("s_mul_i32 s59, s56, 20"); e("s_add_u32 s59, s59, 1"); e("s_mul_i32 s59, s59, 1280")
    e(f"s_mul_i32 s58, s56, {W1_C}"); e("s_add_u32 s58, s58, 102400"); e("s_add_u32 s30, s57, 2"); e("s_lshl_b32 s30, s30, 6"); e("s_add_u32 s58, s58, s30")
    e("s_waitcnt lgkmcnt(0)")
    srd(a, 24, 16, 17, 0, WS_USED)
    e(f"s_mov_b32 s48, s44"); e("s_mov_b32 s49, s45"); e(f"s_mov_b32 s50, {ACT}"); e("s_mov_b32 s51, 0x20000")
    for r in range(3): e(f"buffer_load_dwordx4 v[{220+4*r}:{223+4*r}], v{212+r}, s[48:51], s47 offen" + ntm)
    e("s_cmp_eq_u32 s57, 1"); e("s_cselect_b32 s40, s14, s12"); e("s_cselect_b32 s41, s15, s13"); e(f"s_mov_b32 s42, {640*1280}"); e("s_mov_b32 s43, 0x20000")
    e("buffer_load_dwordx4 v[232:235], v215, s[40:43], s59 offen")
    e("s_lshl_b32 s19, s2, 10"); e(f"s_add_u32 s19, s19, {ZERO_OFF}")
    for r in range(4): e(f"v_mov_b32 v{200+r}, 0")
    e("v_lshlrev_b32 v6, 4, v0"); e("v_cmp_gt_u32 vcc, 64, v0"); e("v_cndmask_b32 v7, v14, v6, vcc")
    e("buffer_store_dwordx4 v[200:203], v7, s[24:27], s19 offen sc1")
    NS = 0
    if clear_o0:
        for r in range(4): e(f"v_mov_b32 v{204+r}, -1")
        e("s_mul_i32 s19, s2, 10240"); e(f"s_add_u32 s19, s19, {O_OFF[0]}")
        e("v_cmp_gt_u32 vcc, 128, v0"); e("v_cndmask_b32 v7, v14, v6, vcc")
        e("buffer_store_dwordx4 v[204:207], v6, s[24:27], s19 offen sc1")
        e("s_add_u32 s19, s19, 4096"); e("buffer_store_dwordx4 v[204:207], v6, s[24:27], s19 offen sc1")
        e("s_add_u32 s19, s19, 4096"); e("buffer_store_dwordx4 v[204:207], v7, s[24:27], s19 offen sc1")
        NS = 3
    st.mark("common")
    e("s_and_b32 s33, s2, 7"); e("s_lshr_b32 s34, s2, 3")
    e("s_cmp_ge_u32 s34, 12")
    e(f"s_cbranch_scc1 {name}_wf")

    e("s_mul_i32 s30, s33, 12"); e("s_add_u32 s30, s30, s34")
    e("s_lshr_b32 s28, s30, 5"); e("s_and_b32 s29, s30, 31")
    srd(a, 32, 4, 5, 0, 640 * 3840)
    srd(a, 36, 6, 7, 0, 32 * 400 * 2)
    FA = 4096
    e("v_lshrrev_b32 v8, 2, v1"); e("v_lshrrev_b32 v9, 4, v1"); e("v_xor_b32 v9, v9, v1"); e("v_and_b32 v9, 3, v9")
    e("s_mul_i32 s30, s18, 160"); e("v_add_u32 v8, s30, v8")
    e("s_movk_i32 s31, 3840"); e("v_mul_lo_u32 v8, v8, s31")
    e("s_mul_i32 s30, s28, 640"); e("s_mul_i32 s31, s29, 20"); e("s_add_u32 s30, s30, s31"); e("s_lshl_b32 s30, s30, 1")
    e("v_lshlrev_b32 v9, 4, v9"); e("v_add3_u32 v8, v8, v9, s30")
    e("v_lshlrev_b32 v10, 4, v0"); e("v_cmp_gt_u32 vcc, 50, v0"); e("v_cndmask_b32 v11, v14, v10, vcc")
    e("s_mul_i32 s30, s29, 800")
    e("buffer_load_dwordx4 v[64:67], v11, s[36:39], s30 offen")
    e("s_mov_b32 s31, 0"); e("s_mul_i32 s35x, s18, 10240".replace("s35x", "s55")); e(f"s_add_u32 s55, s55, {FA}")
    for m in range(10):
        e(f"s_add_u32 m0, s55, {1024*m}")
        e(f"buffer_load_dwordx4 v8, s[32:35], s31 offen lds")
        if m < 9: e("s_add_u32 s31, s31, 61440")
    e("v_lshrrev_b32 v12, 2, v3"); e("v_xor_b32 v12, v12, v4"); e("v_lshlrev_b32 v12, 4, v12"); e("v_lshl_add_u32 v12, v3, 6, v12"); e("v_add_u32 v12, s55, v12")
    for r in range(68, 72): e(f"v_mov_b32 v{r}, 0")
    e("v_cmp_gt_u32 vcc, 84, v0"); e("s_and_saveexec_b64 s[52:53], vcc")
    e("ds_write_b128 v10, v[68:71]"); e("s_mov_b64 exec, s[52:53]")
    xconv_finish(a, name, 11 + 1 + NS)
    e("s_cmp_eq_u32 s28, 2"); e(f"s_cbranch_scc1 {name}_bid")
    e("s_waitcnt vmcnt(14)")
    e("v_cmp_gt_u32 vcc, 50, v0"); e("s_and_saveexec_b64 s[52:53], vcc")
    e("ds_write_b128 v10, v[64:67]"); e("s_mov_b64 exec, s[52:53]")
    e(f"s_branch {name}_bdone")
    a.label(f"{name}_bid")
    e("v_mul_u32_u24 v10, 42, v0"); e("v_mov_b32 v11, 0x3f80")
    e("v_cmp_gt_u32 vcc, 20, v0"); e("s_and_saveexec_b64 s[52:53], vcc")
    e("ds_write_b16 v10, v11"); e("s_mov_b64 exec, s[52:53]")
    a.label(f"{name}_bdone")
    e("s_waitcnt lgkmcnt(0)"); e("s_barrier")
    e("v_lshrrev_b32 v10, 2, v3"); e("v_lshl_add_u32 v10, v4, 3, v10"); e("v_mul_u32_u24 v10, 40, v10"); e("v_and_b32 v11, 3, v1"); e("v_lshl_add_u32 v10, v11, 3, v10")
    for nt in range(2):
        e(f"ds_read_b64_tr_b16 v[{56+4*nt}:{57+4*nt}], v10 offset:{32*nt}")
        e(f"ds_read_b64_tr_b16 v[{58+4*nt}:{59+4*nt}], v10 offset:{32*nt + 160}")
    e("s_waitcnt vmcnt(4)")
    for m in range(10): e(f"ds_read_b128 v[{16+4*m}:{19+4*m}], v12 offset:{1024*m}")
    e("s_waitcnt lgkmcnt(0)")
    st.mark("f_loads")
    for m in range(10):
        for nt in range(2):
            d = 80 + 8 * m + 4 * nt
            e(f"v_mfma_f32_16x16x32_bf16 v[{d}:{d+3}], v[{16+4*m}:{19+4*m}], v[{56+4*nt}:{59+4*nt}], 0")
    for nt in range(2):
        r = 64 + 2*nt
        e(f"v_pk_add_f32 v[{r}:{r+1}], v[{80+4*nt}:{81+4*nt}], v[{82+4*nt}:{83+4*nt}]")
        for m in range(1, 10):
            for hb in range(2):
                s0 = 80 + 8*m + 4*nt + 2*hb
                e(f"v_pk_add_f32 v[{r}:{r+1}], v[{r}:{r+1}], v[{s0}:{s0+1}]")
        e(f"v_add_f32 v{r}, v{r}, v{r+1}")
    for nt in range(2):
        r = 64 + 2*nt
        e(f"v_mov_b32 v68, v{r}"); e(f"v_permlane32_swap_b32 v{r}, v68"); e(f"v_add_f32 v{r}, v{r}, v68")
        e(f"v_mov_b32 v68, v{r}"); e(f"v_permlane16_swap_b32 v{r}, v68"); e(f"v_add_f32 v{r}, v{r}, v68")
    e("v_lshlrev_b32 v69, 4, v3"); e("v_add_u32 v69, 2048, v69")
    e("s_lshl_b32 s30, s18, 2"); e("v_add_u32 v70, s30, v69")
    e("ds_write_b32 v70, v64"); e("ds_write_b32 v70, v66 offset:256")
    e("s_and_b32 s30, s29, 1")
    e("s_cmp_eq_u32 s28, 2"); e("s_cselect_b32 s31, 2, 0"); e("s_add_u32 s30, s30, s31")
    e("s_lshl_b32 s30, s30, 6")
    e("v_and_b32 v8, 1, v4"); e("v_lshlrev_b32 v8, 9, v8")
    e("v_lshrrev_b32 v9, 1, v4"); e("v_lshlrev_b32 v9, 8, v9")
    e("v_add3_u32 v8, v8, v9, s30")
    for nt in range(2):
        e(f"v_add_u32 v9, {16*nt}, v3")
        e("v_lshrrev_b32 v10, 2, v9"); e("v_lshlrev_b32 v10, 10, v10")
        e("v_and_b32 v11, 3, v9"); e("v_lshlrev_b32 v11, 4, v11")
        e(f"v_add3_u32 v{72+nt}, v8, v10, v11")
    e("v_cmp_gt_u32 vcc, 4, v3"); e("v_cndmask_b32 v73, v14, v73, vcc")
    e("s_lshr_b32 s30, s29, 1"); e(f"s_mul_i32 s30, s30, {W1_C}")
    e("s_cmp_eq_u32 s28, 0"); e("s_cselect_b32 s31, 102400, 0"); e("s_add_u32 s30, s30, s31")
    e("s_mul_i32 s31, s18, 25600"); e("s_add_u32 s30, s30, s31")
    e("s_waitcnt lgkmcnt(0)"); e("s_barrier")
    e("ds_read_b128 v[68:71], v69"); e("ds_read_b128 v[74:77], v69 offset:256")
    e("s_waitcnt lgkmcnt(0)")
    for nt, b in ((0, 68), (1, 74)):
        e(f"v_pk_add_f32 v[{b}:{b+1}], v[{b}:{b+1}], v[{b+2}:{b+3}]"); e(f"v_add_f32 v{b}, v{b}, v{b+1}")
        e(f"v_mul_f32 v{64+2*nt}, {1.0/640.0!r}, v{b}")
    st.mark("f_sums")
    for mp in range(5):
        for nt in range(2):
            dA = 80 + 8 * (2*mp) + 4 * nt; dB = 80 + 8 * (2*mp+1) + 4 * nt
            for d in (dA, dB):
                for hb in range(2):
                    e(f"v_pk_add_f32 v[{d+2*hb}:{d+2*hb+1}], v[{d+2*hb}:{d+2*hb+1}], v[{64+2*nt}:{65+2*nt}] op_sel_hi:[1,0] neg_lo:[0,1] neg_hi:[0,1]")
            r0 = 16 + 4 * (2*mp + nt)
            e(f"v_cvt_pk_bf16_f32 v{r0}, v{dA}, v{dA+1}"); e(f"v_cvt_pk_bf16_f32 v{r0+1}, v{dA+2}, v{dA+3}")
            e(f"v_cvt_pk_bf16_f32 v{r0+2}, v{dB}, v{dB+1}"); e(f"v_cvt_pk_bf16_f32 v{r0+3}, v{dB+2}, v{dB+3}")
            e(f"v_permlane16_swap_b32 v{r0}, v{r0+2}"); e(f"v_permlane16_swap_b32 v{r0+1}, v{r0+3}")
            e(f"buffer_store_dwordx4 v[{r0}:{r0+3}], v{72+nt}, s[24:27], s30 offen sc1")
        e("s_add_u32 s30, s30, 5120")
    st.mark("f_stores")
    e("s_cmp_eq_u32 s28, 2")
    e(f"s_cbranch_scc1 {name}_tables")
    e(f"s_branch {name}_end")

    a.label(f"{name}_wf")
    e("s_sub_u32 s34, s34, 12")
    e("s_and_b32 s28, s33, 1"); e("s_mul_i32 s28, s28, 5"); e("s_lshr_b32 s30, s34, 2"); e("s_add_u32 s28, s28, s30")
    e("s_lshr_b32 s29, s33, 1"); e("s_lshl_b32 s29, s29, 2"); e("s_and_b32 s30, s34, 3"); e("s_add_u32 s29, s29, s30")
    srd(a, 32, 8, 9, 0, 640 * 1280)
    srd(a, 36, 12, 13, 0, 640 * 1280)
    srd(a, 40, 14, 15, 0, 640 * 1280)
    wv = VM(a); wv.q = ["x"] * 4 + ["z"] * (1 + NS)
    e("s_lshl_b32 s54, s18, 2"); e("v_add_u32 v8, s54, v4"); e("v_xor_b32 v8, v8, v3"); e("v_lshlrev_b32 v8, 4, v8")
    e("v_mul_u32_u24 v9, 1280, v4"); e("v_add_u32 v24, v8, v9")
    for gi in range(4):
        e(f"s_lshl_b32 s30, s28, 6"); e("s_add_u32 s30, s30, s54"); e(f"s_add_u32 s30, s30, {16*gi}")
        e("s_mul_i32 s31, s30, 52429"); e("s_lshr_b32 s31, s31, 21"); e("s_mul_i32 s31, s31, 40"); e("s_sub_u32 s31, s30, s31")
        e("s_cmp_eq_u32 s31, 20"); e("s_cselect_b32 s55, 16, 0"); e("s_add_u32 s30, s30, s55")
        e("s_cmp_ge_u32 s31, 24"); e("s_cselect_b32 s55, 4, 0"); e("s_sub_u32 s30, s30, s55")
        e(f"s_mul_i32 s{20+gi}, s30, 1280")
    e("s_mul_i32 s55, s29, 20"); e("s_add_u32 s55, s55, 1")
    e("s_add_u32 s30, s55, s54"); e("s_mul_i32 s60, s30, 1280")
    e("s_add_u32 s30, s55, 16"); e("s_mul_i32 s30, s30, 1280")
    e("s_mul_i32 s45, s18, 5120")
    e("s_add_u32 s31, s45, 81920 + 40960"); e("s_add_u32 s56, s45, 81920 + 20480")
    e("s_cmp_lt_u32 s18, 2"); e("s_cselect_b32 s61, s30, s60"); e("s_cselect_b32 s44, s31, s56")
    e("s_cmp_eq_u32 s18, 0"); e("s_cselect_b32 s64, s36, s40"); e("s_cselect_b32 s65, s37, s41"); e(f"s_mov_b32 s66, {640*1280}"); e("s_mov_b32 s67, 0x20000")
    def seg_items(n):
        it = []
        for gi in range(4):
            it.append([f"s_add_u32 s30, s{20+gi}, {256*n}", f"s_add_u32 m0, s45, {gi*20480 + 1024*n}", ("s[32:35]",)])
        it.append([f"s_add_u32 s30, s60, {256*n}", f"s_add_u32 m0, s45, {81920 + 1024*n}", ("s[36:39]",)])
        it.append([f"s_add_u32 s30, s60, {256*n}", f"s_add_u32 m0, s56, {1024*n}", ("s[40:43]",)])
        it.append([f"s_add_u32 s30, s61, {256*n}", f"s_add_u32 m0, s44, {1024*n}", ("s[64:67]",)])
        return it
    def issue_seg(n):
        for p0, p1, (srdn,) in seg_items(n):
            e(p0); e(p1); wv.issue(f"buffer_load_dwordx4 v24, {srdn}, s30 offen lds", f"g{n}")
    for n in range(3): issue_seg(n)
    st.mark("w_issue")
    xconv_finish(a, name, 21 + 1 + NS)
    wv.q = [t for t in wv.q if t.startswith("g")] + ["xs"] * 4
    e("v_lshrrev_b32 v21, 2, v3"); e("v_mul_u32_u24 v21, 5120, v21"); e("v_and_b32 v9, 3, v3"); e("v_lshl_add_u32 v21, v9, 8, v21")
    e("s_mul_i32 s30, s18, 20480"); e("s_mov_b32 s31, 81920")
    for p in range(4):
        e(f"v_add_u32 v9, {4*p}, v4"); e("v_xor_b32 v9, v9, v3"); e("v_lshlrev_b32 v9, 4, v9")
        e(f"v_add3_u32 v{184+p}, v21, v9, s30"); e(f"v_add3_u32 v{188+p}, v21, v9, s31")
    e("s_mul_i32 s31, s29, 5")
    for k, dst in ((0, 15), (4, 16)):
        e(f"v_add_u32 v9, s31, v4")
        if k: e(f"v_add_u32 v9, {k}, v9")
        e("v_lshrrev_b32 v10, 4, v9"); e("v_lshlrev_b32 v10, 10, v10"); e("v_and_b32 v9, 15, v9"); e("v_xor_b32 v9, v9, v3"); e("v_lshl_add_u32 v10, v9, 4, v10")
        e(f"v_add3_u32 v{dst}, v21, v10, s30")
    e("v_mov_b32 v22, 0x3f80"); e("v_mov_b32 v23, 0x3f800000")
    e("v_lshlrev_b32 v9, 3, v4"); e("v_sub_u32 v17, v3, v9"); e("v_add_u32 v18, 16, v17")
    ident_frag(a, 112, 17, 22)
    ident_frag(a, 116, 18, 22)
    def rd(s):
        b0 = 144 + 16*(s & 1)
        e(f"ds_read_b128 v[{b0}:{b0+3}], v{184+(s&3)} offset:{(s>>2)*1024}")
        for nt in range(3):
            e(f"ds_read_b128 v[{b0+4+4*nt}:{b0+7+4*nt}], v{188+(s&3)} offset:{nt*20480 + (s>>2)*1024}")
    wv.wait("g0"); e("s_barrier")
    st.mark("w_loads")
    rd(0)
    for s in range(20):
        if s % 4 == 3 and s < 19:
            n = (s + 1) // 4
            wv.wait(f"g{n}"); e("s_barrier")
        if s in (0, 4): issue_seg(3 + s // 4)
        if s + 1 < 20: rd(s + 1); e("s_waitcnt lgkmcnt(4)")
        else: e("s_waitcnt lgkmcnt(0)")
        b0 = 144 + 16*(s & 1)
        for nt in range(3):
            c = "0" if s == 0 else f"v[{120+4*nt}:{123+4*nt}]"
            e(f"v_mfma_f32_16x16x32_bf16 v[{120+4*nt}:{123+4*nt}], v[{b0}:{b0+3}], v[{b0+4+4*nt}:{b0+7+4*nt}], {c}")
    e("ds_read_b128 v[104:107], v15"); e("ds_read_b128 v[108:111], v16"); e("s_waitcnt lgkmcnt(0)")
    e("v_mfma_f32_16x16x32_bf16 v[132:135], v[104:107], v[112:115], 0")
    e("v_mfma_f32_16x16x32_bf16 v[136:139], v[104:107], v[116:119], 0")
    e("v_mfma_f32_16x16x32_bf16 v[140:143], v[108:111], v[112:115], 0")
    st.mark("w_mfma")
    e("s_lshr_b32 s31, s18, 1"); e("s_mul_i32 s31, s31, 5120"); e("s_and_b32 s30, s18, 1"); e("s_lshl_b32 s30, s30, 9"); e("s_add_u32 s30, s30, s31"); e(f"s_add_u32 s30, s30, {XL}")
    e("v_lshrrev_b32 v8, 1, v4"); e("v_lshlrev_b32 v8, 8, v8"); e("v_and_b32 v9, 1, v4"); e("v_lshl_add_u32 v8, v9, 3, v8"); e("v_add_u32 v8, s30, v8")
    e(f"v_mov_b32 v14, {XL + 10240}")
    def xf_addr(dst, vu, ri_const=None, vri=None):
        e(f"v_lshrrev_b32 v10, 2, v{vu}"); e("v_lshlrev_b32 v10, 10, v10")
        e(f"v_and_b32 v11, 3, v{vu}")
        if ri_const is not None: e(f"v_add_u32 v11, {4*(2+ri_const)}, v11")
        else: e(f"v_lshl_add_u32 v11, v{vri}, 2, v11"); e("v_add_u32 v11, 8, v11")
        e("v_lshlrev_b32 v11, 4, v11")
        e(f"v_add3_u32 v{dst}, v8, v10, v11")
    xf_addr(16, 3, 0); xf_addr(17, 3, 1)
    e("v_and_b32 v12, 3, v3"); e("v_add_u32 v12, 16, v12"); e("v_lshrrev_b32 v13, 2, v3")
    xf_addr(18, 12, None, 13)
    e("v_cmp_gt_u32 vcc, 8, v3"); e("v_cndmask_b32 v18, v14, v18, vcc")
    for nt in range(3):
        e(f"v_add_u32 v12, {16*nt}, v3")
        e("v_cmp_le_u32 vcc, 20, v12"); e("v_cndmask_b32 v13, 0, 1, vcc")
        e("v_lshlrev_b32 v15, 2, v13"); e("v_sub_u32 v15, v12, v15")
        e("v_cmp_le_u32 vcc, 24, v12"); e("v_subrev_u32 v12, 24, v12"); e("v_cndmask_b32 v12, v15, v12, vcc")
        e("v_lshrrev_b32 v10, 2, v12"); e("v_lshlrev_b32 v10, 10, v10")
        e("v_and_b32 v11, 3, v12"); e("v_lshl_add_u32 v11, v13, 2, v11"); e("v_lshlrev_b32 v11, 4, v11")
        e(f"v_add3_u32 v{19+nt}, v8, v10, v11")
    e("v_cmp_gt_u32 vcc, 8, v3"); e("v_cndmask_b32 v21, v14, v21, vcc")
    for t in range(6):
        d = 120 + 4 * t
        e(f"v_cvt_pk_bf16_f32 v{d}, v{d}, v{d+1}")
        e(f"v_cvt_pk_bf16_f32 v{d+1}, v{d+2}, v{d+3}")
        e(f"ds_write_b64 v{16+t}, v[{d}:{d+1}]")
    e("s_waitcnt lgkmcnt(0)"); e("s_barrier")
    e("v_lshlrev_b32 v8, 4, v0"); e(f"v_add_u32 v9, {XL}, v8")
    for r in range(3): e(f"ds_read_b128 v[{120+4*r}:{123+4*r}], v9 offset:{4096*r}")
    e(f"s_mul_i32 s30, s29, {W2_C}"); e("s_mul_i32 s31, s28, 10240"); e("s_add_u32 s30, s30, s31"); e(f"s_add_u32 s30, s30, {W2_OFF}")
    e(f"v_mov_b32 v14, {OOB}"); e("v_cmp_gt_u32 vcc, 128, v0"); e("v_cndmask_b32 v9, v14, v8, vcc")
    e("s_waitcnt lgkmcnt(0)")
    e("buffer_store_dwordx4 v[120:123], v8, s[24:27], s30 offen sc1")
    e("s_add_u32 s30, s30, 4096"); e("buffer_store_dwordx4 v[124:127], v8, s[24:27], s30 offen sc1")
    e("s_add_u32 s30, s30, 4096"); e("buffer_store_dwordx4 v[128:131], v9, s[24:27], s30 offen sc1")
    e(f"s_branch {name}_end")

    a.label(f"{name}_tables")
    e("s_mov_b32 s28, s29")
    e("s_cmp_gt_u32 s28, 4")
    e(f"s_cbranch_scc1 {name}_end")
    e("v_lshlrev_b32 v9, 4, v1")
    e("s_cmp_eq_u32 s28, 4")
    e(f"s_cbranch_scc1 {name}_tab2")
    e("s_lshl_b32 s29, s28, 4"); e("v_add_u32 v8, s29, v3")
    e("s_cmp_ge_u32 s18, 2")
    e(f"s_cbranch_scc1 {name}_tabtw")
    e("s_lshl_b32 s29, s18, 5"); e("v_lshlrev_b32 v10, 3, v4"); e("v_add_u32 v10, s29, v10")
    for jj in range(8):
        e(f"v_add_u32 v11, {jj}, v10"); e("v_mul_u32_u24 v11, v11, v8"); e("v_and_b32 v11, 63, v11")
        e("v_cvt_f32_u32 v11, v11"); e(f"v_mul_f32 v11, {1.0/64!r}, v11")
        e(f"v_cos_f32 v{16+jj}, v11"); e(f"v_sin_f32 v{24+jj}, v11")
    for q in range(4):
        e(f"v_cvt_pk_bf16_f32 v{32+q}, v{16+2*q}, v{17+2*q}")
        e(f"v_cvt_pk_bf16_f32 v{40+q}, v{24+2*q}, v{25+2*q}")
        e(f"v_xor_b32 v{36+q}, 0x80008000, v{40+q}")
    e("s_mul_i32 s29, s28, 6144"); e("s_lshl_b32 s30, s18, 10"); e("s_add_u32 s29, s29, s30"); e(f"s_add_u32 s29, s29, {TAB_OFF + TAB_W64}")
    for var in range(3):
        if var == 2: e("s_add_u32 s29, s29, 4096")
        e(f"buffer_store_dwordx4 v[{32+4*var}:{35+4*var}], v9, s[24:27], s29 offen offset:{2048*(var&1)}")
    e(f"s_branch {name}_end")
    a.label(f"{name}_tabtw")
    e("s_cmp_lg_u32 s18, 2")
    e(f"s_cbranch_scc1 {name}_end")
    for T in range(2):
        for b in range(4):
            e(f"v_lshlrev_b32 v11, 2, v4"); e(f"v_add_u32 v11, {16*T+b}, v11"); e("v_mul_u32_u24 v11, v11, v8")
            e("v_cvt_f32_u32 v11, v11"); e(f"v_mul_f32 v11, {1.0/2048!r}, v11")
            e(f"v_cos_f32 v{16+4*T+b}, v11"); e(f"v_sin_f32 v{24+4*T+b}, v11")
    e("s_lshl_b32 s29, s28, 12"); e(f"s_add_u32 s29, s29, {TAB_OFF + TAB_TW}")
    for q in range(4):
        e(f"buffer_store_dwordx4 v[{16+4*q}:{19+4*q}], v9, s[24:27], s29 offen offset:{1024*q}")
    e(f"s_branch {name}_end")
    a.label(f"{name}_tab2")
    e("s_cmp_ge_u32 s18, 2")
    e(f"s_cbranch_scc1 {name}_end")
    e("s_lshl_b32 s29, s18, 4"); e("v_add_u32 v8, s29, v3")
    for jj in range(8):
        e(f"v_lshlrev_b32 v11, 2, v4"); e(f"v_add_u32 v11, {16*(jj>>2) + (jj&3)}, v11"); e("v_mul_u32_u24 v11, v11, v8"); e("v_and_b32 v11, 31, v11")
        e("v_cvt_f32_u32 v11, v11"); e(f"v_mul_f32 v11, {1.0/32!r}, v11")
        e(f"v_cos_f32 v{16+jj}, v11"); e(f"v_sin_f32 v{24+jj}, v11")
    for q in range(4):
        e(f"v_cvt_pk_bf16_f32 v{32+q}, v{16+2*q}, v{17+2*q}")
        e(f"v_cvt_pk_bf16_f32 v{36+q}, v{24+2*q}, v{25+2*q}")
    e("s_lshl_b32 s29, s18, 11"); e(f"s_add_u32 s29, s29, {TAB_OFF + TAB_S2}")
    e("buffer_store_dwordx4 v[32:35], v9, s[24:27], s29 offen")
    e("buffer_store_dwordx4 v[36:39], v9, s[24:27], s29 offen offset:1024")
    a.label(f"{name}_end")
    if stamps:
        e("s_waitcnt vmcnt(0)"); st.mark("end"); st.flush(16, 17, 18)
    a.label(f"{name}_exit")
    e("s_endpgm")
    gen_k0.names = st.names
    return kernel_header(name) + a.text() + kernel_desc(name, 256, 0, 102 if stamps else 72)
```

```python
from asm import *
from layout import *
OOB = 0x40000000
RB = 0
YB = 8704
TBL = 34048

def af_addr(a, dst, vt, t0, t1):
    e = a.e
    e(f"v_and_b32 v{t0}, 31, v{vt}")
    e(f"v_lshrrev_b32 v{t1}, 5, v{vt}")
    e(f"v_lshrrev_b32 v{dst}, 2, v{t0}"); e(f"v_lshlrev_b32 v{dst}, 4, v{dst}")
    e(f"v_and_b32 v{t0}, 3, v{t0}"); e(f"v_lshl_add_u32 v{dst}, v{t0}, 1, v{dst}")
    e(f"v_lshrrev_b32 v{t0}, 5, v{t1}"); e(f"v_lshl_add_u32 v{dst}, v{t0}, 3, v{dst}")
    e(f"v_and_b32 v{t0}, 1, v{t1}"); e(f"v_add_u32 v{dst}, v{dst}, v{t0}")
    e(f"v_mul_u32_u24 v{dst}, {AF_WT}, v{dst}")
    e(f"v_bfe_u32 v{t0}, v{t1}, 1, 4"); e(f"v_lshl_add_u32 v{dst}, v{t0}, 4, v{dst}")

def gen_k3(name, layer, stamps=False, linemap=False):
    a = Asm(); e = a.e; vm = VM(a); sm = Stamps(a, stamps, 3 + 4*layer)
    if linemap:
        e("s_cmp_ge_u32 s2, 256"); e(f"s_cbranch_scc1 {name}_end")
        e("s_and_b32 s16, s2, 7"); e("s_cmp_ge_u32 s16, 5"); e(f"s_cbranch_scc1 {name}_end")
    else:
        e("s_cmp_ge_u32 s2, 160"); e(f"s_cbranch_scc1 {name}_end")
    sm.mark("start")
    e("s_load_dwordx2 s[30:31], s[0:1], 88")
    if layer == 1: e("s_load_dwordx2 s[24:25], s[0:1], 72")
    if linemap:
        e("s_lshr_b32 s17, s2, 3"); e("s_lshl_b32 s16, s16, 3"); e("s_and_b32 s19, s17, 7"); e("s_add_u32 s16, s16, s19"); e("s_lshr_b32 s17, s17, 3")
    else:
        e("s_and_b32 s16, s2, 7"); e("s_lshr_b32 s17, s2, 3"); e("s_lshr_b32 s19, s17, 2"); e("s_lshl_b32 s19, s19, 3")
        e("s_add_u32 s16, s16, s19")
        e("s_and_b32 s17, s17, 3")
    e("v_and_b32 v1, 63, v0"); e("v_lshrrev_b32 v2, 6, v0")
    e("v_readfirstlane_b32 s18, v2")
    e("v_and_b32 v2, 15, v1"); e("v_lshrrev_b32 v3, 4, v1")
    e("v_lshlrev_b32 v5, 4, v1")
    e("v_lshlrev_b32 v6, 4, v0")
    e(f"v_mov_b32 v20, {OOB}"); e("v_cmp_gt_u32 vcc, 512, v0"); e("v_cndmask_b32 v7, v20, v6, vcc")
    e("s_lshl_b32 s3, s16, 3"); e("s_add_u32 s3, s3, s18"); e("s_sub_u32 s20, s3, 1"); e("s_lshl_b32 s20, s20, 13"); e(f"s_add_u32 s20, s20, {XF_OFF[layer]}")
    e("s_cmp_eq_u32 s3, 0"); e(f"s_cselect_b32 s3, {OOB}, 0"); e("v_add_u32 v4, s3, v5"); e("s_add_u32 s21, s20, 4096")
    e(f"s_mov_b32 s22, {ST_OFF[layer]}"); e(f"s_mov_b32 s23, {ST_OFF[layer] + 8192}")
    e("s_waitcnt lgkmcnt(0)")
    srd(a, 12, 30, 31, 0, WS_USED)
    vm.issue("buffer_load_dwordx4 v[8:11], v7, s[12:15], s22 offen", "st")
    vm.issue("buffer_load_dwordx4 v[12:15], v7, s[12:15], s23 offen", "st")
    e("s_cmp_ge_u32 s18, 7"); e(f"s_cbranch_scc1 {name}_notab")
    for h in range(2):
        e(f"s_lshl_b32 s3, s18, 1");
        if h: e("s_add_u32 s3, s3, 1")
        e("s_lshl_b32 s19, s3, 10")
        e("s_mul_i32 s33, s17, 6144"); e(f"s_add_u32 s33, s33, {TAB_OFF + TAB_W64}")
        e("s_lshl_b32 s34, s17, 12"); e(f"s_add_u32 s34, s34, {TAB_OFF + TAB_TW - 6144}")
        e("s_cmp_ge_u32 s3, 6"); e("s_cselect_b32 s33, s34, s33")
        e("s_cmp_ge_u32 s3, 10"); e(f"s_cselect_b32 s33, {TAB_OFF + TAB_S2 - 10240}, s33")
        e("s_add_u32 s33, s33, s19")
        e(f"s_add_u32 m0, s19, {TBL}")
        e("buffer_load_dwordx4 v5, s[12:15], s33 offen lds")
    a.label(f"{name}_notab")
    Xr = lambda T, st, ri: 32 + ((T*2+st)*2+ri)*4
    def data_loads(T):
        for st in range(2):
            for ri in range(2):
                r = Xr(T, st, ri)
                e(f"buffer_load_dwordx4 v[{r}:{r+3}], v4, s[12:15], {'s37' if ri else 's36'} offen offset:{T*2048 + st*1024}")
    e("s_mov_b32 s36, s20"); e("s_mov_b32 s37, s21"); e("s_mov_b32 s28, 0xffff0000")
    data_loads(0)
    e("v_lshrrev_b32 v16, 5, v0"); e("v_and_b32 v17, 31, v0"); e("v_lshl_add_u32 v16, v17, 6, v16"); e("s_lshl_b32 s3, s17, 4"); e("v_add_u32 v16, s3, v16")
    e("v_sub_u32 v17, 2048, v16"); e("v_and_b32 v17, 2047, v17")
    af_addr(a, 18, 16, 22, 21); af_addr(a, 19, 17, 22, 21)
    e("v_cmp_gt_u32 vcc, 512, v0"); e("v_cndmask_b32 v18, v20, v18, vcc"); e("v_cndmask_b32 v19, v20, v19, vcc")
    e("s_lshl_b32 s20, s16, 8"); e("s_sub_u32 s22, 20224, s20")
    e(f"s_add_u32 s21, s20, {X1_OFF[layer]}"); e(f"s_add_u32 s23, s22, {X1_OFF[layer]}")
    sm.mark("issued")
    e("s_waitcnt vmcnt(4)")
    for q in range(4):
        e(f"v_mul_f32 v{8+q}, {1/640!r}, v{8+q}")
        e(f"v_mul_f32 v{12+q}, {1/640!r}, v{12+q}")
        e(f"v_fma_f32 v{12+q}, -v{8+q}, v{8+q}, v{12+q}")
        e(f"v_max_f32 v{12+q}, 0, v{12+q}")
        e(f"v_add_f32 v{12+q}, 0x3727c5ac, v{12+q}")
        e(f"v_rsq_f32 v{12+q}, v{12+q}")
    e("v_lshrrev_b32 v8, 4, v0"); e("v_mul_u32_u24 v8, 272, v8"); e("v_and_b32 v9, 15, v0"); e("v_lshl_add_u32 v8, v9, 4, v8")
    e("s_cmp_eq_u32 s18, 8"); e(f"s_cbranch_scc1 {name}_nor")
    e("ds_write_b128 v8, v[12:15]")
    a.label(f"{name}_nor")
    e("s_waitcnt lgkmcnt(0)"); e("s_barrier")
    sm.mark("rtab")
    data_loads(1)
    e("buffer_load_dwordx4 v[24:27], v18, s[12:15], s21 offen")
    e("buffer_load_dwordx4 v[28:31], v19, s[12:15], s23 offen")
    e("v_mul_u32_u24 v8, 272, v2"); e("v_lshl_add_u32 v8, v3, 5, v8")
    e(f"v_add_u32 v9, {TBL}, v5")
    RR = lambda T, st: 64 + (T*2+st)*8
    for T in range(2):
        for st in range(2):
            r = RR(T, st)
            e(f"ds_read_b128 v[{r}:{r+3}], v8 offset:{T*16*272 + st*128}")
            e(f"ds_read_b128 v[{r+4}:{r+7}], v8 offset:{T*16*272 + st*128 + 16}")
    for k in range(6): e(f"ds_read_b128 v[{96+4*k}:{99+4*k}], v9 offset:{k*1024}")
    W = lambda var, st: 96 + (var*2+st)*4
    ng = 0
    for T in range(2):
        for st in range(2):
            e(f"s_waitcnt vmcnt({2*(3-ng) + 2})" + (" lgkmcnt(6)" if ng == 0 else ""))
            if ng == 1:
                for k in range(8): e(f"ds_read_b128 v[{120+4*k}:{123+4*k}], v9 offset:{6144 + k*1024}")
            for ri in range(2):
                d = Xr(T, st, ri); r = RR(T, st)
                for q in range(4):
                    t0 = 20 + 2*(q & 1)
                    e(f"v_lshlrev_b32 v{t0}, 16, v{d+q}"); e(f"v_and_b32 v{t0+1}, s28, v{d+q}")
                    e(f"v_pk_mul_f32 v[{t0}:{t0+1}], v[{t0}:{t0+1}], v[{r+2*q}:{r+2*q+1}]")
                    e(f"v_cvt_pk_bf16_f32 v{d+q}, v{t0}, v{t0+1}")
            ng += 1
    sm.mark("scaled")
    e("s_waitcnt lgkmcnt(0)")
    G = lambda T, ri: 152 + (T*2+ri)*4
    def mf(d, A, B, first):
        c = "0" if first else f"v[{d}:{d+3}]"
        e(f"v_mfma_f32_16x16x32_bf16 v[{d}:{d+3}], v[{A}:{A+3}], v[{B}:{B+3}], {c}")
    for T in range(2):
        for st in range(2):
            mf(G(T,0), Xr(T,st,0), W(0,st), st == 0)
            mf(G(T,1), Xr(T,st,0), W(1,st), st == 0)
        for st in range(2):
            mf(G(T,0), Xr(T,st,1), W(2,st), False)
            mf(G(T,1), Xr(T,st,1), W(0,st), False)
    for T in range(2):
        for b in range(4):
            c, s = 120 + 4*T + b, 128 + 4*T + b
            gr, gi = G(T,0) + b, G(T,1) + b
            e(f"v_mul_f32 v{32+4*T+b}, v{gr}, v{c}"); e(f"v_mul_f32 v{40+4*T+b}, v{gi}, v{c}")
            e(f"v_fmac_f32 v{32+4*T+b}, v{gi}, v{s}"); e(f"v_fma_f32 v{40+4*T+b}, -v{gr}, v{s}, v{40+4*T+b}")
    for q in range(4):
        e(f"v_cvt_pk_bf16_f32 v{48+q}, v{32+2*q}, v{33+2*q}")
        e(f"v_cvt_pk_bf16_f32 v{52+q}, v{40+2*q}, v{41+2*q}")
    e("v_mul_u32_u24 v8, 33, v2"); e("v_lshl_add_u32 v8, v3, 2, v8"); e("v_mul_u32_u24 v8, 48, v8"); e("s_lshl_b32 s3, s18, 2"); e(f"s_add_u32 s3, s3, {YB}"); e("v_add_u32 v8, s3, v8")
    for T2 in range(2):
        mf(56 + 4*T2, 136 + 8*T2, 48, True)
    for T2 in range(2):
        mf(56 + 4*T2, 140 + 8*T2, 52, False)
    sm.mark("fft")
    for T2 in range(2):
        for b in range(4):
            e(f"ds_write_b32 v8, v{56+4*T2+b} offset:{768*T2 + 48*b}")
    e("s_waitcnt lgkmcnt(0)"); e("s_barrier")
    sm.mark("ybar")
    e("s_cmp_eq_u32 s18, 8"); e(f"s_cbranch_scc1 {name}_end")
    e("v_lshrrev_b32 v8, 5, v0"); e("v_mul_u32_u24 v8, 33, v8"); e("v_and_b32 v9, 31, v0"); e("v_add_u32 v8, v8, v9"); e("v_mul_u32_u24 v8, 48, v8")
    e(f"ds_read_b128 v[32:35], v8 offset:{YB}"); e(f"ds_read_b128 v[36:39], v8 offset:{YB+16}"); e(f"ds_read_b32 v64, v8 offset:{YB+32}")
    e("s_waitcnt vmcnt(0)")
    for q in range(4):
        e(f"v_lshlrev_b32 v{40+2*q}, 16, v{24+q}"); e(f"v_and_b32 v{41+2*q}, s28, v{24+q}")
        e(f"v_lshlrev_b32 v{48+2*q}, 16, v{28+q}"); e(f"v_and_b32 v{49+2*q}, s28, v{28+q}")
    e("s_waitcnt lgkmcnt(0)")
    for q in range(8):
        e(f"v_add_f32 v{40+q}, v{40+q}, v{32+q}")
        e(f"v_add_f32 v{48+q}, v{48+q}, v{64 if q == 0 else 40-q}")
    for q in range(4):
        e(f"v_cvt_pk_bf16_f32 v{56+q}, v{40+2*q}, v{41+2*q}")
        e(f"v_cvt_pk_bf16_f32 v{60+q}, v{48+2*q}, v{49+2*q}")
    if layer == 0:
        e(f"s_add_u32 s21, s20, {XIN_OFF[1]}"); e(f"s_add_u32 s23, s22, {XIN_OFF[1]}")
        e("buffer_store_dwordx4 v[56:59], v18, s[12:15], s21 offen sc1")
        e("buffer_store_dwordx4 v[60:63], v19, s[12:15], s23 offen sc1")
    else:
        e(f"s_mov_b32 s26, {ACT}"); e("s_mov_b32 s27, 0x20000")
        e("v_mul_u32_u24 v18, 1280, v16"); e("v_mul_u32_u24 v19, 1280, v17")
        e("s_lshl_b32 s20, s16, 4"); e("s_sub_u32 s22, 1264, s20")
        e("buffer_store_dwordx4 v[56:59], v18, s[24:27], s20 offen")
        e("buffer_store_dwordx4 v[60:63], v19, s[24:27], s22 offen")
    if stamps:
        sm.mark("stored"); e("s_waitcnt vmcnt(0)"); sm.mark("drain"); sm.flush(30, 31, 18)
    a.label(f"{name}_end")
    e("s_endpgm")
    gen_k3.names = sm.names
    return kernel_header(name) + a.text() + kernel_desc(name, 168, 0, 102 if stamps else 64)
K3_LDS = TBL + 14336
```

```python
from asm import *
from layout import *
from k1b import x_items, dma_item, w_items, emit_now
from kA import signal, wait_cnt, force
OOB = 0x40000000
TB = 40960
ROWP = 288
KVT = 77824
KVS = 83968
XB = 83968

def hoisted(a, layer):
    e = a.e
    e("v_lshrrev_b32 v238, 5, v1"); e(f"v_mul_u32_u24 v236, {AF_WT}, v238"); e("v_lshl_add_u32 v236, v2, 4, v236")
    e("v_and_b32 v8, 1, v3"); e("v_lshl_add_u32 v237, v8, 3, v236"); e("v_mul_u32_u24 v9, 768, v8"); e("v_add_u32 v236, v236, v9")
    e("s_mul_i32 s46, s17, 1280"); e("s_add_u32 s46, s46, s44")
    e("v_lshl_add_u32 v9, v238, 4, v2"); e("s_lshl_b32 s19, s18, 5"); e("v_add_u32 v9, s19, v9"); e(f"v_mul_u32_u24 v9, {ROWP}, v9"); e(f"v_add_u32 v9, {TB}, v9")
    e("v_mul_u32_u24 v10, 80, v8"); e("v_add_u32 v244, v9, v10")
    e("v_mul_u32_u24 v10, 48, v8"); e("v_add_u32 v245, v9, v10")
    e("v_lshrrev_b32 v9, 2, v2"); e("v_lshl_add_u32 v9, v3, 2, v9"); e(f"v_mul_u32_u24 v9, {ROWP}, v9"); e("v_and_b32 v10, 3, v1"); e("v_lshl_add_u32 v9, v10, 3, v9"); e(f"v_add_u32 v9, {TB}, v9")
    e("s_lshr_b32 s19, s18, 1"); e("s_and_b32 s23, s18, 1")
    e("s_mul_i32 s3, s19, 80"); e("v_add_u32 v246, s3, v9")
    e("s_mul_i32 s3, s19, 48"); e("s_lshl_b32 s33, s23, 5"); e("s_add_u32 s3, s3, s33"); e("s_add_u32 s3, s3, 160"); e("v_add_u32 v247, s3, v9")
    e("s_lshl_b32 s3, s23, 4"); e("v_add_u32 v9, s3, v2"); e("v_mul_u32_u24 v10, 80, v9"); e("v_lshl_add_u32 v10, v3, 3, v10")
    e("s_mul_i32 s3, s19, 1680"); e(f"s_add_u32 s3, s3, {KVS}"); e("v_add_u32 v10, s3, v10")
    e(f"v_mov_b32 v11, {KVS + 3520}"); e("v_cmp_ge_u32 vcc, 20, v9"); e("s_nop 1"); e("v_cndmask_b32 v248, v11, v10, vcc")
    e(f"v_mov_b32 v11, {KVS + 3520 - 64}"); e("v_cmp_gt_u32 vcc, 2, v3"); e("s_nop 1"); e("v_cndmask_b32 v249, v11, v248, vcc")
    e("v_lshlrev_b32 v9, 4, v0"); e(f"v_add_u32 v251, {KVS}, v9")
    e(f"v_mov_b32 v11, {OOB}"); e("v_cmp_gt_u32 vcc, 210, v0"); e("s_nop 1"); e("v_cndmask_b32 v250, v11, v9, vcc")
    e("s_lshl_b32 s3, s17, 4"); e("s_mul_i32 s61, s3, 3584"); e(f"s_add_u32 s61, s61, {KVP_OFF[layer]}")
    e("s_mul_i32 s56, s16, 3584"); e("s_add_u32 s56, s56, s61")
    e("v_cmp_le_u32 vcc, 105, v0"); e("s_nop 1"); e("v_cndmask_b32 v10, 0, 1, vcc"); e("v_mul_u32_u24 v10, 240, v10"); e("v_add_u32 v10, v10, v9"); e(f"v_add_u32 v252, {KVT}, v10")
    e("v_mul_u32_u24 v10, 1920, v8"); e("v_and_b32 v11, 3, v2"); e("v_mul_u32_u24 v11, 80, v11"); e("v_add_u32 v10, v10, v11")
    e("v_lshrrev_b32 v11, 2, v2"); e("v_cmp_eq_u32 vcc, v11, v3"); e("v_mov_b32 v11, 3840"); e("v_cndmask_b32 v10, v11, v10, vcc"); e(f"v_add_u32 v253, {KVT}, v10")
    e("v_lshlrev_b32 v10, 9, v238"); e("v_lshl_add_u32 v10, v8, 8, v10")
    e("v_lshrrev_b32 v11, 2, v2"); e("v_lshl_add_u32 v10, v11, 6, v10"); e("v_and_b32 v11, 3, v2"); e("v_lshl_add_u32 v10, v11, 2, v10")
    e("s_lshl_b32 s3, s18, 4"); e(f"s_add_u32 s3, s3, {XB}"); e("v_add_u32 v254, s3, v10")
    e(f"v_add_u32 v239, {XB}, v9")
    e("v_lshrrev_b32 v10, 4, v0"); e("v_lshlrev_b32 v10, 12, v10"); e("v_bfe_u32 v11, v0, 2, 2"); e("v_lshl_add_u32 v10, v11, 8, v10")
    e("v_and_b32 v11, 3, v0"); e("v_lshl_add_u32 v255, v11, 4, v10")
    e(f"v_mov_b32 v11, {OOB}"); e("v_cmp_gt_u32 vcc, 128, v0"); e("s_nop 1"); e("v_cndmask_b32 v243, v11, v255, vcc")
    e("s_lshr_b32 s19, s16, 1"); e("s_lshr_b32 s60, s19, 2"); e("s_lshl_b32 s60, s60, 11")
    e("s_and_b32 s3, s19, 3"); e("s_lshl_b32 s3, s3, 6"); e("s_add_u32 s60, s60, s3")
    e("s_and_b32 s23, s16, 1"); e("s_lshl_b32 s3, s23, 10"); e("s_add_u32 s60, s60, s3"); e("s_mul_i32 s3, s17, 163840"); e("s_add_u32 s60, s60, s3"); e(f"s_add_u32 s60, s60, {XF_OFF[layer]}")
    e("s_lshl_b32 s19, s19, 2"); e("s_add_u32 s19, s19, s18"); e("s_lshl_b32 s59, s19, 6"); e("s_lshl_b32 s3, s23, 5"); e("s_add_u32 s59, s59, s3"); e("s_lshl_b32 s59, s59, 2"); e(f"s_add_u32 s59, s59, {ST_OFF[layer]}")
    e("v_lshl_add_u32 v10, v2, 1, v238"); e("v_lshlrev_b32 v10, 2, v10"); e(f"v_mov_b32 v11, {OOB}"); e("v_cmp_eq_u32 vcc, 0, v8"); e("s_nop 1"); e("v_cndmask_b32 v242, v11, v10, vcc")
    for r in range(152, 156): e(f"v_mov_b32 v{r}, 0x3f803f80")
    e("v_and_b32 v8, 3, v2")
    e("v_cmp_eq_u32 s[24:25], 1, v8"); e("v_cmp_eq_u32 s[26:27], 2, v8"); e("v_cmp_eq_u32 s[28:29], 3, v8")
    e("v_lshrrev_b32 v9, 2, v2"); e("v_lshl_add_u32 v9, v9, 4, v2"); e("v_lshlrev_b32 v9, 2, v9")

def epiA_head(r):
    e = r.e
    e("v_permlane32_swap_b32 v136, v140")
    for tt in range(2):
        g0 = 144 + 4*tt
        e(f"v_cndmask_b32 v{g0}, v{g0}, v{g0+1}, s[24:25]")
        e(f"v_cndmask_b32 v{g0+2}, v{g0+2}, v{g0+3}, s[28:29]")
        e(f"v_cndmask_b32 v{g0+2}, v{g0}, v{g0+2}, s[22:23]")
    e("ds_bpermute_b32 v145, v9, v146"); e("ds_bpermute_b32 v149, v9, v150")
    for u in range(20): e(f"v_permlane32_swap_b32 v{56+u}, v{76+u}")
    r.mark("step")
    e("v_permlane32_swap_b32 v145, v149")
    e(f"v_mul_f32 v136, {1/640!r}, v136")
    e(f"v_mul_f32 v145, {1/640!r}, v145")
    e("v_fma_f32 v145, -v136, v136, v145")
    e("v_max_f32 v145, 0, v145")
    e("v_add_f32 v145, 0x3727c5ac, v145")
    e("v_rsq_f32 v8, v145")
    e("v_mov_b32 v206, 0x3f80"); e("v_mov_b32 v207, 0")
    e(f"v_mul_f32 v10, {LOG2E!r}, v8")
    for u in range(0, 20, 2): e(f"v_pk_mul_f32 v[{76+u}:{77+u}], v[{76+u}:{77+u}], v[8:9] op_sel_hi:[1,0]")
    for q in range(10): e(f"v_cvt_pk_bf16_f32 v{196+q}, v{76+2*q}, v{77+2*q}")
    for q in range(3): e(f"ds_write_b128 v245, v[{196+4*q}:{199+4*q}] offset:{160+16*q}")
    softmax_pair_pk(r, 56, 10, 156, 208, 176)
    for q in range(5): e(f"ds_write_b128 v244, v[{176+4*q}:{179+4*q}] offset:{16*q}")
def epiA_tail(r):
    e = r.e
    B = lambda nt, ks: (56 + 16*nt + 4*ks) if nt < 2 else (156 + 4*ks)
    for ks in range(4):
        e(f"ds_read_b64_tr_b16 v[{216+4*ks}:{217+4*ks}], v247 offset:{ks*32*ROWP}")
        e(f"ds_read_b64_tr_b16 v[{218+4*ks}:{219+4*ks}], v247 offset:{ks*32*ROWP + 16*ROWP}")
        for nt in range(3):
            b = B(nt, ks)
            e(f"ds_read_b64_tr_b16 v[{b}:{b+1}], v246 offset:{ks*32*ROWP + 32*nt}")
            e(f"ds_read_b64_tr_b16 v[{b+2}:{b+3}], v246 offset:{ks*32*ROWP + 16*ROWP + 32*nt}")
    r.mark("step")
    for ks in range(4):
        for nt in range(3):
            b = B(nt, ks); d = 176 + 4*nt
            c = "0" if ks == 0 else f"v[{d}:{d+3}]"
            e(f"v_mfma_f32_16x16x32_bf16 v[{d}:{d+3}], v[{b}:{b+3}], v[{216+4*ks}:{219+4*ks}], {c}")
    r.mark("step")
    for nt in range(3):
        d = 176 + 4*nt
        e(f"v_cvt_pk_bf16_f32 v{d}, v{d}, v{d+1}"); e(f"v_cvt_pk_bf16_f32 v{d+1}, v{d+2}, v{d+3}")
        e(f"ds_write_b64 v{249 if nt == 2 else 248}, v[{d}:{d+1}] offset:{32*nt}")
    r.mark("barrier")
    e("ds_read_b128 v[176:179], v251")
    r.mark("step")
    r.items.append(("VM", "buffer_store_dwordx4 v[176:179], v250, s[12:15], s56 offen sc1", "kvst", []))

def gen_kA(name, layer, stamps=False, LEAD=6, VMGAP=4, fine=False, SIGSTEP=13, WT=True, TAG=False, CLEAR1=False, LEAD5=6, EARLYW=False):
    a = Asm(); e = a.e; vm = VM(a); st = Stamps(a, stamps, 1 + 4*layer)
    e("s_cmp_ge_u32 s2, 256")
    e(f"s_cbranch_scc1 {name}_end")
    st.mark("start")
    if stamps: e("s_mov_b32 s57, 0"); e("s_mov_b32 s58, 0")
    e("s_load_dwordx2 s[30:31], s[0:1], 88")
    wg_to_rc(a, 16, 17, 19)
    e("v_and_b32 v1, 63, v0"); e("v_lshrrev_b32 v2, 6, v0")
    e("v_readfirstlane_b32 s18, v2")
    e("v_lshlrev_b32 v5, 4, v1")
    e("s_lshl_b32 s44, s16, 2"); e("s_add_u32 s44, s44, s18"); e(f"s_mul_i32 s44, s44, {2*AF_WT}")
    e(f"s_add_u32 s19, s44, {XIN_OFF[layer]}")
    e(f"s_mul_i32 s34, s17, {W1_C}")
    e("s_lshl_b32 s21, s18, 10")
    e("s_mov_b32 s20, 0"); e(f"s_mov_b32 s35, {AF_WT}")
    e(f"s_mov_b32 s6, {2*AF_WT}"); e("s_mov_b32 s7, 0x20000"); e(f"s_mov_b32 s10, {163840}"); e("s_mov_b32 s11, 0x20000")
    e("s_waitcnt lgkmcnt(0)")
    e("s_add_u32 s4, s30, s19"); e("s_addc_u32 s5, s31, 0")
    e("s_add_u32 s8, s30, s34"); e("s_addc_u32 s9, s31, 0")
    X = lambda tt, s: f"a[{(2*s+tt)*4}:{(2*s+tt)*4+3}]"
    tag = lambda s: f"s{s}"
    L = lambda s: w_items(s, 0, "s[8:11]", tag) + x_items(X, s)
    r = Rec()
    r.e("v_and_b32 v2, 15, v1"); r.e("v_lshrrev_b32 v3, 4, v1")
    r.e("v_add_u32 v6, 61440, v5"); r.e("v_add_u32 v7, 102400, v5")
    r.e("s_add_u32 s36, s8, 163840"); r.e("s_addc_u32 s37, s9, 0"); r.e("s_mov_b32 s38, 40960"); r.e("s_mov_b32 s39, 0x20000")
    srd(r, 12, 30, 31, 0, WS_USED)
    r.e(f"s_mul_i32 s34, s17, {W2_C}"); r.e(f"s_add_u32 s34, s34, {W2_OFF - 102400}")
    r.e("s_add_u32 s48, s30, s34"); r.e("s_addc_u32 s49, s31, 0"); r.e("s_mov_b32 s50, 163840"); r.e("s_mov_b32 s51, 0x20000")
    r.e("s_add_u32 s52, s48, 163840"); r.e("s_addc_u32 s53, s49, 0"); r.e("s_mov_b32 s54, 40960"); r.e("s_mov_b32 s55, 0x20000")
    hoisted(r, layer)
    r.e("v_and_b32 v8, 2, v2"); r.e("v_cmp_eq_u32 s[22:23], 2, v8")
    r.e(f"s_lshl_b32 s45, s17, 7"); r.e(f"s_add_u32 s45, s45, {CNT_OFF + layer*4096}")
    setup = [i for i in r.items if not i.startswith("s_nop")]
    loads = []
    for s in range(LEAD): loads += L(s)
    nvm = sum(isinstance(i, tuple) for i in loads); per = -(-len(setup) // max(1, nvm - 2)); k = 0
    scc_busy = False
    for it in loads:
        if isinstance(it, tuple):
            vm.issue(it[1], it[2]); k += 1
            if k > 2:
                n = 0
                while setup and (n < per or setup[0].startswith("s_addc") or setup[0].startswith("s_cselect")):
                    e(setup.pop(0)); n += 1
        else: e(it)
    for it in setup: e(it)
    sideA = Side(a, vm, VMGAP)
    for s in range(LEAD, 20): sideA.add(L(s))
    for s in range(12): sideA.add(w_items(s, 102400, "s[8:11]", lambda s: f"p{s//4}"))
    if not fine: st.mark("issued")
    vm.wait("s0"); e("s_barrier")
    accA = lambda tt, T: 56 + 20*tt + 4*T
    accB = lambda tt, T: 96 + 20*tt + 4*T
    def lds0(s, T):
        off = (s*5+T)*1024
        return (5, off) if s < 12 else (6, off - 61440)
    def pre0(s):
        if s + 1 < 20:
            force(sideA, vm, f"s{s+1}")
            if f"s{s+1}" in vm.q: vm.wait(f"s{s+1}")
            e("s_barrier")
    def extra0(s):
        out = []
        for tt in range(2):
            c0 = "0" if s == 0 else f"v[{136+4*tt}:{139+4*tt}]"
            c1 = "0" if s == 0 else f"v[{144+4*tt}:{147+4*tt}]"
            out.append(f"v_mfma_f32_16x16x32_bf16 v[{136+4*tt}:{139+4*tt}], v[152:155], {X(tt,s)}, {c0}")
            out.append(f"v_mfma_f32_16x16x32_bf16 v[{144+4*tt}:{147+4*tt}], {X(tt,s)}, {X(tt,s)}, {c1}")
        return out
    gemm2(a, 20, lds0, accA, (16, 36), X, True, [sideA], extra0, pre0)
    st.mark("passA")
    e("s_barrier")
    pend = list(sideA.q)
    r = Rec(); epiA_head(r)
    for i, it in enumerate(r.items):
        if isinstance(it, tuple): e("s_waitcnt lgkmcnt(0)")
        else: e(it)
        if i % 14 == 13 and pend:
            while pend:
                p = pend.pop(0)
                if isinstance(p, tuple): vm.issue(p[1], p[2]); break
                e(p)
    emit_now(a, vm, pend)
    for q in range(4): e(f"v_mov_b32 v{232+q}, 0")
    e(f"v_add_u32 v8, {KVT + 3840 - KVS}, v251")
    e("v_cmp_gt_u32 vcc, 128, v0"); e("s_and_saveexec_b64 s[40:41], vcc")
    e("ds_write_b128 v8, v[232:235]")
    e("s_mov_b64 exec, s[40:41]")
    e("s_waitcnt lgkmcnt(0)")
    vm.wait("p0"); e("s_barrier")
    st.mark("epiAhead")
    sideB = Side(a, vm, VMGAP); sideW = Side(a, vm, VMGAP)
    r = Rec(); epiA_tail(r); sideB.add(r.items)
    for s in range(12, 20): sideW.add(w_items(s, -61440, "s[36:39]", lambda s: f"p{s//4}"))
    if TAG:
        for q in range(4): e(f"v_mov_b32 v{232+q}, -1")
        e(f"s_add_u32 s47, s46, {O_OFF[layer]}")
        sideW.q = [("VM", "buffer_store_dwordx4 v[232:235], v236, s[12:15], s47 offen sc1", "clr", []),
                   ("VM", "buffer_store_dwordx4 v[232:235], v236, s[12:15], s47 offen offset:256 sc1", "clr", []),
                   ("VM", "buffer_store_dwordx2 v[232:233], v237, s[12:15], s47 offen offset:512 sc1", "clr", [])] + sideW.q
    def lds1(s, T):
        off = (s*5+T)*1024
        return (7, off) if s < 12 else (5, off - 61440)
    state = {"sig": False}
    def pre1(s):
        if fine and s in (3, 6, 9, 12, 16): st.mark(f"B{s}")
        if s % 4 == 3 and s < 19:
            t = f"p{(s+1)//4}"
            force(sideW, vm, t)
            if t in vm.q: vm.wait(t)
            e("s_barrier")
        if s == 12:
            e("s_barrier")
            for s2 in range(12): sideW.add(w_items(s2, 102400, "s[48:51]", lambda s: f"w{s//4}"))
        if s == SIGSTEP:
            assert "kvst" in vm.q and not sideB.q, (vm.q, sideB.q)
            assert not any(isinstance(i, tuple) and i[2] == "clr" for i in sideW.q)
            vm.wait("kvst")
            if "clr" in vm.q: vm.wait("clr")
            signal(a, "s45", f"{name}_sig1"); state["sig"] = True
    gemm2(a, 20, lds1, accB, (16, 36), X, True, [sideB, sideW], None, pre1)
    sideB.flush()
    assert state["sig"]
    st.mark("passB")
    wait_cnt(a, "s45", 16, f"{name}_w1")
    st.mark("kvwait")
    KP = lambda R: (56 + 4*R) if R < 10 else (216 + 4*(R-10)) if R < 14 else (136 + 4*(R-14))
    pend = []
    for R in range(16):
        pend.append(("VM", f"buffer_load_dwordx4 v[{KP(R)}:{KP(R)+3}], v250, s[12:15], s61 offen sc1", "kp"))
        if R < 15: pend.append("s_add_u32 s61, s61, 3584")
    vm.q = []
    later = list(sideW.q) + [f"s_add_u32 s3, s46, {XIN_OFF[layer]}",
             ("VM", "buffer_load_dwordx4 v[224:227], v236, s[12:15], s3 offen", "res", []),
             ("VM", "buffer_load_dwordx4 v[228:231], v236, s[12:15], s3 offen offset:256", "res", []),
             ("VM", "buffer_load_dwordx2 v[232:233], v237, s[12:15], s3 offen offset:512", "res", [])]
    if TAG:
        later += ["v_and_b32 v234, 15, v1", "v_lshlrev_b32 v234, 7, v234", f"s_mov_b32 s47, {CNT_OFF + layer*4096}",
                  ("VM", "buffer_load_dword v235, v234, s[12:15], s47 offen sc1", "res", [])]
    r = Rec()
    for u in range(20): r.e(f"v_permlane32_swap_b32 v{96+u}, v{116+u}")
    softmax_pair_pk(r, 96, 10, 156, 208, 176)
    for i, it in enumerate(r.items):
        e(it)
        if i % 9 == 0 and pend:
            while pend:
                p = pend.pop(0)
                if isinstance(p, tuple): vm.issue(p[1], p[2]); break
                e(p)
    emit_now(a, vm, pend)
    st.mark("epiB")
    e("v_mov_b32 v12, 0x3f80"); e("v_mov_b32 v13, 0x3f800000")
    for q in range(8): e(f"v_mov_b32 v{196+q}, 0")
    done = -1
    for R in range(16):
        if R % 4 == 0:
            e(f"s_waitcnt vmcnt({12 - R})")
        for q in range(4):
            e(f"v_dot2c_f32_bf16 v{196+2*q}, v{KP(R)+q}, v12"); e(f"v_dot2c_f32_bf16 v{197+2*q}, v{KP(R)+q}, v13")
    vm.q = []
    for q in range(4): e(f"v_cvt_pk_bf16_f32 v{196+q}, v{196+2*q}, v{197+2*q}")
    e("v_cmp_gt_u32 vcc, 210, v0"); e("s_and_saveexec_b64 s[40:41], vcc")
    e("ds_write_b128 v252, v[196:199]")
    e("s_mov_b64 exec, s[40:41]")
    lateW = []
    for s2 in range(12, 20): lateW += w_items(s2, -61440, "s[52:55]", lambda s: f"w{s//4}")
    emit_now(a, vm, later)
    if EARLYW: emit_now(a, vm, lateW); lateW = []
    e("s_waitcnt lgkmcnt(0)"); e("s_barrier")
    if not fine: st.mark("kvsum")
    order = [5, 0, 1, 2, 3, 4]
    def t4read(i):
        for ch in range(5):
            rr = (16, 36)[i & 1] + 4*ch
            e(f"ds_read_b128 v[{rr}:{rr+3}], v253 offset:{order[i]*320 + ch*16}")
    t4read(0)
    for i, Tp in enumerate(order):
        if i + 1 < 6:
            t4read(i + 1); e("s_waitcnt lgkmcnt(5)")
        else: e("s_waitcnt lgkmcnt(0)")
        d = 56 + 4*Tp
        for ch in range(5):
            rr = (16, 36)[i & 1] + 4*ch
            c = "0" if ch == 0 else f"v[{d}:{d+3}]"
            e(f"v_mfma_f32_16x16x32_bf16 v[{d}:{d+3}], v[{rr}:{rr+3}], v[{176+4*ch}:{179+4*ch}], {c}")
        if i == 2:
            e("v_add_f32 v76, 0x358637bd, v76"); e("v_rcp_f32 v80, v76")
    for u in range(0, 20, 2): e(f"v_pk_mul_f32 v[{56+u}:{57+u}], v[{56+u}:{57+u}], v[80:81] op_sel_hi:[1,0]")
    for q in range(10): e(f"v_cvt_pk_bf16_f32 v{156+q}, v{56+2*q}, v{57+2*q}")
    e(f"s_add_u32 s3, s46, {O_OFF[layer]}")
    vm.issue("buffer_store_dwordx4 v[156:159], v236, s[12:15], s3 offen sc1", "ost")
    vm.issue("buffer_store_dwordx4 v[160:163], v236, s[12:15], s3 offen offset:256 sc1", "ost")
    vm.issue("buffer_store_dwordx2 v[164:165], v237, s[12:15], s3 offen offset:512 sc1", "ost")
    st.mark("T4")
    vm.wait("res")
    for q in range(10):
        e(f"v_lshlrev_b32 v{96+2*q}, 16, v{224+q}")
        e(f"v_and_b32 v{97+2*q}, 0xffff0000, v{224+q}")
    for u in range(20): e(f"v_permlane32_swap_b32 v{96+u}, v{116+u}")
    if not TAG:
        e("s_waitcnt vmcnt(0)")
        e(f"s_lshl_b32 s45, s16, 7"); e(f"s_add_u32 s45, s45, {CNT_OFF + layer*4096 + 2048}")
        signal(a, "s45", f"{name}_sig2")
        emit_now(a, vm, lateW)
        e("s_waitcnt vmcnt(0)")
        wait_cnt(a, "s45", 16, f"{name}_w2")
        vm.q = []
    else:
        e("s_waitcnt vmcnt(3)"); e("s_barrier")
        vm.q = ["ost"] * 3
        e("v_cmp_gt_u32 vcc, 16, v235"); e(f"s_cbranch_vccnz {name}_gw")
        a.label(f"{name}_gwd")
        emit_now(a, vm, lateW)
    st.mark("owait")
    e(f"s_add_u32 s19, s44, {O_OFF[layer]}")
    e("s_add_u32 s4, s30, s19"); e("s_addc_u32 s5, s31, 0")
    e("s_mov_b32 s20, 0"); e(f"s_mov_b32 s35, {AF_WT}")
    for s in range(LEAD5): emit_now(a, vm, x_items(X, s, extra=" sc1"))
    sideO = Side(a, vm, VMGAP)
    for s in range(LEAD5, 20): sideO.add(x_items(X, s, extra=" sc1"))
    stubs = []
    def check_items(s):
        b0, b1 = (2*s)*4, (2*s+1)*4
        return [f"v_accvgpr_read_b32 v8, a{b0}", f"v_accvgpr_read_b32 v9, a{b0+2}", f"v_accvgpr_read_b32 v10, a{b1}", f"v_accvgpr_read_b32 v11, a{b1+2}",
                "v_max_u32 v8, v8, v9", "v_max3_u32 v8, v8, v10, v11", "v_cmp_eq_u32 vcc, -1, v8"]
    def branch(s):
        e(f"s_cbranch_vccnz {name}_rt{s}")
        a.label(f"{name}_c{s}")
        pendt = {i[2] for i in sideO.q if isinstance(i, tuple) and i[0] == "VM"}
        stubs.append((s, [s2 for s2 in range(s, 20) if f"s{s2}" not in pendt]))
    sideC = Side(a, vm, VMGAP)
    vm.wait("s0")
    if TAG:
        for it in check_items(0): e(it)
        branch(0)
    def pre5(s):
        if s == 11: e("s_barrier")
        if TAG:
            if s > 0:
                sideC.flush(); branch(s)
        elif s + 1 < 20:
            force(sideO, vm, f"s{s+1}")
            if f"s{s+1}" in vm.q: vm.wait(f"s{s+1}")
    def mid5(s, i):
        if TAG and i == 4 and s + 1 < 20:
            force(sideO, vm, f"s{s+1}")
            if f"s{s+1}" in vm.q: vm.wait(f"s{s+1}")
            sideC.add(check_items(s + 1))
    gemm2(a, 20, lds1, accB, (16, 36), X, False, [sideC, sideO], None, pre5, mid=mid5)
    st.mark("T5")
    wt = " sc1" if WT else ""
    for u in range(20): e(f"v_cvt_pk_bf16_f32 v{56+u}, v{96+u}, v{116+u}")
    for u in range(20): e(f"v_permlane32_swap_b32 v{96+u}, v{116+u}")
    e("v_pk_mul_f32 v[138:139], v[96:97], v[96:97]"); e("v_pk_add_f32 v[136:137], v[96:97], v[98:99]"); e("v_pk_fma_f32 v[138:139], v[98:99], v[98:99], v[138:139]")
    for u in range(4, 20, 2):
        e(f"v_pk_add_f32 v[136:137], v[136:137], v[{96+u}:{97+u}]"); e(f"v_pk_fma_f32 v[138:139], v[{96+u}:{97+u}], v[{96+u}:{97+u}], v[138:139]")
    e("v_add_f32 v136, v136, v137"); e("v_add_f32 v138, v138, v139")
    e("v_mov_b32 v140, v136"); e("v_mov_b32 v141, v138"); e("s_add_u32 s34, s59, 8192")
    e("v_permlane16_swap_b32 v136, v140"); e("v_permlane16_swap_b32 v138, v141")
    e("v_add_f32 v136, v136, v140"); e("v_add_f32 v138, v138, v141")
    e("buffer_atomic_add_f32 v136, v242, s[12:15], s59 offen")
    e("buffer_atomic_add_f32 v138, v242, s[12:15], s34 offen")
    for q in range(10): e(f"v_cvt_pk_bf16_f32 v{156+q}, v{96+2*q}, v{97+2*q}")
    e(f"s_add_u32 s3, s46, {X1_OFF[layer]}")
    e("buffer_store_dwordx4 v[156:159], v236, s[12:15], s3 offen" + wt)
    e("buffer_store_dwordx4 v[160:163], v236, s[12:15], s3 offen offset:256" + wt)
    e("buffer_store_dwordx2 v[164:165], v237, s[12:15], s3 offen offset:512" + wt)
    for u in range(0, 20, 2): e(f"v_permlane32_swap_b32 v{56+u}, v{57+u}")
    for u in range(0, 20, 2): e(f"ds_write_b32 v254, v{57+u} offset:{u*512}")
    e("s_waitcnt lgkmcnt(0)"); e("s_barrier")
    for rr in range(3): e(f"ds_read_b128 v[{76+4*rr}:{79+4*rr}], v239 offset:{4096*rr}")
    e("s_waitcnt lgkmcnt(2)")
    e("buffer_store_dwordx4 v[76:79], v255, s[12:15], s60 offen" + wt)
    e("s_add_u32 s60, s60, 65536"); e("s_waitcnt lgkmcnt(1)")
    e("buffer_store_dwordx4 v[80:83], v255, s[12:15], s60 offen" + wt)
    e("s_add_u32 s60, s60, 65536"); e("s_waitcnt lgkmcnt(0)")
    e("buffer_store_dwordx4 v[84:87], v243, s[12:15], s60 offen" + wt)
    if not fine: st.mark("epi5")
    if stamps: e("s_waitcnt vmcnt(0)"); st.mark("drain")
    st.extra = ["s57", "s58"]
    st.flush(30, 31, 18)
    a.label(f"{name}_end")
    e("s_endpgm")
    if TAG:
        a.label(f"{name}_gw")
        e(f"s_mov_b32 s42, {1 << 16}"); e(f"s_mov_b32 s47, {CNT_OFF + layer*4096}")
        a.label(f"{name}_gwl")
        e("buffer_load_dword v235, v234, s[12:15], s47 offen sc1"); e("s_waitcnt vmcnt(0)")
        e("v_cmp_gt_u32 vcc, 16, v235"); e(f"s_cbranch_vccz {name}_gwd")
        e("s_sub_u32 s42, s42, 1"); e("s_cmp_lg_u32 s42, 0"); e(f"s_cbranch_scc1 {name}_gwl")
        e(f"s_branch {name}_gwd")
    for s, lst in stubs:
        a.label(f"{name}_rt{s}")
        e(f"s_mov_b32 s42, {1 << 14}")
        a.label(f"{name}_rl{s}")
        if stamps: e(f"s_add_u32 s57, s57, 1"); e(f"s_or_b32 s58, s58, {1 << s}")
        e("s_waitcnt vmcnt(0)")
        for s2 in lst:
            e(f"s_mov_b32 s47, {s2*1024}"); e(f"s_mov_b32 s43, {AF_WT + s2*1024}")
            e(f"buffer_load_dwordx4 {X(0,s2)}, v5, s[4:7], s47 offen sc1")
            e(f"buffer_load_dwordx4 {X(1,s2)}, v5, s[4:7], s43 offen sc1")
        e("s_waitcnt vmcnt(0)")
        for it in check_items(s): e(it)
        e(f"s_cbranch_vccz {name}_c{s}")
        e("s_sub_u32 s42, s42, 1"); e("s_cmp_lg_u32 s42, 0"); e(f"s_cbranch_scc1 {name}_rl{s}")
        e(f"s_branch {name}_c{s}")
    gen_kA.names = st.names
    return kernel_header(name) + a.text() + kernel_desc(name, 256, 160, 102 if stamps else 64)
```

```python
import sys; sys.path.insert(0,'gen')
from gen_all import *
from k0 import gen_k0, K0_LDS
import kA2
from k3 import gen_k3, K3_LDS
def build_v8(out, stamps=False, tag=(True, True), k0kw={}, lm=(False, True), **kw):
    launches = [("k0_kernel", 256, 256, K0_LDS)]
    bodies = [gen_k0("k0_kernel", 65536, stamps, **k0kw)]
    for L in range(2):
        launches += [(f"kAl{L}_kernel", 256, 256, 163840), (f"k3l{L}_kernel", 256 if lm[L] else 160, 576, K3_LDS)]
        bodies += [kA2.gen_kA(f"kAl{L}_kernel", L, stamps, TAG=tag[L], CLEAR1=tag[1], **kw), gen_k3(f"k3l{L}_kernel", L, stamps, linemap=lm[L])]
    print(assemble(launches, bodies, out), ",".join(kA2.gen_kA.names))
if __name__ == "__main__":
    build_v8("v10.s")
    build_v8("v10s.s", True)
    build_v8("v10s_00.s", True, tag=(False, False))
```

```python
import re

TRANS = ("v_exp_f32", "v_log_f32", "v_rcp_f32", "v_rsq_f32", "v_sqrt_f32", "v_sin_f32", "v_cos_f32", "v_rcp_iflag_f32")
REG_RE = re.compile(r"(?<![\w.])([vas])(\d+)(?![\w\[])|(?<![\w.])([vas])\[(\d+):(\d+)\]|(?<![\w.])(vcc|exec|m0|scc)(_lo|_hi)?(?![\w])")

def regs_of(tok):
    out = []
    for m in REG_RE.finditer(tok):
        if m.group(1): out.append((m.group(1), int(m.group(2))))
        elif m.group(3):
            for i in range(int(m.group(4)), int(m.group(5)) + 1): out.append((m.group(3), i))
        else:
            nm = m.group(6)
            if nm == "vcc":
                if m.group(7) == "_lo": out.append(("s", 106))
                elif m.group(7) == "_hi": out.append(("s", 107))
                else: out += [("s", 106), ("s", 107)]
            elif nm == "exec": out += [("x", 0)]
            elif nm == "m0": out.append(("m", 0))
    return out

def split_ops(s):
    ops, depth, cur = [], 0, ""
    for ch in s:
        if ch == "[" or ch == "(": depth += 1
        if ch == "]" or ch == ")": depth -= 1
        if ch == "," and depth == 0: ops.append(cur.strip()); cur = ""
        else: cur += ch
    if cur.strip(): ops.append(cur.strip())
    return ops

class Inst:
    __slots__ = ("text", "op", "cls", "wr", "rd", "states", "passes", "srcc", "store_data", "isdpp", "lds_dma", "mask_rd", "sgpr_valu_wr", "ab")
    def __init__(self, text):
        self.text = text
        t = text.split(";")[0].strip()
        parts = t.split(None, 1)
        self.op = op = parts[0]
        rest = parts[1] if len(parts) > 1 else ""
        ops = split_ops(rest)
        self.wr, self.rd = [], []
        self.states = 1; self.passes = 0; self.srcc = []; self.store_data = []; self.ab = []
        self.isdpp = ("row_" in rest or "quad_perm" in rest or "wave_" in rest or "dpp" in op)
        self.lds_dma = False; self.mask_rd = []; self.sgpr_valu_wr = []
        R = lambda i: regs_of(ops[i].split(" ")[0] if i == len(ops) - 1 else ops[i]) if i < len(ops) else []
        if op == "s_nop":
            self.cls = "nop"; self.states = int(ops[0], 0) + 1
        elif op.startswith("v_mfma"):
            self.cls = "mfma"; self.wr = R(0); self.ab = R(1) + R(2); self.srcc = R(3); self.rd = self.ab + self.srcc
            self.passes = 8 if "32x32" in op else 4
        elif op.startswith("v_"):
            self.cls = "trans" if op.replace("_e32", "").replace("_e64", "") in TRANS else "valu"
            base = op.replace("_e32", "").replace("_e64", "")
            if base.startswith("v_cmp"):
                self.wr = R(0); self.rd = R(1) + R(2)
            elif base.startswith("v_permlane") and "swap" in base:
                self.wr = R(0) + R(1); self.rd = R(0) + R(1)
            elif base in ("v_readfirstlane_b32", "v_readlane_b32"):
                self.wr = R(0); self.rd = sum((R(i) for i in range(1, len(ops))), [])
            elif base in ("v_add_co_u32", "v_sub_co_u32", "v_addc_co_u32", "v_subb_co_u32", "v_mad_u64_u32"):
                self.wr = R(0) + R(1); self.rd = sum((R(i) for i in range(2, len(ops))), [])
            else:
                self.wr = R(0); self.rd = sum((R(i) for i in range(1, len(ops))), [])
                if base.startswith("v_fmac") or base.startswith("v_pk_fmac") or base.startswith("v_dot2c") or base in ("v_writelane_b32",): self.rd += R(0)
                if base == "v_cndmask_b32":
                    if len(ops) == 3: self.rd += [("s", 106), ("s", 107)]; self.mask_rd = [("s", 106), ("s", 107)]
                    else: self.mask_rd = R(3)
            self.sgpr_valu_wr = [r for r in self.wr if r[0] == "s"]
        elif op.startswith("ds_"):
            self.cls = "ds"
            if op.startswith("ds_read") or op.startswith("ds_bpermute") or op.startswith("ds_permute") or op.startswith("ds_swizzle"):
                self.wr = R(0); self.rd = sum((R(i) for i in range(1, len(ops))), [])
            else:
                self.rd = sum((R(i) for i in range(len(ops))), [])
        elif op.startswith("buffer_") or op.startswith("global_"):
            self.cls = "vmem"
            words = rest.replace(",", " ").split()
            islds = ("lds" in words) or ("_lds_" in op)
            allr = sum((R(i) for i in range(len(ops))), [])
            if op in ("buffer_wbl2", "buffer_inv"): pass
            elif islds:
                self.lds_dma = True; self.rd = allr + [("m", 0)]
            elif "_load" in op:
                self.wr = R(0); self.rd = sum((R(i) for i in range(1, len(ops))), [])
            elif "_store" in op:
                self.rd = allr
                d = R(0) if op.startswith("buffer_") else R(1)
                if "x4" in op or "x3" in op: self.store_data = d
            elif "_atomic" in op:
                self.rd = allr
                if "sc0" in words: self.wr = R(0)
        elif op.startswith("s_"):
            self.cls = "salu"
            if op.startswith(("s_waitcnt", "s_barrier", "s_branch", "s_cbranch", "s_endpgm", "s_setprio", "s_sleep")):
                self.cls = "sctl"
            elif op.startswith("s_cmp"):
                self.rd = sum((R(i) for i in range(len(ops))), [])
            elif op.startswith("s_load") or op.startswith("s_memtime") or op.startswith("s_memrealtime") or op.startswith("s_getreg") or op.startswith("s_getpc"):
                self.wr = R(0); self.rd = sum((R(i) for i in range(1, len(ops))), [])
            else:
                self.wr = R(0); self.rd = sum((R(i) for i in range(1, len(ops))), [])
                if "saveexec" in op: self.wr += [("x", 0)]
        else:
            raise ValueError("unknown instruction: " + text)

def need(prod, cons):
    n = 0
    pw = set(prod.wr);
    isvalu = lambda i: i.cls in ("valu", "trans")
    crd = set(cons.rd); cwr = set(cons.wr)
    if isvalu(prod):
        vw = {r for r in pw if r[0] in "va"}
        if vw & crd:
            if cons.cls == "mfma": n = max(n, 2)
            if cons.op.startswith("v_permlane"): n = max(n, 2)
            if cons.op.startswith(("v_readlane", "v_readfirstlane")): n = max(n, 1)
            if cons.isdpp: n = max(n, 2)
            if prod.cls == "trans" and cons.cls != "trans": n = max(n, 1)
        sw = {r for r in pw if r[0] == "s"}
        if sw & crd:
            if cons.cls == "vmem": n = max(n, 5)
            elif cons.op.startswith(("v_readlane", "v_writelane")): n = max(n, 4)
            elif isvalu(cons) or cons.cls == "mfma": n = max(n, 2)
            elif cons.cls in ("salu",): n = max(n, 1)
    if prod.cls == "mfma":
        p = prod.passes
        d = set(prod.wr)
        if cons.cls == "mfma":
            if d & set(cons.ab): n = max(n, 8 if p == 4 else 12)
            c = set(cons.srcc)
            if d & c and not (c == d and cons.passes == p): n = max(n, 6 if p == 4 else 10)
            if d & cwr and not (d & c): n = max(n, 6 if p == 4 else 10)
        else:
            if d & (crd | cwr): n = max(n, 8 if p == 4 else 12)
        if isvalu(cons) and set(prod.srcc) & cwr: n = max(n, 3 if p == 4 else 7)
    if prod.cls == "salu" and ("m", 0) in pw and cons.lds_dma: n = max(n, 1)
    if prod.store_data and set(prod.store_data) & cwr:
        n = max(n, 2 if isvalu(cons) or cons.cls == "mfma" else 1)
    return n

class Asm:
    def __init__(self):
        self.out = []
        self.hist = []
        self.nops = 0
        self.nds = 0
    def raw(self, s): self.out.append(s)
    def label(self, name):
        self.out.append(name + ":")
    def e(self, text):
        for line in text.split("\n"):
            line = line.strip()
            if not line or line.startswith(";"): continue
            if line.endswith(":"): self.label(line[:-1]); continue
            ins = Inst(line)
            mo = re.search(r"offset:(-?\d+)", line)
            if mo:
                ov = int(mo.group(1))
                if ins.op.startswith("buffer_"): assert 0 <= ov <= 4095, line
                elif ins.op.startswith("global_"): assert -4096 <= ov <= 4095, line
                elif ins.op.startswith("ds_"): assert 0 <= ov <= 65535, line
            req = 0; dist = 0
            for p in reversed(self.hist):
                k = need(p, ins)
                if k > dist: req = max(req, k - dist)
                dist += p.states
                if dist >= 12: break
            if req > 0 and ins.cls != "nop":
                nop = Inst(f"s_nop {req-1}")
                self.out.append("    " + nop.text); self.hist.append(nop); self.nops += 1
            self.out.append("    " + line)
            if ins.cls == "ds": self.nds += 1
            self.hist.append(ins)
            if len(self.hist) > 24: self.hist = self.hist[-24:]
    def text(self): return "\n".join(self.out) + "\n"

def kernel_header(name):
    return f".text\n.globl {name}\n.p2align 8\n.type {name},@function\n{name}:\n"
def kernel_desc(name, vgpr, agpr=0, sgpr=100):
    acc = (vgpr + 3) // 4 * 4
    nfv = acc + agpr if agpr else vgpr
    return f""".section .rodata,"a"
.p2align 6
.amdhsa_kernel {name}
  .amdhsa_next_free_vgpr {nfv}
  .amdhsa_next_free_sgpr {sgpr}
  .amdhsa_accum_offset {acc}
  .amdhsa_group_segment_fixed_size 0
  .amdhsa_kernarg_size 96
  .amdhsa_user_sgpr_count 2
  .amdhsa_user_sgpr_kernarg_segment_ptr 1
  .amdhsa_system_sgpr_workgroup_id_x 1
  .amdhsa_float_denorm_mode_32 3
.end_amdhsa_kernel
"""

class VM:
    def __init__(self, a): self.a = a; self.q = []
    def issue(self, text, tag):
        self.a.e(text); self.q.append(tag)
    def wait(self, tag, extra=""):
        idx = max(i for i, t in enumerate(self.q) if t == tag)
        n = len(self.q) - 1 - idx
        assert n <= 63, n
        self.a.e(f"s_waitcnt vmcnt({n}){extra}")
        self.q = self.q[idx+1:]
    def wait_all(self):
        self.a.e("s_waitcnt vmcnt(0)"); self.q = []

def srd(a, s, base_lo, base_hi, off, size):
    if isinstance(off, str):
        a.e(f"s_add_u32 s{s}, s{base_lo}, {off}"); a.e(f"s_addc_u32 s{s+1}, s{base_hi}, 0")
    elif off:
        a.e(f"s_add_u32 s{s}, s{base_lo}, {off}"); a.e(f"s_addc_u32 s{s+1}, s{base_hi}, 0")
    else:
        a.e(f"s_mov_b32 s{s}, s{base_lo}"); a.e(f"s_mov_b32 s{s+1}, s{base_hi}")
    a.e(f"s_mov_b32 s{s+2}, {size}")
    a.e(f"s_mov_b32 s{s+3}, 0x20000")

def wg_to_rc(a, sR, sC, tmp):
    e = a.e
    e(f"s_and_b32 s{tmp}, s2, 7"); e(f"s_lshr_b32 s{tmp+1}, s2, 3")
    e(f"s_lshr_b32 s{sR}, s{tmp}, 1"); e(f"s_lshl_b32 s{sR}, s{sR}, 2"); e(f"s_and_b32 s{sC}, s{tmp+1}, 3"); e(f"s_add_u32 s{sR}, s{sR}, s{sC}")
    e(f"s_and_b32 s{sC}, s{tmp}, 1"); e(f"s_lshl_b32 s{sC}, s{sC}, 3"); e(f"s_lshr_b32 s{tmp+1}, s{tmp+1}, 2"); e(f"s_add_u32 s{sC}, s{sC}, s{tmp+1}")

LOG2E = 1.4426950408889634

def softmax_pair(a, K, vC, Ep, tmp, P):
    e = a.e
    mx, mn, sp, sm = tmp, tmp + 1, tmp + 2, tmp + 3
    e(f"v_max3_f32 v{mx}, v{K[0]}, v{K[1]}, v{K[2]}")
    e(f"v_min3_f32 v{mn}, v{K[0]}, v{K[1]}, v{K[2]}")
    for u in range(3, 19, 2):
        e(f"v_max3_f32 v{mx}, v{mx}, v{K[u]}, v{K[u+1]}")
        e(f"v_min3_f32 v{mn}, v{mn}, v{K[u]}, v{K[u+1]}")
    e(f"v_max_f32 v{mx}, v{mx}, v{K[19]}")
    e(f"v_min_f32 v{mn}, v{mn}, v{K[19]}")
    e(f"v_mul_f32 v{mx}, v{vC}, v{mx}")
    e(f"v_mul_f32 v{mn}, v{vC}, v{mn}")
    for u in range(20):
        e(f"v_fma_f32 v{Ep+u}, v{K[u]}, v{vC}, -v{mx}")
        e(f"v_fma_f32 v{K[u]}, -v{K[u]}, v{vC}, v{mn}")
    for u in range(20):
        e(f"v_exp_f32 v{Ep+u}, v{Ep+u}")
        e(f"v_exp_f32 v{K[u]}, v{K[u]}")
    e(f"v_add_f32 v{sp}, v{Ep}, v{Ep+1}")
    e(f"v_add_f32 v{sm}, v{K[0]}, v{K[1]}")
    for u in range(2, 20):
        e(f"v_add_f32 v{sp}, v{sp}, v{Ep+u}")
        e(f"v_add_f32 v{sm}, v{sm}, v{K[u]}")
    e(f"v_rcp_f32 v{sp}, v{sp}")
    e(f"v_rcp_f32 v{sm}, v{sm}")
    for u in range(20):
        e(f"v_mul_f32 v{Ep+u}, v{sp}, v{Ep+u}")
        e(f"v_mul_f32 v{K[u]}, v{sm}, v{K[u]}")
    for q in range(10):
        e(f"v_cvt_pk_bf16_f32 v{P+q}, v{Ep+2*q}, v{Ep+2*q+1}")
        e(f"v_cvt_pk_bf16_f32 v{P+10+q}, v{K[2*q]}, v{K[2*q+1]}")

STAMP_OFF = 200 * 1024 * 1024
class Stamps:
    def __init__(self, a, on, kid): self.a = a; self.on = on; self.n = 0; self.kid = kid; self.names = []
    def mark(self, nm):
        if not self.on: return
        r = 70 + 2 * self.n; self.n += 1; self.names.append(nm)
        assert r + 1 <= 101
        if self.n == 1: self.a.e("s_memrealtime s[62:63]")
        self.a.e(f"s_memtime s[{r}:{r+1}]"); self.a.e("s_waitcnt lgkmcnt(0)")
    def flush(self, ws_lo, ws_hi, wave_sgpr):
        if not self.on: return
        e = self.a.e
        e("s_memrealtime s[68:69]"); e("s_waitcnt lgkmcnt(0)")
        e(f"s_cmp_lg_u32 s{wave_sgpr}, 0"); lab = f"Lstamp_{self.kid}"
        e(f"s_cbranch_scc1 {lab}")
        e(f"s_lshl_b32 s66, s2, 7"); e(f"s_add_u32 s66, s66, {STAMP_OFF + self.kid * 65536}")
        e(f"s_add_u32 s64, s{ws_lo}, s66"); e(f"s_addc_u32 s65, s{ws_hi}, 0")
        e("v_mov_b32 v160, 0")
        for i in range(self.n):
            e(f"v_mov_b32 v161, s{70+2*i}")
            e(f"global_store_dword v160, v161, s[64:65] offset:{4*i}")
        e("v_mov_b32 v161, s68"); e(f"global_store_dword v160, v161, s[64:65] offset:120")
        e("v_mov_b32 v161, s62"); e(f"global_store_dword v160, v161, s[64:65] offset:116")
        for k, r in enumerate(getattr(self, "extra", [])):
            e(f"v_mov_b32 v161, {r}"); e(f"global_store_dword v160, v161, s[64:65] offset:{112 - 4*k}")
        self.a.label(lab)

def softmax_pair_pk(a, K, vC, Ep, tmp, P):
    e = a.e
    assert K % 2 == 0 and Ep % 2 == 0 and tmp % 2 == 0 and vC % 2 == 0
    mx, mn, sp, sm = tmp, tmp + 2, tmp + 4, tmp + 6
    e(f"v_max3_f32 v{mx}, v{K}, v{K+1}, v{K+2}")
    e(f"v_min3_f32 v{mn}, v{K}, v{K+1}, v{K+2}")
    for u in range(3, 19, 2):
        e(f"v_max3_f32 v{mx}, v{mx}, v{K+u}, v{K+u+1}")
        e(f"v_min3_f32 v{mn}, v{mn}, v{K+u}, v{K+u+1}")
    e(f"v_max_f32 v{mx}, v{mx}, v{K+19}")
    e(f"v_min_f32 v{mn}, v{mn}, v{K+19}")
    e(f"v_mul_f32 v{mx}, v{vC}, v{mx}")
    e(f"v_mul_f32 v{mn}, v{vC}, v{mn}")
    for u in range(0, 20, 2):
        e(f"v_pk_fma_f32 v[{Ep+u}:{Ep+u+1}], v[{K+u}:{K+u+1}], v[{vC}:{vC+1}], v[{mx}:{mx+1}] op_sel_hi:[1,0,0] neg_lo:[0,0,1] neg_hi:[0,0,1]")
        e(f"v_pk_fma_f32 v[{K+u}:{K+u+1}], v[{K+u}:{K+u+1}], v[{vC}:{vC+1}], v[{mn}:{mn+1}] op_sel_hi:[1,0,0] neg_lo:[1,0,0] neg_hi:[1,0,0]")
    for u in range(20):
        e(f"v_exp_f32 v{Ep+u}, v{Ep+u}")
        e(f"v_exp_f32 v{K+u}, v{K+u}")
    e(f"v_pk_add_f32 v[{sp}:{sp+1}], v[{Ep}:{Ep+1}], v[{Ep+2}:{Ep+3}]")
    e(f"v_pk_add_f32 v[{sm}:{sm+1}], v[{K}:{K+1}], v[{K+2}:{K+3}]")
    for u in range(4, 20, 2):
        e(f"v_pk_add_f32 v[{sp}:{sp+1}], v[{sp}:{sp+1}], v[{Ep+u}:{Ep+u+1}]")
        e(f"v_pk_add_f32 v[{sm}:{sm+1}], v[{sm}:{sm+1}], v[{K+u}:{K+u+1}]")
    e(f"v_add_f32 v{sp}, v{sp}, v{sp+1}")
    e(f"v_add_f32 v{sm}, v{sm}, v{sm+1}")
    e(f"v_rcp_f32 v{sp}, v{sp}")
    e(f"v_rcp_f32 v{sm}, v{sm}")
    for u in range(0, 20, 2):
        e(f"v_pk_mul_f32 v[{Ep+u}:{Ep+u+1}], v[{Ep+u}:{Ep+u+1}], v[{sp}:{sp+1}] op_sel_hi:[1,0]")
        e(f"v_pk_mul_f32 v[{K+u}:{K+u+1}], v[{K+u}:{K+u+1}], v[{sm}:{sm+1}] op_sel_hi:[1,0]")
    for q in range(10):
        e(f"v_cvt_pk_bf16_f32 v{P+q}, v{Ep+2*q}, v{Ep+2*q+1}")
        e(f"v_cvt_pk_bf16_f32 v{P+10+q}, v{K+2*q}, v{K+2*q+1}")

class Rec:
    def __init__(self): self.items = []
    def e(self, text):
        for line in text.split("\n"):
            line = line.strip()
            if line and not line.startswith(";"): self.items.append(line)
    def mark(self, m): self.items.append(("MARK", m))

def slot_cost(line):
    op = line.split()[0]
    if op in TRANS or op.startswith("v_permlane"): return 2
    if op.startswith("v_mfma"): return 0
    return 1

class Side:
    def __init__(self, a, vm, vm_gap=4):
        self.a, self.vm, self.q, self.vm_gap = a, vm, [], vm_gap
        self.since_vm = 99; self.blocked = False; self.want_barrier = False; self.debt = False
    def add(self, items): self.q += list(items)
    def step_boundary(self):
        if self.want_barrier: self.a.e("s_barrier"); self.want_barrier = False
        self.blocked = False
    def fill(self, slots):
        self.since_vm += 1
        while self.q and slots > 0 and not self.blocked:
            it = self.q[0]
            if isinstance(it, tuple) and it[0] == "STAMP":
                self.q.pop(0); continue
            if isinstance(it, tuple) and it[0] == "MARK":
                self.q.pop(0); self.blocked = True
                if it[1] == "barrier": self.want_barrier = True
                continue
            if isinstance(it, tuple) and it[0] == "VM":
                if self.since_vm < self.vm_gap: return slots
                self.q.pop(0)
                for pre in it[3]: self.a.e(pre)
                self.vm.issue(it[1], it[2]); self.since_vm = 0; slots -= 1 + len(it[3]); continue
            c = slot_cost(it)
            if c > slots and slots < 2 and not self.debt: return slots
            self.q.pop(0); self.a.e(it); slots -= c
            if " m0," in it: return slots
        return slots
    def flush(self):
        while self.q:
            it = self.q.pop(0)
            if isinstance(it, tuple) and it[0] == "STAMP":
                if getattr(self, "st", None): self.st.mark(it[1])
                continue
            if isinstance(it, tuple) and it[0] == "MARK":
                self.a.e("s_waitcnt lgkmcnt(0)")
                if it[1] == "barrier": self.a.e("s_barrier")
            elif isinstance(it, tuple) and it[0] == "VM":
                for pre in it[3]: self.a.e(pre)
                self.vm.issue(it[1], it[2])
            else: self.a.e(it)
        if self.want_barrier: self.a.e("s_waitcnt lgkmcnt(0)"); self.a.e("s_barrier"); self.want_barrier = False
        self.blocked = False

def gemm2(a, nsteps, lds_of, acc, abuf, xreg, first_zero, sides, extra=None, pre=None, slots=2, mid=None, counted=True, c0=None):
    e = a.e
    def read(s, T):
        vb, imm = lds_of(s, T); r = abuf[s & 1] + 4 * T
        e(f"ds_read_b128 v[{r}:{r+3}], v{vb} offset:{imm}")
    for T in range(5): read(0, T)
    mark = a.nds
    for s in range(nsteps):
        n = a.nds - mark
        if any(sd.blocked or sd.want_barrier for sd in sides) or n > 15 or not counted: n = 0
        e(f"s_waitcnt lgkmcnt({n})")
        for sd in sides: sd.step_boundary()
        if pre: pre(s)
        mf = []
        for T in range(5):
            r = abuf[s & 1] + 4 * T
            for tt in range(2):
                d = acc(tt, T); c = "0" if (s == 0 and first_zero) else f"v[{d}:{d+3}]"
                if s == 0 and c0: c = f"v[{c0(tt, T)}:{c0(tt, T)+3}]"
                mf.append(f"v_mfma_f32_16x16x32_bf16 v[{d}:{d+3}], v[{r}:{r+3}], {xreg(tt, s)}, {c}")
        if extra: mf += extra(s)
        for i, m in enumerate(mf):
            e(m)
            if mid: mid(s, i)
            left = slots
            if s + 1 < nsteps and i < 5:
                read(s + 1, i); left -= 1
                if i == 4: mark = a.nds
            for sd in sides: sd.since_vm += 1
            for sd in sides:
                n0 = len(sd.q); sv = sd.since_vm
                if left > 0:
                    sd.since_vm -= 1; sd.fill(left)
                if len(sd.q) != n0: break


def gemm3(a, nsteps, tiles, lds_of, acc, bufs, xreg, first_zero, sides, extra=None, pre=None, slots=2, mid=None, post=None, wait_every=1):
    e = a.e
    D = len(bufs); nt = len(tiles)
    marks = {}; carry = 0
    def read(s, ti):
        vb, imm = lds_of(s, tiles[ti]); r = bufs[s % D] + 4 * ti
        e(f"ds_read_b128 v[{r}:{r+3}], v{vb} offset:{imm}")
    for s in range(min(D - 1, nsteps)):
        for ti in range(nt): read(s, ti)
        marks[s] = a.nds
    for s in range(nsteps):
        blk = any(sd.blocked or sd.want_barrier for sd in sides)
        if blk or s % wait_every == 0:
            last = min(s + wait_every - 1, nsteps - 1) if s % wait_every == 0 else s
            assert last in marks
            n = 0 if blk else a.nds - marks[last]
            e(f"s_waitcnt lgkmcnt({min(n, 15)})")
        for sd in sides: sd.step_boundary()
        if pre: pre(s)
        mf = []
        for ti, T in enumerate(tiles):
            r = bufs[s % D] + 4 * ti
            for tt in range(2):
                d = acc(tt, T); c = "0" if (s == 0 and first_zero) else f"v[{d}:{d+3}]"
                mf.append(f"v_mfma_f32_16x16x32_bf16 v[{d}:{d+3}], v[{r}:{r+3}], {xreg(tt, s)}, {c}")
        if extra: mf += extra(s)
        for i, m in enumerate(mf):
            e(m)
            if mid: mid(s, i)
            left = (slots(s) if callable(slots) else slots) + carry
            if s + D - 1 < nsteps and i < nt:
                read(s + D - 1, i); left -= 1
                if i == nt - 1: marks[s + D - 1] = a.nds
            for sd in sides: sd.since_vm += 1
            for sd in sides:
                if left <= 0: break
                sd.since_vm -= 1; left = sd.fill(left)
            carry = min(left, 0)
        if post: post(s)
```

```python
import sys; sys.path.insert(0,'gen')
from gen_all import *
from k0 import gen_k0, K0_LDS
import kA3, k0, k3
from k3 import gen_k3, K3_LDS, K3_LDS_H
def build_v12(out, stamps=False, k0kw={}, lm=(False, True), k3kw={}, **kw):
    launches = [("k0_kernel", 256, 256, K0_LDS)]
    bodies = [gen_k0("k0_kernel", 49152, stamps, l4=True, clear_kv=(2 if kw.get("KCLR") else 1) if kw.get("SENT") else 0, **k0kw)]
    for L in range(2):
        launches += [(f"kAl{L}_kernel", 256, 256, 163840), (f"k3l{L}_kernel", 256 if lm[L] else 160, 576, K3_LDS_H if k3kw.get('helpc') else K3_LDS)]
        if L == 0: bodies.append(kA3.gen_kA("kA", stamps, **kw))
        bodies.append(gen_k3(f"k3l{L}_kernel", L, stamps, linemap=lm[L], **k3kw))
    print(assemble(launches, bodies, out), ",".join(kA3.gen_kA.names))
if __name__ == "__main__":
    W = "work/"
    build_v12(W + "l4.s")
    build_v12(W + "l4s.s", stamps=True)
```

```python
from asm import *
from layout import *

OOB = 0x40000000
XL = 143360
WP = 0
K0_LDS = XL + 10240 + 64

def ident_frag(a, dst, vdiff, tmp):
    for q in range(4):
        a.e(f"v_cmp_eq_u32 vcc, {2*q}, v{vdiff}")
        a.e(f"v_cndmask_b32 v{dst+q}, 0, v{tmp}, vcc")
        a.e(f"v_cmp_eq_u32 vcc, {2*q+1}, v{vdiff}")
        a.e(f"v_cndmask_b32 v{dst+q}, v{dst+q}, v{tmp+1}, vcc")

def xconv_finish(a, name, nyounger):
    e = a.e
    e(f"s_waitcnt vmcnt({nyounger})")
    e("buffer_store_dwordx4 v[232:235], v219, s[24:27], s58 offen sc1")
    for r in range(3):
        if r == 2:
            e("v_cmp_gt_u32 vcc, 128, v0"); e("s_and_saveexec_b64 s[52:53], vcc")
        e(f"ds_write_b128 v{216+r}, v[{220+4*r}:{223+4*r}]")
        if r == 2: e("s_mov_b64 exec, s[52:53]")
    e("s_waitcnt lgkmcnt(0)"); e("s_barrier")
    e("v_lshlrev_b32 v236, 4, v0"); e(f"v_add_u32 v237, {XL}, v236")
    for r in range(3): e(f"ds_read_b128 v[{220+4*r}:{223+4*r}], v237 offset:{4096*r}")
    e(f"v_mov_b32 v238, {OOB}"); e("v_cmp_gt_u32 vcc, 128, v0"); e("v_cndmask_b32 v237, v238, v236, vcc")
    e("s_waitcnt lgkmcnt(0)")
    e("buffer_store_dwordx4 v[220:223], v236, s[24:27], s46 offen sc1")
    e("s_add_u32 s46, s46, 4096"); e("buffer_store_dwordx4 v[224:227], v236, s[24:27], s46 offen sc1")
    e("s_add_u32 s46, s46, 4096"); e("buffer_store_dwordx4 v[228:231], v237, s[24:27], s46 offen sc1")

def gen_k0(name, code_bytes, stamps=False, clear_o0=False, ntm='', ntw='', tlb=0, l4=False, clear_kv=False, xlate=False, segup=3):
    a = Asm(); e = a.e
    st = Stamps(a, stamps, 0)
    e(f"s_cmp_ge_u32 s2, 256")
    e(f"s_cbranch_scc1 {name}_exit")
    e("s_getpc_b64 s[20:21]")
    a.label(f"{name}_pc")
    e(f"s_sub_u32 s20, s20, {name}_pc-prog_start"); e("s_subb_u32 s21, s21, 0")
    e("s_lshr_b32 s3, s2, 3"); e(f"s_mul_i32 s3, s3, {code_bytes // 32}")
    e("v_lshlrev_b32 v5, 7, v0"); e("v_add_u32 v5, s3, v5"); e("v_min_u32 v5, prog_end-prog_start-4, v5")
    e(f"v_cmp_gt_u32 vcc, {code_bytes // 32 // 128}, v0"); e("s_and_saveexec_b64 s[22:23], vcc")
    e(f"s_cbranch_execz {name}_nopf")
    e("global_load_dword v239, v5, s[20:21]")
    a.label(f"{name}_nopf")
    e("s_mov_b64 exec, s[22:23]")
    st.mark("start")
    e("s_load_dwordx4 s[4:7], s[0:1], 8")
    e("s_load_dwordx2 s[8:9], s[0:1], 24")
    e("s_load_dwordx4 s[12:15], s[0:1], 56")
    e("s_load_dwordx2 s[16:17], s[0:1], 88")
    e("s_load_dwordx2 s[44:45], s[0:1], 0")
    e("v_and_b32 v1, 63, v0")
    e("v_lshrrev_b32 v2, 6, v0")
    e("v_and_b32 v3, 15, v1")
    e("v_lshrrev_b32 v4, 4, v1")
    e("v_readfirstlane_b32 s18, v2")
    e(f"v_mov_b32 v14, {OOB}")
    e("s_lshr_b32 s28, s2, 1"); e("s_and_b32 s29, s2, 1")
    e("s_lshr_b32 s30, s28, 3"); e("s_bfe_u32 s31, s28, 0x20001"); e("s_and_b32 s46, s28, 1")
    e("s_and_b32 s47, s30, 1"); e("s_lshl_b32 s47, s47, 10"); e("s_lshl_b32 s46, s46, 5"); e("s_add_u32 s47, s47, s46")
    e("s_lshr_b32 s30, s30, 1"); e("s_lshl_b32 s30, s30, 2"); e("s_add_u32 s47, s47, s30"); e("s_add_u32 s47, s47, s31")
    e("s_mul_i32 s47, s47, 1280"); e("s_mul_i32 s46, s29, 640"); e("s_add_u32 s47, s47, s46")
    e(f"s_mul_i32 s46, s28, {AF_WT}"); e("s_mul_i32 s30, s29, 10240"); e("s_add_u32 s46, s46, s30"); e(f"s_add_u32 s46, s46, {XIN_OFF[0]}")
    for r in range(3):
        e(f"v_add_u32 v8, {256*r}, v0"); e("v_mul_u32_u24 v9, 52429, v8"); e("v_lshrrev_b32 v9, 21, v9")
        e("v_mul_u32_u24 v10, 40, v9"); e("v_sub_u32 v10, v8, v10")
        e("v_mul_u32_u24 v11, 81920, v9"); e(f"v_lshl_add_u32 v{212+r}, v10, 4, v11")
        e("v_lshlrev_b32 v12, 4, v9"); e(f"v_lshl_add_u32 v12, v10, 8, v12"); e(f"v_add_u32 v{216+r}, {XL}, v12")
        if r == 2:
            e("v_cmp_gt_u32 vcc, 640, v8"); e(f"v_cndmask_b32 v{212+r}, v14, v{212+r}, vcc")
    e("s_lshr_b32 s56, s2, 4"); e("s_and_b32 s57, s2, 15"); e("s_mul_i32 s30, s57, 200")
    e("v_add_u32 v8, s30, v0")
    e("v_lshrrev_b32 v9, 4, v8"); e("v_mul_u32_u24 v10, 52429, v9"); e("v_lshrrev_b32 v10, 20, v10")
    e("v_mul_u32_u24 v11, 20, v10"); e("v_sub_u32 v11, v9, v11")
    e("s_lshr_b32 s57, s57, 3")
    e("s_mul_i32 s30, s57, 5"); e("v_subrev_u32 v10, s30, v10")
    e("v_and_b32 v12, 3, v8"); e("v_bfe_u32 v13, v8, 2, 2")
    e("v_lshl_add_u32 v9, v10, 2, v12"); e("v_mul_u32_u24 v9, 1280, v9")
    e("v_lshl_add_u32 v9, v11, 6, v9"); e("v_lshl_add_u32 v215, v13, 4, v9")
    if not l4:
        e("v_mul_u32_u24 v9, 5, v11"); e("v_add_u32 v9, v9, v10"); e("v_lshlrev_b32 v9, 10, v9")
        e("v_lshl_add_u32 v12, v13, 4, v12"); e("v_lshl_add_u32 v219, v12, 4, v9")
    else:
        e("v_lshl_add_u32 v9, v10, 2, v12")
        e("v_cmp_le_u32 vcc, 10, v9"); e("v_cndmask_b32 v10, 10, 0, vcc"); e("v_add_u32 v9, v9, v10")
        e("v_cndmask_b32 v10, 0, 64, vcc")
        e("v_and_b32 v12, 3, v9"); e("v_lshl_add_u32 v10, v12, 4, v10"); e("v_lshl_add_u32 v10, v13, 8, v10")
        e("v_lshrrev_b32 v9, 2, v9")
        e("v_mul_u32_u24 v12, 3072, v11"); e("v_add_u32 v12, 2048, v12")
        e("v_lshlrev_b32 v13, 11, v11"); e("v_lshl_add_u32 v13, v9, 10, v13"); e(f"v_add_u32 v13, {61440 - 3072}, v13")
        e("v_cmp_eq_u32 vcc, 2, v9"); e("v_cndmask_b32 v12, v13, v12, vcc"); e("v_add_u32 v219, v10, v12")
    e("v_cmp_gt_u32 vcc, 200, v0"); e("v_cndmask_b32 v215, v14, v215, vcc"); e("v_cndmask_b32 v219, v14, v219, vcc")
    e("s_mul_i32 s59, s56, 20"); e("s_add_u32 s59, s59, 1"); e("s_mul_i32 s59, s59, 1280")
    e(f"s_mul_i32 s58, s56, {W1_C}"); e("s_add_u32 s58, s58, 102400")
    if not l4: e("s_add_u32 s30, s57, 2"); e("s_lshl_b32 s30, s30, 6")
    else: e("s_lshl_b32 s30, s57, 7")
    e("s_add_u32 s58, s58, s30")
    e("s_waitcnt lgkmcnt(0)")
    srd(a, 24, 16, 17, 0, WS_USED)
    e(f"s_mov_b32 s48, s44"); e("s_mov_b32 s49, s45"); e(f"s_mov_b32 s50, {ACT}"); e("s_mov_b32 s51, 0x20000")
    if tlb:
        e("s_cmp_ge_u32 s2, 8"); e(f"s_cbranch_scc1 {name}_notlb"); e("s_cmp_lg_u32 s18, 1"); e(f"s_cbranch_scc1 {name}_notlb")
        e("s_load_dwordx2 s[22:23], s[0:1], 72")
        e(f"v_mul_u32_u24 v5, {tlb >> 8}, v1"); e("v_lshlrev_b32 v5, 8, v5")
        for q in range((WS_USED + 64*tlb - 1) // (64*tlb)):
            e(f"v_min_u32 v6, {WS_USED - 4}, v5"); e(f"buffer_load_dword v{240+q}, v6, s[24:27], 0 offen"); e(f"v_add_u32 v5, {64*tlb}, v5")
        e("s_waitcnt lgkmcnt(0)")
        e(f"v_mul_u32_u24 v5, {tlb >> 8}, v1"); e("v_lshlrev_b32 v5, 8, v5"); e(f"v_min_u32 v5, {ACT - 4}, v5")
        e("global_load_dword v250, v5, s[22:23]")
        a.label(f"{name}_notlb")
    xloads = [f"buffer_load_dwordx4 v[{220+4*r}:{223+4*r}], v{212+r}, s[48:51], s47 offen" + ntm for r in range(3)]
    if not xlate:
        for it in xloads: e(it)
    e("s_cmp_eq_u32 s57, 1"); e("s_cselect_b32 s40, s14, s12"); e("s_cselect_b32 s41, s15, s13"); e(f"s_mov_b32 s42, {640*1280}"); e("s_mov_b32 s43, 0x20000")
    e("buffer_load_dwordx4 v[232:235], v215, s[40:43], s59 offen")
    e(f"s_cmp_ge_u32 s2, 20"); e(f"s_cselect_b32 s19, {ST_OFF[1] - 20480 - ST_OFF[0]}, 0"); e(f"s_add_u32 s19, s19, {ST_OFF[0]}"); e("s_lshl_b32 s30, s2, 10"); e("s_add_u32 s19, s19, s30")
    for r in range(4): e(f"v_mov_b32 v{200+r}, 0")
    e("s_cmp_lt_u32 s2, 40"); e(f"s_cselect_b32 s30, 64, 0")
    e("v_lshlrev_b32 v6, 4, v0"); e("v_cmp_gt_u32 vcc, s30, v0"); e("v_cndmask_b32 v7, v14, v6, vcc")
    e("buffer_store_dwordx4 v[200:203], v7, s[24:27], s19 offen sc1")
    NS = 0
    if clear_o0:
        for r in range(4): e(f"v_mov_b32 v{204+r}, -1")
        e("s_mul_i32 s19, s2, 10240"); e(f"s_add_u32 s19, s19, {O_OFF[0]}")
        e("v_cmp_gt_u32 vcc, 128, v0"); e("v_cndmask_b32 v7, v14, v6, vcc")
        e("buffer_store_dwordx4 v[204:207], v6, s[24:27], s19 offen sc1")
        e("s_add_u32 s19, s19, 4096"); e("buffer_store_dwordx4 v[204:207], v6, s[24:27], s19 offen sc1")
        e("s_add_u32 s19, s19, 4096"); e("buffer_store_dwordx4 v[204:207], v7, s[24:27], s19 offen sc1")
        NS = 3
    if clear_kv == 1:
        for r in range(4): e(f"v_mov_b32 v{204+r}, -1")
        e("s_lshl_b32 s19, s2, 12"); e(f"s_add_u32 s19, s19, {KVP_OFF[0]}")
        e("buffer_store_dwordx4 v[204:207], v6, s[24:27], s19 offen sc1")
        e(f"s_add_u32 s19, s19, {LSTRIDE}"); e("buffer_store_dwordx4 v[204:207], v6, s[24:27], s19 offen sc1")
        NS += 2
    st.mark("common")
    e("s_and_b32 s33, s2, 7"); e("s_lshr_b32 s34, s2, 3")
    e("s_cmp_ge_u32 s34, 12")
    e(f"s_cbranch_scc1 {name}_wf")

    if xlate:
        for it in xloads: e(it)
    e("s_mul_i32 s30, s33, 12"); e("s_add_u32 s30, s30, s34")
    e("s_lshr_b32 s28, s30, 5"); e("s_and_b32 s29, s30, 31")
    srd(a, 32, 4, 5, 0, 640 * 3840)
    srd(a, 36, 6, 7, 0, 32 * 400 * 2)
    FA = 4096
    e("v_lshrrev_b32 v8, 2, v1"); e("v_lshrrev_b32 v9, 4, v1"); e("v_xor_b32 v9, v9, v1"); e("v_and_b32 v9, 3, v9")
    e("s_mul_i32 s30, s18, 160"); e("v_add_u32 v8, s30, v8")
    e("s_movk_i32 s31, 3840"); e("v_mul_lo_u32 v8, v8, s31")
    e("s_mul_i32 s30, s28, 640"); e("s_mul_i32 s31, s29, 20"); e("s_add_u32 s30, s30, s31"); e("s_lshl_b32 s30, s30, 1")
    e("v_lshlrev_b32 v9, 4, v9"); e("v_add3_u32 v8, v8, v9, s30")
    e("v_lshlrev_b32 v10, 4, v0"); e("v_cmp_gt_u32 vcc, 50, v0"); e("v_cndmask_b32 v11, v14, v10, vcc")
    e("s_mul_i32 s30, s29, 800")
    e("buffer_load_dwordx4 v[64:67], v11, s[36:39], s30 offen")
    e("s_mov_b32 s31, 0"); e("s_mul_i32 s35x, s18, 10240".replace("s35x", "s55")); e(f"s_add_u32 s55, s55, {FA}")
    for m in range(10):
        e(f"s_add_u32 m0, s55, {1024*m}")
        e(f"buffer_load_dwordx4 v8, s[32:35], s31 offen lds")
        if m < 9: e("s_add_u32 s31, s31, 61440")
    e("v_lshrrev_b32 v12, 2, v3"); e("v_xor_b32 v12, v12, v4"); e("v_lshlrev_b32 v12, 4, v12"); e("v_lshl_add_u32 v12, v3, 6, v12"); e("v_add_u32 v12, s55, v12")
    for r in range(68, 72): e(f"v_mov_b32 v{r}, 0")
    e("v_cmp_gt_u32 vcc, 84, v0"); e("s_and_saveexec_b64 s[52:53], vcc")
    e("ds_write_b128 v10, v[68:71]"); e("s_mov_b64 exec, s[52:53]")
    xconv_finish(a, name, 11 if xlate else 11 + 1 + NS)
    e("s_cmp_eq_u32 s28, 2"); e(f"s_cbranch_scc1 {name}_bid")
    e("s_waitcnt vmcnt(14)")
    e("v_cmp_gt_u32 vcc, 50, v0"); e("s_and_saveexec_b64 s[52:53], vcc")
    e("ds_write_b128 v10, v[64:67]"); e("s_mov_b64 exec, s[52:53]")
    e(f"s_branch {name}_bdone")
    a.label(f"{name}_bid")
    e("v_mul_u32_u24 v10, 42, v0"); e("v_mov_b32 v11, 0x3f80")
    e("v_cmp_gt_u32 vcc, 20, v0"); e("s_and_saveexec_b64 s[52:53], vcc")
    e("ds_write_b16 v10, v11"); e("s_mov_b64 exec, s[52:53]")
    a.label(f"{name}_bdone")
    e("s_waitcnt lgkmcnt(0)"); e("s_barrier")
    e("v_lshrrev_b32 v10, 2, v3"); e("v_lshl_add_u32 v10, v4, 3, v10"); e("v_mul_u32_u24 v10, 40, v10"); e("v_and_b32 v11, 3, v1"); e("v_lshl_add_u32 v10, v11, 3, v10")
    for nt in range(2):
        e(f"ds_read_b64_tr_b16 v[{56+4*nt}:{57+4*nt}], v10 offset:{32*nt}")
        e(f"ds_read_b64_tr_b16 v[{58+4*nt}:{59+4*nt}], v10 offset:{32*nt + 160}")
    e("s_waitcnt vmcnt(4)")
    for m in range(10): e(f"ds_read_b128 v[{16+4*m}:{19+4*m}], v12 offset:{1024*m}")
    e("s_waitcnt lgkmcnt(0)")
    st.mark("f_loads")
    for m in range(10):
        for nt in range(2):
            d = 80 + 8 * m + 4 * nt
            e(f"v_mfma_f32_16x16x32_bf16 v[{d}:{d+3}], v[{16+4*m}:{19+4*m}], v[{56+4*nt}:{59+4*nt}], 0")
    for nt in range(2):
        r = 64 + 2*nt
        e(f"v_pk_add_f32 v[{r}:{r+1}], v[{80+4*nt}:{81+4*nt}], v[{82+4*nt}:{83+4*nt}]")
        for m in range(1, 10):
            for hb in range(2):
                s0 = 80 + 8*m + 4*nt + 2*hb
                e(f"v_pk_add_f32 v[{r}:{r+1}], v[{r}:{r+1}], v[{s0}:{s0+1}]")
        e(f"v_add_f32 v{r}, v{r}, v{r+1}")
    for nt in range(2):
        r = 64 + 2*nt
        e(f"v_mov_b32 v68, v{r}"); e(f"v_permlane32_swap_b32 v{r}, v68"); e(f"v_add_f32 v{r}, v{r}, v68")
        e(f"v_mov_b32 v68, v{r}"); e(f"v_permlane16_swap_b32 v{r}, v68"); e(f"v_add_f32 v{r}, v{r}, v68")
    e("v_lshlrev_b32 v69, 4, v3"); e("v_add_u32 v69, 2048, v69")
    e("s_lshl_b32 s30, s18, 2"); e("v_add_u32 v70, s30, v69")
    e("ds_write_b32 v70, v64"); e("ds_write_b32 v70, v66 offset:256")
    if not l4:
        e("s_and_b32 s30, s29, 1")
        e("s_cmp_eq_u32 s28, 2"); e("s_cselect_b32 s31, 2, 0"); e("s_add_u32 s30, s30, s31")
        e("s_lshl_b32 s30, s30, 6")
        e("v_and_b32 v8, 1, v4"); e("v_lshlrev_b32 v8, 9, v8")
        e("v_lshrrev_b32 v9, 1, v4"); e("v_lshlrev_b32 v9, 8, v9")
        e("v_add3_u32 v8, v8, v9, s30")
        for nt in range(2):
            e(f"v_add_u32 v9, {16*nt}, v3")
            e("v_lshrrev_b32 v10, 2, v9"); e("v_lshlrev_b32 v10, 10, v10")
            e("v_and_b32 v11, 3, v9"); e("v_lshlrev_b32 v11, 4, v11")
            e(f"v_add3_u32 v{72+nt}, v8, v10, v11")
        e("v_cmp_gt_u32 vcc, 4, v3"); e("v_cndmask_b32 v73, v14, v73, vcc")
        e("s_lshr_b32 s30, s29, 1"); e(f"s_mul_i32 s30, s30, {W1_C}")
        e("s_cmp_eq_u32 s28, 0"); e("s_cselect_b32 s31, 102400, 0"); e("s_add_u32 s30, s30, s31")
        e("s_mul_i32 s31, s18, 25600"); e("s_add_u32 s30, s30, s31")
    else:
        e("s_and_b32 s30, s29, 1"); e("s_lshl_b32 s30, s30, 7")
        e("v_and_b32 v8, 1, v4"); e("v_lshlrev_b32 v8, 9, v8")
        e("v_lshrrev_b32 v9, 1, v4"); e("v_lshlrev_b32 v9, 8, v9")
        e("v_add3_u32 v8, v8, v9, s30")
        e("s_cmp_eq_u32 s28, 2"); e("s_cselect_b32 s31, 10, 0"); e("s_mul_i32 s30, s18, 5")
        for nt in range(2):
            e(f"v_add_u32 v9, {16*nt}, v3")
            e("v_cmp_le_u32 vcc, 10, v9"); e("v_cndmask_b32 v10, 0, 10, vcc"); e("v_sub_u32 v9, v9, v10"); e("v_add_u32 v9, s31, v9")
            e("v_cndmask_b32 v10, 0, 64, vcc"); e("v_and_b32 v11, 3, v9"); e("v_lshl_add_u32 v10, v11, 4, v10")
            e("v_lshrrev_b32 v9, 2, v9"); e("v_lshl_add_u32 v10, v9, 10, v10")
            e("v_cmp_gt_u32 vcc, 3, v9")
            e(f"v_mov_b32 v11, {61440 - 3072}"); e("v_cndmask_b32 v11, v11, 0, vcc"); e("v_add3_u32 v10, v8, v10, v11")
            e("v_mov_b32 v11, 2048"); e("v_mov_b32 v9, 3072"); e(f"v_cndmask_b32 v{78+nt}, v11, v9, vcc")
            e(f"v_mul_u32_u24 v11, s30, v{78+nt}"); e(f"v_add_u32 v{72+nt}, v10, v11")
        e("v_cmp_gt_u32 vcc, 4, v3"); e("v_cndmask_b32 v73, v14, v73, vcc")
        e("s_lshr_b32 s30, s29, 1"); e(f"s_mul_i32 s30, s30, {W1_C}")
        e("s_cmp_eq_u32 s28, 0"); e("s_cselect_b32 s31, 102400, 0"); e("s_add_u32 s30, s30, s31")
    e("s_waitcnt lgkmcnt(0)"); e("s_barrier")
    e("ds_read_b128 v[68:71], v69"); e("ds_read_b128 v[74:77], v69 offset:256")
    e("s_waitcnt lgkmcnt(0)")
    for nt, b in ((0, 68), (1, 74)):
        e(f"v_pk_add_f32 v[{b}:{b+1}], v[{b}:{b+1}], v[{b+2}:{b+3}]"); e(f"v_add_f32 v{b}, v{b}, v{b+1}")
        e(f"v_mul_f32 v{64+2*nt}, {1.0/640.0!r}, v{b}")
    st.mark("f_sums")
    for mp in range(5):
        for nt in range(2):
            dA = 80 + 8 * (2*mp) + 4 * nt; dB = 80 + 8 * (2*mp+1) + 4 * nt
            for d in (dA, dB):
                for hb in range(2):
                    e(f"v_pk_add_f32 v[{d+2*hb}:{d+2*hb+1}], v[{d+2*hb}:{d+2*hb+1}], v[{64+2*nt}:{65+2*nt}] op_sel_hi:[1,0] neg_lo:[0,1] neg_hi:[0,1]")
            r0 = 16 + 4 * (2*mp + nt)
            e(f"v_cvt_pk_bf16_f32 v{r0}, v{dA}, v{dA+1}"); e(f"v_cvt_pk_bf16_f32 v{r0+1}, v{dA+2}, v{dA+3}")
            e(f"v_cvt_pk_bf16_f32 v{r0+2}, v{dB}, v{dB+1}"); e(f"v_cvt_pk_bf16_f32 v{r0+3}, v{dB+2}, v{dB+3}")
            e(f"v_permlane16_swap_b32 v{r0}, v{r0+2}"); e(f"v_permlane16_swap_b32 v{r0+1}, v{r0+3}")
            e(f"buffer_store_dwordx4 v[{r0}:{r0+3}], v{72+nt}, s[24:27], s30 offen sc1")
        if not l4: e("s_add_u32 s30, s30, 5120")
        elif mp < 4: e("v_add_u32 v72, v72, v78"); e("v_add_u32 v73, v73, v79")
    st.mark("f_stores")
    if clear_kv == 2:
        for r in range(4): e(f"v_mov_b32 v{204+r}, -1")
        e("s_mul_i32 s30, s2, 12288"); e("v_lshlrev_b32 v8, 4, v0"); e("v_add_u32 v8, s30, v8")
        e(f"s_mov_b32 s31, {KVP_OFF[0]}")
        for r in range(3):
            e(f"v_cmp_gt_u32 vcc, {256*4096}, v8") if False else None
            e(f"v_mov_b32 v10, {256*4096}"); e("v_cmp_gt_u32 vcc, v10, v8"); e("v_cndmask_b32 v9, v14, v8, vcc")
            e("buffer_store_dwordx4 v[204:207], v9, s[24:27], s31 offen sc1")
            if r < 2: e("v_add_u32 v8, 4096, v8")
    e("s_cmp_eq_u32 s28, 2")
    e(f"s_cbranch_scc1 {name}_tables")
    e(f"s_branch {name}_end")

    a.label(f"{name}_wf")
    e("s_sub_u32 s34, s34, 12")
    e("s_and_b32 s28, s33, 1"); e("s_mul_i32 s28, s28, 5"); e("s_lshr_b32 s30, s34, 2"); e("s_add_u32 s28, s28, s30")
    e("s_lshr_b32 s29, s33, 1"); e("s_lshl_b32 s29, s29, 2"); e("s_and_b32 s30, s34, 3"); e("s_add_u32 s29, s29, s30")
    srd(a, 32, 8, 9, 0, 640 * 1280)
    srd(a, 36, 12, 13, 0, 640 * 1280)
    srd(a, 40, 14, 15, 0, 640 * 1280)
    wv = VM(a); wv.q = ["x"] * (1 if xlate else 4) + ["z"] * (1 + NS)
    e("s_lshl_b32 s54, s18, 2"); e("v_add_u32 v8, s54, v4"); e("v_xor_b32 v8, v8, v3"); e("v_lshlrev_b32 v8, 4, v8")
    e("v_mul_u32_u24 v9, 1280, v4"); e("v_add_u32 v24, v8, v9")
    if l4: e("v_lshrrev_b32 v9, 1, v4"); e("v_mul_u32_u24 v9, 10, v9"); e("v_and_b32 v10, 1, v4"); e("v_add_u32 v9, v9, v10"); e("v_mul_u32_u24 v9, 1280, v9"); e("v_add_u32 v25, v8, v9")
    for gi in range(4):
        e(f"s_lshl_b32 s30, s28, 6"); e("s_add_u32 s30, s30, s54"); e(f"s_add_u32 s30, s30, {16*gi}")
        e("s_mul_i32 s31, s30, 52429"); e("s_lshr_b32 s31, s31, 21"); e("s_mul_i32 s31, s31, 40"); e("s_sub_u32 s31, s30, s31")
        if not l4:
            e("s_cmp_eq_u32 s31, 20"); e("s_cselect_b32 s55, 16, 0"); e("s_add_u32 s30, s30, s55")
            e("s_cmp_ge_u32 s31, 24"); e("s_cselect_b32 s55, 4, 0"); e("s_sub_u32 s30, s30, s55")
        else:
            e("s_sub_u32 s30, s30, s31"); e("s_lshr_b32 s55, s31, 3"); e("s_lshl_b32 s55, s55, 1"); e("s_add_u32 s55, s55, s31")
            e("s_cmp_eq_u32 s31, 32"); e("s_cselect_b32 s55, 8, s55"); e("s_cmp_eq_u32 s31, 36"); e("s_cselect_b32 s55, 28, s55")
            e("s_add_u32 s30, s30, s55")
            e("s_cmp_ge_u32 s31, 32"); e("s_cselect_b64 s[52:53], -1, 0"); e(f"v_cndmask_b32 v{26+gi}, v24, v25, s[52:53]")
        e(f"s_mul_i32 s{20+gi}, s30, 1280")
    e("s_mul_i32 s55, s29, 20"); e("s_add_u32 s55, s55, 1")
    e("s_add_u32 s30, s55, s54"); e("s_mul_i32 s60, s30, 1280")
    e("s_add_u32 s30, s55, 16"); e("s_mul_i32 s30, s30, 1280")
    e("s_mul_i32 s45, s18, 5120")
    e("s_add_u32 s31, s45, 81920 + 40960"); e("s_add_u32 s56, s45, 81920 + 20480")
    e("s_cmp_lt_u32 s18, 2"); e("s_cselect_b32 s61, s30, s60"); e("s_cselect_b32 s44, s31, s56")
    e("s_cmp_eq_u32 s18, 0"); e("s_cselect_b32 s64, s36, s40"); e("s_cselect_b32 s65, s37, s41"); e(f"s_mov_b32 s66, {640*1280}"); e("s_mov_b32 s67, 0x20000")
    def seg_items(n):
        it = []
        for gi in range(4):
            it.append([f"s_add_u32 s30, s{20+gi}, {256*n}", f"s_add_u32 m0, s45, {gi*20480 + 1024*n}", ("s[32:35]", 26+gi if l4 else 24)])
        it.append([f"s_add_u32 s30, s60, {256*n}", f"s_add_u32 m0, s45, {81920 + 1024*n}", ("s[36:39]", 24)])
        it.append([f"s_add_u32 s30, s60, {256*n}", f"s_add_u32 m0, s56, {1024*n}", ("s[40:43]", 24)])
        it.append([f"s_add_u32 s30, s61, {256*n}", f"s_add_u32 m0, s44, {1024*n}", ("s[64:67]", 24)])
        return it
    def issue_seg(n):
        for p0, p1, (srdn, va) in seg_items(n):
            e(p0); e(p1); wv.issue(f"buffer_load_dwordx4 v{va}, {srdn}, s30 offen lds", f"g{n}")
    for n in range(segup): issue_seg(n)
    st.mark("w_issue")
    if not xlate:
        xconv_finish(a, name, 7*segup + 1 + NS)
        wv.q = [t for t in wv.q if t.startswith("g")] + ["xs"] * 4
    e("v_lshrrev_b32 v21, 2, v3"); e("v_mul_u32_u24 v21, 5120, v21"); e("v_and_b32 v9, 3, v3"); e("v_lshl_add_u32 v21, v9, 8, v21")
    e("s_mul_i32 s30, s18, 20480"); e("s_mov_b32 s31, 81920")
    for p in range(4):
        e(f"v_add_u32 v9, {4*p}, v4"); e("v_xor_b32 v9, v9, v3"); e("v_lshlrev_b32 v9, 4, v9")
        e(f"v_add3_u32 v{184+p}, v21, v9, s30"); e(f"v_add3_u32 v{188+p}, v21, v9, s31")
    e("s_mul_i32 s31, s29, 5")
    for k, dst in ((0, 15), (4, 16)):
        e(f"v_add_u32 v9, s31, v4")
        if k: e(f"v_add_u32 v9, {k}, v9")
        e("v_lshrrev_b32 v10, 4, v9"); e("v_lshlrev_b32 v10, 10, v10"); e("v_and_b32 v9, 15, v9"); e("v_xor_b32 v9, v9, v3"); e("v_lshl_add_u32 v10, v9, 4, v10")
        e(f"v_add3_u32 v{dst}, v21, v10, s30")
    e("v_mov_b32 v22, 0x3f80"); e("v_mov_b32 v23, 0x3f800000")
    e("v_lshlrev_b32 v9, 3, v4"); e("v_sub_u32 v17, v3, v9"); e("v_add_u32 v18, 16, v17")
    ident_frag(a, 112, 17, 22)
    ident_frag(a, 116, 18, 22)
    def rd(s):
        b0 = 144 + 16*(s & 1)
        e(f"ds_read_b128 v[{b0}:{b0+3}], v{184+(s&3)} offset:{(s>>2)*1024}")
        for nt in range(3):
            e(f"ds_read_b128 v[{b0+4+4*nt}:{b0+7+4*nt}], v{188+(s&3)} offset:{nt*20480 + (s>>2)*1024}")
    wv.wait("g0"); e("s_barrier")
    st.mark("w_loads")
    rd(0)
    for s in range(20):
        if s % 4 == 3 and s < 19:
            n = (s + 1) // 4
            wv.wait(f"g{n}"); e("s_barrier")
        if s in (0, 4) and segup + s // 4 < 5: issue_seg(segup + s // 4)
        if xlate and s == 8:
            for it in xloads: wv.issue(it, "xl")
        if s + 1 < 20: rd(s + 1); e("s_waitcnt lgkmcnt(4)")
        else: e("s_waitcnt lgkmcnt(0)")
        b0 = 144 + 16*(s & 1)
        for nt in range(3):
            c = "0" if s == 0 else f"v[{120+4*nt}:{123+4*nt}]"
            e(f"v_mfma_f32_16x16x32_bf16 v[{120+4*nt}:{123+4*nt}], v[{b0}:{b0+3}], v[{b0+4+4*nt}:{b0+7+4*nt}], {c}")
    e("ds_read_b128 v[104:107], v15"); e("ds_read_b128 v[108:111], v16"); e("s_waitcnt lgkmcnt(0)")
    e("v_mfma_f32_16x16x32_bf16 v[132:135], v[104:107], v[112:115], 0")
    e("v_mfma_f32_16x16x32_bf16 v[136:139], v[104:107], v[116:119], 0")
    e("v_mfma_f32_16x16x32_bf16 v[140:143], v[108:111], v[112:115], 0")
    st.mark("w_mfma")
    e("s_lshr_b32 s31, s18, 1"); e("s_mul_i32 s31, s31, 5120"); e("s_and_b32 s30, s18, 1"); e("s_lshl_b32 s30, s30, 9"); e("s_add_u32 s30, s30, s31"); e(f"s_add_u32 s30, s30, {XL}")
    e("v_lshrrev_b32 v8, 1, v4"); e("v_lshlrev_b32 v8, 8, v8"); e("v_and_b32 v9, 1, v4"); e("v_lshl_add_u32 v8, v9, 3, v8"); e("v_add_u32 v8, s30, v8")
    e(f"v_mov_b32 v14, {XL + 10240}")
    def xf_addr(dst, vu, ri_const=None, vri=None):
        if l4:
            e(f"v_cmp_le_u32 vcc, 10, v{vu}"); e("v_cndmask_b32 v10, 10, 0, vcc"); e(f"v_add_u32 v10, v{vu}, v10")
            e("v_cndmask_b32 v11, 0, 4, vcc"); e("v_and_b32 v15, 3, v10"); e("v_add_u32 v11, v11, v15")
            if ri_const is not None:
                if ri_const: e("v_add_u32 v11, 8, v11")
            else: e(f"v_lshl_add_u32 v11, v{vri}, 3, v11")
            e("v_lshrrev_b32 v10, 2, v10"); e("v_lshlrev_b32 v10, 10, v10"); e("v_lshlrev_b32 v11, 4, v11")
            e(f"v_add3_u32 v{dst}, v8, v10, v11")
            return
        e(f"v_lshrrev_b32 v10, 2, v{vu}"); e("v_lshlrev_b32 v10, 10, v10")
        e(f"v_and_b32 v11, 3, v{vu}")
        if ri_const is not None: e(f"v_add_u32 v11, {4*(2+ri_const)}, v11")
        else: e(f"v_lshl_add_u32 v11, v{vri}, 2, v11"); e("v_add_u32 v11, 8, v11")
        e("v_lshlrev_b32 v11, 4, v11")
        e(f"v_add3_u32 v{dst}, v8, v10, v11")
    xf_addr(16, 3, 0); xf_addr(17, 3, 1)
    e("v_and_b32 v12, 3, v3"); e("v_add_u32 v12, 16, v12"); e("v_lshrrev_b32 v13, 2, v3")
    xf_addr(18, 12, None, 13)
    e("v_cmp_gt_u32 vcc, 8, v3"); e("v_cndmask_b32 v18, v14, v18, vcc")
    for nt in range(3):
        if l4:
            if nt < 2:
                e("v_lshrrev_b32 v13, 3, v3")
                if nt: e("v_add_u32 v13, 2, v13")
                e("v_bfe_u32 v10, v3, 2, 1"); e("v_lshlrev_b32 v10, 10, v10"); e("v_and_b32 v11, 3, v3")
            else:
                e("v_lshrrev_b32 v13, 1, v3"); e("v_mov_b32 v10, 2048"); e("v_and_b32 v11, 1, v3")
            e("v_lshl_add_u32 v11, v13, 2, v11"); e("v_lshlrev_b32 v11, 4, v11")
            e(f"v_add3_u32 v{19+nt}, v8, v10, v11")
            continue
        e(f"v_add_u32 v12, {16*nt}, v3")
        e("v_cmp_le_u32 vcc, 20, v12"); e("v_cndmask_b32 v13, 0, 1, vcc")
        e("v_lshlrev_b32 v15, 2, v13"); e("v_sub_u32 v15, v12, v15")
        e("v_cmp_le_u32 vcc, 24, v12"); e("v_subrev_u32 v12, 24, v12"); e("v_cndmask_b32 v12, v15, v12, vcc")
        e("v_lshrrev_b32 v10, 2, v12"); e("v_lshlrev_b32 v10, 10, v10")
        e("v_and_b32 v11, 3, v12"); e("v_lshl_add_u32 v11, v13, 2, v11"); e("v_lshlrev_b32 v11, 4, v11")
        e(f"v_add3_u32 v{19+nt}, v8, v10, v11")
    e("v_cmp_gt_u32 vcc, 8, v3"); e("v_cndmask_b32 v21, v14, v21, vcc")
    for t in range(6):
        d = 120 + 4 * t
        e(f"v_cvt_pk_bf16_f32 v{d}, v{d}, v{d+1}")
        e(f"v_cvt_pk_bf16_f32 v{d+1}, v{d+2}, v{d+3}")
        e(f"ds_write_b64 v{16+t}, v[{d}:{d+1}]")
    e("s_waitcnt lgkmcnt(0)"); e("s_barrier")
    e("v_lshlrev_b32 v8, 4, v0"); e(f"v_add_u32 v9, {XL}, v8")
    for r in range(3): e(f"ds_read_b128 v[{120+4*r}:{123+4*r}], v9 offset:{4096*r}")
    if xlate:
        e("s_waitcnt vmcnt(0)")
        e("buffer_store_dwordx4 v[232:235], v219, s[24:27], s58 offen sc1")
        for r in range(3):
            e(f"v_subrev_u32 v{216+r}, {XL}, v{216+r}")
            if r == 2:
                e("v_cmp_gt_u32 vcc, 128, v0"); e("s_and_saveexec_b64 s[52:53], vcc")
            e(f"ds_write_b128 v{216+r}, v[{220+4*r}:{223+4*r}]")
            if r == 2: e("s_mov_b64 exec, s[52:53]")
    e(f"s_mul_i32 s30, s29, {W2_C}"); e("s_mul_i32 s31, s28, 10240"); e("s_add_u32 s30, s30, s31"); e(f"s_add_u32 s30, s30, {W2_OFF}")
    e(f"v_mov_b32 v14, {OOB}"); e("v_cmp_gt_u32 vcc, 128, v0"); e("v_cndmask_b32 v9, v14, v8, vcc")
    e("s_waitcnt lgkmcnt(2)" if xlate else "s_waitcnt lgkmcnt(0)")
    e("buffer_store_dwordx4 v[120:123], v8, s[24:27], s30 offen sc1")
    e("s_add_u32 s30, s30, 4096"); e("buffer_store_dwordx4 v[124:127], v8, s[24:27], s30 offen sc1")
    e("s_add_u32 s30, s30, 4096"); e("buffer_store_dwordx4 v[128:131], v9, s[24:27], s30 offen sc1")
    if xlate:
        e("s_waitcnt lgkmcnt(0)"); e("s_barrier")
        for r in range(3): e(f"ds_read_b128 v[{220+4*r}:{223+4*r}], v8 offset:{4096*r}")
        e("s_waitcnt lgkmcnt(0)")
        e("buffer_store_dwordx4 v[220:223], v8, s[24:27], s46 offen sc1")
        e("s_add_u32 s46, s46, 4096"); e("buffer_store_dwordx4 v[224:227], v8, s[24:27], s46 offen sc1")
        e("s_add_u32 s46, s46, 4096"); e("buffer_store_dwordx4 v[228:231], v9, s[24:27], s46 offen sc1")
    e(f"s_branch {name}_end")

    a.label(f"{name}_tables")
    e("s_mov_b32 s28, s29")
    e("s_cmp_gt_u32 s28, 4")
    e(f"s_cbranch_scc1 {name}_end")
    e("v_lshlrev_b32 v9, 4, v1")
    e("s_cmp_eq_u32 s28, 4")
    e(f"s_cbranch_scc1 {name}_tab2")
    e("s_lshl_b32 s29, s28, 4"); e("v_add_u32 v8, s29, v3")
    e("s_cmp_ge_u32 s18, 2")
    e(f"s_cbranch_scc1 {name}_tabtw")
    e("s_lshl_b32 s29, s18, 5"); e("v_lshlrev_b32 v10, 3, v4"); e("v_add_u32 v10, s29, v10")
    for jj in range(8):
        e(f"v_add_u32 v11, {jj}, v10"); e("v_mul_u32_u24 v11, v11, v8"); e("v_and_b32 v11, 63, v11")
        e("v_cvt_f32_u32 v11, v11"); e(f"v_mul_f32 v11, {1.0/64!r}, v11")
        e(f"v_cos_f32 v{16+jj}, v11"); e(f"v_sin_f32 v{24+jj}, v11")
    for q in range(4):
        e(f"v_cvt_pk_bf16_f32 v{32+q}, v{16+2*q}, v{17+2*q}")
        e(f"v_cvt_pk_bf16_f32 v{40+q}, v{24+2*q}, v{25+2*q}")
        e(f"v_xor_b32 v{36+q}, 0x80008000, v{40+q}")
    e("s_mul_i32 s29, s28, 6144"); e("s_lshl_b32 s30, s18, 10"); e("s_add_u32 s29, s29, s30"); e(f"s_add_u32 s29, s29, {TAB_OFF + TAB_W64}")
    for var in range(3):
        if var == 2: e("s_add_u32 s29, s29, 4096")
        e(f"buffer_store_dwordx4 v[{32+4*var}:{35+4*var}], v9, s[24:27], s29 offen offset:{2048*(var&1)}")
    e(f"s_branch {name}_end")
    a.label(f"{name}_tabtw")
    e("s_cmp_lg_u32 s18, 2")
    e(f"s_cbranch_scc1 {name}_end")
    for T in range(2):
        for b in range(4):
            e(f"v_lshlrev_b32 v11, 2, v4"); e(f"v_add_u32 v11, {16*T+b}, v11"); e("v_mul_u32_u24 v11, v11, v8")
            e("v_cvt_f32_u32 v11, v11"); e(f"v_mul_f32 v11, {1.0/2048!r}, v11")
            e(f"v_cos_f32 v{16+4*T+b}, v11"); e(f"v_sin_f32 v{24+4*T+b}, v11")
    e("s_lshl_b32 s29, s28, 12"); e(f"s_add_u32 s29, s29, {TAB_OFF + TAB_TW}")
    for q in range(4):
        e(f"buffer_store_dwordx4 v[{16+4*q}:{19+4*q}], v9, s[24:27], s29 offen offset:{1024*q}")
    e(f"s_branch {name}_end")
    a.label(f"{name}_tab2")
    e("s_cmp_ge_u32 s18, 2")
    e(f"s_cbranch_scc1 {name}_end")
    e("s_lshl_b32 s29, s18, 4"); e("v_add_u32 v8, s29, v3")
    for jj in range(8):
        e(f"v_lshlrev_b32 v11, 2, v4"); e(f"v_add_u32 v11, {16*(jj>>2) + (jj&3)}, v11"); e("v_mul_u32_u24 v11, v11, v8"); e("v_and_b32 v11, 31, v11")
        e("v_cvt_f32_u32 v11, v11"); e(f"v_mul_f32 v11, {1.0/32!r}, v11")
        e(f"v_cos_f32 v{16+jj}, v11"); e(f"v_sin_f32 v{24+jj}, v11")
    for q in range(4):
        e(f"v_cvt_pk_bf16_f32 v{32+q}, v{16+2*q}, v{17+2*q}")
        e(f"v_cvt_pk_bf16_f32 v{36+q}, v{24+2*q}, v{25+2*q}")
    e("s_lshl_b32 s29, s18, 11"); e(f"s_add_u32 s29, s29, {TAB_OFF + TAB_S2}")
    e("buffer_store_dwordx4 v[32:35], v9, s[24:27], s29 offen")
    e("buffer_store_dwordx4 v[36:39], v9, s[24:27], s29 offen offset:1024")
    a.label(f"{name}_end")
    if stamps:
        e("s_waitcnt vmcnt(0)"); st.mark("end"); st.flush(16, 17, 18)
    a.label(f"{name}_exit")
    e("s_endpgm")
    gen_k0.names = st.names
    return kernel_header(name) + a.text() + kernel_desc(name, 256, 0, 102 if stamps else 72)
```

```python
from asm import *
from layout import *
OOB = 0x40000000
RB = 0
YB = 8704
TBL = 34048

def af_addr(a, dst, vt, t0, t1):
    e = a.e
    e(f"v_and_b32 v{t0}, 31, v{vt}")
    e(f"v_lshrrev_b32 v{t1}, 5, v{vt}")
    e(f"v_lshrrev_b32 v{dst}, 2, v{t0}"); e(f"v_lshlrev_b32 v{dst}, 4, v{dst}")
    e(f"v_and_b32 v{t0}, 3, v{t0}"); e(f"v_lshl_add_u32 v{dst}, v{t0}, 1, v{dst}")
    e(f"v_lshrrev_b32 v{t0}, 5, v{t1}"); e(f"v_lshl_add_u32 v{dst}, v{t0}, 3, v{dst}")
    e(f"v_and_b32 v{t0}, 1, v{t1}"); e(f"v_add_u32 v{dst}, v{dst}, v{t0}")
    e(f"v_mul_u32_u24 v{dst}, {AF_WT}, v{dst}")
    e(f"v_bfe_u32 v{t0}, v{t1}, 1, 4"); e(f"v_lshl_add_u32 v{dst}, v{t0}, 4, v{dst}")

def gen_k3(name, layer, stamps=False, linemap=False, early=0):
    a = Asm(); e = a.e; vm = VM(a); sm = Stamps(a, stamps, 3 + 4*layer)
    if linemap:
        e("s_cmp_ge_u32 s2, 256"); e(f"s_cbranch_scc1 {name}_end")
        e("s_and_b32 s16, s2, 7"); e("s_cmp_ge_u32 s16, 5"); e(f"s_cbranch_scc1 {name}_end")
    else:
        e("s_cmp_ge_u32 s2, 160"); e(f"s_cbranch_scc1 {name}_end")
    sm.mark("start")
    e("s_load_dwordx2 s[30:31], s[0:1], 88")
    if layer == 1: e("s_load_dwordx2 s[24:25], s[0:1], 72")
    if linemap:
        e("s_lshr_b32 s17, s2, 3"); e("s_lshl_b32 s16, s16, 3"); e("s_and_b32 s19, s17, 7"); e("s_add_u32 s16, s16, s19"); e("s_lshr_b32 s17, s17, 3")
    else:
        e("s_and_b32 s16, s2, 7"); e("s_lshr_b32 s17, s2, 3"); e("s_lshr_b32 s19, s17, 2"); e("s_lshl_b32 s19, s19, 3")
        e("s_add_u32 s16, s16, s19")
        e("s_and_b32 s17, s17, 3")
    e("v_and_b32 v1, 63, v0"); e("v_lshrrev_b32 v2, 6, v0")
    e("v_readfirstlane_b32 s18, v2")
    e("v_and_b32 v2, 15, v1"); e("v_lshrrev_b32 v3, 4, v1")
    e("v_lshlrev_b32 v5, 4, v1")
    e("v_lshlrev_b32 v6, 4, v0")
    e(f"v_mov_b32 v20, {OOB}"); e("v_cmp_gt_u32 vcc, 512, v0"); e("v_cndmask_b32 v7, v20, v6, vcc")
    e("s_lshl_b32 s3, s16, 3"); e("s_add_u32 s3, s3, s18"); e("s_sub_u32 s20, s3, 1"); e("s_lshl_b32 s20, s20, 13"); e(f"s_add_u32 s20, s20, {XF_OFF[layer]}")
    e("s_cmp_eq_u32 s3, 0"); e(f"s_cselect_b32 s3, {OOB}, 0"); e("v_add_u32 v4, s3, v5"); e("s_add_u32 s21, s20, 4096")
    e(f"s_mov_b32 s22, {ST_OFF[layer]}"); e(f"s_mov_b32 s23, {ST_OFF[layer] + 8192}")
    e("s_waitcnt lgkmcnt(0)")
    srd(a, 12, 30, 31, 0, WS_USED)
    vm.issue("buffer_load_dwordx4 v[8:11], v7, s[12:15], s22 offen", "st")
    vm.issue("buffer_load_dwordx4 v[12:15], v7, s[12:15], s23 offen", "st")
    e("s_cmp_ge_u32 s18, 7"); e(f"s_cbranch_scc1 {name}_notab")
    for h in range(2):
        e(f"s_lshl_b32 s3, s18, 1");
        if h: e("s_add_u32 s3, s3, 1")
        e("s_lshl_b32 s19, s3, 10")
        e("s_mul_i32 s33, s17, 6144"); e(f"s_add_u32 s33, s33, {TAB_OFF + TAB_W64}")
        e("s_lshl_b32 s34, s17, 12"); e(f"s_add_u32 s34, s34, {TAB_OFF + TAB_TW - 6144}")
        e("s_cmp_ge_u32 s3, 6"); e("s_cselect_b32 s33, s34, s33")
        e("s_cmp_ge_u32 s3, 10"); e(f"s_cselect_b32 s33, {TAB_OFF + TAB_S2 - 10240}, s33")
        e("s_add_u32 s33, s33, s19")
        e(f"s_add_u32 m0, s19, {TBL}")
        e("buffer_load_dwordx4 v5, s[12:15], s33 offen lds")
    a.label(f"{name}_notab")
    Xr = lambda T, st, ri: 32 + ((T*2+st)*2+ri)*4
    def data_loads(T):
        for st in range(2):
            for ri in range(2):
                r = Xr(T, st, ri)
                e(f"buffer_load_dwordx4 v[{r}:{r+3}], v4, s[12:15], {'s37' if ri else 's36'} offen offset:{T*2048 + st*1024}")
    e("s_mov_b32 s36, s20"); e("s_mov_b32 s37, s21"); e("s_mov_b32 s28, 0xffff0000")
    data_loads(0)
    e("v_lshrrev_b32 v16, 5, v0"); e("v_and_b32 v17, 31, v0"); e("v_lshl_add_u32 v16, v17, 6, v16"); e("s_lshl_b32 s3, s17, 4"); e("v_add_u32 v16, s3, v16")
    e("v_sub_u32 v17, 2048, v16"); e("v_and_b32 v17, 2047, v17")
    af_addr(a, 18, 16, 22, 21); af_addr(a, 19, 17, 22, 21)
    e("v_cmp_gt_u32 vcc, 512, v0"); e("v_cndmask_b32 v18, v20, v18, vcc"); e("v_cndmask_b32 v19, v20, v19, vcc")
    e("s_lshl_b32 s20, s16, 8"); e("s_sub_u32 s22, 20224, s20")
    e(f"s_add_u32 s21, s20, {X1_OFF[layer]}"); e(f"s_add_u32 s23, s22, {X1_OFF[layer]}")
    if early >= 1: data_loads(1)
    if early >= 2:
        e("buffer_load_dwordx4 v[24:27], v18, s[12:15], s21 offen")
        e("buffer_load_dwordx4 v[28:31], v19, s[12:15], s23 offen")
    sm.mark("issued")
    e(f"s_waitcnt vmcnt({(4, 8, 10)[early]})")
    for q in range(4):
        e(f"v_mul_f32 v{8+q}, {1/640!r}, v{8+q}")
        e(f"v_mul_f32 v{12+q}, {1/640!r}, v{12+q}")
        e(f"v_fma_f32 v{12+q}, -v{8+q}, v{8+q}, v{12+q}")
        e(f"v_max_f32 v{12+q}, 0, v{12+q}")
        e(f"v_add_f32 v{12+q}, 0x3727c5ac, v{12+q}")
        e(f"v_rsq_f32 v{12+q}, v{12+q}")
    e("v_lshrrev_b32 v8, 4, v0"); e("v_mul_u32_u24 v8, 272, v8"); e("v_and_b32 v9, 15, v0"); e("v_lshl_add_u32 v8, v9, 4, v8")
    e("s_cmp_eq_u32 s18, 8"); e(f"s_cbranch_scc1 {name}_nor")
    e("ds_write_b128 v8, v[12:15]")
    a.label(f"{name}_nor")
    if early == 1:
        e("buffer_load_dwordx4 v[24:27], v18, s[12:15], s21 offen")
        e("buffer_load_dwordx4 v[28:31], v19, s[12:15], s23 offen")
    e("s_waitcnt lgkmcnt(0)"); e("s_barrier")
    sm.mark("rtab")
    if early == 0:
        data_loads(1)
        e("buffer_load_dwordx4 v[24:27], v18, s[12:15], s21 offen")
        e("buffer_load_dwordx4 v[28:31], v19, s[12:15], s23 offen")
    e("v_mul_u32_u24 v8, 272, v2"); e("v_lshl_add_u32 v8, v3, 5, v8")
    e(f"v_add_u32 v9, {TBL}, v5")
    RR = lambda T, st: 64 + (T*2+st)*8
    for T in range(2):
        for st in range(2):
            r = RR(T, st)
            e(f"ds_read_b128 v[{r}:{r+3}], v8 offset:{T*16*272 + st*128}")
            e(f"ds_read_b128 v[{r+4}:{r+7}], v8 offset:{T*16*272 + st*128 + 16}")
    for k in range(6): e(f"ds_read_b128 v[{96+4*k}:{99+4*k}], v9 offset:{k*1024}")
    W = lambda var, st: 96 + (var*2+st)*4
    ng = 0
    for T in range(2):
        for st in range(2):
            e(f"s_waitcnt vmcnt({2*(3-ng) + 2})" + (" lgkmcnt(6)" if ng == 0 else ""))
            if ng == 1:
                for k in range(8): e(f"ds_read_b128 v[{120+4*k}:{123+4*k}], v9 offset:{6144 + k*1024}")
            for ri in range(2):
                d = Xr(T, st, ri); r = RR(T, st)
                for q in range(4):
                    t0 = 20 + 2*(q & 1)
                    e(f"v_lshlrev_b32 v{t0}, 16, v{d+q}"); e(f"v_and_b32 v{t0+1}, s28, v{d+q}")
                    e(f"v_pk_mul_f32 v[{t0}:{t0+1}], v[{t0}:{t0+1}], v[{r+2*q}:{r+2*q+1}]")
                    e(f"v_cvt_pk_bf16_f32 v{d+q}, v{t0}, v{t0+1}")
            ng += 1
    sm.mark("scaled")
    e("s_waitcnt lgkmcnt(0)")
    G = lambda T, ri: 152 + (T*2+ri)*4
    def mf(d, A, B, first):
        c = "0" if first else f"v[{d}:{d+3}]"
        e(f"v_mfma_f32_16x16x32_bf16 v[{d}:{d+3}], v[{A}:{A+3}], v[{B}:{B+3}], {c}")
    for T in range(2):
        for st in range(2):
            mf(G(T,0), Xr(T,st,0), W(0,st), st == 0)
            mf(G(T,1), Xr(T,st,0), W(1,st), st == 0)
        for st in range(2):
            mf(G(T,0), Xr(T,st,1), W(2,st), False)
            mf(G(T,1), Xr(T,st,1), W(0,st), False)
    for T in range(2):
        for b in range(4):
            c, s = 120 + 4*T + b, 128 + 4*T + b
            gr, gi = G(T,0) + b, G(T,1) + b
            e(f"v_mul_f32 v{32+4*T+b}, v{gr}, v{c}"); e(f"v_mul_f32 v{40+4*T+b}, v{gi}, v{c}")
            e(f"v_fmac_f32 v{32+4*T+b}, v{gi}, v{s}"); e(f"v_fma_f32 v{40+4*T+b}, -v{gr}, v{s}, v{40+4*T+b}")
    for q in range(4):
        e(f"v_cvt_pk_bf16_f32 v{48+q}, v{32+2*q}, v{33+2*q}")
        e(f"v_cvt_pk_bf16_f32 v{52+q}, v{40+2*q}, v{41+2*q}")
    e("v_mul_u32_u24 v8, 33, v2"); e("v_lshl_add_u32 v8, v3, 2, v8"); e("v_mul_u32_u24 v8, 48, v8"); e("s_lshl_b32 s3, s18, 2"); e(f"s_add_u32 s3, s3, {YB}"); e("v_add_u32 v8, s3, v8")
    for T2 in range(2):
        mf(56 + 4*T2, 136 + 8*T2, 48, True)
    for T2 in range(2):
        mf(56 + 4*T2, 140 + 8*T2, 52, False)
    sm.mark("fft")
    for T2 in range(2):
        for b in range(4):
            e(f"ds_write_b32 v8, v{56+4*T2+b} offset:{768*T2 + 48*b}")
    e("s_waitcnt lgkmcnt(0)"); e("s_barrier")
    sm.mark("ybar")
    e("s_cmp_eq_u32 s18, 8"); e(f"s_cbranch_scc1 {name}_end")
    e("v_lshrrev_b32 v8, 5, v0"); e("v_mul_u32_u24 v8, 33, v8"); e("v_and_b32 v9, 31, v0"); e("v_add_u32 v8, v8, v9"); e("v_mul_u32_u24 v8, 48, v8")
    e(f"ds_read_b128 v[32:35], v8 offset:{YB}"); e(f"ds_read_b128 v[36:39], v8 offset:{YB+16}"); e(f"ds_read_b32 v64, v8 offset:{YB+32}")
    e("s_waitcnt vmcnt(0)")
    for q in range(4):
        e(f"v_lshlrev_b32 v{40+2*q}, 16, v{24+q}"); e(f"v_and_b32 v{41+2*q}, s28, v{24+q}")
        e(f"v_lshlrev_b32 v{48+2*q}, 16, v{28+q}"); e(f"v_and_b32 v{49+2*q}, s28, v{28+q}")
    e("s_waitcnt lgkmcnt(0)")
    for q in range(8):
        e(f"v_add_f32 v{40+q}, v{40+q}, v{32+q}")
        e(f"v_add_f32 v{48+q}, v{48+q}, v{64 if q == 0 else 40-q}")
    for q in range(4):
        e(f"v_cvt_pk_bf16_f32 v{56+q}, v{40+2*q}, v{41+2*q}")
        e(f"v_cvt_pk_bf16_f32 v{60+q}, v{48+2*q}, v{49+2*q}")
    if layer == 0:
        e(f"s_add_u32 s21, s20, {XIN_OFF[1]}"); e(f"s_add_u32 s23, s22, {XIN_OFF[1]}")
        e("buffer_store_dwordx4 v[56:59], v18, s[12:15], s21 offen sc1")
        e("buffer_store_dwordx4 v[60:63], v19, s[12:15], s23 offen sc1")
    else:
        e(f"s_mov_b32 s26, {ACT}"); e("s_mov_b32 s27, 0x20000")
        e("v_mul_u32_u24 v18, 1280, v16"); e("v_mul_u32_u24 v19, 1280, v17")
        e("s_lshl_b32 s20, s16, 4"); e("s_sub_u32 s22, 1264, s20")
        e("buffer_store_dwordx4 v[56:59], v18, s[24:27], s20 offen")
        e("buffer_store_dwordx4 v[60:63], v19, s[24:27], s22 offen")
    if stamps:
        sm.mark("stored"); e("s_waitcnt vmcnt(0)"); sm.mark("drain"); sm.flush(30, 31, 18)
    a.label(f"{name}_end")
    e("s_endpgm")
    gen_k3.names = sm.names
    return kernel_header(name) + a.text() + kernel_desc(name, 168, 0, 102 if stamps else 64)
K3_LDS = TBL + 14336
```

```python
from asm import *
from layout import *
from k1b import x_items, dma_item, w_items, emit_now
from kA import signal, wait_cnt, force
OOB = 0x40000000
TB = 0
PITCH = 352
KVT = 45056
KVZ = 49152
KVS = 51200
XB = 51200
UREG = 61440

def hoisted(a):
    e = a.e
    e("v_and_b32 v8, 1, v3"); e("v_lshrrev_b32 v12, 1, v3")
    e("v_lshlrev_b32 v236, 4, v2"); e("v_lshl_add_u32 v238, v12, 3, v236"); e("v_lshl_add_u32 v236, v3, 8, v236"); e(f"v_add_u32 v237, {AF_WT}, v236")
    e(f"v_mul_u32_u24 v9, {AF_WT}, v8"); e("v_add_u32 v238, v238, v9"); e("v_add_u32 v238, 1024, v238")
    e("s_mul_i32 s46, s17, 1280"); e("s_add_u32 s46, s46, s44")
    e("s_lshl_b32 s19, s18, 5"); e("v_add_u32 v9, s19, v2"); e(f"v_mul_u32_u24 v9, {PITCH}, v9")
    e("v_mul_u32_u24 v10, 48, v3"); e("v_add_u32 v244, v9, v10")
    e("v_lshl_add_u32 v245, v3, 5, v9"); e("v_add_u32 v245, 192, v245")
    e("v_lshrrev_b32 v9, 2, v2"); e("v_lshl_add_u32 v9, v3, 2, v9"); e(f"v_mul_u32_u24 v9, {PITCH}, v9"); e("v_and_b32 v10, 3, v1"); e("v_lshl_add_u32 v9, v10, 3, v9")
    e("s_lshr_b32 s19, s18, 1"); e("s_and_b32 s23, s18, 1")
    e("s_mul_i32 s3, s19, 96"); e("v_add_u32 v246, s3, v9")
    e("s_lshl_b32 s3, s18, 5"); e("s_add_u32 s3, s3, 192"); e("v_add_u32 v247, s3, v9")
    e("s_mul_i32 s3, s23, 10"); e("v_add_u32 v9, s3, v2"); e("v_cmp_eq_u32 vcc, 10, v2"); e("v_mov_b32 v10, 20"); e("v_cndmask_b32 v9, v9, v10, vcc")
    e("v_mul_u32_u24 v9, 96, v9"); e("v_lshl_add_u32 v9, v3, 3, v9")
    e("s_mul_i32 s3, s19, 2016"); e(f"s_add_u32 s3, s3, {KVS}"); e("v_add_u32 v9, s3, v9")
    e("s_sub_u32 s3, 11, s23"); e(f"v_mov_b32 v11, {KVS + 4096}"); e("v_cmp_gt_u32 vcc, s3, v2"); e("v_cndmask_b32 v248, v11, v9, vcc")
    e("v_lshlrev_b32 v9, 4, v0"); e(f"v_add_u32 v251, {KVS}, v9"); e(f"v_add_u32 v252, {KVT}, v9")
    e(f"v_mov_b32 v11, {OOB}"); e("v_cmp_gt_u32 vcc, 252, v0"); e("v_cndmask_b32 v250, v11, v9, vcc")
    e("s_lshl_b32 s3, s17, 4"); e(f"s_mul_i32 s61, s3, {KVP_ST}"); e(f"s_add_u32 s61, s61, {KVP_OFF[0]}")
    e(f"s_mul_i32 s56, s16, {KVP_ST}"); e("s_add_u32 s56, s56, s61")
    e("v_and_b32 v13, 3, v2"); e("v_bfe_u32 v10, v2, 2, 1"); e("v_mul_u32_u24 v10, 10, v10"); e("v_add_u32 v10, v10, v13")
    e("v_mul_u32_u24 v11, 2016, v12"); e("v_mul_u32_u24 v14, 48, v8"); e("v_add_u32 v11, v11, v14"); e(f"v_add_u32 v11, {KVT}, v11")
    e("v_mul_u32_u24 v14, 96, v10"); e("v_add_u32 v14, v14, v11")
    e("v_lshrrev_b32 v15, 3, v2"); e("v_cmp_eq_u32 s[40:41], v15, v12"); e(f"v_mov_b32 v15, {KVZ}"); e("v_cndmask_b32 v253, v15, v14, s[40:41]")
    e("v_add_u32 v10, 8, v10"); e("v_cmp_eq_u32 vcc, 2, v13"); e("v_mov_b32 v14, 20"); e("v_cndmask_b32 v10, v10, v14, vcc")
    e("v_mul_u32_u24 v14, 96, v10"); e("v_add_u32 v14, v14, v11"); e("v_cndmask_b32 v14, v15, v14, s[40:41]")
    e("v_cmp_eq_u32 vcc, 3, v13"); e("v_cndmask_b32 v249, v14, v15, vcc")
    e("v_mul_u32_u24 v10, 5120, v8"); e("v_lshl_add_u32 v10, v12, 8, v10")
    e("v_lshrrev_b32 v11, 2, v2"); e("v_lshl_add_u32 v10, v11, 6, v10"); e("v_lshl_add_u32 v10, v13, 2, v10")
    e("s_lshl_b32 s3, s18, 4"); e(f"s_add_u32 s3, s3, {XB}"); e("v_add_u32 v254, s3, v10")
    e(f"v_add_u32 v239, {XB}, v9")
    e("v_lshrrev_b32 v10, 4, v0"); e("v_lshlrev_b32 v10, 12, v10"); e("v_bfe_u32 v11, v0, 2, 2"); e("v_lshl_add_u32 v10, v11, 8, v10")
    e("v_and_b32 v11, 3, v0"); e("v_lshl_add_u32 v255, v11, 4, v10")
    e(f"v_mov_b32 v11, {OOB}"); e("v_cmp_gt_u32 vcc, 128, v0"); e("v_cndmask_b32 v243, v11, v255, vcc")
    e("s_lshr_b32 s19, s16, 1"); e("s_lshr_b32 s60, s19, 2"); e("s_lshl_b32 s60, s60, 11")
    e("s_and_b32 s3, s19, 3"); e("s_lshl_b32 s3, s3, 6"); e("s_add_u32 s60, s60, s3")
    e("s_and_b32 s23, s16, 1"); e("s_lshl_b32 s3, s23, 10"); e("s_add_u32 s60, s60, s3"); e("s_mul_i32 s3, s17, 163840"); e("s_add_u32 s60, s60, s3"); e(f"s_add_u32 s60, s60, {XF_OFF[0]}")
    e("s_lshl_b32 s19, s19, 2"); e("s_add_u32 s19, s19, s18"); e("s_lshl_b32 s59, s19, 6"); e("s_lshl_b32 s3, s23, 5"); e("s_add_u32 s59, s59, s3"); e("s_lshl_b32 s59, s59, 2"); e(f"s_add_u32 s59, s59, {ST_OFF[0]}")
    e("v_lshl_add_u32 v10, v2, 1, v12"); e("v_lshlrev_b32 v10, 2, v10"); e(f"v_mov_b32 v11, {OOB}"); e("v_cmp_eq_u32 vcc, 0, v8"); e("v_cndmask_b32 v242, v11, v10, vcc")
    for r in range(152, 156): e(f"v_mov_b32 v{r}, 0x3f803f80")
    e("v_cmp_eq_u32 s[24:25], 1, v13"); e("v_cmp_eq_u32 s[28:29], 3, v13")
    e("v_lshrrev_b32 v9, 2, v2"); e("v_lshl_add_u32 v9, v9, 4, v2"); e("v_lshlrev_b32 v9, 2, v9")

def pair_reduce(e, op, x0, x1):
    e(f"v_permlane16_swap_b32 v{x0}, v{x1}"); e(f"{op} v{x0}, v{x0}, v{x1}")
    e(f"v_mov_b32 v{x1}, v{x0}"); e(f"v_permlane16_swap_b32 v{x0}, v{x1}")

def softmax_l4_a(r, K, C, E, tmp, ratio=False):
    e = r.e
    mx = (tmp, tmp+1); mn = (tmp+2, tmp+3); sp = (tmp+4, tmp+5); sm = (tmp+6, tmp+7)
    for tt in range(2):
        k = K[tt]
        e(f"v_max3_f32 v{mx[tt]}, v{k}, v{k+1}, v{k+2}"); e(f"v_min3_f32 v{mn[tt]}, v{k}, v{k+1}, v{k+2}")
    for u in (3, 5, 7):
        for tt in range(2):
            k = K[tt]
            e(f"v_max3_f32 v{mx[tt]}, v{mx[tt]}, v{k+u}, v{k+u+1}"); e(f"v_min3_f32 v{mn[tt]}, v{mn[tt]}, v{k+u}, v{k+u+1}")
    for tt in range(2):
        k = K[tt]
        e(f"v_max_f32 v{mx[tt]}, v{mx[tt]}, v{k+9}"); e(f"v_min_f32 v{mn[tt]}, v{mn[tt]}, v{k+9}")
    e(f"v_permlane16_swap_b32 v{mx[0]}, v{mx[1]}"); e(f"v_permlane16_swap_b32 v{mn[0]}, v{mn[1]}")
    e(f"v_max_f32 v{mx[0]}, v{mx[0]}, v{mx[1]}"); e(f"v_min_f32 v{mn[0]}, v{mn[0]}, v{mn[1]}")
    e(f"v_mov_b32 v{mx[1]}, v{mx[0]}"); e(f"v_mov_b32 v{mn[1]}, v{mn[0]}")
    e(f"v_permlane16_swap_b32 v{mx[0]}, v{mx[1]}"); e(f"v_permlane16_swap_b32 v{mn[0]}, v{mn[1]}")
    for tt in range(2):
        e(f"v_mul_f32 v{mx[tt]}, v{C[tt]}, v{mx[tt]}"); e(f"v_mul_f32 v{mn[tt]}, v{C[tt]}, v{mn[tt]}")
    seq = [(tt, u) for u in range(10) for tt in range(2)]
    def fm(tt, u):
        e(f"v_fma_f32 v{E[tt]+u}, v{K[tt]+u}, v{C[tt]}, -v{mx[tt]}"); e(f"v_fma_f32 v{K[tt]+u}, -v{K[tt]+u}, v{C[tt]}, v{mn[tt]}")
    def ex(tt, u):
        e(f"v_exp_f32 v{E[tt]+u}, v{E[tt]+u}"); e(f"v_exp_f32 v{K[tt]+u}, v{K[tt]+u}")
    def ad(tt, u):
        if u == 0: return
        if u == 1:
            e(f"v_add_f32 v{sp[tt]}, v{E[tt]}, v{E[tt]+1}"); e(f"v_add_f32 v{sm[tt]}, v{K[tt]}, v{K[tt]+1}")
        else:
            e(f"v_add_f32 v{sp[tt]}, v{sp[tt]}, v{E[tt]+u}"); e(f"v_add_f32 v{sm[tt]}, v{sm[tt]}, v{K[tt]+u}")
    n = len(seq)
    for i in range(n + 4):
        if i < n: fm(*seq[i])
        if 0 <= i - 2 < n: ex(*seq[i-2])
        if 0 <= i - 4 < n: ad(*seq[i-4])
    e(f"v_permlane16_swap_b32 v{sp[0]}, v{sp[1]}"); e(f"v_permlane16_swap_b32 v{sm[0]}, v{sm[1]}")
    e(f"v_add_f32 v{sp[0]}, v{sp[0]}, v{sp[1]}"); e(f"v_add_f32 v{sm[0]}, v{sm[0]}, v{sm[1]}")
    if ratio:
        e(f"v_rcp_f32 v{sm[0]}, v{sm[0]}"); e(f"v_mov_b32 v{sp[1]}, v{sp[0]}"); e(f"v_mul_f32 v{sm[0]}, v{sp[0]}, v{sm[0]}")
        e(f"v_mov_b32 v{sm[1]}, v{sm[0]}")
    else:
        e(f"v_rcp_f32 v{sp[0]}, v{sp[0]}"); e(f"v_rcp_f32 v{sm[0]}, v{sm[0]}")
        e(f"v_mov_b32 v{sp[1]}, v{sp[0]}"); e(f"v_mov_b32 v{sm[1]}, v{sm[0]}")
    e(f"v_permlane16_swap_b32 v{sp[0]}, v{sp[1]}"); e(f"v_permlane16_swap_b32 v{sm[0]}, v{sm[1]}")
def softmax_l4_b(r, K, E, tmp, P, ratio=False, after=None):
    e = r.e
    sp = tmp + 4; sm = tmp + 6
    for tt in range(2):
        for u in range(10):
            if not ratio: e(f"v_mul_f32 v{E[tt]+u}, v{sp+tt}, v{E[tt]+u}")
            e(f"v_mul_f32 v{K[tt]+u}, v{sm+tt}, v{K[tt]+u}")
        for q in range(5):
            e(f"v_cvt_pk_bf16_f32 v{P[tt]+q}, v{E[tt]+2*q}, v{E[tt]+2*q+1}")
            e(f"v_cvt_pk_bf16_f32 v{P[tt]+5+q}, v{K[tt]+2*q}, v{K[tt]+2*q+1}")
        e(f"v_mov_b32 v{P[tt]+10}, 0"); e(f"v_mov_b32 v{P[tt]+11}, 0")
        if after: after(tt)

def stats_items(r):
    e = r.e
    for tt in range(2):
        g0 = 144 + 4*tt
        e(f"v_cndmask_b32 v{g0}, v{g0}, v{g0+1}, s[24:25]")
        e(f"v_cndmask_b32 v{g0+2}, v{g0+2}, v{g0+3}, s[28:29]")
        e(f"v_cndmask_b32 v{g0+2}, v{g0}, v{g0+2}, s[22:23]")
    e("ds_bpermute_b32 v145, v9, v146"); e("ds_bpermute_b32 v149, v9, v150")
    for tt in range(2): e(f"v_mul_f32 v{136+4*tt}, {1/640!r}, v{136+4*tt}")
    r.mark("step")
    for tt in range(2): e(f"v_mul_f32 v{145+4*tt}, {1/640!r}, v{145+4*tt}")
    for tt in range(2): e(f"v_fma_f32 v{145+4*tt}, -v{136+4*tt}, v{136+4*tt}, v{145+4*tt}")
    for tt in range(2): e(f"v_max_f32 v{145+4*tt}, 0, v{145+4*tt}")
    for tt in range(2): e(f"v_add_f32 v{145+4*tt}, 0x3727c5ac, v{145+4*tt}")
    for tt in range(2): e(f"v_rsq_f32 v{10+tt}, v{145+4*tt}")
    e("v_mov_b32 v205, 0x3f80"); e("v_mov_b32 v213, 0x3f80")
    for tt in range(2): e(f"v_mul_f32 v{14+tt}, {LOG2E!r}, v{10+tt}")
    for q in (206, 207, 214, 215): e(f"v_mov_b32 v{q}, 0")

def epiA_tail(r):
    e = r.e
    B = lambda nt, ks: (56 + 16*nt + 4*ks) if nt < 2 else (156 + 4*ks)
    for ks in range(4):
        e(f"ds_read_b64_tr_b16 v[{216+4*ks}:{217+4*ks}], v247 offset:{ks*32*PITCH}")
        e(f"ds_read_b64_tr_b16 v[{218+4*ks}:{219+4*ks}], v247 offset:{ks*32*PITCH + 16*PITCH}")
        for nt in range(3):
            b = B(nt, ks)
            e(f"ds_read_b64_tr_b16 v[{b}:{b+1}], v246 offset:{ks*32*PITCH + 32*nt}")
            e(f"ds_read_b64_tr_b16 v[{b+2}:{b+3}], v246 offset:{ks*32*PITCH + 16*PITCH + 32*nt}")
    r.mark("step")
    for ks in range(4):
        for nt in range(3):
            b = B(nt, ks); d = 176 + 4*nt
            c = "0" if ks == 0 else f"v[{d}:{d+3}]"
            e(f"v_mfma_f32_16x16x32_bf16 v[{d}:{d+3}], v[{b}:{b+3}], v[{216+4*ks}:{219+4*ks}], {c}")
    r.mark("step")
    for nt in range(3):
        d = 176 + 4*nt
        e(f"v_cvt_pk_bf16_f32 v{d}, v{d}, v{d+1}"); e(f"v_cvt_pk_bf16_f32 v{d+1}, v{d+2}, v{d+3}")
        e(f"ds_write_b64 v248, v[{d}:{d+1}] offset:{32*nt}")
    r.mark("barrier")
    e("ds_read_b128 v[176:179], v251")
    r.mark("step")
    r.items.append(("VM", "buffer_store_dwordx4 v[176:179], v250, s[12:15], s56 offen sc1", "kvst", []))

def sprinkle(a, vm, items, pend, every, start=0, st=None):
    e = a.e
    for i, it in enumerate(items):
        if isinstance(it, tuple):
            if it[0] == "MARK": e("s_waitcnt lgkmcnt(0)")
            elif it[0] == "VM": vm.issue(it[1], it[2])
            elif it[0] == "ST" and st: st.mark(it[1])
        else: e(it)
        if i >= start and (i - start) % every == every - 1 and pend:
            while pend:
                p = pend.pop(0)
                if isinstance(p, tuple): vm.issue(p[1], p[2]); break
                e(p)
    emit_now(a, vm, pend); pend.clear()

def gen_kA(name, stamps=False, NLEAD=22, VMGAP=4, fine=False, SIGSTEP=5, WT=True, LEAD5=6, PADN=1, only=None, HSH=False, SLA=2, SLB=2, GAPA2=3, GAPB2=4, PREW=0, LDEV=8, EARLYW=False, WE=1, KPSC=True, OSC=True, ASY=False, SIG1=17, CK0=4, CK1=12, TSL=4, TSN=3, KPGAP=2, SENT=False, KS0=2, SUMPOS=None, KCLR=0, MFR=3, HEV=12, EP5=False, LW=0, LWS=0, GAP5=None, T5N=0, B5=11, SELB=False, T4O=False, KNAN=False, KDLY=False):
    a = Asm(); e = a.e; vm = VM(a); st = Stamps(a, stamps, 1)
    if only is not None:
        _mark = st.mark
        st.mark = lambda nm: _mark(nm) if nm in only else None
    a.label(f"{name}_body")
    e("s_cmp_ge_u32 s2, 256")
    e(f"s_cbranch_scc1 {name}_end")
    st.mark("start")
    if stamps: e("s_mov_b32 s57, 0"); e("s_mov_b32 s58, 0")
    e("s_load_dwordx2 s[30:31], s[0:1], 88")
    wg_to_rc(a, 16, 17, 19)
    e("v_and_b32 v1, 63, v0"); e("v_lshrrev_b32 v2, 6, v0")
    e("v_readfirstlane_b32 s18, v2")
    e("v_lshlrev_b32 v5, 4, v1")
    e("s_lshl_b32 s44, s16, 2"); e("s_add_u32 s44, s44, s18"); e(f"s_mul_i32 s44, s44, {2*AF_WT}")
    e(f"s_add_u32 s19, s44, {XIN_OFF[0]}")
    e(f"s_mul_i32 s34, s17, {W1_C}")
    e("s_lshl_b32 s21, s18, 10"); e("s_mul_i32 s64, s18, 3072"); e("s_lshl_b32 s65, s18, 11")
    e("s_mov_b32 s20, 0"); e(f"s_mov_b32 s35, {AF_WT}")
    e(f"s_mov_b32 s6, {2*AF_WT}"); e("s_mov_b32 s7, 0x20000"); e(f"s_mov_b32 s10, {163840}"); e("s_mov_b32 s11, 0x20000")
    e("s_add_u32 s19, s19, s32")
    e("s_waitcnt lgkmcnt(0)")
    e("s_add_u32 s4, s30, s19"); e("s_addc_u32 s5, s31, 0")
    e("s_add_u32 s8, s30, s34"); e("s_addc_u32 s9, s31, 0")
    X = lambda tt, s: f"a[{(2*s+tt)*4}:{(2*s+tt)*4+3}]"
    def dma(sreg, off, srdn, tag): return [f"s_add_u32 m0, {sreg}, {off}", ("VM", f"buffer_load_dwordx4 v5, {srdn}, m0 offen lds", tag, [])]
    def grp3(G, base, srdn, tag):
        return sum((dma("s64", base + G*12288 + T*1024, srdn, tag) for T in range(3)), [])
    def grp2(G, base, srdn, tag):
        return sum((dma("s65", base + G*8192 + T*1024, srdn, tag) for T in range(2)), [])
    xt = lambda s: [(i[0], i[1], f"x{s}", i[3]) if isinstance(i, tuple) else i for i in x_items(X, s)]
    loadsA = grp3(0, 0, "s[8:11]", "W0") + xt(0) + xt(1)
    for G in range(1, 5):
        loadsA += grp3(G, 0, "s[8:11]", f"W{G}")
        for s in range(4*G - 2, 4*G + 2): loadsA += xt(s)
    loadsA += xt(18) + grp2(0, UREG, "s[8:11]", "U0") + xt(19)
    for G in range(1, 5): loadsA += grp2(G, UREG, "s[8:11]", f"U{G}")
    loadsP = []
    for G in range(5): loadsP += grp3(G, 102400, "s[8:11]", f"P{G}")
    r = Rec()
    r.e("v_and_b32 v2, 15, v1"); r.e("v_lshrrev_b32 v3, 4, v1")
    r.e(f"v_add_u32 v6, {UREG}, v5"); r.e("v_add_u32 v7, 102400, v5")
    r.e("s_add_u32 s36, s8, 102400"); r.e("s_addc_u32 s37, s9, 0"); r.e("s_mov_b32 s38, 102400"); r.e("s_mov_b32 s39, 0x20000")
    r.e("s_add_u32 s12, s30, s32"); r.e("s_addc_u32 s13, s31, 0"); r.e(f"s_sub_u32 s14, {WS_USED}, s32"); r.e("s_mov_b32 s15, 0x20000")
    r.e(f"s_mul_i32 s34, s17, {W2_C}"); r.e(f"s_add_u32 s34, s34, {W2_OFF - 102400}")
    r.e("s_add_u32 s48, s30, s34"); r.e("s_addc_u32 s49, s31, 0"); r.e("s_mov_b32 s50, 163840"); r.e("s_mov_b32 s51, 0x20000")
    r.e("s_add_u32 s52, s48, 102400"); r.e("s_addc_u32 s53, s49, 0"); r.e("s_mov_b32 s54, 102400"); r.e("s_mov_b32 s55, 0x20000")
    hoisted(r)
    r.e("v_and_b32 v8, 2, v2"); r.e("v_cmp_eq_u32 s[22:23], 2, v8")
    r.e(f"s_lshl_b32 s45, s17, 7"); r.e(f"s_add_u32 s45, s45, {CNT_OFF[0]}")
    setup = []
    for i in r.items:
        if i.startswith("s_nop"): continue
        if i.startswith("s_addc") or i.startswith("s_cselect"): setup[-1] += "\n" + i
        else: setup.append(i)
    lead = []; n = 0
    while n < NLEAD:
        it = loadsA.pop(0); lead.append(it)
        if isinstance(it, tuple): n += 1
    sideH = Side(a, vm)
    if HSH:
        for q in range(152, 156): e(f"v_mov_b32 v{q}, 0x3f803f80")
        sideH.add([i for i in setup if "0x3f803f80" not in i]); setup = []
    per = -(-len(setup) // max(1, NLEAD - 3)); k = 0
    for it in lead:
        if isinstance(it, tuple):
            vm.issue(it[1], it[2]); k += 1
            if k > 3:
                n = 0
                while setup and n < per:
                    e(setup.pop(0)); n += 1
        else: e(it)
    for it in setup: e(it)
    sideA = Side(a, vm, VMGAP); sideA.add(loadsA)
    if not fine: st.mark("issued")
    vm.wait("W0"); e("s_barrier")
    accA = lambda tt, T: 56 + 20*tt + 4*T
    accB = lambda tt, T: 96 + 20*tt + 4*T
    def need(side, t):
        force(side, vm, t)
        if t in vm.q: vm.wait(t)
    B3 = (16, 28, 40); B2 = (16, 24, 32, 40)
    def preA1(s):
        if only and s in (5, 10, 15): st.mark(f"A1s{s}")
        need(sideA, f"x{s}")
        if s % 4 == 2 and s < 18:
            need(sideA, f"W{(s+2)//4}"); e("s_barrier")
    def extra0(s):
        out = []
        for tt in range(2):
            c0 = "0" if s == 0 else f"v[{136+4*tt}:{139+4*tt}]"
            c1 = "0" if s == 0 else f"v[{144+4*tt}:{147+4*tt}]"
            out.append(f"v_mfma_f32_16x16x32_bf16 v[{136+4*tt}:{139+4*tt}], v[152:155], {X(tt,s)}, {c0}")
            out.append(f"v_mfma_f32_16x16x32_bf16 v[{144+4*tt}:{147+4*tt}], {X(tt,s)}, {X(tt,s)}, {c1}")
        return out
    gemm3(a, 20, [0, 1, 2], lambda s, T: (5, s*3072 + T*1024), accA, B3, X, True, [sideA, sideH], extra0, preA1)
    sideH.flush()
    st.mark("A1")
    need(sideA, "U0"); e("s_barrier")
    sideA.vm_gap = GAPA2; sideA.add(loadsP)
    sideS = Side(a, vm); sideS.debt = True
    KA = (56, 76); EE = (156, 166); PP = (176, 188)
    r = Rec(); stats_items(r); softmax_l4_a(r, KA, (14, 15), EE, 216); sideS.add(r.items)
    def preA2(s):
        if only and s in (1, 2, 5, 6, 10, 15): st.mark(f"A2s{s}")
        if s % 4 == 1 and s < 17:
            need(sideA, f"U{(s+3)//4}"); e("s_barrier")
    gemm3(a, 20, [3, 4], lambda s, T: (6, s*2048 + (T-3)*1024), accA, B2, X, True, [sideA, sideS], None, preA2, slots=SLA, wait_every=WE)
    st.mark("A2")
    r = Rec()
    for tt in range(2):
        vb = 66 + 20*tt
        for u in range(10): r.e(f"v_mul_f32 v{vb+u}, v{10+tt}, v{vb+u}")
        for q in range(5): r.e(f"v_cvt_pk_bf16_f32 v{200+8*tt+q}, v{vb+2*q}, v{vb+2*q+1}")
        for q in range(2): r.e(f"ds_write_b128 v245, v[{200+8*tt+4*q}:{203+8*tt+4*q}] offset:{16*q + tt*16*PITCH}")
    r.items.append(("ST", "h_v"))
    r.items += sideS.q; sideS.q = []
    r.items.append(("ST", "h_a"))
    def phi_rows(tt):
        for q in range(3): r.e(f"ds_write_b128 v244, v[{PP[tt]+4*q}:{PP[tt]+4*q+3}] offset:{16*q + tt*16*PITCH}")
    softmax_l4_b(r, KA, EE, 216, PP, after=phi_rows)
    r.items.append(("ST", "h_b"))
    pend = list(sideA.q); sideA.q = []
    if KCLR == 1:
        for q in range(4): e(f"v_mov_b32 v{232+q}, -1")
        e("s_cmp_eq_u32 s32, 0"); e(f"s_cselect_b32 s3, 0, {OOB}"); e(f"v_subrev_u32 v8, {KVS}, v251"); e("v_add_u32 v8, s3, v8")
        e("s_lshl_b32 s3, s2, 12"); e(f"s_add_u32 s3, s3, {KVP_OFF[0] + LSTRIDE}")
        vm.issue("buffer_store_dwordx4 v[232:235], v8, s[12:15], s3 offen sc1", "kclr")
    if KCLR == 2:
        e("s_cmp_lg_u32 s32, 0"); e(f"s_cbranch_scc1 {name}_nokclr")
        for q in range(4): e(f"v_mov_b32 v{232+q}, -1")
        e(f"v_subrev_u32 v8, {KVS}, v251")
        e("s_lshl_b32 s3, s2, 12"); e(f"s_add_u32 s3, s3, {KVP_OFF[0] + LSTRIDE}")
        e("buffer_store_dwordx4 v[232:235], v8, s[12:15], s3 offen sc1")
        a.label(f"{name}_nokclr")
    sprinkle(a, vm, r.items, pend, HEV, st=st if only else None)
    for q in range(4): e(f"v_mov_b32 v{232+q}, 0")
    e(f"v_add_u32 v8, {KVZ - KVS}, v251")
    e("v_cmp_gt_u32 vcc, 128, v0"); e("s_and_saveexec_b64 s[40:41], vcc")
    e("ds_write_b128 v8, v[232:235]")
    e("s_mov_b64 exec, s[40:41]")
    e("s_waitcnt lgkmcnt(0)")
    if only: st.mark("h_w")
    vm.wait("P0")
    if only: st.mark("h_p")
    e("s_barrier")
    st.mark("head")
    sideB = Side(a, vm, VMGAP); sideW = Side(a, vm, VMGAP)
    r = Rec(); epiA_tail(r)
    if KDLY:
        r.items.insert(len(r.items) - 1, f"s_bitcmp1_b32 s16, 0\ns_cbranch_scc0 {name}_nodly\ns_sleep 60\n{name}_nodly:")
    sideB.add(r.items)
    for q in range(4): e(f"v_mov_b32 v{232+q}, -1")
    e(f"s_add_u32 s47, s46, {O_OFF[0]}")
    sideW.q = [("VM", "buffer_store_dwordx4 v[232:235], v236, s[12:15], s47 offen sc1", "clr", []),
               ("VM", "buffer_store_dwordx4 v[232:235], v237, s[12:15], s47 offen sc1", "clr", []),
               ("VM", "buffer_store_dwordx2 v[232:233], v238, s[12:15], s47 offen sc1", "clr", [])]
    for G in range(5): sideW.add(grp2(G, UREG, "s[36:39]", f"V{G}"))
    state = {"sig": False}
    def do_signal():
        assert not any(isinstance(i, tuple) and i[0] == "VM" and i[2] in (("clr",) if SENT else ("clr", "kvst")) for i in sideW.q + ([] if SENT else sideB.q))
        if "kvst" in vm.q and not SENT: vm.wait("kvst")
        if "clr" in vm.q: vm.wait("clr")
        signal(a, "s45", f"{name}_sig1"); state["sig"] = True
    def preB1(s):
        if only and s in (2, 5, 10, 15): st.mark(f"B1s{s}")
        if s % 4 == 2 and s < 18:
            t = f"P{(s+2)//4}"
            if t in vm.q: vm.wait(t)
            e("s_barrier")
        if (ASY or SENT) and s == SIG1: do_signal()
    sel = Rec()
    sel.e("v_and_b32 v8, 1, v2"); sel.e("v_lshlrev_b32 v8, 4, v8"); sel.e("v_mov_b32 v12, 0x3f80"); sel.e("v_lshlrev_b32 v8, v8, v12")
    sel.e("v_lshrrev_b32 v12, 2, v2"); sel.e("v_cmp_eq_u32 vcc, v12, v3"); sel.items[-1] += "\nv_cndmask_b32 v8, 0, v8, vcc"
    sel.e("v_and_b32 v12, 2, v2"); sel.e("v_cmp_eq_u32 vcc, 0, v12"); sel.items[-1] += "\nv_cndmask_b32 v210, 0, v8, vcc\nv_cndmask_b32 v211, v8, 0, vcc"
    for q in (208, 209, 212, 213): sel.e(f"v_mov_b32 v{q}, 0")
    if SELB: sideB.add(sel.items); sel.items = []
    gemm3(a, 20, [0, 1, 2], lambda s, T: (7, s*3072 + T*1024), accB, B3, X, True, [sideB, sideW], None, preB1,
          slots=(lambda s: TSL if s < TSN else 2) if (ASY or SENT) else 2)
    st.mark("B1")
    sideB.flush()
    need(sideW, "V0"); e("s_barrier")
    sideW.vm_gap = GAPB2
    sideS = Side(a, vm); sideS.debt = True
    KQ = (96, 116)
    r = Rec(); softmax_l4_a(r, KQ, (14, 15), EE, 200, ratio=True); sideS.add(r.items)
    KP = lambda R: (56 + 4*R) if R < 10 else (216 + 4*(R-10)) if R < 14 else (136 + 4*(R-14))
    kpl = []
    for R in range(16):
        kpl.append(("VM", f"buffer_load_dwordx4 v[{KP(R)}:{KP(R)+3}], v250, s[12:15], s61 offen" + (" sc1" if KPSC else ""), f"kp{R//4}", []))
        if R < 15: kpl.append(f"s_add_u32 s61, s61, {KVP_ST}")
    def kp_check(G):
        r0 = [KP(4*G + i) for i in range(4)]
        return [f"v_max3_u32 v8, v{r0[0]}, v{r0[0]+3}, v{r0[1]}", f"v_max3_u32 v8, v8, v{r0[1]+3}, v{r0[2]}", f"v_max3_u32 v8, v8, v{r0[2]+3}, v{r0[3]}",
                f"v_max_u32 v8, v8, v{r0[3]+3}", "v_cmp_eq_u32 vcc, -1, v8"]
    def preB2(s):
        if only and s in (1, 2, 5, 6, 10, 15): st.mark(f"B2s{s}")
        if s % 4 == 1 and s < 17:
            need(sideW, f"V{(s+3)//4}"); e("s_barrier")
        if s == 1:
            for s2 in range(12): sideW.add(w_items(s2, 102400, "s[48:51]", lambda s: f"w{s//4}"))
        if not ASY and not SENT and s == SIGSTEP: do_signal()
        if SENT and s == KS0:
            idx = max([i + 1 for i, it in enumerate(sideW.q) if isinstance(it, tuple) and it[2].startswith("V")] + [1 if (sideW.q and isinstance(sideW.q[0], tuple)) else 0])
            sideW.q = sideW.q[:idx] + kpl + sideW.q[idx:]; sideW.vm_gap = KPGAP
        if ASY and s == CK0:
            e("v_mov_b32 v240, 0"); vm.issue("buffer_load_dword v241, v240, s[12:15], s45 offen sc1", "cnt")
        if ASY and s == CK1:
            vm.wait("cnt"); e("v_readfirstlane_b32 s43, v241"); e("s_cmp_lt_u32 s43, 16"); e(f"s_cbranch_scc1 {name}_cw")
            a.label(f"{name}_cwd")
            while sideW.q and not isinstance(sideW.q[0], tuple) and " m0," not in sideW.q[0]: e(sideW.q.pop(0))
            k = 1 if (sideW.q and isinstance(sideW.q[0], tuple)) else 0
            sideW.q = sideW.q[:k] + kpl + sideW.q[k:]; sideW.vm_gap = KPGAP
    gemm3(a, 20, [3, 4], lambda s, T: (6, s*2048 + (T-3)*1024), accB, B2, X, True, [sideW, sideS], None, preB2, slots=SLB, wait_every=WE)
    assert state["sig"]
    st.mark("B2")
    rest = Rec(); rest.items += sideS.q; sideS.q = []
    softmax_l4_b(rest, KQ, EE, 200, PP, ratio=True)
    if not ASY and not SENT:
        for it in rest.items[:PREW]: e(it)
        rest.items = rest.items[PREW:]
        wait_cnt(a, "s45", 16, f"{name}_w1")
        pend = list(kpl); wleft = list(sideW.q); vm.q = []
    else:
        pend = list(sideW.q); wleft = []
    sideW.q = []
    lateW = []
    for s2 in range(12, 20): lateW += w_items(s2, 0, "s[52:55]", lambda s: f"w{s//4}")
    if LW:
        e("s_barrier"); pend += lateW; lateW = []
    st.mark("kvwait")
    later = wleft + [f"s_add_u32 s3, s46, {XIN_OFF[0]}",
             ("VM", "buffer_load_dwordx4 v[224:227], v236, s[12:15], s3 offen", "res", []),
             ("VM", "buffer_load_dwordx4 v[228:231], v237, s[12:15], s3 offen", "res", []),
             ("VM", "buffer_load_dwordx2 v[232:233], v238, s[12:15], s3 offen", "res", [])]
    later += ["v_and_b32 v234, 15, v1", "v_lshlrev_b32 v234, 7, v234", f"s_mov_b32 s47, {CNT_OFF[0]}",
              ("VM", "buffer_load_dword v235, v234, s[12:15], s47 offen sc1", "res", [])]
    def sum_mf(R, h):
        d = 144 + 4*h; c = "0" if R == 0 else f"v[{d}:{d+3}]"
        return f"v_mfma_f32_16x16x32_bf16 v[{d}:{d+3}], v[{210-2*h}:{213-2*h}], v[{KP(R)}:{KP(R)+3}], {c}"
    def sum_head(G):
        vm.wait(f"kp{G}")
        if SENT and not KNAN:
            for it in kp_check(G): e(it)
            e(f"s_cbranch_vccnz {name}_kr{G}"); a.label(f"{name}_kc{G}")
    if SUMPOS is None:
        sprinkle(a, vm, rest.items + sel.items, pend, LDEV)
        st.mark("epiB")
        for R in range(16):
            if R % 4 == 0: sum_head(R // 4)
            for h in range(2): e(sum_mf(R, h))
    else:
        items = sel.items + rest.items; mfq = []; nxt = 0; cnt = 0
        for i, it in enumerate(items):
            if nxt < 4 and i >= SUMPOS[nxt] and not mfq and not any(isinstance(p, tuple) and p[2] == f"kp{nxt}" for p in pend):
                sum_head(nxt); mfq = [sum_mf(R, h) for R in range(4*nxt, 4*nxt + 4) for h in range(2)]; nxt += 1
            if mfq and i % MFR == 0: e(mfq.pop(0))
            e(it)
            if i % LDEV == LDEV - 1 and pend:
                while pend:
                    p = pend.pop(0)
                    if isinstance(p, tuple): vm.issue(p[1], p[2]); break
                    e(p)
        emit_now(a, vm, pend); pend.clear()
        st.mark("epiB")
        for m in mfq: e(m)
        while nxt < 4:
            sum_head(nxt)
            for R in range(4*nxt, 4*nxt + 4):
                for h in range(2): e(sum_mf(R, h))
            nxt += 1
    if SENT and KNAN:
        e("v_cmp_u_f32 vcc, v144, v148"); e(f"s_cbranch_vccnz {name}_kn"); a.label(f"{name}_knd")
    for q in range(4): e(f"v_cvt_pk_bf16_f32 v{208+q}, v{144+2*q}, v{145+2*q}")
    e("v_cmp_gt_u32 vcc, 252, v0"); e("s_and_saveexec_b64 s[40:41], vcc")
    e("ds_write_b128 v252, v[208:211]")
    e("s_mov_b64 exec, s[40:41]")
    emit_now(a, vm, later)
    if EARLYW: emit_now(a, vm, lateW); lateW = []
    e("s_waitcnt lgkmcnt(0)"); e("s_barrier")
    if not fine: st.mark("kvsum")
    for Tp in (2, 0, 1):
        for ch in range(3):
            rr = 16 + 12*Tp + 4*ch
            if Tp < 2: e(f"ds_read_b128 v[{rr}:{rr+3}], v253 offset:{Tp*384 + ch*16}")
            else: e(f"ds_read_b128 v[{rr}:{rr+3}], v249 offset:{ch*16}")
    def t4mf(tt, Tp, ch):
        rr = 16 + 12*Tp + 4*ch; d = 56 + 12*tt + 4*Tp
        c = "0" if ch == 0 else f"v[{d}:{d+3}]"
        return f"v_mfma_f32_16x16x32_bf16 v[{d}:{d+3}], v[{rr}:{rr+3}], v[{PP[tt]+4*ch}:{PP[tt]+4*ch+3}], {c}"
    def t4epi(tt):
        ob = 56 + 12*tt; it = []
        for u in range(10): it.append(f"v_mul_f32 v{ob+u}, v{80+tt}, v{ob+u}")
        for q in range(4): it.append(f"v_cvt_pk_bf16_f32 v{156+4*tt+q}, v{ob+2*q}, v{ob+2*q+1}")
        it.append(f"v_cvt_pk_bf16_f32 v{164+tt}, v{ob+8}, v{ob+9}")
        return it
    if T4O:
        e(f"s_add_u32 s3, s46, {O_OFF[0]}")
        for i, Tp in enumerate((2, 0, 1)):
            e(f"s_waitcnt lgkmcnt({6 - 3*i})")
            for ch in range(3): e(t4mf(0, Tp, ch))
        mf1 = [t4mf(1, Tp, ch) for Tp in (2, 0, 1) for ch in range(3)]
        ep0 = ["v_fmac_f32 v66, 0x358637bd, v204", "v_rcp_f32 v80, v66"] + t4epi(0)
        for i, m in enumerate(mf1):
            e(m)
            if i >= 1:
                for it in ep0[:2]: e(it)
                ep0 = ep0[2:]
            if i == 4: e("v_fmac_f32 v78, 0x358637bd, v205"); e("v_rcp_f32 v81, v78")
        for it in ep0: e(it)
        vm.issue("buffer_store_dwordx4 v[156:159], v236, s[12:15], s3 offen sc1", "ost")
        for it in t4epi(1): e(it)
        vm.issue("buffer_store_dwordx4 v[160:163], v237, s[12:15], s3 offen sc1", "ost")
        e("v_permlane16_swap_b32 v164, v165")
        vm.issue("buffer_store_dwordx2 v[164:165], v238, s[12:15], s3 offen sc1", "ost")
    else:
        for i, Tp in enumerate((2, 0, 1)):
            e(f"s_waitcnt lgkmcnt({6 - 3*i})")
            for ch in range(3):
                rr = 16 + 12*Tp + 4*ch
                for tt in range(2):
                    d = 56 + 12*tt + 4*Tp
                    c = "0" if ch == 0 else f"v[{d}:{d+3}]"
                    e(f"v_mfma_f32_16x16x32_bf16 v[{d}:{d+3}], v[{rr}:{rr+3}], v[{PP[tt]+4*ch}:{PP[tt]+4*ch+3}], {c}")
            if i == 1:
                e("v_fmac_f32 v66, 0x358637bd, v204"); e("v_fmac_f32 v78, 0x358637bd, v205"); e("v_rcp_f32 v80, v66"); e("v_rcp_f32 v81, v78")
        for tt in range(2):
            sel = "op_sel_hi:[1,0]" if tt == 0 else "op_sel:[0,1] op_sel_hi:[1,1]"
            ob = 56 + 12*tt
            for u in range(0, 10, 2): e(f"v_pk_mul_f32 v[{ob+u}:{ob+u+1}], v[{ob+u}:{ob+u+1}], v[80:81] {sel}")
            for q in range(4): e(f"v_cvt_pk_bf16_f32 v{156+4*tt+q}, v{ob+2*q}, v{ob+2*q+1}")
            e(f"v_cvt_pk_bf16_f32 v{164+tt}, v{ob+8}, v{ob+9}")
        e(f"s_add_u32 s3, s46, {O_OFF[0]}")
        vm.issue("buffer_store_dwordx4 v[156:159], v236, s[12:15], s3 offen sc1", "ost")
        e("v_permlane16_swap_b32 v164, v165")
        vm.issue("buffer_store_dwordx4 v[160:163], v237, s[12:15], s3 offen sc1", "ost")
        vm.issue("buffer_store_dwordx2 v[164:165], v238, s[12:15], s3 offen sc1", "ost")
    st.mark("T4")
    vm.wait("res")
    e("v_permlane16_swap_b32 v232, v233")
    for tt in range(2):
        for q in range(4):
            e(f"v_lshlrev_b32 v{96+20*tt+2*q}, 16, v{224+4*tt+q}"); e(f"v_and_b32 v{97+20*tt+2*q}, 0xffff0000, v{224+4*tt+q}")
        e(f"v_lshlrev_b32 v{104+20*tt}, 16, v{232+tt}"); e(f"v_and_b32 v{105+20*tt}, 0xffff0000, v{232+tt}")
    e("s_waitcnt vmcnt(3)"); e("s_barrier")
    vm.q = ["ost"] * 3
    e("v_cmp_gt_u32 vcc, 16, v235"); e(f"s_cbranch_vccnz {name}_gw")
    a.label(f"{name}_gwd")
    if not LWS: emit_now(a, vm, lateW); lateW = []
    st.mark("owait")
    e(f"s_add_u32 s19, s44, {O_OFF[0]}")
    e("s_add_u32 s4, s12, s19"); e("s_addc_u32 s5, s13, 0")
    if T5N:
        e("s_mov_b32 s33, 0")
        a.label(f"{name}_t5")
    e("s_mov_b32 s20, 0"); e(f"s_mov_b32 s35, {AF_WT}")
    osc = " sc1" if OSC else ""
    for s in range(LEAD5): emit_now(a, vm, x_items(X, s, extra=osc))
    sideO = Side(a, vm, GAP5 or VMGAP)
    for s in range(LEAD5, 20):
        sideO.add(x_items(X, s, extra=osc))
        if LWS and lateW and s >= LWS:
            sideO.add(lateW[:4]); lateW = lateW[4:]
    assert not lateW
    stubs = []
    def check_items(s):
        b0, b1 = (2*s)*4, (2*s+1)*4
        return [f"v_accvgpr_read_b32 v8, a{b0}", f"v_accvgpr_read_b32 v9, a{b0+2}", f"v_accvgpr_read_b32 v10, a{b1}", f"v_accvgpr_read_b32 v11, a{b1+2}",
                "v_max_u32 v8, v8, v9", "v_max3_u32 v8, v8, v10, v11", "v_cmp_eq_u32 vcc, -1, v8"]
    def branch(s):
        e(f"s_cbranch_vccnz {name}_rt{s}")
        a.label(f"{name}_c{s}")
        pendt = {i[2] for i in sideO.q if isinstance(i, tuple) and i[0] == "VM"}
        stubs.append((s, [s2 for s2 in range(s, 20) if f"s{s2}" not in pendt]))
    sideC = Side(a, vm, VMGAP)
    vm.wait("s0")
    for it in check_items(0): e(it)
    branch(0)
    def lds5(s, T):
        off = (s*5+T)*1024
        return (7, off) if s < 12 else (6, off - UREG)
    def pre5(s):
        if only and s in (0, 1, 2, 3, 4, 6, 8, 10, 12, 14, 16, 18): st.mark(f"T5s{s}")
        if s == B5:
            if LWS:
                force(sideO, vm, "w4")
                if "w4" in vm.q: vm.wait("w4")
            if T5N: e("s_cmp_lg_u32 s33, 0"); e(f"s_cbranch_scc1 {name}_nob")
            e("s_barrier")
            if T5N: a.label(f"{name}_nob")
        if s > 0 and (not T5N or s < T5N):
            sideC.flush(); branch(s)
    def mid5(s, i):
        if i == 4 and s + 1 < 20:
            force(sideO, vm, f"s{s+1}")
            if f"s{s+1}" in vm.q: vm.wait(f"s{s+1}")
            if not T5N or s + 1 < T5N: sideC.add(check_items(s + 1))
    accN = (lambda tt, T: 56 + 20*tt + 4*T) if T5N else accB
    gemm2(a, 20, lds5, accN, (16, 36), X, False, [sideC, sideO], None, pre5, mid=mid5, c0=accB if T5N else None)
    if T5N:
        e("v_cmp_u_f32 vcc, v56, v76"); e(f"s_cbranch_vccnz {name}_t5r")
        a.label(f"{name}_t5d")
    AB = 56 if T5N else 96; XP = 96 if T5N else 56; RD = 110 if T5N else 76
    st.mark("T5")
    if EP5 == 2:
        wt = " sc1" if WT else ""
        for q in range(10):
            e(f"v_cvt_pk_bf16_f32 v{56+q}, v{106+q}, v{126+q}")
            if q: e(f"ds_write_b32 v254, v{55+q} offset:{(q-1)*512}")
        for tt in range(2):
            b = 96 + 20*tt; s_ = 136 + 4*tt
            e(f"v_pk_mul_f32 v[{s_+2}:{s_+3}], v[{b}:{b+1}], v[{b}:{b+1}]"); e(f"v_pk_add_f32 v[{s_}:{s_+1}], v[{b}:{b+1}], v[{b+2}:{b+3}]")
            if tt == 0: e("ds_write_b32 v254, v65 offset:4608")
            e(f"v_pk_fma_f32 v[{s_+2}:{s_+3}], v[{b+2}:{b+3}], v[{b+2}:{b+3}], v[{s_+2}:{s_+3}]")
            for u in range(4, 10, 2):
                e(f"v_pk_add_f32 v[{s_}:{s_+1}], v[{s_}:{s_+1}], v[{b+u}:{b+u+1}]"); e(f"v_pk_fma_f32 v[{s_+2}:{s_+3}], v[{b+u}:{b+u+1}], v[{b+u}:{b+u+1}], v[{s_+2}:{s_+3}]")
        for tt in range(2):
            s_ = 136 + 4*tt
            e(f"v_add_f32 v{s_}, v{s_}, v{s_+1}"); e(f"v_add_f32 v{s_+2}, v{s_+2}, v{s_+3}")
        e("s_waitcnt lgkmcnt(0)"); e("s_barrier")
        for rr in range(3): e(f"ds_read_b128 v[{76+4*rr}:{79+4*rr}], v239 offset:{4096*rr}")
        e("v_permlane32_swap_b32 v136, v140"); e("v_permlane32_swap_b32 v138, v142")
        e("s_add_u32 s34, s59, 8192")
        e("v_add_f32 v136, v136, v140"); e("v_add_f32 v138, v138, v142")
        e("v_mov_b32 v140, v136"); e("v_mov_b32 v141, v138")
        e("v_permlane16_swap_b32 v136, v140"); e("v_permlane16_swap_b32 v138, v141")
        e("v_add_f32 v136, v136, v140"); e("v_add_f32 v138, v138, v141")
        e("buffer_atomic_add_f32 v136, v242, s[12:15], s59 offen")
        e("buffer_atomic_add_f32 v138, v242, s[12:15], s34 offen")
        e("s_waitcnt lgkmcnt(2)"); e("buffer_store_dwordx4 v[76:79], v255, s[12:15], s60 offen" + wt); e("s_add_u32 s60, s60, 65536")
        for q in range(4): e(f"v_cvt_pk_bf16_f32 v{156+q}, v{96+2*q}, v{97+2*q}")
        e("s_waitcnt lgkmcnt(1)"); e("buffer_store_dwordx4 v[80:83], v255, s[12:15], s60 offen" + wt); e("s_add_u32 s60, s60, 65536")
        for q in range(4): e(f"v_cvt_pk_bf16_f32 v{160+q}, v{116+2*q}, v{117+2*q}")
        e("s_waitcnt lgkmcnt(0)"); e("buffer_store_dwordx4 v[84:87], v243, s[12:15], s60 offen" + wt)
        e(f"s_add_u32 s3, s46, {X1_OFF[0]}")
        e("v_cvt_pk_bf16_f32 v164, v104, v105"); e("v_cvt_pk_bf16_f32 v165, v124, v125")
        e("buffer_store_dwordx4 v[156:159], v236, s[12:15], s3 offen" + wt)
        e("v_permlane16_swap_b32 v164, v165")
        e("buffer_store_dwordx4 v[160:163], v237, s[12:15], s3 offen" + wt)
        e("buffer_store_dwordx2 v[164:165], v238, s[12:15], s3 offen" + wt)
    elif EP5:
        wt = " sc1" if WT else ""
        for q in range(10):
            e(f"v_cvt_pk_bf16_f32 v{56+q}, v{106+q}, v{126+q}")
            if q: e(f"ds_write_b32 v254, v{55+q} offset:{(q-1)*512}")
        for tt in range(2):
            b = 96 + 20*tt
            for q in range(4): e(f"v_cvt_pk_bf16_f32 v{156+4*tt+q}, v{b+2*q}, v{b+2*q+1}")
            if tt == 0: e("ds_write_b32 v254, v65 offset:4608")
            e(f"v_cvt_pk_bf16_f32 v{164+tt}, v{b+8}, v{b+9}")
        e(f"s_add_u32 s3, s46, {X1_OFF[0]}")
        e("buffer_store_dwordx4 v[156:159], v236, s[12:15], s3 offen" + wt)
        e("v_permlane16_swap_b32 v164, v165")
        e("buffer_store_dwordx4 v[160:163], v237, s[12:15], s3 offen" + wt)
        e("s_waitcnt lgkmcnt(0)"); e("s_barrier")
        for rr in range(3): e(f"ds_read_b128 v[{76+4*rr}:{79+4*rr}], v239 offset:{4096*rr}")
        e("buffer_store_dwordx2 v[164:165], v238, s[12:15], s3 offen" + wt)
        for tt in range(2):
            b = 96 + 20*tt; s_ = 136 + 4*tt
            e(f"v_pk_mul_f32 v[{s_+2}:{s_+3}], v[{b}:{b+1}], v[{b}:{b+1}]"); e(f"v_pk_add_f32 v[{s_}:{s_+1}], v[{b}:{b+1}], v[{b+2}:{b+3}]")
            e(f"v_pk_fma_f32 v[{s_+2}:{s_+3}], v[{b+2}:{b+3}], v[{b+2}:{b+3}], v[{s_+2}:{s_+3}]")
            if tt == 0:
                e("s_waitcnt lgkmcnt(2)"); e("buffer_store_dwordx4 v[76:79], v255, s[12:15], s60 offen" + wt); e("s_add_u32 s60, s60, 65536")
            for u in range(4, 10, 2):
                e(f"v_pk_add_f32 v[{s_}:{s_+1}], v[{s_}:{s_+1}], v[{b+u}:{b+u+1}]"); e(f"v_pk_fma_f32 v[{s_+2}:{s_+3}], v[{b+u}:{b+u+1}], v[{b+u}:{b+u+1}], v[{s_+2}:{s_+3}]")
            if tt == 0:
                e("s_waitcnt lgkmcnt(1)"); e("buffer_store_dwordx4 v[80:83], v255, s[12:15], s60 offen" + wt); e("s_add_u32 s60, s60, 65536")
        e("s_waitcnt lgkmcnt(0)"); e("buffer_store_dwordx4 v[84:87], v243, s[12:15], s60 offen" + wt)
        for tt in range(2):
            s_ = 136 + 4*tt
            e(f"v_add_f32 v{s_}, v{s_}, v{s_+1}"); e(f"v_add_f32 v{s_+2}, v{s_+2}, v{s_+3}")
        e("v_permlane32_swap_b32 v136, v140"); e("v_permlane32_swap_b32 v138, v142")
        e("s_add_u32 s34, s59, 8192")
        e("v_add_f32 v136, v136, v140"); e("v_add_f32 v138, v138, v142")
        e("v_mov_b32 v140, v136"); e("v_mov_b32 v141, v138")
        e("v_permlane16_swap_b32 v136, v140"); e("v_permlane16_swap_b32 v138, v141")
        e("v_add_f32 v136, v136, v140"); e("v_add_f32 v138, v138, v141")
        e("buffer_atomic_add_f32 v136, v242, s[12:15], s59 offen")
        e("buffer_atomic_add_f32 v138, v242, s[12:15], s34 offen")
    else:
        wt = " sc1" if WT else ""
        for tt in range(2):
            b = AB + 20*tt; s_ = 136 + 4*tt
            e(f"v_pk_mul_f32 v[{s_+2}:{s_+3}], v[{b}:{b+1}], v[{b}:{b+1}]"); e(f"v_pk_add_f32 v[{s_}:{s_+1}], v[{b}:{b+1}], v[{b+2}:{b+3}]")
            e(f"v_pk_fma_f32 v[{s_+2}:{s_+3}], v[{b+2}:{b+3}], v[{b+2}:{b+3}], v[{s_+2}:{s_+3}]")
            for u in range(4, 10, 2):
                e(f"v_pk_add_f32 v[{s_}:{s_+1}], v[{s_}:{s_+1}], v[{b+u}:{b+u+1}]"); e(f"v_pk_fma_f32 v[{s_+2}:{s_+3}], v[{b+u}:{b+u+1}], v[{b+u}:{b+u+1}], v[{s_+2}:{s_+3}]")
        for tt in range(2):
            s_ = 136 + 4*tt
            e(f"v_add_f32 v{s_}, v{s_}, v{s_+1}"); e(f"v_add_f32 v{s_+2}, v{s_+2}, v{s_+3}")
        for tt in range(2):
            b = AB + 20*tt
            for q in range(4): e(f"v_cvt_pk_bf16_f32 v{156+4*tt+q}, v{b+2*q}, v{b+2*q+1}")
            e(f"v_cvt_pk_bf16_f32 v{164+tt}, v{b+8}, v{b+9}")
        e("v_permlane32_swap_b32 v136, v140"); e("v_permlane32_swap_b32 v138, v142")
        e(f"s_add_u32 s3, s46, {X1_OFF[0]}")
        e("buffer_store_dwordx4 v[156:159], v236, s[12:15], s3 offen" + wt)
        e("v_add_f32 v136, v136, v140"); e("v_add_f32 v138, v138, v142")
        e("v_permlane16_swap_b32 v164, v165")
        e("buffer_store_dwordx4 v[160:163], v237, s[12:15], s3 offen" + wt)
        e("v_mov_b32 v140, v136"); e("v_mov_b32 v141, v138"); e("s_add_u32 s34, s59, 8192")
        e("buffer_store_dwordx2 v[164:165], v238, s[12:15], s3 offen" + wt)
        e("v_permlane16_swap_b32 v136, v140"); e("v_permlane16_swap_b32 v138, v141")
        for q in range(10): e(f"v_cvt_pk_bf16_f32 v{XP+q}, v{AB+10+q}, v{AB+30+q}")
        e("v_add_f32 v136, v136, v140"); e("v_add_f32 v138, v138, v141")
        for q in range(10): e(f"ds_write_b32 v254, v{XP+q} offset:{q*512}")
        e("buffer_atomic_add_f32 v136, v242, s[12:15], s59 offen")
        e("buffer_atomic_add_f32 v138, v242, s[12:15], s34 offen")
        e("s_waitcnt lgkmcnt(0)"); e("s_barrier")
        for rr in range(3): e(f"ds_read_b128 v[{RD+4*rr}:{RD+3+4*rr}], v239 offset:{4096*rr}")
        e("s_waitcnt lgkmcnt(2)")
        e(f"buffer_store_dwordx4 v[{RD}:{RD+3}], v255, s[12:15], s60 offen" + wt)
        e("s_add_u32 s60, s60, 65536"); e("s_waitcnt lgkmcnt(1)")
        e(f"buffer_store_dwordx4 v[{RD+4}:{RD+7}], v255, s[12:15], s60 offen" + wt)
        e("s_add_u32 s60, s60, 65536"); e("s_waitcnt lgkmcnt(0)")
        e(f"buffer_store_dwordx4 v[{RD+8}:{RD+11}], v243, s[12:15], s60 offen" + wt)
    if not fine: st.mark("epi5")
    if stamps: e("s_waitcnt vmcnt(0)"); st.mark("drain")
    st.extra = ["s57", "s58"]
    if stamps:
        e("s_cmp_eq_u32 s32, 0"); e("s_cselect_b32 s33, 0, 262144"); e("s_add_u32 s30, s30, s33"); e("s_addc_u32 s31, s31, 0")
    st.flush(30, 31, 18)
    a.label(f"{name}_end")
    e("s_endpgm")
    if ASY:
        a.label(f"{name}_cw")
        e(f"s_mov_b32 s42, {1 << 16}")
        a.label(f"{name}_cwl")
        if stamps: e("s_add_u32 s57, s57, 1"); e(f"s_or_b32 s58, s58, {1 << 19}")
        e("buffer_load_dword v241, v240, s[12:15], s45 offen sc1"); e("s_waitcnt vmcnt(0)")
        e("v_readfirstlane_b32 s43, v241"); e("s_cmp_ge_u32 s43, 16"); e(f"s_cbranch_scc1 {name}_cwd")
        e("s_sub_u32 s42, s42, 1"); e("s_cmp_lg_u32 s42, 0"); e(f"s_cbranch_scc1 {name}_cwl")
        e(f"s_branch {name}_cwd")
    if T5N:
        a.label(f"{name}_t5r")
        if stamps: e("s_add_u32 s57, s57, 1"); e(f"s_or_b32 s58, s58, {1 << 15}")
        e("s_add_u32 s33, s33, 1"); e(f"s_cmp_ge_u32 s33, {1 << 10}"); e(f"s_cbranch_scc1 {name}_t5d")
        e("s_waitcnt vmcnt(0)"); e(f"s_branch {name}_t5")
    if SENT and KNAN:
        a.label(f"{name}_kn")
        e(f"s_mov_b32 s42, {1 << 14}")
        a.label(f"{name}_knl")
        if stamps: e("s_add_u32 s57, s57, 1"); e(f"s_or_b32 s58, s58, {1 << 16}")
        for R in range(16):
            e(f"s_sub_u32 s47, s61, {(15 - R) * KVP_ST}")
            e(f"buffer_load_dwordx4 v[{KP(R)}:{KP(R)+3}], v250, s[12:15], s47 offen sc1")
        e("s_waitcnt vmcnt(0)")
        for R in range(16):
            for h in range(2): e(sum_mf(R, h))
        e("v_cmp_u_f32 vcc, v144, v148"); e(f"s_cbranch_vccz {name}_knd")
        e("s_sub_u32 s42, s42, 1"); e("s_cmp_lg_u32 s42, 0"); e(f"s_cbranch_scc1 {name}_knl")
        e(f"s_branch {name}_knd")
    if SENT and not KNAN:
        for G in range(4):
            a.label(f"{name}_kr{G}")
            e(f"s_mov_b32 s42, {1 << 14}")
            a.label(f"{name}_kl{G}")
            if stamps: e("s_add_u32 s57, s57, 1"); e(f"s_or_b32 s58, s58, {1 << (16 + G)}")
            for R in range(4*G, 4*G + 4):
                e(f"s_sub_u32 s47, s61, {(15 - R) * KVP_ST}")
                e(f"buffer_load_dwordx4 v[{KP(R)}:{KP(R)+3}], v250, s[12:15], s47 offen sc1")
            e("s_waitcnt vmcnt(0)")
            for it in kp_check(G): e(it)
            e(f"s_cbranch_vccz {name}_kc{G}")
            e("s_sub_u32 s42, s42, 1"); e("s_cmp_lg_u32 s42, 0"); e(f"s_cbranch_scc1 {name}_kl{G}")
            e(f"s_branch {name}_kc{G}")
    a.label(f"{name}_gw")
    e(f"s_mov_b32 s42, {1 << 16}"); e(f"s_mov_b32 s47, {CNT_OFF[0]}")
    a.label(f"{name}_gwl")
    e("buffer_load_dword v235, v234, s[12:15], s47 offen sc1"); e("s_waitcnt vmcnt(0)")
    e("v_cmp_gt_u32 vcc, 16, v235"); e(f"s_cbranch_vccz {name}_gwd")
    e("s_sub_u32 s42, s42, 1"); e("s_cmp_lg_u32 s42, 0"); e(f"s_cbranch_scc1 {name}_gwl")
    e(f"s_branch {name}_gwd")
    for s, lst in stubs:
        a.label(f"{name}_rt{s}")
        e(f"s_mov_b32 s42, {1 << 14}")
        a.label(f"{name}_rl{s}")
        if stamps: e(f"s_add_u32 s57, s57, 1"); e(f"s_or_b32 s58, s58, {1 << s}")
        e("s_waitcnt vmcnt(0)")
        for s2 in lst:
            e(f"s_mov_b32 s47, {s2*1024}"); e(f"s_mov_b32 s43, {AF_WT + s2*1024}")
            e(f"buffer_load_dwordx4 {X(0,s2)}, v5, s[4:7], s47 offen sc1")
            e(f"buffer_load_dwordx4 {X(1,s2)}, v5, s[4:7], s43 offen sc1")
        e("s_waitcnt vmcnt(0)")
        for it in check_items(s): e(it)
        e(f"s_cbranch_vccz {name}_c{s}")
        e("s_sub_u32 s42, s42, 1"); e("s_cmp_lg_u32 s42, 0"); e(f"s_cbranch_scc1 {name}_rl{s}")
        e(f"s_branch {name}_c{s}")
    gen_kA.names = st.names
    ent = lambda L: kernel_header(f"{name}l{L}_kernel") + f"    s_mov_b32 s32, {L*LSTRIDE}\n    s_branch {name}_body\n"
    desc = "".join(kernel_desc(f"{name}l{L}_kernel", 256, 160, 102 if stamps else 72) for L in range(2))
    pad = "    s_nop 0\n" * PADN
    return ent(1) + ent(0).replace(f"    s_branch {name}_body\n", pad) + a.text() + desc
```

```python
S, D, H, DH = 2048, 640, 32, 20
W1_OFF = 0
W1_C = 204800
W2_OFF = 16 * W1_C
W2_C = 102400
TAB_OFF = W2_OFF + 16 * W2_C
TAB_W64 = 0
TAB_TW = 4 * 6144
TAB_S2 = TAB_TW + 4 * 4096
TAB_SIZE = 65536
ACT = 2048 * 1280
L0 = TAB_OFF + TAB_SIZE
_st = L0
_cnt = _st + 16384
ZSIZE = 20480
_kvp = L0 + 32768
_o = _kvp + 256 * 4096
_x1 = _o + ACT
_xf = _x1 + ACT
_xin = _xf + ACT
LSTRIDE = _xin + ACT - L0
ST_OFF = [_st, _st + LSTRIDE]
CNT_OFF = [_cnt, _cnt + LSTRIDE]
KVP_OFF = [_kvp, _kvp + LSTRIDE]
O_OFF = [_o, _o + LSTRIDE]
X1_OFF = [_x1, _x1 + LSTRIDE]
XF_OFF = [_xf, _xf + LSTRIDE]
XIN_OFF = [_xin, _xin + LSTRIDE]
WS_USED = L0 + 2 * LSTRIDE
AF_R = 163840
AF_WT = 20480
def token(R, w, tt, j): return 32 * (32 * (R & 1) + 2 * j + tt) + 4 * (R >> 1) + w
def m40(gg, u): return 24 * gg + u if u < 16 else 16 + 4 * gg + (u - 16)

def pos40(g, u): return 8 * g + u if u < 8 else 32 + 2 * g + (u - 8)
def w1off(s, T): return s * 3072 + T * 1024 if T < 3 else 61440 + s * 2048 + (T - 3) * 1024
KVP_ST = 4096
```

```python
from gen_v12 import *
BEST = dict(SENT=True, KS0=6, KPGAP=3, TSL=2, TSN=0, KCLR=2, SUMPOS=(6, 36, 66, 96), T5N=6, SELB=True, T4O=True, WE=2, KNAN=True, U0L=True, XBP=True)
K0B = dict(segup=5, xlate=True)
if __name__ == "__main__":
    build_v12("k1.s", k0kw=K0B, **BEST)
    build_v12("k1s.s", stamps=True, k0kw=K0B, **BEST)
```

```python
import re

TRANS = ("v_exp_f32", "v_log_f32", "v_rcp_f32", "v_rsq_f32", "v_sqrt_f32", "v_sin_f32", "v_cos_f32", "v_rcp_iflag_f32")
REG_RE = re.compile(r"(?<![\w.])([vas])(\d+)(?![\w\[])|(?<![\w.])([vas])\[(\d+):(\d+)\]|(?<![\w.])(vcc|exec|m0|scc)(_lo|_hi)?(?![\w])")

def regs_of(tok):
    out = []
    for m in REG_RE.finditer(tok):
        if m.group(1): out.append((m.group(1), int(m.group(2))))
        elif m.group(3):
            for i in range(int(m.group(4)), int(m.group(5)) + 1): out.append((m.group(3), i))
        else:
            nm = m.group(6)
            if nm == "vcc":
                if m.group(7) == "_lo": out.append(("s", 106))
                elif m.group(7) == "_hi": out.append(("s", 107))
                else: out += [("s", 106), ("s", 107)]
            elif nm == "exec": out += [("x", 0)]
            elif nm == "m0": out.append(("m", 0))
    return out

def split_ops(s):
    ops, depth, cur = [], 0, ""
    for ch in s:
        if ch == "[" or ch == "(": depth += 1
        if ch == "]" or ch == ")": depth -= 1
        if ch == "," and depth == 0: ops.append(cur.strip()); cur = ""
        else: cur += ch
    if cur.strip(): ops.append(cur.strip())
    return ops

class Inst:
    __slots__ = ("text", "op", "cls", "wr", "rd", "states", "passes", "srcc", "store_data", "isdpp", "lds_dma", "mask_rd", "sgpr_valu_wr", "ab")
    def __init__(self, text):
        self.text = text
        t = text.split(";")[0].strip()
        parts = t.split(None, 1)
        self.op = op = parts[0]
        rest = parts[1] if len(parts) > 1 else ""
        ops = split_ops(rest)
        self.wr, self.rd = [], []
        self.states = 1; self.passes = 0; self.srcc = []; self.store_data = []; self.ab = []
        self.isdpp = ("row_" in rest or "quad_perm" in rest or "wave_" in rest or "dpp" in op)
        self.lds_dma = False; self.mask_rd = []; self.sgpr_valu_wr = []
        R = lambda i: regs_of(ops[i].split(" ")[0] if i == len(ops) - 1 else ops[i]) if i < len(ops) else []
        if op == "s_nop":
            self.cls = "nop"; self.states = int(ops[0], 0) + 1
        elif op.startswith("v_mfma"):
            self.cls = "mfma"; self.wr = R(0); self.ab = R(1) + R(2); self.srcc = R(3); self.rd = self.ab + self.srcc
            self.passes = 8 if "32x32" in op else 4
        elif op.startswith("v_"):
            self.cls = "trans" if op.replace("_e32", "").replace("_e64", "") in TRANS else "valu"
            base = op.replace("_e32", "").replace("_e64", "")
            if base.startswith("v_cmp"):
                self.wr = R(0); self.rd = R(1) + R(2)
            elif base.startswith("v_permlane") and "swap" in base:
                self.wr = R(0) + R(1); self.rd = R(0) + R(1)
            elif base in ("v_readfirstlane_b32", "v_readlane_b32"):
                self.wr = R(0); self.rd = sum((R(i) for i in range(1, len(ops))), [])
            elif base in ("v_add_co_u32", "v_sub_co_u32", "v_addc_co_u32", "v_subb_co_u32", "v_mad_u64_u32"):
                self.wr = R(0) + R(1); self.rd = sum((R(i) for i in range(2, len(ops))), [])
            else:
                self.wr = R(0); self.rd = sum((R(i) for i in range(1, len(ops))), [])
                if base.startswith("v_fmac") or base.startswith("v_pk_fmac") or base.startswith("v_dot2c") or base in ("v_writelane_b32",): self.rd += R(0)
                if base == "v_cndmask_b32":
                    if len(ops) == 3: self.rd += [("s", 106), ("s", 107)]; self.mask_rd = [("s", 106), ("s", 107)]
                    else: self.mask_rd = R(3)
            self.sgpr_valu_wr = [r for r in self.wr if r[0] == "s"]
        elif op.startswith("ds_"):
            self.cls = "ds"
            if op.startswith("ds_read") or op.startswith("ds_bpermute") or op.startswith("ds_permute") or op.startswith("ds_swizzle"):
                self.wr = R(0); self.rd = sum((R(i) for i in range(1, len(ops))), [])
            else:
                self.rd = sum((R(i) for i in range(len(ops))), [])
        elif op.startswith("buffer_") or op.startswith("global_"):
            self.cls = "vmem"
            words = rest.replace(",", " ").split()
            islds = ("lds" in words) or ("_lds_" in op)
            allr = sum((R(i) for i in range(len(ops))), [])
            if op in ("buffer_wbl2", "buffer_inv"): pass
            elif islds:
                self.lds_dma = True; self.rd = allr + [("m", 0)]
            elif "_load" in op:
                self.wr = R(0); self.rd = sum((R(i) for i in range(1, len(ops))), [])
            elif "_store" in op:
                self.rd = allr
                d = R(0) if op.startswith("buffer_") else R(1)
                if "x4" in op or "x3" in op: self.store_data = d
            elif "_atomic" in op:
                self.rd = allr
                if "sc0" in words: self.wr = R(0)
        elif op.startswith("s_"):
            self.cls = "salu"
            if op.startswith(("s_waitcnt", "s_barrier", "s_branch", "s_cbranch", "s_endpgm", "s_setprio", "s_sleep")):
                self.cls = "sctl"
            elif op.startswith("s_cmp"):
                self.rd = sum((R(i) for i in range(len(ops))), [])
            elif op.startswith("s_load") or op.startswith("s_memtime") or op.startswith("s_memrealtime") or op.startswith("s_getreg") or op.startswith("s_getpc"):
                self.wr = R(0); self.rd = sum((R(i) for i in range(1, len(ops))), [])
            else:
                self.wr = R(0); self.rd = sum((R(i) for i in range(1, len(ops))), [])
                if "saveexec" in op: self.wr += [("x", 0)]
        else:
            raise ValueError("unknown instruction: " + text)

def need(prod, cons):
    n = 0
    pw = set(prod.wr);
    isvalu = lambda i: i.cls in ("valu", "trans")
    crd = set(cons.rd); cwr = set(cons.wr)
    if isvalu(prod):
        vw = {r for r in pw if r[0] in "va"}
        if vw & crd:
            if cons.cls == "mfma": n = max(n, 2)
            if cons.op.startswith("v_permlane"): n = max(n, 2)
            if cons.op.startswith(("v_readlane", "v_readfirstlane")): n = max(n, 1)
            if cons.isdpp: n = max(n, 2)
            if prod.cls == "trans" and cons.cls != "trans": n = max(n, 1)
        sw = {r for r in pw if r[0] == "s"}
        if sw & crd:
            if cons.cls == "vmem": n = max(n, 5)
            elif cons.op.startswith(("v_readlane", "v_writelane")): n = max(n, 4)
            elif isvalu(cons) or cons.cls == "mfma": n = max(n, 2)
            elif cons.cls in ("salu",): n = max(n, 1)
    if prod.cls == "mfma":
        p = prod.passes
        d = set(prod.wr)
        if cons.cls == "mfma":
            if d & set(cons.ab): n = max(n, 8 if p == 4 else 12)
            c = set(cons.srcc)
            if d & c and not (c == d and cons.passes == p): n = max(n, 6 if p == 4 else 10)
            if d & cwr and not (d & c): n = max(n, 6 if p == 4 else 10)
        else:
            if d & (crd | cwr): n = max(n, 8 if p == 4 else 12)
        if isvalu(cons) and set(prod.srcc) & cwr: n = max(n, 3 if p == 4 else 7)
    if prod.cls == "salu" and ("m", 0) in pw and cons.lds_dma: n = max(n, 1)
    if prod.store_data and set(prod.store_data) & cwr:
        n = max(n, 2 if isvalu(cons) or cons.cls == "mfma" else 1)
    return n

class Asm:
    def __init__(self):
        self.out = []
        self.hist = []
        self.nops = 0
        self.nds = 0
    def raw(self, s): self.out.append(s)
    def label(self, name):
        self.out.append(name + ":")
    def e(self, text):
        for line in text.split("\n"):
            line = line.strip()
            if not line or line.startswith(";"): continue
            if line.endswith(":"): self.label(line[:-1]); continue
            ins = Inst(line)
            mo = re.search(r"offset:(-?\d+)", line)
            if mo:
                ov = int(mo.group(1))
                if ins.op.startswith("buffer_"): assert 0 <= ov <= 4095, line
                elif ins.op.startswith("global_"): assert -4096 <= ov <= 4095, line
                elif ins.op.startswith("ds_"): assert 0 <= ov <= 65535, line
            req = 0; dist = 0
            for p in reversed(self.hist):
                k = need(p, ins)
                if k > dist: req = max(req, k - dist)
                dist += p.states
                if dist >= 12: break
            if req > 0 and ins.cls != "nop":
                nop = Inst(f"s_nop {req-1}")
                self.out.append("    " + nop.text); self.hist.append(nop); self.nops += 1
            self.out.append("    " + line)
            if ins.cls == "ds": self.nds += 1
            self.hist.append(ins)
            if len(self.hist) > 24: self.hist = self.hist[-24:]
    def text(self): return "\n".join(self.out) + "\n"

def kernel_header(name):
    return f".text\n.globl {name}\n.p2align 8\n.type {name},@function\n{name}:\n"
def kernel_desc(name, vgpr, agpr=0, sgpr=100):
    acc = (vgpr + 3) // 4 * 4
    nfv = acc + agpr if agpr else vgpr
    return f""".section .rodata,"a"
.p2align 6
.amdhsa_kernel {name}
  .amdhsa_next_free_vgpr {nfv}
  .amdhsa_next_free_sgpr {sgpr}
  .amdhsa_accum_offset {acc}
  .amdhsa_group_segment_fixed_size 0
  .amdhsa_kernarg_size 96
  .amdhsa_user_sgpr_count 2
  .amdhsa_user_sgpr_kernarg_segment_ptr 1
  .amdhsa_system_sgpr_workgroup_id_x 1
  .amdhsa_float_denorm_mode_32 3
.end_amdhsa_kernel
"""

class VM:
    def __init__(self, a): self.a = a; self.q = []
    def issue(self, text, tag):
        self.a.e(text); self.q.append(tag)
    def wait(self, tag, extra=""):
        idx = max(i for i, t in enumerate(self.q) if t == tag)
        n = len(self.q) - 1 - idx
        assert n <= 63, n
        self.a.e(f"s_waitcnt vmcnt({n}){extra}")
        self.q = self.q[idx+1:]
    def wait_all(self):
        self.a.e("s_waitcnt vmcnt(0)"); self.q = []

def srd(a, s, base_lo, base_hi, off, size):
    if isinstance(off, str):
        a.e(f"s_add_u32 s{s}, s{base_lo}, {off}"); a.e(f"s_addc_u32 s{s+1}, s{base_hi}, 0")
    elif off:
        a.e(f"s_add_u32 s{s}, s{base_lo}, {off}"); a.e(f"s_addc_u32 s{s+1}, s{base_hi}, 0")
    else:
        a.e(f"s_mov_b32 s{s}, s{base_lo}"); a.e(f"s_mov_b32 s{s+1}, s{base_hi}")
    a.e(f"s_mov_b32 s{s+2}, {size}")
    a.e(f"s_mov_b32 s{s+3}, 0x20000")

def wg_to_rc(a, sR, sC, tmp):
    e = a.e
    e(f"s_and_b32 s{tmp}, s2, 7"); e(f"s_lshr_b32 s{tmp+1}, s2, 3")
    e(f"s_lshr_b32 s{sR}, s{tmp}, 1"); e(f"s_lshl_b32 s{sR}, s{sR}, 2"); e(f"s_and_b32 s{sC}, s{tmp+1}, 3"); e(f"s_add_u32 s{sR}, s{sR}, s{sC}")
    e(f"s_and_b32 s{sC}, s{tmp}, 1"); e(f"s_lshl_b32 s{sC}, s{sC}, 3"); e(f"s_lshr_b32 s{tmp+1}, s{tmp+1}, 2"); e(f"s_add_u32 s{sC}, s{sC}, s{tmp+1}")

LOG2E = 1.4426950408889634

def softmax_pair(a, K, vC, Ep, tmp, P):
    e = a.e
    mx, mn, sp, sm = tmp, tmp + 1, tmp + 2, tmp + 3
    e(f"v_max3_f32 v{mx}, v{K[0]}, v{K[1]}, v{K[2]}")
    e(f"v_min3_f32 v{mn}, v{K[0]}, v{K[1]}, v{K[2]}")
    for u in range(3, 19, 2):
        e(f"v_max3_f32 v{mx}, v{mx}, v{K[u]}, v{K[u+1]}")
        e(f"v_min3_f32 v{mn}, v{mn}, v{K[u]}, v{K[u+1]}")
    e(f"v_max_f32 v{mx}, v{mx}, v{K[19]}")
    e(f"v_min_f32 v{mn}, v{mn}, v{K[19]}")
    e(f"v_mul_f32 v{mx}, v{vC}, v{mx}")
    e(f"v_mul_f32 v{mn}, v{vC}, v{mn}")
    for u in range(20):
        e(f"v_fma_f32 v{Ep+u}, v{K[u]}, v{vC}, -v{mx}")
        e(f"v_fma_f32 v{K[u]}, -v{K[u]}, v{vC}, v{mn}")
    for u in range(20):
        e(f"v_exp_f32 v{Ep+u}, v{Ep+u}")
        e(f"v_exp_f32 v{K[u]}, v{K[u]}")
    e(f"v_add_f32 v{sp}, v{Ep}, v{Ep+1}")
    e(f"v_add_f32 v{sm}, v{K[0]}, v{K[1]}")
    for u in range(2, 20):
        e(f"v_add_f32 v{sp}, v{sp}, v{Ep+u}")
        e(f"v_add_f32 v{sm}, v{sm}, v{K[u]}")
    e(f"v_rcp_f32 v{sp}, v{sp}")
    e(f"v_rcp_f32 v{sm}, v{sm}")
    for u in range(20):
        e(f"v_mul_f32 v{Ep+u}, v{sp}, v{Ep+u}")
        e(f"v_mul_f32 v{K[u]}, v{sm}, v{K[u]}")
    for q in range(10):
        e(f"v_cvt_pk_bf16_f32 v{P+q}, v{Ep+2*q}, v{Ep+2*q+1}")
        e(f"v_cvt_pk_bf16_f32 v{P+10+q}, v{K[2*q]}, v{K[2*q+1]}")

STAMP_OFF = 200 * 1024 * 1024
class Stamps:
    def __init__(self, a, on, kid): self.a = a; self.on = on; self.n = 0; self.kid = kid; self.names = []
    def mark(self, nm):
        if not self.on: return
        r = 70 + 2 * self.n; self.n += 1; self.names.append(nm)
        assert r + 1 <= 101
        if self.n == 1: self.a.e("s_memrealtime s[62:63]")
        self.a.e(f"s_memtime s[{r}:{r+1}]"); self.a.e("s_waitcnt lgkmcnt(0)")
    def flush(self, ws_lo, ws_hi, wave_sgpr):
        if not self.on: return
        e = self.a.e
        e("s_memrealtime s[68:69]"); e("s_waitcnt lgkmcnt(0)")
        e(f"s_cmp_lg_u32 s{wave_sgpr}, 0"); lab = f"Lstamp_{self.kid}"
        e(f"s_cbranch_scc1 {lab}")
        e(f"s_lshl_b32 s66, s2, 7"); e(f"s_add_u32 s66, s66, {STAMP_OFF + self.kid * 65536}")
        e(f"s_add_u32 s64, s{ws_lo}, s66"); e(f"s_addc_u32 s65, s{ws_hi}, 0")
        e("v_mov_b32 v160, 0")
        for i in range(self.n):
            e(f"v_mov_b32 v161, s{70+2*i}")
            e(f"global_store_dword v160, v161, s[64:65] offset:{4*i}")
        e("v_mov_b32 v161, s68"); e(f"global_store_dword v160, v161, s[64:65] offset:120")
        e("v_mov_b32 v161, s62"); e(f"global_store_dword v160, v161, s[64:65] offset:116")
        for k, r in enumerate(getattr(self, "extra", [])):
            e(f"v_mov_b32 v161, {r}"); e(f"global_store_dword v160, v161, s[64:65] offset:{112 - 4*k}")
        self.a.label(lab)

def softmax_pair_pk(a, K, vC, Ep, tmp, P):
    e = a.e
    assert K % 2 == 0 and Ep % 2 == 0 and tmp % 2 == 0 and vC % 2 == 0
    mx, mn, sp, sm = tmp, tmp + 2, tmp + 4, tmp + 6
    e(f"v_max3_f32 v{mx}, v{K}, v{K+1}, v{K+2}")
    e(f"v_min3_f32 v{mn}, v{K}, v{K+1}, v{K+2}")
    for u in range(3, 19, 2):
        e(f"v_max3_f32 v{mx}, v{mx}, v{K+u}, v{K+u+1}")
        e(f"v_min3_f32 v{mn}, v{mn}, v{K+u}, v{K+u+1}")
    e(f"v_max_f32 v{mx}, v{mx}, v{K+19}")
    e(f"v_min_f32 v{mn}, v{mn}, v{K+19}")
    e(f"v_mul_f32 v{mx}, v{vC}, v{mx}")
    e(f"v_mul_f32 v{mn}, v{vC}, v{mn}")
    for u in range(0, 20, 2):
        e(f"v_pk_fma_f32 v[{Ep+u}:{Ep+u+1}], v[{K+u}:{K+u+1}], v[{vC}:{vC+1}], v[{mx}:{mx+1}] op_sel_hi:[1,0,0] neg_lo:[0,0,1] neg_hi:[0,0,1]")
        e(f"v_pk_fma_f32 v[{K+u}:{K+u+1}], v[{K+u}:{K+u+1}], v[{vC}:{vC+1}], v[{mn}:{mn+1}] op_sel_hi:[1,0,0] neg_lo:[1,0,0] neg_hi:[1,0,0]")
    for u in range(20):
        e(f"v_exp_f32 v{Ep+u}, v{Ep+u}")
        e(f"v_exp_f32 v{K+u}, v{K+u}")
    e(f"v_pk_add_f32 v[{sp}:{sp+1}], v[{Ep}:{Ep+1}], v[{Ep+2}:{Ep+3}]")
    e(f"v_pk_add_f32 v[{sm}:{sm+1}], v[{K}:{K+1}], v[{K+2}:{K+3}]")
    for u in range(4, 20, 2):
        e(f"v_pk_add_f32 v[{sp}:{sp+1}], v[{sp}:{sp+1}], v[{Ep+u}:{Ep+u+1}]")
        e(f"v_pk_add_f32 v[{sm}:{sm+1}], v[{sm}:{sm+1}], v[{K+u}:{K+u+1}]")
    e(f"v_add_f32 v{sp}, v{sp}, v{sp+1}")
    e(f"v_add_f32 v{sm}, v{sm}, v{sm+1}")
    e(f"v_rcp_f32 v{sp}, v{sp}")
    e(f"v_rcp_f32 v{sm}, v{sm}")
    for u in range(0, 20, 2):
        e(f"v_pk_mul_f32 v[{Ep+u}:{Ep+u+1}], v[{Ep+u}:{Ep+u+1}], v[{sp}:{sp+1}] op_sel_hi:[1,0]")
        e(f"v_pk_mul_f32 v[{K+u}:{K+u+1}], v[{K+u}:{K+u+1}], v[{sm}:{sm+1}] op_sel_hi:[1,0]")
    for q in range(10):
        e(f"v_cvt_pk_bf16_f32 v{P+q}, v{Ep+2*q}, v{Ep+2*q+1}")
        e(f"v_cvt_pk_bf16_f32 v{P+10+q}, v{K+2*q}, v{K+2*q+1}")

class Rec:
    def __init__(self): self.items = []
    def e(self, text):
        for line in text.split("\n"):
            line = line.strip()
            if line and not line.startswith(";"): self.items.append(line)
    def mark(self, m): self.items.append(("MARK", m))

def slot_cost(line):
    op = line.split()[0]
    if op in TRANS or op.startswith("v_permlane"): return 2
    if op.startswith("v_mfma"): return 0
    return 1

class Side:
    def __init__(self, a, vm, vm_gap=4):
        self.a, self.vm, self.q, self.vm_gap = a, vm, [], vm_gap
        self.since_vm = 99; self.blocked = False; self.want_barrier = False; self.debt = False
    def add(self, items): self.q += list(items)
    def step_boundary(self):
        if self.want_barrier: self.a.e("s_barrier"); self.want_barrier = False
        self.blocked = False
    def fill(self, slots):
        self.since_vm += 1
        while self.q and slots > 0 and not self.blocked:
            it = self.q[0]
            if isinstance(it, tuple) and it[0] == "STAMP":
                self.q.pop(0); continue
            if isinstance(it, tuple) and it[0] == "MARK":
                self.q.pop(0); self.blocked = True
                if it[1] == "barrier": self.want_barrier = True
                continue
            if isinstance(it, tuple) and it[0] == "VM":
                if self.since_vm < self.vm_gap: return slots
                self.q.pop(0)
                for pre in it[3]: self.a.e(pre)
                self.vm.issue(it[1], it[2]); self.since_vm = 0; slots -= 1 + len(it[3]); continue
            c = slot_cost(it)
            if c > slots and slots < 2 and not self.debt: return slots
            self.q.pop(0); self.a.e(it); slots -= c
            if " m0," in it: return slots
        return slots
    def flush(self):
        while self.q:
            it = self.q.pop(0)
            if isinstance(it, tuple) and it[0] == "STAMP":
                if getattr(self, "st", None): self.st.mark(it[1])
                continue
            if isinstance(it, tuple) and it[0] == "MARK":
                self.a.e("s_waitcnt lgkmcnt(0)")
                if it[1] == "barrier": self.a.e("s_barrier")
            elif isinstance(it, tuple) and it[0] == "VM":
                for pre in it[3]: self.a.e(pre)
                self.vm.issue(it[1], it[2])
            else: self.a.e(it)
        if self.want_barrier: self.a.e("s_waitcnt lgkmcnt(0)"); self.a.e("s_barrier"); self.want_barrier = False
        self.blocked = False

def gemm2(a, nsteps, lds_of, acc, abuf, xreg, first_zero, sides, extra=None, pre=None, slots=2, mid=None, counted=True, c0=None):
    e = a.e
    def read(s, T):
        vb, imm = lds_of(s, T); r = abuf[s & 1] + 4 * T
        e(f"ds_read_b128 v[{r}:{r+3}], v{vb} offset:{imm}")
    for T in range(5): read(0, T)
    mark = a.nds
    for s in range(nsteps):
        n = a.nds - mark
        if any(sd.blocked or sd.want_barrier for sd in sides) or n > 15 or not counted: n = 0
        e(f"s_waitcnt lgkmcnt({n})")
        for sd in sides: sd.step_boundary()
        if pre: pre(s)
        mf = []
        for T in range(5):
            r = abuf[s & 1] + 4 * T
            for tt in range(2):
                d = acc(tt, T); c = "0" if (s == 0 and first_zero) else f"v[{d}:{d+3}]"
                if s == 0 and c0: c = f"v[{c0(tt, T)}:{c0(tt, T)+3}]"
                mf.append(f"v_mfma_f32_16x16x32_bf16 v[{d}:{d+3}], v[{r}:{r+3}], {xreg(tt, s)}, {c}")
        if extra: mf += extra(s)
        for i, m in enumerate(mf):
            e(m)
            if mid: mid(s, i)
            left = slots
            if s + 1 < nsteps and i < 5:
                read(s + 1, i); left -= 1
                if i == 4: mark = a.nds
            for sd in sides: sd.since_vm += 1
            for sd in sides:
                n0 = len(sd.q); sv = sd.since_vm
                if left > 0:
                    sd.since_vm -= 1; sd.fill(left)
                if len(sd.q) != n0: break


def gemm3(a, nsteps, tiles, lds_of, acc, bufs, xreg, first_zero, sides, extra=None, pre=None, slots=2, mid=None, post=None, wait_every=1, s0=0):
    e = a.e
    D = len(bufs); nt = len(tiles)
    marks = {}; carry = 0
    def read(s, ti):
        vb, imm = lds_of(s, tiles[ti]); r = bufs[s % D] + 4 * ti
        e(f"ds_read_b128 v[{r}:{r+3}], v{vb} offset:{imm}")
    for s in range(s0, min(s0 + D - 1, nsteps)):
        for ti in range(nt): read(s, ti)
        marks[s] = a.nds
    for s in range(s0, nsteps):
        blk = any(sd.blocked or sd.want_barrier for sd in sides)
        if blk or (s - s0) % wait_every == 0:
            last = min(s + wait_every - 1, nsteps - 1) if (s - s0) % wait_every == 0 else s
            assert last in marks
            n = 0 if blk else a.nds - marks[last]
            e(f"s_waitcnt lgkmcnt({min(n, 15)})")
        for sd in sides: sd.step_boundary()
        if pre: pre(s)
        mf = []
        for ti, T in enumerate(tiles):
            r = bufs[s % D] + 4 * ti
            for tt in range(2):
                d = acc(tt, T); c = "0" if (s == 0 and first_zero) else f"v[{d}:{d+3}]"
                mf.append(f"v_mfma_f32_16x16x32_bf16 v[{d}:{d+3}], v[{r}:{r+3}], {xreg(tt, s)}, {c}")
        if extra: mf += extra(s)
        for i, m in enumerate(mf):
            e(m)
            if mid: mid(s, i)
            left = (slots(s) if callable(slots) else slots) + carry
            if s + D - 1 < nsteps and i < nt:
                read(s + D - 1, i); left -= 1
                if i == nt - 1: marks[s + D - 1] = a.nds
            for sd in sides: sd.since_vm += 1
            for sd in sides:
                if left <= 0: break
                sd.since_vm -= 1; left = sd.fill(left)
            carry = min(left, 0)
        if post: post(s)
```

```python
from asm import *
from layout import *
from k1b import x_items, dma_item, w_items, emit_now
from kA import signal, wait_cnt, force
OOB = 0x40000000
TB = 0
PITCH = 352
KVT = 45056
KVZ = 49152
KVS = 51200
XB = 51200
UREG = 61440

def hoisted(a, XBP=False):
    e = a.e
    e("v_and_b32 v8, 1, v3"); e("v_lshrrev_b32 v12, 1, v3")
    e("v_lshlrev_b32 v236, 4, v2"); e("v_lshl_add_u32 v238, v12, 3, v236"); e("v_lshl_add_u32 v236, v3, 8, v236"); e(f"v_add_u32 v237, {AF_WT}, v236")
    e(f"v_mul_u32_u24 v9, {AF_WT}, v8"); e("v_add_u32 v238, v238, v9"); e("v_add_u32 v238, 1024, v238")
    e("s_mul_i32 s46, s17, 1280"); e("s_add_u32 s46, s46, s44")
    e("s_lshl_b32 s19, s18, 5"); e("v_add_u32 v9, s19, v2"); e(f"v_mul_u32_u24 v9, {PITCH}, v9")
    e("v_mul_u32_u24 v10, 48, v3"); e("v_add_u32 v244, v9, v10")
    e("v_lshl_add_u32 v245, v3, 5, v9"); e("v_add_u32 v245, 192, v245")
    e("v_lshrrev_b32 v9, 2, v2"); e("v_lshl_add_u32 v9, v3, 2, v9"); e(f"v_mul_u32_u24 v9, {PITCH}, v9"); e("v_and_b32 v10, 3, v1"); e("v_lshl_add_u32 v9, v10, 3, v9")
    e("s_lshr_b32 s19, s18, 1"); e("s_and_b32 s23, s18, 1")
    e("s_mul_i32 s3, s19, 96"); e("v_add_u32 v246, s3, v9")
    e("s_lshl_b32 s3, s18, 5"); e("s_add_u32 s3, s3, 192"); e("v_add_u32 v247, s3, v9")
    e("s_mul_i32 s3, s23, 10"); e("v_add_u32 v9, s3, v2"); e("v_cmp_eq_u32 vcc, 10, v2"); e("v_mov_b32 v10, 20"); e("v_cndmask_b32 v9, v9, v10, vcc")
    e("v_mul_u32_u24 v9, 96, v9"); e("v_lshl_add_u32 v9, v3, 3, v9")
    e("s_mul_i32 s3, s19, 2016"); e(f"s_add_u32 s3, s3, {KVS}"); e("v_add_u32 v9, s3, v9")
    e("s_sub_u32 s3, 11, s23"); e(f"v_mov_b32 v11, {KVS + 4096}"); e("v_cmp_gt_u32 vcc, s3, v2"); e("v_cndmask_b32 v248, v11, v9, vcc")
    e("v_lshlrev_b32 v9, 4, v0"); e(f"v_add_u32 v251, {KVS}, v9"); e(f"v_add_u32 v252, {KVT}, v9")
    e(f"v_mov_b32 v11, {OOB}"); e("v_cmp_gt_u32 vcc, 252, v0"); e("v_cndmask_b32 v250, v11, v9, vcc")
    e("s_lshl_b32 s3, s17, 4"); e(f"s_mul_i32 s61, s3, {KVP_ST}"); e(f"s_add_u32 s61, s61, {KVP_OFF[0]}")
    e(f"s_mul_i32 s56, s16, {KVP_ST}"); e("s_add_u32 s56, s56, s61")
    e("v_and_b32 v13, 3, v2"); e("v_bfe_u32 v10, v2, 2, 1"); e("v_mul_u32_u24 v10, 10, v10"); e("v_add_u32 v10, v10, v13")
    e("v_mul_u32_u24 v11, 2016, v12"); e("v_mul_u32_u24 v14, 48, v8"); e("v_add_u32 v11, v11, v14"); e(f"v_add_u32 v11, {KVT}, v11")
    e("v_mul_u32_u24 v14, 96, v10"); e("v_add_u32 v14, v14, v11")
    e("v_lshrrev_b32 v15, 3, v2"); e("v_cmp_eq_u32 s[40:41], v15, v12"); e(f"v_mov_b32 v15, {KVZ}"); e("v_cndmask_b32 v253, v15, v14, s[40:41]")
    e("v_add_u32 v10, 8, v10"); e("v_cmp_eq_u32 vcc, 2, v13"); e("v_mov_b32 v14, 20"); e("v_cndmask_b32 v10, v10, v14, vcc")
    e("v_mul_u32_u24 v14, 96, v10"); e("v_add_u32 v14, v14, v11"); e("v_cndmask_b32 v14, v15, v14, s[40:41]")
    e("v_cmp_eq_u32 vcc, 3, v13"); e("v_cndmask_b32 v249, v14, v15, vcc")
    if XBP:
        e("v_mul_u32_u24 v10, 5472, v8"); e("v_mul_u32_u24 v11, 272, v12"); e("v_add_u32 v10, v10, v11")
    else:
        e("v_mul_u32_u24 v10, 5120, v8"); e("v_lshl_add_u32 v10, v12, 8, v10")
    e("v_lshrrev_b32 v11, 2, v2"); e("v_lshl_add_u32 v10, v11, 6, v10"); e("v_lshl_add_u32 v10, v13, 2, v10")
    e("s_lshl_b32 s3, s18, 4")
    if not XBP: e(f"s_add_u32 s3, s3, {XB}")
    e("v_add_u32 v254, s3, v10")
    if XBP: e("v_lshrrev_b32 v10, 4, v0"); e("v_lshl_add_u32 v239, v10, 4, v9")
    else: e(f"v_add_u32 v239, {XB}, v9")
    e("v_lshrrev_b32 v10, 4, v0"); e("v_lshlrev_b32 v10, 12, v10"); e("v_bfe_u32 v11, v0, 2, 2"); e("v_lshl_add_u32 v10, v11, 8, v10")
    e("v_and_b32 v11, 3, v0"); e("v_lshl_add_u32 v255, v11, 4, v10")
    e(f"v_mov_b32 v11, {OOB}"); e("v_cmp_gt_u32 vcc, 128, v0"); e("v_cndmask_b32 v243, v11, v255, vcc")
    e("s_lshr_b32 s19, s16, 1"); e("s_lshr_b32 s60, s19, 2"); e("s_lshl_b32 s60, s60, 11")
    e("s_and_b32 s3, s19, 3"); e("s_lshl_b32 s3, s3, 6"); e("s_add_u32 s60, s60, s3")
    e("s_and_b32 s23, s16, 1"); e("s_lshl_b32 s3, s23, 10"); e("s_add_u32 s60, s60, s3"); e("s_mul_i32 s3, s17, 163840"); e("s_add_u32 s60, s60, s3"); e(f"s_add_u32 s60, s60, {XF_OFF[0]}")
    e("s_lshl_b32 s19, s19, 2"); e("s_add_u32 s19, s19, s18"); e("s_lshl_b32 s59, s19, 6"); e("s_lshl_b32 s3, s23, 5"); e("s_add_u32 s59, s59, s3"); e("s_lshl_b32 s59, s59, 2"); e(f"s_add_u32 s59, s59, {ST_OFF[0]}")
    e("v_lshl_add_u32 v10, v2, 1, v12"); e("v_lshlrev_b32 v10, 2, v10"); e(f"v_mov_b32 v11, {OOB}"); e("v_cmp_eq_u32 vcc, 0, v8"); e("v_cndmask_b32 v242, v11, v10, vcc")
    for r in range(152, 156): e(f"v_mov_b32 v{r}, 0x3f803f80")
    e("v_cmp_eq_u32 s[24:25], 1, v13"); e("v_cmp_eq_u32 s[28:29], 3, v13")
    e("v_lshrrev_b32 v9, 2, v2"); e("v_lshl_add_u32 v9, v9, 4, v2"); e("v_lshlrev_b32 v9, 2, v9")

def pair_reduce(e, op, x0, x1):
    e(f"v_permlane16_swap_b32 v{x0}, v{x1}"); e(f"{op} v{x0}, v{x0}, v{x1}")
    e(f"v_mov_b32 v{x1}, v{x0}"); e(f"v_permlane16_swap_b32 v{x0}, v{x1}")

def softmax_l4_a(r, K, C, E, tmp, ratio=False):
    e = r.e
    mx = (tmp, tmp+1); mn = (tmp+2, tmp+3); sp = (tmp+4, tmp+5); sm = (tmp+6, tmp+7)
    for tt in range(2):
        k = K[tt]
        e(f"v_max3_f32 v{mx[tt]}, v{k}, v{k+1}, v{k+2}"); e(f"v_min3_f32 v{mn[tt]}, v{k}, v{k+1}, v{k+2}")
    for u in (3, 5, 7):
        for tt in range(2):
            k = K[tt]
            e(f"v_max3_f32 v{mx[tt]}, v{mx[tt]}, v{k+u}, v{k+u+1}"); e(f"v_min3_f32 v{mn[tt]}, v{mn[tt]}, v{k+u}, v{k+u+1}")
    for tt in range(2):
        k = K[tt]
        e(f"v_max_f32 v{mx[tt]}, v{mx[tt]}, v{k+9}"); e(f"v_min_f32 v{mn[tt]}, v{mn[tt]}, v{k+9}")
    e(f"v_permlane16_swap_b32 v{mx[0]}, v{mx[1]}"); e(f"v_permlane16_swap_b32 v{mn[0]}, v{mn[1]}")
    e(f"v_max_f32 v{mx[0]}, v{mx[0]}, v{mx[1]}"); e(f"v_min_f32 v{mn[0]}, v{mn[0]}, v{mn[1]}")
    e(f"v_mov_b32 v{mx[1]}, v{mx[0]}"); e(f"v_mov_b32 v{mn[1]}, v{mn[0]}")
    e(f"v_permlane16_swap_b32 v{mx[0]}, v{mx[1]}"); e(f"v_permlane16_swap_b32 v{mn[0]}, v{mn[1]}")
    for tt in range(2):
        e(f"v_mul_f32 v{mx[tt]}, v{C[tt]}, v{mx[tt]}"); e(f"v_mul_f32 v{mn[tt]}, v{C[tt]}, v{mn[tt]}")
    seq = [(tt, u) for u in range(10) for tt in range(2)]
    def fm(tt, u):
        e(f"v_fma_f32 v{E[tt]+u}, v{K[tt]+u}, v{C[tt]}, -v{mx[tt]}"); e(f"v_fma_f32 v{K[tt]+u}, -v{K[tt]+u}, v{C[tt]}, v{mn[tt]}")
    def ex(tt, u):
        e(f"v_exp_f32 v{E[tt]+u}, v{E[tt]+u}"); e(f"v_exp_f32 v{K[tt]+u}, v{K[tt]+u}")
    def ad(tt, u):
        if u == 0: return
        if u == 1:
            e(f"v_add_f32 v{sp[tt]}, v{E[tt]}, v{E[tt]+1}"); e(f"v_add_f32 v{sm[tt]}, v{K[tt]}, v{K[tt]+1}")
        else:
            e(f"v_add_f32 v{sp[tt]}, v{sp[tt]}, v{E[tt]+u}"); e(f"v_add_f32 v{sm[tt]}, v{sm[tt]}, v{K[tt]+u}")
    n = len(seq)
    for i in range(n + 4):
        if i < n: fm(*seq[i])
        if 0 <= i - 2 < n: ex(*seq[i-2])
        if 0 <= i - 4 < n: ad(*seq[i-4])
    e(f"v_permlane16_swap_b32 v{sp[0]}, v{sp[1]}"); e(f"v_permlane16_swap_b32 v{sm[0]}, v{sm[1]}")
    e(f"v_add_f32 v{sp[0]}, v{sp[0]}, v{sp[1]}"); e(f"v_add_f32 v{sm[0]}, v{sm[0]}, v{sm[1]}")
    if ratio:
        e(f"v_rcp_f32 v{sm[0]}, v{sm[0]}"); e(f"v_mov_b32 v{sp[1]}, v{sp[0]}"); e(f"v_mul_f32 v{sm[0]}, v{sp[0]}, v{sm[0]}")
        e(f"v_mov_b32 v{sm[1]}, v{sm[0]}")
    else:
        e(f"v_rcp_f32 v{sp[0]}, v{sp[0]}"); e(f"v_rcp_f32 v{sm[0]}, v{sm[0]}")
        e(f"v_mov_b32 v{sp[1]}, v{sp[0]}"); e(f"v_mov_b32 v{sm[1]}, v{sm[0]}")
    e(f"v_permlane16_swap_b32 v{sp[0]}, v{sp[1]}"); e(f"v_permlane16_swap_b32 v{sm[0]}, v{sm[1]}")
def softmax_l4_b(r, K, E, tmp, P, ratio=False, after=None):
    e = r.e
    sp = tmp + 4; sm = tmp + 6
    for tt in range(2):
        for u in range(10):
            if not ratio: e(f"v_mul_f32 v{E[tt]+u}, v{sp+tt}, v{E[tt]+u}")
            e(f"v_mul_f32 v{K[tt]+u}, v{sm+tt}, v{K[tt]+u}")
        for q in range(5):
            e(f"v_cvt_pk_bf16_f32 v{P[tt]+q}, v{E[tt]+2*q}, v{E[tt]+2*q+1}")
            e(f"v_cvt_pk_bf16_f32 v{P[tt]+5+q}, v{K[tt]+2*q}, v{K[tt]+2*q+1}")
        e(f"v_mov_b32 v{P[tt]+10}, 0"); e(f"v_mov_b32 v{P[tt]+11}, 0")
        if after: after(tt)

def stats_items(r):
    e = r.e
    for tt in range(2):
        g0 = 144 + 4*tt
        e(f"v_cndmask_b32 v{g0}, v{g0}, v{g0+1}, s[24:25]")
        e(f"v_cndmask_b32 v{g0+2}, v{g0+2}, v{g0+3}, s[28:29]")
        e(f"v_cndmask_b32 v{g0+2}, v{g0}, v{g0+2}, s[22:23]")
    e("ds_bpermute_b32 v145, v9, v146"); e("ds_bpermute_b32 v149, v9, v150")
    for tt in range(2): e(f"v_mul_f32 v{136+4*tt}, {1/640!r}, v{136+4*tt}")
    r.mark("step")
    for tt in range(2): e(f"v_mul_f32 v{145+4*tt}, {1/640!r}, v{145+4*tt}")
    for tt in range(2): e(f"v_fma_f32 v{145+4*tt}, -v{136+4*tt}, v{136+4*tt}, v{145+4*tt}")
    for tt in range(2): e(f"v_max_f32 v{145+4*tt}, 0, v{145+4*tt}")
    for tt in range(2): e(f"v_add_f32 v{145+4*tt}, 0x3727c5ac, v{145+4*tt}")
    for tt in range(2): e(f"v_rsq_f32 v{10+tt}, v{145+4*tt}")
    e("v_mov_b32 v205, 0x3f80"); e("v_mov_b32 v213, 0x3f80")
    for tt in range(2): e(f"v_mul_f32 v{14+tt}, {LOG2E!r}, v{10+tt}")
    for q in (206, 207, 214, 215): e(f"v_mov_b32 v{q}, 0")

def epiA_tail(r):
    e = r.e
    B = lambda nt, ks: (56 + 16*nt + 4*ks) if nt < 2 else (156 + 4*ks)
    for ks in range(4):
        e(f"ds_read_b64_tr_b16 v[{216+4*ks}:{217+4*ks}], v247 offset:{ks*32*PITCH}")
        e(f"ds_read_b64_tr_b16 v[{218+4*ks}:{219+4*ks}], v247 offset:{ks*32*PITCH + 16*PITCH}")
        for nt in range(3):
            b = B(nt, ks)
            e(f"ds_read_b64_tr_b16 v[{b}:{b+1}], v246 offset:{ks*32*PITCH + 32*nt}")
            e(f"ds_read_b64_tr_b16 v[{b+2}:{b+3}], v246 offset:{ks*32*PITCH + 16*PITCH + 32*nt}")
    r.mark("step")
    for ks in range(4):
        for nt in range(3):
            b = B(nt, ks); d = 176 + 4*nt
            c = "0" if ks == 0 else f"v[{d}:{d+3}]"
            e(f"v_mfma_f32_16x16x32_bf16 v[{d}:{d+3}], v[{b}:{b+3}], v[{216+4*ks}:{219+4*ks}], {c}")
    r.mark("step")
    for nt in range(3):
        d = 176 + 4*nt
        e(f"v_cvt_pk_bf16_f32 v{d}, v{d}, v{d+1}"); e(f"v_cvt_pk_bf16_f32 v{d+1}, v{d+2}, v{d+3}")
        e(f"ds_write_b64 v248, v[{d}:{d+1}] offset:{32*nt}")
    r.mark("barrier")
    e("ds_read_b128 v[176:179], v251")
    r.mark("step")
    r.items.append(("VM", "buffer_store_dwordx4 v[176:179], v250, s[12:15], s56 offen sc1", "kvst", []))

def sprinkle(a, vm, items, pend, every, start=0, st=None):
    e = a.e
    for i, it in enumerate(items):
        if isinstance(it, tuple):
            if it[0] == "MARK": e("s_waitcnt lgkmcnt(0)")
            elif it[0] == "VM": vm.issue(it[1], it[2])
            elif it[0] == "ST" and st: st.mark(it[1])
        else: e(it)
        if i >= start and (i - start) % every == every - 1 and pend:
            while pend:
                p = pend.pop(0)
                if isinstance(p, tuple): vm.issue(p[1], p[2]); break
                e(p)
    emit_now(a, vm, pend); pend.clear()

def gen_kA(name, stamps=False, NLEAD=22, VMGAP=4, fine=False, SIGSTEP=5, WT=True, LEAD5=6, PADN=1, only=None, HSH=False, SLA=2, SLB=2, GAPA2=3, GAPB2=4, PREW=0, LDEV=8, EARLYW=False, WE=1, KPSC=True, OSC=True, ASY=False, SIG1=17, CK0=4, CK1=12, TSL=4, TSN=3, KPGAP=2, SENT=False, KS0=2, SUMPOS=None, KCLR=0, MFR=3, HEV=12, EP5=False, LW=0, LWS=0, GAP5=None, T5N=0, B5=11, SELB=False, T4O=False, KNAN=False, KDLY=False, B2S=0, NPE=8, NPT=8, U0L=False, XBP=False):
    a = Asm(); e = a.e; vm = VM(a); st = Stamps(a, stamps, 1)
    if only is not None:
        _mark = st.mark
        st.mark = lambda nm: _mark(nm) if nm in only else None
    a.label(f"{name}_body")
    e("s_cmp_ge_u32 s2, 256")
    e(f"s_cbranch_scc1 {name}_end")
    st.mark("start")
    if stamps: e("s_mov_b32 s57, 0"); e("s_mov_b32 s58, 0")
    e("s_load_dwordx2 s[30:31], s[0:1], 88")
    wg_to_rc(a, 16, 17, 19)
    e("v_and_b32 v1, 63, v0"); e("v_lshrrev_b32 v2, 6, v0")
    e("v_readfirstlane_b32 s18, v2")
    e("v_lshlrev_b32 v5, 4, v1")
    e("s_lshl_b32 s44, s16, 2"); e("s_add_u32 s44, s44, s18"); e(f"s_mul_i32 s44, s44, {2*AF_WT}")
    e(f"s_add_u32 s19, s44, {XIN_OFF[0]}")
    e(f"s_mul_i32 s34, s17, {W1_C}")
    e("s_lshl_b32 s21, s18, 10"); e("s_mul_i32 s64, s18, 3072"); e("s_lshl_b32 s65, s18, 11")
    e("s_mov_b32 s20, 0"); e(f"s_mov_b32 s35, {AF_WT}")
    e(f"s_mov_b32 s6, {2*AF_WT}"); e("s_mov_b32 s7, 0x20000"); e(f"s_mov_b32 s10, {163840}"); e("s_mov_b32 s11, 0x20000")
    e("s_add_u32 s19, s19, s32")
    e("s_waitcnt lgkmcnt(0)")
    e("s_add_u32 s4, s30, s19"); e("s_addc_u32 s5, s31, 0")
    e("s_add_u32 s8, s30, s34"); e("s_addc_u32 s9, s31, 0")
    X = lambda tt, s: f"a[{(2*s+tt)*4}:{(2*s+tt)*4+3}]"
    def dma(sreg, off, srdn, tag): return [f"s_add_u32 m0, {sreg}, {off}", ("VM", f"buffer_load_dwordx4 v5, {srdn}, m0 offen lds", tag, [])]
    def grp3(G, base, srdn, tag):
        return sum((dma("s64", base + G*12288 + T*1024, srdn, tag) for T in range(3)), [])
    def grp2(G, base, srdn, tag):
        return sum((dma("s65", base + G*8192 + T*1024, srdn, tag) for T in range(2)), [])
    xt = lambda s: [(i[0], i[1], f"x{s}", i[3]) if isinstance(i, tuple) else i for i in x_items(X, s)]
    loadsA = grp3(0, 0, "s[8:11]", "W0") + xt(0) + xt(1)
    for G in range(1, 5):
        loadsA += grp3(G, 0, "s[8:11]", f"W{G}")
        for s in range(4*G - 2, 4*G + 2): loadsA += xt(s)
    loadsA += (xt(18) + xt(19) + grp2(0, UREG, "s[8:11]", "U0")) if U0L else (xt(18) + grp2(0, UREG, "s[8:11]", "U0") + xt(19))
    for G in range(1, 5): loadsA += grp2(G, UREG, "s[8:11]", f"U{G}")
    loadsP = []
    for G in range(5): loadsP += grp3(G, 102400, "s[8:11]", f"P{G}")
    r = Rec()
    r.e("v_and_b32 v2, 15, v1"); r.e("v_lshrrev_b32 v3, 4, v1")
    r.e(f"v_add_u32 v6, {UREG}, v5"); r.e("v_add_u32 v7, 102400, v5")
    r.e("s_add_u32 s36, s8, 102400"); r.e("s_addc_u32 s37, s9, 0"); r.e("s_mov_b32 s38, 102400"); r.e("s_mov_b32 s39, 0x20000")
    r.e("s_add_u32 s12, s30, s32"); r.e("s_addc_u32 s13, s31, 0"); r.e(f"s_sub_u32 s14, {WS_USED}, s32"); r.e("s_mov_b32 s15, 0x20000")
    r.e(f"s_mul_i32 s34, s17, {W2_C}"); r.e(f"s_add_u32 s34, s34, {W2_OFF - 102400}")
    r.e("s_add_u32 s48, s30, s34"); r.e("s_addc_u32 s49, s31, 0"); r.e("s_mov_b32 s50, 163840"); r.e("s_mov_b32 s51, 0x20000")
    r.e(f"s_add_u32 s52, s48, {163840 if B2S else 102400}"); r.e("s_addc_u32 s53, s49, 0"); r.e(f"s_mov_b32 s54, {40960 if B2S else 102400}"); r.e("s_mov_b32 s55, 0x20000")
    hoisted(r, XBP)
    r.e("v_and_b32 v8, 2, v2"); r.e("v_cmp_eq_u32 s[22:23], 2, v8")
    r.e(f"s_lshl_b32 s45, s17, 7"); r.e(f"s_add_u32 s45, s45, {CNT_OFF[0]}")
    setup = []
    for i in r.items:
        if i.startswith("s_nop"): continue
        if i.startswith("s_addc") or i.startswith("s_cselect"): setup[-1] += "\n" + i
        else: setup.append(i)
    lead = []; n = 0
    while n < NLEAD:
        it = loadsA.pop(0); lead.append(it)
        if isinstance(it, tuple): n += 1
    sideH = Side(a, vm)
    if HSH:
        for q in range(152, 156): e(f"v_mov_b32 v{q}, 0x3f803f80")
        sideH.add([i for i in setup if "0x3f803f80" not in i]); setup = []
    per = -(-len(setup) // max(1, NLEAD - 3)); k = 0
    for it in lead:
        if isinstance(it, tuple):
            vm.issue(it[1], it[2]); k += 1
            if k > 3:
                n = 0
                while setup and n < per:
                    e(setup.pop(0)); n += 1
        else: e(it)
    for it in setup: e(it)
    sideA = Side(a, vm, VMGAP); sideA.add(loadsA)
    if not fine: st.mark("issued")
    vm.wait("W0"); e("s_barrier")
    accA = lambda tt, T: 56 + 20*tt + 4*T
    accB = lambda tt, T: 96 + 20*tt + 4*T
    def need(side, t):
        force(side, vm, t)
        if t in vm.q: vm.wait(t)
    B3 = (16, 28, 40); B2 = (16, 24, 32, 40)
    def preA1(s):
        if only and s in (5, 10, 15): st.mark(f"A1s{s}")
        need(sideA, f"x{s}")
        if s % 4 == 2 and s < 18:
            need(sideA, f"W{(s+2)//4}"); e("s_barrier")
    def extra0(s):
        out = []
        for tt in range(2):
            c0 = "0" if s == 0 else f"v[{136+4*tt}:{139+4*tt}]"
            c1 = "0" if s == 0 else f"v[{144+4*tt}:{147+4*tt}]"
            out.append(f"v_mfma_f32_16x16x32_bf16 v[{136+4*tt}:{139+4*tt}], v[152:155], {X(tt,s)}, {c0}")
            out.append(f"v_mfma_f32_16x16x32_bf16 v[{144+4*tt}:{147+4*tt}], {X(tt,s)}, {X(tt,s)}, {c1}")
        return out
    gemm3(a, 20, [0, 1, 2], lambda s, T: (5, s*3072 + T*1024), accA, B3, X, True, [sideA, sideH], extra0, preA1)
    sideH.flush()
    st.mark("A1")
    need(sideA, "U0"); e("s_barrier")
    sideA.vm_gap = GAPA2; sideA.add(loadsP)
    sideS = Side(a, vm); sideS.debt = True
    KA = (56, 76); EE = (156, 166); PP = (176, 188)
    r = Rec(); stats_items(r); softmax_l4_a(r, KA, (14, 15), EE, 216); sideS.add(r.items)
    def preA2(s):
        if only and s in (1, 2, 5, 6, 10, 15): st.mark(f"A2s{s}")
        if s % 4 == 1 and s < 17:
            need(sideA, f"U{(s+3)//4}"); e("s_barrier")
    gemm3(a, 20, [3, 4], lambda s, T: (6, s*2048 + (T-3)*1024), accA, B2, X, True, [sideA, sideS], None, preA2, slots=SLA, wait_every=WE)
    st.mark("A2")
    r = Rec()
    for tt in range(2):
        vb = 66 + 20*tt
        for u in range(10): r.e(f"v_mul_f32 v{vb+u}, v{10+tt}, v{vb+u}")
        for q in range(5): r.e(f"v_cvt_pk_bf16_f32 v{200+8*tt+q}, v{vb+2*q}, v{vb+2*q+1}")
        for q in range(2): r.e(f"ds_write_b128 v245, v[{200+8*tt+4*q}:{203+8*tt+4*q}] offset:{16*q + tt*16*PITCH}")
    r.items.append(("ST", "h_v"))
    r.items += sideS.q; sideS.q = []
    r.items.append(("ST", "h_a"))
    def phi_rows(tt):
        for q in range(3): r.e(f"ds_write_b128 v244, v[{PP[tt]+4*q}:{PP[tt]+4*q+3}] offset:{16*q + tt*16*PITCH}")
    softmax_l4_b(r, KA, EE, 216, PP, after=phi_rows)
    r.items.append(("ST", "h_b"))
    pend = list(sideA.q); sideA.q = []
    if KCLR == 1:
        for q in range(4): e(f"v_mov_b32 v{232+q}, -1")
        e("s_cmp_eq_u32 s32, 0"); e(f"s_cselect_b32 s3, 0, {OOB}"); e(f"v_subrev_u32 v8, {KVS}, v251"); e("v_add_u32 v8, s3, v8")
        e("s_lshl_b32 s3, s2, 12"); e(f"s_add_u32 s3, s3, {KVP_OFF[0] + LSTRIDE}")
        vm.issue("buffer_store_dwordx4 v[232:235], v8, s[12:15], s3 offen sc1", "kclr")
    if KCLR == 2:
        e("s_cmp_lg_u32 s32, 0"); e(f"s_cbranch_scc1 {name}_nokclr")
        for q in range(4): e(f"v_mov_b32 v{232+q}, -1")
        e(f"v_subrev_u32 v8, {KVS}, v251")
        e("s_lshl_b32 s3, s2, 12"); e(f"s_add_u32 s3, s3, {KVP_OFF[0] + LSTRIDE}")
        e("buffer_store_dwordx4 v[232:235], v8, s[12:15], s3 offen sc1")
        a.label(f"{name}_nokclr")
    sprinkle(a, vm, r.items, pend, HEV, st=st if only else None)
    for q in range(4): e(f"v_mov_b32 v{232+q}, 0")
    e(f"v_add_u32 v8, {KVZ - KVS}, v251")
    e("v_cmp_gt_u32 vcc, 128, v0"); e("s_and_saveexec_b64 s[40:41], vcc")
    e("ds_write_b128 v8, v[232:235]")
    e("s_mov_b64 exec, s[40:41]")
    e("s_waitcnt lgkmcnt(0)")
    if only: st.mark("h_w")
    vm.wait("P0")
    if only: st.mark("h_p")
    e("s_barrier")
    st.mark("head")
    sideB = Side(a, vm, VMGAP); sideW = Side(a, vm, VMGAP)
    r = Rec(); epiA_tail(r)
    if KDLY:
        r.items.insert(len(r.items) - 1, f"s_bitcmp1_b32 s16, 0\ns_cbranch_scc0 {name}_nodly\ns_sleep 60\n{name}_nodly:")
    sideB.add(r.items)
    for q in range(4): e(f"v_mov_b32 v{232+q}, -1")
    e(f"s_add_u32 s47, s46, {O_OFF[0]}")
    sideW.q = [("VM", "buffer_store_dwordx4 v[232:235], v236, s[12:15], s47 offen sc1", "clr", []),
               ("VM", "buffer_store_dwordx4 v[232:235], v237, s[12:15], s47 offen sc1", "clr", []),
               ("VM", "buffer_store_dwordx2 v[232:233], v238, s[12:15], s47 offen sc1", "clr", [])]
    for G in range(5): sideW.add(grp2(G, UREG, "s[36:39]", f"V{G}"))
    state = {"sig": False}
    def do_signal():
        assert not any(isinstance(i, tuple) and i[0] == "VM" and i[2] in (("clr",) if SENT else ("clr", "kvst")) for i in sideW.q + ([] if SENT else sideB.q))
        if "kvst" in vm.q and not SENT: vm.wait("kvst")
        if "clr" in vm.q: vm.wait("clr")
        signal(a, "s45", f"{name}_sig1"); state["sig"] = True
    def preB1(s):
        if only and s in (2, 5, 10, 15): st.mark(f"B1s{s}")
        if s % 4 == 2 and s < 18:
            t = f"P{(s+2)//4}"
            if t in vm.q: vm.wait(t)
            e("s_barrier")
        if (ASY or SENT) and s == SIG1: do_signal()
    sel = Rec()
    sel.e("v_and_b32 v8, 1, v2"); sel.e("v_lshlrev_b32 v8, 4, v8"); sel.e("v_mov_b32 v12, 0x3f80"); sel.e("v_lshlrev_b32 v8, v8, v12")
    sel.e("v_lshrrev_b32 v12, 2, v2"); sel.e("v_cmp_eq_u32 vcc, v12, v3"); sel.items[-1] += "\nv_cndmask_b32 v8, 0, v8, vcc"
    sel.e("v_and_b32 v12, 2, v2"); sel.e("v_cmp_eq_u32 vcc, 0, v12"); sel.items[-1] += "\nv_cndmask_b32 v210, 0, v8, vcc\nv_cndmask_b32 v211, v8, 0, vcc"
    for q in (208, 209, 212, 213): sel.e(f"v_mov_b32 v{q}, 0")
    if SELB: sideB.add(sel.items); sel.items = []
    gemm3(a, 20, [0, 1, 2], lambda s, T: (7, s*3072 + T*1024), accB, B3, X, True, [sideB, sideW], None, preB1,
          slots=(lambda s: TSL if s < TSN else 2) if (ASY or SENT) else 2)
    st.mark("B1")
    sideB.flush()
    need(sideW, "V0"); e("s_barrier")
    sideW.vm_gap = GAPB2
    sideS = Side(a, vm); sideS.debt = True
    KQ = (96, 116)
    r = Rec(); softmax_l4_a(r, KQ, (14, 15), EE, 200, ratio=True); sideS.add(r.items)
    KP = lambda R: (56 + 4*R) if R < 10 else (216 + 4*(R-10)) if R < 14 else (136 + 4*(R-14))
    kpl = []
    for R in range(16):
        kpl.append(("VM", f"buffer_load_dwordx4 v[{KP(R)}:{KP(R)+3}], v250, s[12:15], s61 offen" + (" sc1" if KPSC else ""), f"kp{R//4}", []))
        if R < 15: kpl.append(f"s_add_u32 s61, s61, {KVP_ST}")
    def kp_check(G):
        r0 = [KP(4*G + i) for i in range(4)]
        return [f"v_max3_u32 v8, v{r0[0]}, v{r0[0]+3}, v{r0[1]}", f"v_max3_u32 v8, v8, v{r0[1]+3}, v{r0[2]}", f"v_max3_u32 v8, v8, v{r0[2]+3}, v{r0[3]}",
                f"v_max_u32 v8, v8, v{r0[3]+3}", "v_cmp_eq_u32 vcc, -1, v8"]
    def preB2(s):
        if only and s in (1, 2, 5, 6, 10, 15): st.mark(f"B2s{s}")
        if s % 4 == 1 and s < 17:
            need(sideW, f"V{(s+3)//4}"); e("s_barrier")
        if s == 1:
            for s2 in range(12): sideW.add(w_items(s2, 102400, "s[48:51]", lambda s: f"w{s//4}"))
        if not ASY and not SENT and s == SIGSTEP: do_signal()
        if SENT and s == KS0:
            idx = max([i + 1 for i, it in enumerate(sideW.q) if isinstance(it, tuple) and it[2].startswith("V")] + [1 if (sideW.q and isinstance(sideW.q[0], tuple)) else 0])
            sideW.q = sideW.q[:idx] + kpl + sideW.q[idx:]; sideW.vm_gap = KPGAP
        if ASY and s == CK0:
            e("v_mov_b32 v240, 0"); vm.issue("buffer_load_dword v241, v240, s[12:15], s45 offen sc1", "cnt")
        if ASY and s == CK1:
            vm.wait("cnt"); e("v_readfirstlane_b32 s43, v241"); e("s_cmp_lt_u32 s43, 16"); e(f"s_cbranch_scc1 {name}_cw")
            a.label(f"{name}_cwd")
            while sideW.q and not isinstance(sideW.q[0], tuple) and " m0," not in sideW.q[0]: e(sideW.q.pop(0))
            k = 1 if (sideW.q and isinstance(sideW.q[0], tuple)) else 0
            sideW.q = sideW.q[:k] + kpl + sideW.q[k:]; sideW.vm_gap = KPGAP
    gemm3(a, B2S or 20, [3, 4], lambda s, T: (6, s*2048 + (T-3)*1024), accB, B2, X, True, [sideW, sideS], None, preB2, slots=SLB, wait_every=WE)
    assert state["sig"]
    st.mark("B2")
    rest = Rec(); rest.items += sideS.q; sideS.q = []
    softmax_l4_b(rest, KQ, EE, 200, PP, ratio=True)
    if not ASY and not SENT:
        for it in rest.items[:PREW]: e(it)
        rest.items = rest.items[PREW:]
        wait_cnt(a, "s45", 16, f"{name}_w1")
        pend = list(kpl); wleft = list(sideW.q); vm.q = []
    else:
        pend = list(sideW.q); wleft = []
    sideW.q = []
    lateW = []
    for s2 in range(12, 20): lateW += w_items(s2, -61440 if B2S else 0, "s[52:55]", lambda s: f"w{s//4}")
    if LW:
        e("s_barrier"); pend += lateW; lateW = []
    wq = []
    if B2S:
        kpi = max([i + 1 for i, it in enumerate(pend) if isinstance(it, tuple) and it[2].startswith("kp")] + [1 if (pend and isinstance(pend[0], tuple)) else 0])
        wq = pend[kpi:] + lateW; pend = pend[:kpi]; lateW = []
        def take(n):
            out = []
            while wq and n > 0:
                it = wq.pop(0); out.append(it)
                if isinstance(it, tuple): n -= 1
            return out
        pend += take(NPE)
    st.mark("kvwait")
    later = wleft + [f"s_add_u32 s3, s46, {XIN_OFF[0]}",
             ("VM", "buffer_load_dwordx4 v[224:227], v236, s[12:15], s3 offen", "res", []),
             ("VM", "buffer_load_dwordx4 v[228:231], v237, s[12:15], s3 offen", "res", []),
             ("VM", "buffer_load_dwordx2 v[232:233], v238, s[12:15], s3 offen", "res", [])]
    later += ["v_and_b32 v234, 15, v1", "v_lshlrev_b32 v234, 7, v234", f"s_mov_b32 s47, {CNT_OFF[0]}",
              ("VM", "buffer_load_dword v235, v234, s[12:15], s47 offen sc1", "res", [])]
    def sum_mf(R, h):
        d = 144 + 4*h; c = "0" if R == 0 else f"v[{d}:{d+3}]"
        return f"v_mfma_f32_16x16x32_bf16 v[{d}:{d+3}], v[{210-2*h}:{213-2*h}], v[{KP(R)}:{KP(R)+3}], {c}"
    def sum_head(G):
        vm.wait(f"kp{G}")
        if SENT and not KNAN:
            for it in kp_check(G): e(it)
            e(f"s_cbranch_vccnz {name}_kr{G}"); a.label(f"{name}_kc{G}")
    if SUMPOS is None:
        sprinkle(a, vm, rest.items + sel.items, pend, LDEV)
        st.mark("epiB")
        for R in range(16):
            if R % 4 == 0: sum_head(R // 4)
            for h in range(2): e(sum_mf(R, h))
    else:
        items = sel.items + rest.items; mfq = []; nxt = 0; cnt = 0
        for i, it in enumerate(items):
            if nxt < 4 and i >= SUMPOS[nxt] and not mfq and not any(isinstance(p, tuple) and p[2] == f"kp{nxt}" for p in pend):
                sum_head(nxt); mfq = [sum_mf(R, h) for R in range(4*nxt, 4*nxt + 4) for h in range(2)]; nxt += 1
            if mfq and i % MFR == 0: e(mfq.pop(0))
            e(it)
            if i % LDEV == LDEV - 1 and pend:
                while pend:
                    p = pend.pop(0)
                    if isinstance(p, tuple): vm.issue(p[1], p[2]); break
                    e(p)
        emit_now(a, vm, pend); pend.clear()
        st.mark("epiB")
        for m in mfq: e(m)
        while nxt < 4:
            sum_head(nxt)
            for R in range(4*nxt, 4*nxt + 4):
                for h in range(2): e(sum_mf(R, h))
            nxt += 1
    if SENT and KNAN:
        e("v_cmp_u_f32 vcc, v144, v148"); e(f"s_cbranch_vccnz {name}_kn"); a.label(f"{name}_knd")
    for q in range(4): e(f"v_cvt_pk_bf16_f32 v{208+q}, v{144+2*q}, v{145+2*q}")
    e("v_cmp_gt_u32 vcc, 252, v0"); e("s_and_saveexec_b64 s[40:41], vcc")
    e("ds_write_b128 v252, v[208:211]")
    e("s_mov_b64 exec, s[40:41]")
    emit_now(a, vm, later)
    if EARLYW: emit_now(a, vm, lateW); lateW = []
    e("s_waitcnt lgkmcnt(0)"); e("s_barrier")
    if not fine: st.mark("kvsum")
    for Tp in (2, 0, 1):
        for ch in range(3):
            rr = 16 + 12*Tp + 4*ch
            if Tp < 2: e(f"ds_read_b128 v[{rr}:{rr+3}], v253 offset:{Tp*384 + ch*16}")
            else: e(f"ds_read_b128 v[{rr}:{rr+3}], v249 offset:{ch*16}")
    def t4mf(tt, Tp, ch):
        rr = 16 + 12*Tp + 4*ch; d = 56 + 12*tt + 4*Tp
        c = "0" if ch == 0 else f"v[{d}:{d+3}]"
        return f"v_mfma_f32_16x16x32_bf16 v[{d}:{d+3}], v[{rr}:{rr+3}], v[{PP[tt]+4*ch}:{PP[tt]+4*ch+3}], {c}"
    def t4epi(tt):
        ob = 56 + 12*tt; it = []
        for u in range(10): it.append(f"v_mul_f32 v{ob+u}, v{80+tt}, v{ob+u}")
        for q in range(4): it.append(f"v_cvt_pk_bf16_f32 v{156+4*tt+q}, v{ob+2*q}, v{ob+2*q+1}")
        it.append(f"v_cvt_pk_bf16_f32 v{164+tt}, v{ob+8}, v{ob+9}")
        return it
    if T4O:
        e(f"s_add_u32 s3, s46, {O_OFF[0]}")
        t4q = take(NPT) if B2S else []
        def t4load():
            while t4q:
                p = t4q.pop(0)
                if isinstance(p, tuple): vm.issue(p[1], p[2]); break
                e(p)
        for i, Tp in enumerate((2, 0, 1)):
            e(f"s_waitcnt lgkmcnt({6 - 3*i})")
            for ch in range(3):
                e(t4mf(0, Tp, ch))
                if ch != 1: t4load()
        mf1 = [t4mf(1, Tp, ch) for Tp in (2, 0, 1) for ch in range(3)]
        ep0 = ["v_fmac_f32 v66, 0x358637bd, v204", "v_rcp_f32 v80, v66"] + t4epi(0)
        for i, m in enumerate(mf1):
            e(m)
            if i >= 1:
                for it in ep0[:2]: e(it)
                ep0 = ep0[2:]
            if i == 4: e("v_fmac_f32 v78, 0x358637bd, v205"); e("v_rcp_f32 v81, v78")
            if i % 3 == 0: t4load()
        for it in ep0: e(it)
        while t4q: t4load()
        vm.issue("buffer_store_dwordx4 v[156:159], v236, s[12:15], s3 offen sc1", "ost")
        for it in t4epi(1): e(it)
        vm.issue("buffer_store_dwordx4 v[160:163], v237, s[12:15], s3 offen sc1", "ost")
        e("v_permlane16_swap_b32 v164, v165")
        vm.issue("buffer_store_dwordx2 v[164:165], v238, s[12:15], s3 offen sc1", "ost")
    else:
        for i, Tp in enumerate((2, 0, 1)):
            e(f"s_waitcnt lgkmcnt({6 - 3*i})")
            for ch in range(3):
                rr = 16 + 12*Tp + 4*ch
                for tt in range(2):
                    d = 56 + 12*tt + 4*Tp
                    c = "0" if ch == 0 else f"v[{d}:{d+3}]"
                    e(f"v_mfma_f32_16x16x32_bf16 v[{d}:{d+3}], v[{rr}:{rr+3}], v[{PP[tt]+4*ch}:{PP[tt]+4*ch+3}], {c}")
            if i == 1:
                e("v_fmac_f32 v66, 0x358637bd, v204"); e("v_fmac_f32 v78, 0x358637bd, v205"); e("v_rcp_f32 v80, v66"); e("v_rcp_f32 v81, v78")
        for tt in range(2):
            sel = "op_sel_hi:[1,0]" if tt == 0 else "op_sel:[0,1] op_sel_hi:[1,1]"
            ob = 56 + 12*tt
            for u in range(0, 10, 2): e(f"v_pk_mul_f32 v[{ob+u}:{ob+u+1}], v[{ob+u}:{ob+u+1}], v[80:81] {sel}")
            for q in range(4): e(f"v_cvt_pk_bf16_f32 v{156+4*tt+q}, v{ob+2*q}, v{ob+2*q+1}")
            e(f"v_cvt_pk_bf16_f32 v{164+tt}, v{ob+8}, v{ob+9}")
        e(f"s_add_u32 s3, s46, {O_OFF[0]}")
        vm.issue("buffer_store_dwordx4 v[156:159], v236, s[12:15], s3 offen sc1", "ost")
        e("v_permlane16_swap_b32 v164, v165")
        vm.issue("buffer_store_dwordx4 v[160:163], v237, s[12:15], s3 offen sc1", "ost")
        vm.issue("buffer_store_dwordx2 v[164:165], v238, s[12:15], s3 offen sc1", "ost")
    st.mark("T4")
    vm.wait("res")
    e("v_permlane16_swap_b32 v232, v233")
    for tt in range(2):
        for q in range(4):
            e(f"v_lshlrev_b32 v{96+20*tt+2*q}, 16, v{224+4*tt+q}"); e(f"v_and_b32 v{97+20*tt+2*q}, 0xffff0000, v{224+4*tt+q}")
        e(f"v_lshlrev_b32 v{104+20*tt}, 16, v{232+tt}"); e(f"v_and_b32 v{105+20*tt}, 0xffff0000, v{232+tt}")
    if B2S:
        sideX = Side(a, vm, 2); sideX.add(wq); wq = []
        gemm3(a, 20, [3, 4], lambda s, T: (6, s*2048 + (T-3)*1024), accB, B2, X, True, [sideX], None, None, wait_every=WE, s0=B2S)
        sideX.flush()
        st.mark("B2b")
    else:
        e("s_waitcnt vmcnt(3)"); e("s_barrier")
        vm.q = ["ost"] * 3
    e("v_cmp_gt_u32 vcc, 16, v235"); e(f"s_cbranch_vccnz {name}_gw")
    a.label(f"{name}_gwd")
    if not LWS: emit_now(a, vm, lateW); lateW = []
    st.mark("owait")
    e(f"s_add_u32 s19, s44, {O_OFF[0]}")
    e("s_add_u32 s4, s12, s19"); e("s_addc_u32 s5, s13, 0")
    if T5N:
        e("s_mov_b32 s33, 0")
        a.label(f"{name}_t5")
    e("s_mov_b32 s20, 0"); e(f"s_mov_b32 s35, {AF_WT}")
    osc = " sc1" if OSC else ""
    for s in range(LEAD5): emit_now(a, vm, x_items(X, s, extra=osc))
    sideO = Side(a, vm, GAP5 or VMGAP)
    for s in range(LEAD5, 20):
        sideO.add(x_items(X, s, extra=osc))
        if LWS and lateW and s >= LWS:
            sideO.add(lateW[:4]); lateW = lateW[4:]
    assert not lateW
    stubs = []
    def check_items(s):
        b0, b1 = (2*s)*4, (2*s+1)*4
        return [f"v_accvgpr_read_b32 v8, a{b0}", f"v_accvgpr_read_b32 v9, a{b0+2}", f"v_accvgpr_read_b32 v10, a{b1}", f"v_accvgpr_read_b32 v11, a{b1+2}",
                "v_max_u32 v8, v8, v9", "v_max3_u32 v8, v8, v10, v11", "v_cmp_eq_u32 vcc, -1, v8"]
    def branch(s):
        e(f"s_cbranch_vccnz {name}_rt{s}")
        a.label(f"{name}_c{s}")
        pendt = {i[2] for i in sideO.q if isinstance(i, tuple) and i[0] == "VM"}
        stubs.append((s, [s2 for s2 in range(s, 20) if f"s{s2}" not in pendt]))
    sideC = Side(a, vm, VMGAP)
    vm.wait("s0")
    for it in check_items(0): e(it)
    branch(0)
    if B2S:
        e("s_cmp_lg_u32 s33, 0"); e(f"s_cbranch_scc1 {name}_nob0")
        e("s_barrier")
        a.label(f"{name}_nob0")
    def lds5(s, T):
        off = (s*5+T)*1024
        return (7, off) if s < 12 else ((5, off - 61440) if B2S else (6, off - UREG))
    def pre5(s):
        if only and s in (0, 1, 2, 3, 4, 6, 8, 10, 12, 14, 16, 18): st.mark(f"T5s{s}")
        if s == B5 and not B2S:
            if LWS:
                force(sideO, vm, "w4")
                if "w4" in vm.q: vm.wait("w4")
            if T5N: e("s_cmp_lg_u32 s33, 0"); e(f"s_cbranch_scc1 {name}_nob")
            e("s_barrier")
            if T5N: a.label(f"{name}_nob")
        if s > 0 and (not T5N or s < T5N):
            sideC.flush(); branch(s)
    def mid5(s, i):
        if i == 4 and s + 1 < 20:
            force(sideO, vm, f"s{s+1}")
            if f"s{s+1}" in vm.q: vm.wait(f"s{s+1}")
            if not T5N or s + 1 < T5N: sideC.add(check_items(s + 1))
    accN = (lambda tt, T: 56 + 20*tt + 4*T) if T5N else accB
    gemm2(a, 20, lds5, accN, (16, 36), X, False, [sideC, sideO], None, pre5, mid=mid5, c0=accB if T5N else None)
    if T5N:
        e("v_cmp_u_f32 vcc, v56, v76"); e(f"s_cbranch_vccnz {name}_t5r")
        a.label(f"{name}_t5d")
    AB = 56 if T5N else 96; XP = 96 if T5N else 56; RD = 110 if T5N else 76
    st.mark("T5")
    if EP5 == 2:
        wt = " sc1" if WT else ""
        for q in range(10):
            e(f"v_cvt_pk_bf16_f32 v{56+q}, v{106+q}, v{126+q}")
            if q: e(f"ds_write_b32 v254, v{55+q} offset:{(q-1)*512}")
        for tt in range(2):
            b = 96 + 20*tt; s_ = 136 + 4*tt
            e(f"v_pk_mul_f32 v[{s_+2}:{s_+3}], v[{b}:{b+1}], v[{b}:{b+1}]"); e(f"v_pk_add_f32 v[{s_}:{s_+1}], v[{b}:{b+1}], v[{b+2}:{b+3}]")
            if tt == 0: e("ds_write_b32 v254, v65 offset:4608")
            e(f"v_pk_fma_f32 v[{s_+2}:{s_+3}], v[{b+2}:{b+3}], v[{b+2}:{b+3}], v[{s_+2}:{s_+3}]")
            for u in range(4, 10, 2):
                e(f"v_pk_add_f32 v[{s_}:{s_+1}], v[{s_}:{s_+1}], v[{b+u}:{b+u+1}]"); e(f"v_pk_fma_f32 v[{s_+2}:{s_+3}], v[{b+u}:{b+u+1}], v[{b+u}:{b+u+1}], v[{s_+2}:{s_+3}]")
        for tt in range(2):
            s_ = 136 + 4*tt
            e(f"v_add_f32 v{s_}, v{s_}, v{s_+1}"); e(f"v_add_f32 v{s_+2}, v{s_+2}, v{s_+3}")
        e("s_waitcnt lgkmcnt(0)"); e("s_barrier")
        for rr in range(3): e(f"ds_read_b128 v[{76+4*rr}:{79+4*rr}], v239 offset:{4096*rr}")
        e("v_permlane32_swap_b32 v136, v140"); e("v_permlane32_swap_b32 v138, v142")
        e("s_add_u32 s34, s59, 8192")
        e("v_add_f32 v136, v136, v140"); e("v_add_f32 v138, v138, v142")
        e("v_mov_b32 v140, v136"); e("v_mov_b32 v141, v138")
        e("v_permlane16_swap_b32 v136, v140"); e("v_permlane16_swap_b32 v138, v141")
        e("v_add_f32 v136, v136, v140"); e("v_add_f32 v138, v138, v141")
        e("buffer_atomic_add_f32 v136, v242, s[12:15], s59 offen")
        e("buffer_atomic_add_f32 v138, v242, s[12:15], s34 offen")
        e("s_waitcnt lgkmcnt(2)"); e("buffer_store_dwordx4 v[76:79], v255, s[12:15], s60 offen" + wt); e("s_add_u32 s60, s60, 65536")
        for q in range(4): e(f"v_cvt_pk_bf16_f32 v{156+q}, v{96+2*q}, v{97+2*q}")
        e("s_waitcnt lgkmcnt(1)"); e("buffer_store_dwordx4 v[80:83], v255, s[12:15], s60 offen" + wt); e("s_add_u32 s60, s60, 65536")
        for q in range(4): e(f"v_cvt_pk_bf16_f32 v{160+q}, v{116+2*q}, v{117+2*q}")
        e("s_waitcnt lgkmcnt(0)"); e("buffer_store_dwordx4 v[84:87], v243, s[12:15], s60 offen" + wt)
        e(f"s_add_u32 s3, s46, {X1_OFF[0]}")
        e("v_cvt_pk_bf16_f32 v164, v104, v105"); e("v_cvt_pk_bf16_f32 v165, v124, v125")
        e("buffer_store_dwordx4 v[156:159], v236, s[12:15], s3 offen" + wt)
        e("v_permlane16_swap_b32 v164, v165")
        e("buffer_store_dwordx4 v[160:163], v237, s[12:15], s3 offen" + wt)
        e("buffer_store_dwordx2 v[164:165], v238, s[12:15], s3 offen" + wt)
    elif EP5:
        wt = " sc1" if WT else ""
        for q in range(10):
            e(f"v_cvt_pk_bf16_f32 v{56+q}, v{106+q}, v{126+q}")
            if q: e(f"ds_write_b32 v254, v{55+q} offset:{(q-1)*512}")
        for tt in range(2):
            b = 96 + 20*tt
            for q in range(4): e(f"v_cvt_pk_bf16_f32 v{156+4*tt+q}, v{b+2*q}, v{b+2*q+1}")
            if tt == 0: e("ds_write_b32 v254, v65 offset:4608")
            e(f"v_cvt_pk_bf16_f32 v{164+tt}, v{b+8}, v{b+9}")
        e(f"s_add_u32 s3, s46, {X1_OFF[0]}")
        e("buffer_store_dwordx4 v[156:159], v236, s[12:15], s3 offen" + wt)
        e("v_permlane16_swap_b32 v164, v165")
        e("buffer_store_dwordx4 v[160:163], v237, s[12:15], s3 offen" + wt)
        e("s_waitcnt lgkmcnt(0)"); e("s_barrier")
        for rr in range(3): e(f"ds_read_b128 v[{76+4*rr}:{79+4*rr}], v239 offset:{4096*rr}")
        e("buffer_store_dwordx2 v[164:165], v238, s[12:15], s3 offen" + wt)
        for tt in range(2):
            b = 96 + 20*tt; s_ = 136 + 4*tt
            e(f"v_pk_mul_f32 v[{s_+2}:{s_+3}], v[{b}:{b+1}], v[{b}:{b+1}]"); e(f"v_pk_add_f32 v[{s_}:{s_+1}], v[{b}:{b+1}], v[{b+2}:{b+3}]")
            e(f"v_pk_fma_f32 v[{s_+2}:{s_+3}], v[{b+2}:{b+3}], v[{b+2}:{b+3}], v[{s_+2}:{s_+3}]")
            if tt == 0:
                e("s_waitcnt lgkmcnt(2)"); e("buffer_store_dwordx4 v[76:79], v255, s[12:15], s60 offen" + wt); e("s_add_u32 s60, s60, 65536")
            for u in range(4, 10, 2):
                e(f"v_pk_add_f32 v[{s_}:{s_+1}], v[{s_}:{s_+1}], v[{b+u}:{b+u+1}]"); e(f"v_pk_fma_f32 v[{s_+2}:{s_+3}], v[{b+u}:{b+u+1}], v[{b+u}:{b+u+1}], v[{s_+2}:{s_+3}]")
            if tt == 0:
                e("s_waitcnt lgkmcnt(1)"); e("buffer_store_dwordx4 v[80:83], v255, s[12:15], s60 offen" + wt); e("s_add_u32 s60, s60, 65536")
        e("s_waitcnt lgkmcnt(0)"); e("buffer_store_dwordx4 v[84:87], v243, s[12:15], s60 offen" + wt)
        for tt in range(2):
            s_ = 136 + 4*tt
            e(f"v_add_f32 v{s_}, v{s_}, v{s_+1}"); e(f"v_add_f32 v{s_+2}, v{s_+2}, v{s_+3}")
        e("v_permlane32_swap_b32 v136, v140"); e("v_permlane32_swap_b32 v138, v142")
        e("s_add_u32 s34, s59, 8192")
        e("v_add_f32 v136, v136, v140"); e("v_add_f32 v138, v138, v142")
        e("v_mov_b32 v140, v136"); e("v_mov_b32 v141, v138")
        e("v_permlane16_swap_b32 v136, v140"); e("v_permlane16_swap_b32 v138, v141")
        e("v_add_f32 v136, v136, v140"); e("v_add_f32 v138, v138, v141")
        e("buffer_atomic_add_f32 v136, v242, s[12:15], s59 offen")
        e("buffer_atomic_add_f32 v138, v242, s[12:15], s34 offen")
    else:
        wt = " sc1" if WT else ""
        for tt in range(2):
            b = AB + 20*tt; s_ = 136 + 4*tt
            e(f"v_pk_mul_f32 v[{s_+2}:{s_+3}], v[{b}:{b+1}], v[{b}:{b+1}]"); e(f"v_pk_add_f32 v[{s_}:{s_+1}], v[{b}:{b+1}], v[{b+2}:{b+3}]")
            e(f"v_pk_fma_f32 v[{s_+2}:{s_+3}], v[{b+2}:{b+3}], v[{b+2}:{b+3}], v[{s_+2}:{s_+3}]")
            for u in range(4, 10, 2):
                e(f"v_pk_add_f32 v[{s_}:{s_+1}], v[{s_}:{s_+1}], v[{b+u}:{b+u+1}]"); e(f"v_pk_fma_f32 v[{s_+2}:{s_+3}], v[{b+u}:{b+u+1}], v[{b+u}:{b+u+1}], v[{s_+2}:{s_+3}]")
        for tt in range(2):
            s_ = 136 + 4*tt
            e(f"v_add_f32 v{s_}, v{s_}, v{s_+1}"); e(f"v_add_f32 v{s_+2}, v{s_+2}, v{s_+3}")
        for tt in range(2):
            b = AB + 20*tt
            for q in range(4): e(f"v_cvt_pk_bf16_f32 v{156+4*tt+q}, v{b+2*q}, v{b+2*q+1}")
            e(f"v_cvt_pk_bf16_f32 v{164+tt}, v{b+8}, v{b+9}")
        e("v_permlane32_swap_b32 v136, v140"); e("v_permlane32_swap_b32 v138, v142")
        e(f"s_add_u32 s3, s46, {X1_OFF[0]}")
        e("buffer_store_dwordx4 v[156:159], v236, s[12:15], s3 offen" + wt)
        e("v_add_f32 v136, v136, v140"); e("v_add_f32 v138, v138, v142")
        e("v_permlane16_swap_b32 v164, v165")
        e("buffer_store_dwordx4 v[160:163], v237, s[12:15], s3 offen" + wt)
        e("v_mov_b32 v140, v136"); e("v_mov_b32 v141, v138"); e("s_add_u32 s34, s59, 8192")
        e("buffer_store_dwordx2 v[164:165], v238, s[12:15], s3 offen" + wt)
        e("v_permlane16_swap_b32 v136, v140"); e("v_permlane16_swap_b32 v138, v141")
        for q in range(10): e(f"v_cvt_pk_bf16_f32 v{XP+q}, v{AB+10+q}, v{AB+30+q}")
        e("v_add_f32 v136, v136, v140"); e("v_add_f32 v138, v138, v141")
        for q in range(10): e(f"ds_write_b32 v254, v{XP+q} offset:{q*(544 if XBP else 512)}")
        if XBP: e("v_cmp_lt_u32 vcc, 63, v0"); e("v_cndmask_b32 v234, 0, 32, vcc"); e("v_add_u32 v234, v234, v239")
        e("buffer_atomic_add_f32 v136, v242, s[12:15], s59 offen")
        e("buffer_atomic_add_f32 v138, v242, s[12:15], s34 offen")
        e("s_waitcnt lgkmcnt(0)"); e("s_barrier")
        for rr in range(3):
            if XBP: e(f"ds_read_b128 v[{RD+4*rr}:{RD+3+4*rr}], v{234 if rr == 1 else 239} offset:{4352*rr + (32 if rr == 2 else 0)}")
            else: e(f"ds_read_b128 v[{RD+4*rr}:{RD+3+4*rr}], v239 offset:{4096*rr}")
        e("s_waitcnt lgkmcnt(2)")
        e(f"buffer_store_dwordx4 v[{RD}:{RD+3}], v255, s[12:15], s60 offen" + wt)
        e("s_add_u32 s60, s60, 65536"); e("s_waitcnt lgkmcnt(1)")
        e(f"buffer_store_dwordx4 v[{RD+4}:{RD+7}], v255, s[12:15], s60 offen" + wt)
        e("s_add_u32 s60, s60, 65536"); e("s_waitcnt lgkmcnt(0)")
        e(f"buffer_store_dwordx4 v[{RD+8}:{RD+11}], v243, s[12:15], s60 offen" + wt)
    if not fine: st.mark("epi5")
    if stamps: e("s_waitcnt vmcnt(0)"); st.mark("drain")
    st.extra = ["s57", "s58"]
    if stamps:
        e("s_cmp_eq_u32 s32, 0"); e("s_cselect_b32 s33, 0, 262144"); e("s_add_u32 s30, s30, s33"); e("s_addc_u32 s31, s31, 0")
    st.flush(30, 31, 18)
    a.label(f"{name}_end")
    e("s_endpgm")
    if ASY:
        a.label(f"{name}_cw")
        e(f"s_mov_b32 s42, {1 << 16}")
        a.label(f"{name}_cwl")
        if stamps: e("s_add_u32 s57, s57, 1"); e(f"s_or_b32 s58, s58, {1 << 19}")
        e("buffer_load_dword v241, v240, s[12:15], s45 offen sc1"); e("s_waitcnt vmcnt(0)")
        e("v_readfirstlane_b32 s43, v241"); e("s_cmp_ge_u32 s43, 16"); e(f"s_cbranch_scc1 {name}_cwd")
        e("s_sub_u32 s42, s42, 1"); e("s_cmp_lg_u32 s42, 0"); e(f"s_cbranch_scc1 {name}_cwl")
        e(f"s_branch {name}_cwd")
    if T5N:
        a.label(f"{name}_t5r")
        if stamps: e("s_add_u32 s57, s57, 1"); e(f"s_or_b32 s58, s58, {1 << 15}")
        e("s_add_u32 s33, s33, 1"); e(f"s_cmp_ge_u32 s33, {1 << 10}"); e(f"s_cbranch_scc1 {name}_t5d")
        e("s_waitcnt vmcnt(0)"); e(f"s_branch {name}_t5")
    if SENT and KNAN:
        a.label(f"{name}_kn")
        e(f"s_mov_b32 s42, {1 << 14}")
        a.label(f"{name}_knl")
        if stamps: e("s_add_u32 s57, s57, 1"); e(f"s_or_b32 s58, s58, {1 << 16}")
        for R in range(16):
            e(f"s_sub_u32 s47, s61, {(15 - R) * KVP_ST}")
            e(f"buffer_load_dwordx4 v[{KP(R)}:{KP(R)+3}], v250, s[12:15], s47 offen sc1")
        e("s_waitcnt vmcnt(0)")
        for R in range(16):
            for h in range(2): e(sum_mf(R, h))
        e("v_cmp_u_f32 vcc, v144, v148"); e(f"s_cbranch_vccz {name}_knd")
        e("s_sub_u32 s42, s42, 1"); e("s_cmp_lg_u32 s42, 0"); e(f"s_cbranch_scc1 {name}_knl")
        e(f"s_branch {name}_knd")
    if SENT and not KNAN:
        for G in range(4):
            a.label(f"{name}_kr{G}")
            e(f"s_mov_b32 s42, {1 << 14}")
            a.label(f"{name}_kl{G}")
            if stamps: e("s_add_u32 s57, s57, 1"); e(f"s_or_b32 s58, s58, {1 << (16 + G)}")
            for R in range(4*G, 4*G + 4):
                e(f"s_sub_u32 s47, s61, {(15 - R) * KVP_ST}")
                e(f"buffer_load_dwordx4 v[{KP(R)}:{KP(R)+3}], v250, s[12:15], s47 offen sc1")
            e("s_waitcnt vmcnt(0)")
            for it in kp_check(G): e(it)
            e(f"s_cbranch_vccz {name}_kc{G}")
            e("s_sub_u32 s42, s42, 1"); e("s_cmp_lg_u32 s42, 0"); e(f"s_cbranch_scc1 {name}_kl{G}")
            e(f"s_branch {name}_kc{G}")
    a.label(f"{name}_gw")
    e(f"s_mov_b32 s42, {1 << 16}"); e(f"s_mov_b32 s47, {CNT_OFF[0]}")
    a.label(f"{name}_gwl")
    e("buffer_load_dword v235, v234, s[12:15], s47 offen sc1"); e("s_waitcnt vmcnt(0)")
    e("v_cmp_gt_u32 vcc, 16, v235"); e(f"s_cbranch_vccz {name}_gwd")
    e("s_sub_u32 s42, s42, 1"); e("s_cmp_lg_u32 s42, 0"); e(f"s_cbranch_scc1 {name}_gwl")
    e(f"s_branch {name}_gwd")
    for s, lst in stubs:
        a.label(f"{name}_rt{s}")
        e(f"s_mov_b32 s42, {1 << 14}")
        a.label(f"{name}_rl{s}")
        if stamps: e(f"s_add_u32 s57, s57, 1"); e(f"s_or_b32 s58, s58, {1 << s}")
        e("s_waitcnt vmcnt(0)")
        for s2 in lst:
            e(f"s_mov_b32 s47, {s2*1024}"); e(f"s_mov_b32 s43, {AF_WT + s2*1024}")
            e(f"buffer_load_dwordx4 {X(0,s2)}, v5, s[4:7], s47 offen sc1")
            e(f"buffer_load_dwordx4 {X(1,s2)}, v5, s[4:7], s43 offen sc1")
        e("s_waitcnt vmcnt(0)")
        for it in check_items(s): e(it)
        e(f"s_cbranch_vccz {name}_c{s}")
        e("s_sub_u32 s42, s42, 1"); e("s_cmp_lg_u32 s42, 0"); e(f"s_cbranch_scc1 {name}_rl{s}")
        e(f"s_branch {name}_c{s}")
    gen_kA.names = st.names
    ent = lambda L: kernel_header(f"{name}l{L}_kernel") + f"    s_mov_b32 s32, {L*LSTRIDE}\n    s_branch {name}_body\n"
    desc = "".join(kernel_desc(f"{name}l{L}_kernel", 256, 160, 102 if stamps else 72) for L in range(2))
    pad = "    s_nop 0\n" * PADN
    return ent(1) + ent(0).replace(f"    s_branch {name}_body\n", pad) + a.text() + desc
```

```python
import re

TRANS = ("v_exp_f32", "v_log_f32", "v_rcp_f32", "v_rsq_f32", "v_sqrt_f32", "v_sin_f32", "v_cos_f32", "v_rcp_iflag_f32")
REG_RE = re.compile(r"(?<![\w.])([vas])(\d+)(?![\w\[])|(?<![\w.])([vas])\[(\d+):(\d+)\]|(?<![\w.])(vcc|exec|m0|scc)(_lo|_hi)?(?![\w])")

def regs_of(tok):
    out = []
    for m in REG_RE.finditer(tok):
        if m.group(1): out.append((m.group(1), int(m.group(2))))
        elif m.group(3):
            for i in range(int(m.group(4)), int(m.group(5)) + 1): out.append((m.group(3), i))
        else:
            nm = m.group(6)
            if nm == "vcc":
                if m.group(7) == "_lo": out.append(("s", 106))
                elif m.group(7) == "_hi": out.append(("s", 107))
                else: out += [("s", 106), ("s", 107)]
            elif nm == "exec": out += [("x", 0)]
            elif nm == "m0": out.append(("m", 0))
    return out

def split_ops(s):
    ops, depth, cur = [], 0, ""
    for ch in s:
        if ch == "[" or ch == "(": depth += 1
        if ch == "]" or ch == ")": depth -= 1
        if ch == "," and depth == 0: ops.append(cur.strip()); cur = ""
        else: cur += ch
    if cur.strip(): ops.append(cur.strip())
    return ops

class Inst:
    __slots__ = ("text", "op", "cls", "wr", "rd", "states", "passes", "srcc", "store_data", "isdpp", "lds_dma", "mask_rd", "sgpr_valu_wr", "ab")
    def __init__(self, text):
        self.text = text
        t = text.split(";")[0].strip()
        parts = t.split(None, 1)
        self.op = op = parts[0]
        rest = parts[1] if len(parts) > 1 else ""
        ops = split_ops(rest)
        self.wr, self.rd = [], []
        self.states = 1; self.passes = 0; self.srcc = []; self.store_data = []; self.ab = []
        self.isdpp = ("row_" in rest or "quad_perm" in rest or "wave_" in rest or "dpp" in op)
        self.lds_dma = False; self.mask_rd = []; self.sgpr_valu_wr = []
        R = lambda i: regs_of(ops[i].split(" ")[0] if i == len(ops) - 1 else ops[i]) if i < len(ops) else []
        if op == "s_nop":
            self.cls = "nop"; self.states = int(ops[0], 0) + 1
        elif op.startswith("v_mfma"):
            self.cls = "mfma"; self.wr = R(0); self.ab = R(1) + R(2); self.srcc = R(3); self.rd = self.ab + self.srcc
            self.passes = 8 if "32x32" in op else 4
        elif op.startswith("v_"):
            self.cls = "trans" if op.replace("_e32", "").replace("_e64", "") in TRANS else "valu"
            base = op.replace("_e32", "").replace("_e64", "")
            if base.startswith("v_cmp"):
                self.wr = R(0); self.rd = R(1) + R(2)
            elif base.startswith("v_permlane") and "swap" in base:
                self.wr = R(0) + R(1); self.rd = R(0) + R(1)
            elif base in ("v_readfirstlane_b32", "v_readlane_b32"):
                self.wr = R(0); self.rd = sum((R(i) for i in range(1, len(ops))), [])
            elif base in ("v_add_co_u32", "v_sub_co_u32", "v_addc_co_u32", "v_subb_co_u32", "v_mad_u64_u32"):
                self.wr = R(0) + R(1); self.rd = sum((R(i) for i in range(2, len(ops))), [])
            else:
                self.wr = R(0); self.rd = sum((R(i) for i in range(1, len(ops))), [])
                if base.startswith("v_fmac") or base.startswith("v_pk_fmac") or base.startswith("v_dot2c") or base in ("v_writelane_b32",): self.rd += R(0)
                if base == "v_cndmask_b32":
                    if len(ops) == 3: self.rd += [("s", 106), ("s", 107)]; self.mask_rd = [("s", 106), ("s", 107)]
                    else: self.mask_rd = R(3)
            self.sgpr_valu_wr = [r for r in self.wr if r[0] == "s"]
        elif op.startswith("ds_"):
            self.cls = "ds"
            if op.startswith("ds_read") or op.startswith("ds_bpermute") or op.startswith("ds_permute") or op.startswith("ds_swizzle"):
                self.wr = R(0); self.rd = sum((R(i) for i in range(1, len(ops))), [])
            else:
                self.rd = sum((R(i) for i in range(len(ops))), [])
        elif op.startswith("buffer_") or op.startswith("global_"):
            self.cls = "vmem"
            words = rest.replace(",", " ").split()
            islds = ("lds" in words) or ("_lds_" in op)
            allr = sum((R(i) for i in range(len(ops))), [])
            if op in ("buffer_wbl2", "buffer_inv"): pass
            elif islds:
                self.lds_dma = True; self.rd = allr + [("m", 0)]
            elif "_load" in op:
                self.wr = R(0); self.rd = sum((R(i) for i in range(1, len(ops))), [])
            elif "_store" in op:
                self.rd = allr
                d = R(0) if op.startswith("buffer_") else R(1)
                if "x4" in op or "x3" in op: self.store_data = d
            elif "_atomic" in op:
                self.rd = allr
                if "sc0" in words: self.wr = R(0)
        elif op.startswith("s_"):
            self.cls = "salu"
            if op.startswith(("s_waitcnt", "s_barrier", "s_branch", "s_cbranch", "s_endpgm", "s_setprio", "s_sleep")):
                self.cls = "sctl"
            elif op.startswith("s_cmp"):
                self.rd = sum((R(i) for i in range(len(ops))), [])
            elif op.startswith("s_load") or op.startswith("s_memtime") or op.startswith("s_memrealtime") or op.startswith("s_getreg") or op.startswith("s_getpc"):
                self.wr = R(0); self.rd = sum((R(i) for i in range(1, len(ops))), [])
            else:
                self.wr = R(0); self.rd = sum((R(i) for i in range(1, len(ops))), [])
                if "saveexec" in op: self.wr += [("x", 0)]
        else:
            raise ValueError("unknown instruction: " + text)

def need(prod, cons):
    n = 0
    pw = set(prod.wr);
    isvalu = lambda i: i.cls in ("valu", "trans")
    crd = set(cons.rd); cwr = set(cons.wr)
    if isvalu(prod):
        vw = {r for r in pw if r[0] in "va"}
        if vw & crd:
            if cons.cls == "mfma": n = max(n, 2)
            if cons.op.startswith("v_permlane"): n = max(n, 2)
            if cons.op.startswith(("v_readlane", "v_readfirstlane")): n = max(n, 1)
            if cons.isdpp: n = max(n, 2)
            if prod.cls == "trans" and cons.cls != "trans": n = max(n, 1)
        sw = {r for r in pw if r[0] == "s"}
        if sw & crd:
            if cons.cls == "vmem": n = max(n, 5)
            elif cons.op.startswith(("v_readlane", "v_writelane")): n = max(n, 4)
            elif isvalu(cons) or cons.cls == "mfma": n = max(n, 2)
            elif cons.cls in ("salu",): n = max(n, 1)
    if prod.cls == "mfma":
        p = prod.passes
        d = set(prod.wr)
        if cons.cls == "mfma":
            if d & set(cons.ab): n = max(n, 8 if p == 4 else 12)
            c = set(cons.srcc)
            if d & c and not (c == d and cons.passes == p): n = max(n, 6 if p == 4 else 10)
            if d & cwr and not (d & c): n = max(n, 6 if p == 4 else 10)
        else:
            if d & (crd | cwr): n = max(n, 8 if p == 4 else 12)
        if isvalu(cons) and set(prod.srcc) & cwr: n = max(n, 3 if p == 4 else 7)
    if prod.cls == "salu" and ("m", 0) in pw and cons.lds_dma: n = max(n, 1)
    if prod.store_data and set(prod.store_data) & cwr:
        n = max(n, 2 if isvalu(cons) or cons.cls == "mfma" else 1)
    return n

class Asm:
    def __init__(self):
        self.out = []
        self.hist = []
        self.nops = 0
        self.nds = 0
    def raw(self, s): self.out.append(s)
    def label(self, name):
        self.out.append(name + ":")
    def e(self, text):
        for line in text.split("\n"):
            line = line.strip()
            if not line or line.startswith(";"): continue
            if line.endswith(":"): self.label(line[:-1]); continue
            ins = Inst(line)
            mo = re.search(r"offset:(-?\d+)", line)
            if mo:
                ov = int(mo.group(1))
                if ins.op.startswith("buffer_"): assert 0 <= ov <= 4095, line
                elif ins.op.startswith("global_"): assert -4096 <= ov <= 4095, line
                elif ins.op.startswith("ds_"): assert 0 <= ov <= 65535, line
            req = 0; dist = 0
            for p in reversed(self.hist):
                k = need(p, ins)
                if k > dist: req = max(req, k - dist)
                dist += p.states
                if dist >= 12: break
            if req > 0 and ins.cls != "nop":
                nop = Inst(f"s_nop {req-1}")
                self.out.append("    " + nop.text); self.hist.append(nop); self.nops += 1
            self.out.append("    " + line)
            if ins.cls == "ds": self.nds += 1
            self.hist.append(ins)
            if len(self.hist) > 24: self.hist = self.hist[-24:]
    def text(self): return "\n".join(self.out) + "\n"

def kernel_header(name):
    return f".text\n.globl {name}\n.p2align 8\n.type {name},@function\n{name}:\n"
def kernel_desc(name, vgpr, agpr=0, sgpr=100):
    acc = (vgpr + 3) // 4 * 4
    nfv = acc + agpr if agpr else vgpr
    return f""".section .rodata,"a"
.p2align 6
.amdhsa_kernel {name}
  .amdhsa_next_free_vgpr {nfv}
  .amdhsa_next_free_sgpr {sgpr}
  .amdhsa_accum_offset {acc}
  .amdhsa_group_segment_fixed_size 0
  .amdhsa_kernarg_size 96
  .amdhsa_user_sgpr_count 2
  .amdhsa_user_sgpr_kernarg_segment_ptr 1
  .amdhsa_system_sgpr_workgroup_id_x 1
  .amdhsa_float_denorm_mode_32 3
.end_amdhsa_kernel
"""

class VM:
    def __init__(self, a): self.a = a; self.q = []
    def issue(self, text, tag):
        self.a.e(text); self.q.append(tag)
    def wait(self, tag, extra=""):
        idx = max(i for i, t in enumerate(self.q) if t == tag)
        n = len(self.q) - 1 - idx
        assert n <= 63, n
        self.a.e(f"s_waitcnt vmcnt({n}){extra}")
        self.q = self.q[idx+1:]
    def wait_all(self):
        self.a.e("s_waitcnt vmcnt(0)"); self.q = []

def srd(a, s, base_lo, base_hi, off, size):
    if isinstance(off, str):
        a.e(f"s_add_u32 s{s}, s{base_lo}, {off}"); a.e(f"s_addc_u32 s{s+1}, s{base_hi}, 0")
    elif off:
        a.e(f"s_add_u32 s{s}, s{base_lo}, {off}"); a.e(f"s_addc_u32 s{s+1}, s{base_hi}, 0")
    else:
        a.e(f"s_mov_b32 s{s}, s{base_lo}"); a.e(f"s_mov_b32 s{s+1}, s{base_hi}")
    a.e(f"s_mov_b32 s{s+2}, {size}")
    a.e(f"s_mov_b32 s{s+3}, 0x20000")

def wg_to_rc(a, sR, sC, tmp):
    e = a.e
    e(f"s_and_b32 s{tmp}, s2, 7"); e(f"s_lshr_b32 s{tmp+1}, s2, 3")
    e(f"s_lshr_b32 s{sR}, s{tmp}, 1"); e(f"s_lshl_b32 s{sR}, s{sR}, 2"); e(f"s_and_b32 s{sC}, s{tmp+1}, 3"); e(f"s_add_u32 s{sR}, s{sR}, s{sC}")
    e(f"s_and_b32 s{sC}, s{tmp}, 1"); e(f"s_lshl_b32 s{sC}, s{sC}, 3"); e(f"s_lshr_b32 s{tmp+1}, s{tmp+1}, 2"); e(f"s_add_u32 s{sC}, s{sC}, s{tmp+1}")

LOG2E = 1.4426950408889634

def softmax_pair(a, K, vC, Ep, tmp, P):
    e = a.e
    mx, mn, sp, sm = tmp, tmp + 1, tmp + 2, tmp + 3
    e(f"v_max3_f32 v{mx}, v{K[0]}, v{K[1]}, v{K[2]}")
    e(f"v_min3_f32 v{mn}, v{K[0]}, v{K[1]}, v{K[2]}")
    for u in range(3, 19, 2):
        e(f"v_max3_f32 v{mx}, v{mx}, v{K[u]}, v{K[u+1]}")
        e(f"v_min3_f32 v{mn}, v{mn}, v{K[u]}, v{K[u+1]}")
    e(f"v_max_f32 v{mx}, v{mx}, v{K[19]}")
    e(f"v_min_f32 v{mn}, v{mn}, v{K[19]}")
    e(f"v_mul_f32 v{mx}, v{vC}, v{mx}")
    e(f"v_mul_f32 v{mn}, v{vC}, v{mn}")
    for u in range(20):
        e(f"v_fma_f32 v{Ep+u}, v{K[u]}, v{vC}, -v{mx}")
        e(f"v_fma_f32 v{K[u]}, -v{K[u]}, v{vC}, v{mn}")
    for u in range(20):
        e(f"v_exp_f32 v{Ep+u}, v{Ep+u}")
        e(f"v_exp_f32 v{K[u]}, v{K[u]}")
    e(f"v_add_f32 v{sp}, v{Ep}, v{Ep+1}")
    e(f"v_add_f32 v{sm}, v{K[0]}, v{K[1]}")
    for u in range(2, 20):
        e(f"v_add_f32 v{sp}, v{sp}, v{Ep+u}")
        e(f"v_add_f32 v{sm}, v{sm}, v{K[u]}")
    e(f"v_rcp_f32 v{sp}, v{sp}")
    e(f"v_rcp_f32 v{sm}, v{sm}")
    for u in range(20):
        e(f"v_mul_f32 v{Ep+u}, v{sp}, v{Ep+u}")
        e(f"v_mul_f32 v{K[u]}, v{sm}, v{K[u]}")
    for q in range(10):
        e(f"v_cvt_pk_bf16_f32 v{P+q}, v{Ep+2*q}, v{Ep+2*q+1}")
        e(f"v_cvt_pk_bf16_f32 v{P+10+q}, v{K[2*q]}, v{K[2*q+1]}")

STAMP_OFF = 200 * 1024 * 1024
class Stamps:
    def __init__(self, a, on, kid): self.a = a; self.on = on; self.n = 0; self.kid = kid; self.names = []
    def mark(self, nm):
        if not self.on: return
        r = 70 + 2 * self.n; self.n += 1; self.names.append(nm)
        assert r + 1 <= 101
        if self.n == 1: self.a.e("s_memrealtime s[62:63]")
        self.a.e(f"s_memtime s[{r}:{r+1}]"); self.a.e("s_waitcnt lgkmcnt(0)")
    def flush(self, ws_lo, ws_hi, wave_sgpr):
        if not self.on: return
        e = self.a.e
        e("s_memrealtime s[68:69]"); e("s_waitcnt lgkmcnt(0)")
        e(f"s_cmp_lg_u32 s{wave_sgpr}, 0"); lab = f"Lstamp_{self.kid}"
        e(f"s_cbranch_scc1 {lab}")
        e(f"s_lshl_b32 s66, s2, 7"); e(f"s_add_u32 s66, s66, {STAMP_OFF + self.kid * 65536}")
        e(f"s_add_u32 s64, s{ws_lo}, s66"); e(f"s_addc_u32 s65, s{ws_hi}, 0")
        e("v_mov_b32 v160, 0")
        for i in range(self.n):
            e(f"v_mov_b32 v161, s{70+2*i}")
            e(f"global_store_dword v160, v161, s[64:65] offset:{4*i}")
        e("v_mov_b32 v161, s68"); e(f"global_store_dword v160, v161, s[64:65] offset:120")
        e("v_mov_b32 v161, s62"); e(f"global_store_dword v160, v161, s[64:65] offset:116")
        for k, r in enumerate(getattr(self, "extra", [])):
            e(f"v_mov_b32 v161, {r}"); e(f"global_store_dword v160, v161, s[64:65] offset:{112 - 4*k}")
        self.a.label(lab)

def softmax_pair_pk(a, K, vC, Ep, tmp, P):
    e = a.e
    assert K % 2 == 0 and Ep % 2 == 0 and tmp % 2 == 0 and vC % 2 == 0
    mx, mn, sp, sm = tmp, tmp + 2, tmp + 4, tmp + 6
    e(f"v_max3_f32 v{mx}, v{K}, v{K+1}, v{K+2}")
    e(f"v_min3_f32 v{mn}, v{K}, v{K+1}, v{K+2}")
    for u in range(3, 19, 2):
        e(f"v_max3_f32 v{mx}, v{mx}, v{K+u}, v{K+u+1}")
        e(f"v_min3_f32 v{mn}, v{mn}, v{K+u}, v{K+u+1}")
    e(f"v_max_f32 v{mx}, v{mx}, v{K+19}")
    e(f"v_min_f32 v{mn}, v{mn}, v{K+19}")
    e(f"v_mul_f32 v{mx}, v{vC}, v{mx}")
    e(f"v_mul_f32 v{mn}, v{vC}, v{mn}")
    for u in range(0, 20, 2):
        e(f"v_pk_fma_f32 v[{Ep+u}:{Ep+u+1}], v[{K+u}:{K+u+1}], v[{vC}:{vC+1}], v[{mx}:{mx+1}] op_sel_hi:[1,0,0] neg_lo:[0,0,1] neg_hi:[0,0,1]")
        e(f"v_pk_fma_f32 v[{K+u}:{K+u+1}], v[{K+u}:{K+u+1}], v[{vC}:{vC+1}], v[{mn}:{mn+1}] op_sel_hi:[1,0,0] neg_lo:[1,0,0] neg_hi:[1,0,0]")
    for u in range(20):
        e(f"v_exp_f32 v{Ep+u}, v{Ep+u}")
        e(f"v_exp_f32 v{K+u}, v{K+u}")
    e(f"v_pk_add_f32 v[{sp}:{sp+1}], v[{Ep}:{Ep+1}], v[{Ep+2}:{Ep+3}]")
    e(f"v_pk_add_f32 v[{sm}:{sm+1}], v[{K}:{K+1}], v[{K+2}:{K+3}]")
    for u in range(4, 20, 2):
        e(f"v_pk_add_f32 v[{sp}:{sp+1}], v[{sp}:{sp+1}], v[{Ep+u}:{Ep+u+1}]")
        e(f"v_pk_add_f32 v[{sm}:{sm+1}], v[{sm}:{sm+1}], v[{K+u}:{K+u+1}]")
    e(f"v_add_f32 v{sp}, v{sp}, v{sp+1}")
    e(f"v_add_f32 v{sm}, v{sm}, v{sm+1}")
    e(f"v_rcp_f32 v{sp}, v{sp}")
    e(f"v_rcp_f32 v{sm}, v{sm}")
    for u in range(0, 20, 2):
        e(f"v_pk_mul_f32 v[{Ep+u}:{Ep+u+1}], v[{Ep+u}:{Ep+u+1}], v[{sp}:{sp+1}] op_sel_hi:[1,0]")
        e(f"v_pk_mul_f32 v[{K+u}:{K+u+1}], v[{K+u}:{K+u+1}], v[{sm}:{sm+1}] op_sel_hi:[1,0]")
    for q in range(10):
        e(f"v_cvt_pk_bf16_f32 v{P+q}, v{Ep+2*q}, v{Ep+2*q+1}")
        e(f"v_cvt_pk_bf16_f32 v{P+10+q}, v{K+2*q}, v{K+2*q+1}")

class Rec:
    def __init__(self): self.items = []
    def e(self, text):
        for line in text.split("\n"):
            line = line.strip()
            if line and not line.startswith(";"): self.items.append(line)
    def mark(self, m): self.items.append(("MARK", m))

def slot_cost(line):
    op = line.split()[0]
    if op in TRANS or op.startswith("v_permlane"): return 2
    if op.startswith("v_mfma"): return 0
    return 1

class Side:
    def __init__(self, a, vm, vm_gap=4):
        self.a, self.vm, self.q, self.vm_gap = a, vm, [], vm_gap
        self.since_vm = 99; self.blocked = False; self.want_barrier = False; self.debt = False
    def add(self, items): self.q += list(items)
    def step_boundary(self):
        if self.want_barrier: self.a.e("s_barrier"); self.want_barrier = False
        self.blocked = False
    def fill(self, slots):
        self.since_vm += 1
        while self.q and slots > 0 and not self.blocked:
            it = self.q[0]
            if isinstance(it, tuple) and it[0] == "STAMP":
                self.q.pop(0); continue
            if isinstance(it, tuple) and it[0] == "MARK":
                self.q.pop(0); self.blocked = True; self.mark_nds = self.a.nds
                if it[1] == "barrier": self.want_barrier = True
                continue
            if isinstance(it, tuple) and it[0] == "VM":
                if self.since_vm < self.vm_gap: return slots
                self.q.pop(0)
                for pre in it[3]: self.a.e(pre)
                self.vm.issue(it[1], it[2]); self.since_vm = 0; slots -= 1 + len(it[3]); continue
            c = slot_cost(it)
            if c > slots and slots < 2 and not self.debt: return slots
            self.q.pop(0); self.a.e(it); slots -= c
            if " m0," in it: return slots
        return slots
    def flush(self):
        while self.q:
            it = self.q.pop(0)
            if isinstance(it, tuple) and it[0] == "STAMP":
                if getattr(self, "st", None): self.st.mark(it[1])
                continue
            if isinstance(it, tuple) and it[0] == "MARK":
                self.a.e("s_waitcnt lgkmcnt(0)")
                if it[1] == "barrier": self.a.e("s_barrier")
            elif isinstance(it, tuple) and it[0] == "VM":
                for pre in it[3]: self.a.e(pre)
                self.vm.issue(it[1], it[2])
            else: self.a.e(it)
        if self.want_barrier: self.a.e("s_waitcnt lgkmcnt(0)"); self.a.e("s_barrier"); self.want_barrier = False
        self.blocked = False

def gemm2(a, nsteps, lds_of, acc, abuf, xreg, first_zero, sides, extra=None, pre=None, slots=2, mid=None, counted=True, c0=None, mark0=None):
    e = a.e
    def read(s, T):
        vb, imm = lds_of(s, T); r = abuf[s & 1] + 4 * T
        e(f"ds_read_b128 v[{r}:{r+3}], v{vb} offset:{imm}")
    if mark0 is None:
        for T in range(5): read(0, T)
        mark = a.nds
    else: mark = mark0
    for s in range(nsteps):
        n = a.nds - mark
        if any(sd.blocked or sd.want_barrier for sd in sides) or n > 15 or not counted: n = 0
        e(f"s_waitcnt lgkmcnt({n})")
        for sd in sides: sd.step_boundary()
        if pre: pre(s)
        mf = []
        for T in range(5):
            r = abuf[s & 1] + 4 * T
            for tt in range(2):
                d = acc(tt, T); c = "0" if (s == 0 and first_zero) else f"v[{d}:{d+3}]"
                if s == 0 and c0: c = f"v[{c0(tt, T)}:{c0(tt, T)+3}]"
                mf.append(f"v_mfma_f32_16x16x32_bf16 v[{d}:{d+3}], v[{r}:{r+3}], {xreg(tt, s)}, {c}")
        if extra: mf += extra(s)
        for i, m in enumerate(mf):
            e(m)
            if mid: mid(s, i)
            left = slots
            if s + 1 < nsteps and i < 5:
                read(s + 1, i); left -= 1
                if i == 4: mark = a.nds
            for sd in sides: sd.since_vm += 1
            for sd in sides:
                n0 = len(sd.q); sv = sd.since_vm
                if left > 0:
                    sd.since_vm -= 1; sd.fill(left)
                if len(sd.q) != n0: break


def gemm3(a, nsteps, tiles, lds_of, acc, bufs, xreg, first_zero, sides, extra=None, pre=None, slots=2, mid=None, post=None, wait_every=1, s0=0, marks0=None, cmarks=False):
    e = a.e
    D = len(bufs); nt = len(tiles)
    marks = {}; carry = 0
    def read(s, ti):
        vb, imm = lds_of(s, tiles[ti]); r = bufs[s % D] + 4 * ti
        e(f"ds_read_b128 v[{r}:{r+3}], v{vb} offset:{imm}")
    for s in range(s0, min(s0 + D - 1, nsteps)):
        if marks0 and s in marks0: marks[s] = marks0[s]; continue
        for ti in range(nt): read(s, ti)
        marks[s] = a.nds
    for s in range(s0, nsteps):
        blk = any(sd.blocked or sd.want_barrier for sd in sides)
        if blk or (s - s0) % wait_every == 0:
            last = min(s + wait_every - 1, nsteps - 1) if (s - s0) % wait_every == 0 else s
            assert last in marks
            n = a.nds - marks[last]
            if blk:
                n = min([n] + [a.nds - sd.mark_nds for sd in sides if sd.blocked or sd.want_barrier]) if cmarks else 0
            e(f"s_waitcnt lgkmcnt({min(n, 15)})")
        for sd in sides: sd.step_boundary()
        if pre: pre(s)
        mf = []
        for ti, T in enumerate(tiles):
            r = bufs[s % D] + 4 * ti
            for tt in range(2):
                d = acc(tt, T); c = "0" if (s == 0 and first_zero) else f"v[{d}:{d+3}]"
                mf.append(f"v_mfma_f32_16x16x32_bf16 v[{d}:{d+3}], v[{r}:{r+3}], {xreg(tt, s)}, {c}")
        if extra: mf += extra(s)
        for i, m in enumerate(mf):
            e(m)
            if mid: mid(s, i)
            left = (slots(s) if callable(slots) else slots) + carry
            if s + D - 1 < nsteps and i < nt:
                read(s + D - 1, i); left -= 1
                if i == nt - 1: marks[s + D - 1] = a.nds
            for sd in sides: sd.since_vm += 1
            for sd in sides:
                if left <= 0: break
                sd.since_vm -= 1; left = sd.fill(left)
            carry = min(left, 0)
        if post: post(s)
```

```python
from gen_v12 import *
BEST = dict(SENT=True, KS0=6, KPGAP=3, TSL=2, TSN=0, KCLR=2, SUMPOS=(6, 36, 66, 96), T5N=6, SELB=True, T4O=True, WE=2, KNAN=True, U0L=True, XBP=True, RL=4, PRO=7)
K0B = dict(segup=5, xlate=True, xmap=True)
if __name__ == "__main__":
    build_v12("t1.s", k0kw=K0B, **BEST)
    build_v12("t1s.s", stamps=True, k0kw=K0B, **BEST)
```

```python
from asm import *
from layout import *

OOB = 0x40000000
XL = 143360
WP = 0
K0_LDS = XL + 10240 + 64

def ident_frag(a, dst, vdiff, tmp):
    for q in range(4):
        a.e(f"v_cmp_eq_u32 vcc, {2*q}, v{vdiff}")
        a.e(f"v_cndmask_b32 v{dst+q}, 0, v{tmp}, vcc")
        a.e(f"v_cmp_eq_u32 vcc, {2*q+1}, v{vdiff}")
        a.e(f"v_cndmask_b32 v{dst+q}, v{dst+q}, v{tmp+1}, vcc")

def xconv_finish(a, name, nyounger, xs=' sc1'):
    e = a.e
    e(f"s_waitcnt vmcnt({nyounger})")
    e("buffer_store_dwordx4 v[232:235], v219, s[24:27], s58 offen sc1")
    for r in range(3):
        if r == 2:
            e("v_cmp_gt_u32 vcc, 128, v0"); e("s_and_saveexec_b64 s[52:53], vcc")
        e(f"ds_write_b128 v{216+r}, v[{220+4*r}:{223+4*r}]")
        if r == 2: e("s_mov_b64 exec, s[52:53]")
    e("s_waitcnt lgkmcnt(0)"); e("s_barrier")
    e("v_lshlrev_b32 v236, 4, v0"); e(f"v_add_u32 v237, {XL}, v236")
    for r in range(3): e(f"ds_read_b128 v[{220+4*r}:{223+4*r}], v237 offset:{4096*r}")
    e(f"v_mov_b32 v238, {OOB}"); e("v_cmp_gt_u32 vcc, 128, v0"); e("v_cndmask_b32 v237, v238, v236, vcc")
    e("s_waitcnt lgkmcnt(0)")
    e("buffer_store_dwordx4 v[220:223], v236, s[24:27], s46 offen" + xs)
    e("s_add_u32 s46, s46, 4096"); e("buffer_store_dwordx4 v[224:227], v236, s[24:27], s46 offen" + xs)
    e("s_add_u32 s46, s46, 4096"); e("buffer_store_dwordx4 v[228:231], v237, s[24:27], s46 offen" + xs)

def gen_k0(name, code_bytes, stamps=False, clear_o0=False, ntm='', ntw='', tlb=0, l4=False, clear_kv=False, xlate=False, segup=3, xmap=False, xsc=True):
    a = Asm(); e = a.e
    st = Stamps(a, stamps, 0)
    e(f"s_cmp_ge_u32 s2, 256")
    e(f"s_cbranch_scc1 {name}_exit")
    e("s_getpc_b64 s[20:21]")
    a.label(f"{name}_pc")
    e(f"s_sub_u32 s20, s20, {name}_pc-prog_start"); e("s_subb_u32 s21, s21, 0")
    e("s_lshr_b32 s3, s2, 3"); e(f"s_mul_i32 s3, s3, {code_bytes // 32}")
    e("v_lshlrev_b32 v5, 7, v0"); e("v_add_u32 v5, s3, v5"); e("v_min_u32 v5, prog_end-prog_start-4, v5")
    e(f"v_cmp_gt_u32 vcc, {code_bytes // 32 // 128}, v0"); e("s_and_saveexec_b64 s[22:23], vcc")
    e(f"s_cbranch_execz {name}_nopf")
    e("global_load_dword v239, v5, s[20:21]")
    a.label(f"{name}_nopf")
    e("s_mov_b64 exec, s[22:23]")
    st.mark("start")
    e("s_load_dwordx4 s[4:7], s[0:1], 8")
    e("s_load_dwordx2 s[8:9], s[0:1], 24")
    e("s_load_dwordx4 s[12:15], s[0:1], 56")
    e("s_load_dwordx2 s[16:17], s[0:1], 88")
    e("s_load_dwordx2 s[44:45], s[0:1], 0")
    e("v_and_b32 v1, 63, v0")
    e("v_lshrrev_b32 v2, 6, v0")
    e("v_and_b32 v3, 15, v1")
    e("v_lshrrev_b32 v4, 4, v1")
    e("v_readfirstlane_b32 s18, v2")
    e(f"v_mov_b32 v14, {OOB}")
    if xmap:
        e("s_and_b32 s29, s2, 7"); e("s_lshl_b32 s29, s29, 5"); e("s_lshr_b32 s28, s2, 3"); e("s_add_u32 s29, s29, s28")
        e("s_lshr_b32 s28, s29, 1"); e("s_and_b32 s29, s29, 1")
    else:
        e("s_lshr_b32 s28, s2, 1"); e("s_and_b32 s29, s2, 1")
    e("s_lshr_b32 s30, s28, 3"); e("s_bfe_u32 s31, s28, 0x20001"); e("s_and_b32 s46, s28, 1")
    e("s_and_b32 s47, s30, 1"); e("s_lshl_b32 s47, s47, 10"); e("s_lshl_b32 s46, s46, 5"); e("s_add_u32 s47, s47, s46")
    e("s_lshr_b32 s30, s30, 1"); e("s_lshl_b32 s30, s30, 2"); e("s_add_u32 s47, s47, s30"); e("s_add_u32 s47, s47, s31")
    e("s_mul_i32 s47, s47, 1280"); e("s_mul_i32 s46, s29, 640"); e("s_add_u32 s47, s47, s46")
    e(f"s_mul_i32 s46, s28, {AF_WT}"); e("s_mul_i32 s30, s29, 10240"); e("s_add_u32 s46, s46, s30"); e(f"s_add_u32 s46, s46, {XIN_OFF[0]}")
    for r in range(3):
        e(f"v_add_u32 v8, {256*r}, v0"); e("v_mul_u32_u24 v9, 52429, v8"); e("v_lshrrev_b32 v9, 21, v9")
        e("v_mul_u32_u24 v10, 40, v9"); e("v_sub_u32 v10, v8, v10")
        e("v_mul_u32_u24 v11, 81920, v9"); e(f"v_lshl_add_u32 v{212+r}, v10, 4, v11")
        e("v_lshlrev_b32 v12, 4, v9"); e(f"v_lshl_add_u32 v12, v10, 8, v12"); e(f"v_add_u32 v{216+r}, {XL}, v12")
        if r == 2:
            e("v_cmp_gt_u32 vcc, 640, v8"); e(f"v_cndmask_b32 v{212+r}, v14, v{212+r}, vcc")
    e("s_lshr_b32 s56, s2, 4"); e("s_and_b32 s57, s2, 15"); e("s_mul_i32 s30, s57, 200")
    e("v_add_u32 v8, s30, v0")
    e("v_lshrrev_b32 v9, 4, v8"); e("v_mul_u32_u24 v10, 52429, v9"); e("v_lshrrev_b32 v10, 20, v10")
    e("v_mul_u32_u24 v11, 20, v10"); e("v_sub_u32 v11, v9, v11")
    e("s_lshr_b32 s57, s57, 3")
    e("s_mul_i32 s30, s57, 5"); e("v_subrev_u32 v10, s30, v10")
    e("v_and_b32 v12, 3, v8"); e("v_bfe_u32 v13, v8, 2, 2")
    e("v_lshl_add_u32 v9, v10, 2, v12"); e("v_mul_u32_u24 v9, 1280, v9")
    e("v_lshl_add_u32 v9, v11, 6, v9"); e("v_lshl_add_u32 v215, v13, 4, v9")
    if not l4:
        e("v_mul_u32_u24 v9, 5, v11"); e("v_add_u32 v9, v9, v10"); e("v_lshlrev_b32 v9, 10, v9")
        e("v_lshl_add_u32 v12, v13, 4, v12"); e("v_lshl_add_u32 v219, v12, 4, v9")
    else:
        e("v_lshl_add_u32 v9, v10, 2, v12")
        e("v_cmp_le_u32 vcc, 10, v9"); e("v_cndmask_b32 v10, 10, 0, vcc"); e("v_add_u32 v9, v9, v10")
        e("v_cndmask_b32 v10, 0, 64, vcc")
        e("v_and_b32 v12, 3, v9"); e("v_lshl_add_u32 v10, v12, 4, v10"); e("v_lshl_add_u32 v10, v13, 8, v10")
        e("v_lshrrev_b32 v9, 2, v9")
        e("v_mul_u32_u24 v12, 3072, v11"); e("v_add_u32 v12, 2048, v12")
        e("v_lshlrev_b32 v13, 11, v11"); e("v_lshl_add_u32 v13, v9, 10, v13"); e(f"v_add_u32 v13, {61440 - 3072}, v13")
        e("v_cmp_eq_u32 vcc, 2, v9"); e("v_cndmask_b32 v12, v13, v12, vcc"); e("v_add_u32 v219, v10, v12")
    e("v_cmp_gt_u32 vcc, 200, v0"); e("v_cndmask_b32 v215, v14, v215, vcc"); e("v_cndmask_b32 v219, v14, v219, vcc")
    e("s_mul_i32 s59, s56, 20"); e("s_add_u32 s59, s59, 1"); e("s_mul_i32 s59, s59, 1280")
    e(f"s_mul_i32 s58, s56, {W1_C}"); e("s_add_u32 s58, s58, 102400")
    if not l4: e("s_add_u32 s30, s57, 2"); e("s_lshl_b32 s30, s30, 6")
    else: e("s_lshl_b32 s30, s57, 7")
    e("s_add_u32 s58, s58, s30")
    e("s_waitcnt lgkmcnt(0)")
    srd(a, 24, 16, 17, 0, WS_USED)
    e(f"s_mov_b32 s48, s44"); e("s_mov_b32 s49, s45"); e(f"s_mov_b32 s50, {ACT}"); e("s_mov_b32 s51, 0x20000")
    if tlb:
        e("s_cmp_ge_u32 s2, 8"); e(f"s_cbranch_scc1 {name}_notlb"); e("s_cmp_lg_u32 s18, 1"); e(f"s_cbranch_scc1 {name}_notlb")
        e("s_load_dwordx2 s[22:23], s[0:1], 72")
        e(f"v_mul_u32_u24 v5, {tlb >> 8}, v1"); e("v_lshlrev_b32 v5, 8, v5")
        for q in range((WS_USED + 64*tlb - 1) // (64*tlb)):
            e(f"v_min_u32 v6, {WS_USED - 4}, v5"); e(f"buffer_load_dword v{240+q}, v6, s[24:27], 0 offen"); e(f"v_add_u32 v5, {64*tlb}, v5")
        e("s_waitcnt lgkmcnt(0)")
        e(f"v_mul_u32_u24 v5, {tlb >> 8}, v1"); e("v_lshlrev_b32 v5, 8, v5"); e(f"v_min_u32 v5, {ACT - 4}, v5")
        e("global_load_dword v250, v5, s[22:23]")
        a.label(f"{name}_notlb")
    xloads = [f"buffer_load_dwordx4 v[{220+4*r}:{223+4*r}], v{212+r}, s[48:51], s47 offen" + ntm for r in range(3)]
    if not xlate:
        for it in xloads: e(it)
    e("s_cmp_eq_u32 s57, 1"); e("s_cselect_b32 s40, s14, s12"); e("s_cselect_b32 s41, s15, s13"); e(f"s_mov_b32 s42, {640*1280}"); e("s_mov_b32 s43, 0x20000")
    e("buffer_load_dwordx4 v[232:235], v215, s[40:43], s59 offen")
    e(f"s_cmp_ge_u32 s2, 20"); e(f"s_cselect_b32 s19, {ST_OFF[1] - 20480 - ST_OFF[0]}, 0"); e(f"s_add_u32 s19, s19, {ST_OFF[0]}"); e("s_lshl_b32 s30, s2, 10"); e("s_add_u32 s19, s19, s30")
    for r in range(4): e(f"v_mov_b32 v{200+r}, 0")
    e("s_cmp_lt_u32 s2, 40"); e(f"s_cselect_b32 s30, 64, 0")
    e("v_lshlrev_b32 v6, 4, v0"); e("v_cmp_gt_u32 vcc, s30, v0"); e("v_cndmask_b32 v7, v14, v6, vcc")
    e("buffer_store_dwordx4 v[200:203], v7, s[24:27], s19 offen sc1")
    NS = 0
    if clear_o0:
        for r in range(4): e(f"v_mov_b32 v{204+r}, -1")
        e("s_mul_i32 s19, s2, 10240"); e(f"s_add_u32 s19, s19, {O_OFF[0]}")
        e("v_cmp_gt_u32 vcc, 128, v0"); e("v_cndmask_b32 v7, v14, v6, vcc")
        e("buffer_store_dwordx4 v[204:207], v6, s[24:27], s19 offen sc1")
        e("s_add_u32 s19, s19, 4096"); e("buffer_store_dwordx4 v[204:207], v6, s[24:27], s19 offen sc1")
        e("s_add_u32 s19, s19, 4096"); e("buffer_store_dwordx4 v[204:207], v7, s[24:27], s19 offen sc1")
        NS = 3
    if clear_kv == 1:
        for r in range(4): e(f"v_mov_b32 v{204+r}, -1")
        e("s_lshl_b32 s19, s2, 12"); e(f"s_add_u32 s19, s19, {KVP_OFF[0]}")
        e("buffer_store_dwordx4 v[204:207], v6, s[24:27], s19 offen sc1")
        e(f"s_add_u32 s19, s19, {LSTRIDE}"); e("buffer_store_dwordx4 v[204:207], v6, s[24:27], s19 offen sc1")
        NS += 2
    st.mark("common")
    e("s_and_b32 s33, s2, 7"); e("s_lshr_b32 s34, s2, 3")
    e("s_cmp_ge_u32 s34, 12")
    e(f"s_cbranch_scc1 {name}_wf")

    if xlate:
        for it in xloads: e(it)
    e("s_mul_i32 s30, s33, 12"); e("s_add_u32 s30, s30, s34")
    e("s_lshr_b32 s28, s30, 5"); e("s_and_b32 s29, s30, 31")
    srd(a, 32, 4, 5, 0, 640 * 3840)
    srd(a, 36, 6, 7, 0, 32 * 400 * 2)
    FA = 4096
    e("v_lshrrev_b32 v8, 2, v1"); e("v_lshrrev_b32 v9, 4, v1"); e("v_xor_b32 v9, v9, v1"); e("v_and_b32 v9, 3, v9")
    e("s_mul_i32 s30, s18, 160"); e("v_add_u32 v8, s30, v8")
    e("s_movk_i32 s31, 3840"); e("v_mul_lo_u32 v8, v8, s31")
    e("s_mul_i32 s30, s28, 640"); e("s_mul_i32 s31, s29, 20"); e("s_add_u32 s30, s30, s31"); e("s_lshl_b32 s30, s30, 1")
    e("v_lshlrev_b32 v9, 4, v9"); e("v_add3_u32 v8, v8, v9, s30")
    e("v_lshlrev_b32 v10, 4, v0"); e("v_cmp_gt_u32 vcc, 50, v0"); e("v_cndmask_b32 v11, v14, v10, vcc")
    e("s_mul_i32 s30, s29, 800")
    e("buffer_load_dwordx4 v[64:67], v11, s[36:39], s30 offen")
    e("s_mov_b32 s31, 0"); e("s_mul_i32 s35x, s18, 10240".replace("s35x", "s55")); e(f"s_add_u32 s55, s55, {FA}")
    for m in range(10):
        e(f"s_add_u32 m0, s55, {1024*m}")
        e(f"buffer_load_dwordx4 v8, s[32:35], s31 offen lds")
        if m < 9: e("s_add_u32 s31, s31, 61440")
    e("v_lshrrev_b32 v12, 2, v3"); e("v_xor_b32 v12, v12, v4"); e("v_lshlrev_b32 v12, 4, v12"); e("v_lshl_add_u32 v12, v3, 6, v12"); e("v_add_u32 v12, s55, v12")
    for r in range(68, 72): e(f"v_mov_b32 v{r}, 0")
    e("v_cmp_gt_u32 vcc, 84, v0"); e("s_and_saveexec_b64 s[52:53], vcc")
    e("ds_write_b128 v10, v[68:71]"); e("s_mov_b64 exec, s[52:53]")
    xconv_finish(a, name, 11 if xlate else 11 + 1 + NS, ' sc1' if xsc else '')
    e("s_cmp_eq_u32 s28, 2"); e(f"s_cbranch_scc1 {name}_bid")
    e("s_waitcnt vmcnt(14)")
    e("v_cmp_gt_u32 vcc, 50, v0"); e("s_and_saveexec_b64 s[52:53], vcc")
    e("ds_write_b128 v10, v[64:67]"); e("s_mov_b64 exec, s[52:53]")
    e(f"s_branch {name}_bdone")
    a.label(f"{name}_bid")
    e("v_mul_u32_u24 v10, 42, v0"); e("v_mov_b32 v11, 0x3f80")
    e("v_cmp_gt_u32 vcc, 20, v0"); e("s_and_saveexec_b64 s[52:53], vcc")
    e("ds_write_b16 v10, v11"); e("s_mov_b64 exec, s[52:53]")
    a.label(f"{name}_bdone")
    e("s_waitcnt lgkmcnt(0)"); e("s_barrier")
    e("v_lshrrev_b32 v10, 2, v3"); e("v_lshl_add_u32 v10, v4, 3, v10"); e("v_mul_u32_u24 v10, 40, v10"); e("v_and_b32 v11, 3, v1"); e("v_lshl_add_u32 v10, v11, 3, v10")
    for nt in range(2):
        e(f"ds_read_b64_tr_b16 v[{56+4*nt}:{57+4*nt}], v10 offset:{32*nt}")
        e(f"ds_read_b64_tr_b16 v[{58+4*nt}:{59+4*nt}], v10 offset:{32*nt + 160}")
    e("s_waitcnt vmcnt(4)")
    for m in range(10): e(f"ds_read_b128 v[{16+4*m}:{19+4*m}], v12 offset:{1024*m}")
    e("s_waitcnt lgkmcnt(0)")
    st.mark("f_loads")
    for m in range(10):
        for nt in range(2):
            d = 80 + 8 * m + 4 * nt
            e(f"v_mfma_f32_16x16x32_bf16 v[{d}:{d+3}], v[{16+4*m}:{19+4*m}], v[{56+4*nt}:{59+4*nt}], 0")
    for nt in range(2):
        r = 64 + 2*nt
        e(f"v_pk_add_f32 v[{r}:{r+1}], v[{80+4*nt}:{81+4*nt}], v[{82+4*nt}:{83+4*nt}]")
        for m in range(1, 10):
            for hb in range(2):
                s0 = 80 + 8*m + 4*nt + 2*hb
                e(f"v_pk_add_f32 v[{r}:{r+1}], v[{r}:{r+1}], v[{s0}:{s0+1}]")
        e(f"v_add_f32 v{r}, v{r}, v{r+1}")
    for nt in range(2):
        r = 64 + 2*nt
        e(f"v_mov_b32 v68, v{r}"); e(f"v_permlane32_swap_b32 v{r}, v68"); e(f"v_add_f32 v{r}, v{r}, v68")
        e(f"v_mov_b32 v68, v{r}"); e(f"v_permlane16_swap_b32 v{r}, v68"); e(f"v_add_f32 v{r}, v{r}, v68")
    e("v_lshlrev_b32 v69, 4, v3"); e("v_add_u32 v69, 2048, v69")
    e("s_lshl_b32 s30, s18, 2"); e("v_add_u32 v70, s30, v69")
    e("ds_write_b32 v70, v64"); e("ds_write_b32 v70, v66 offset:256")
    if not l4:
        e("s_and_b32 s30, s29, 1")
        e("s_cmp_eq_u32 s28, 2"); e("s_cselect_b32 s31, 2, 0"); e("s_add_u32 s30, s30, s31")
        e("s_lshl_b32 s30, s30, 6")
        e("v_and_b32 v8, 1, v4"); e("v_lshlrev_b32 v8, 9, v8")
        e("v_lshrrev_b32 v9, 1, v4"); e("v_lshlrev_b32 v9, 8, v9")
        e("v_add3_u32 v8, v8, v9, s30")
        for nt in range(2):
            e(f"v_add_u32 v9, {16*nt}, v3")
            e("v_lshrrev_b32 v10, 2, v9"); e("v_lshlrev_b32 v10, 10, v10")
            e("v_and_b32 v11, 3, v9"); e("v_lshlrev_b32 v11, 4, v11")
            e(f"v_add3_u32 v{72+nt}, v8, v10, v11")
        e("v_cmp_gt_u32 vcc, 4, v3"); e("v_cndmask_b32 v73, v14, v73, vcc")
        e("s_lshr_b32 s30, s29, 1"); e(f"s_mul_i32 s30, s30, {W1_C}")
        e("s_cmp_eq_u32 s28, 0"); e("s_cselect_b32 s31, 102400, 0"); e("s_add_u32 s30, s30, s31")
        e("s_mul_i32 s31, s18, 25600"); e("s_add_u32 s30, s30, s31")
    else:
        e("s_and_b32 s30, s29, 1"); e("s_lshl_b32 s30, s30, 7")
        e("v_and_b32 v8, 1, v4"); e("v_lshlrev_b32 v8, 9, v8")
        e("v_lshrrev_b32 v9, 1, v4"); e("v_lshlrev_b32 v9, 8, v9")
        e("v_add3_u32 v8, v8, v9, s30")
        e("s_cmp_eq_u32 s28, 2"); e("s_cselect_b32 s31, 10, 0"); e("s_mul_i32 s30, s18, 5")
        for nt in range(2):
            e(f"v_add_u32 v9, {16*nt}, v3")
            e("v_cmp_le_u32 vcc, 10, v9"); e("v_cndmask_b32 v10, 0, 10, vcc"); e("v_sub_u32 v9, v9, v10"); e("v_add_u32 v9, s31, v9")
            e("v_cndmask_b32 v10, 0, 64, vcc"); e("v_and_b32 v11, 3, v9"); e("v_lshl_add_u32 v10, v11, 4, v10")
            e("v_lshrrev_b32 v9, 2, v9"); e("v_lshl_add_u32 v10, v9, 10, v10")
            e("v_cmp_gt_u32 vcc, 3, v9")
            e(f"v_mov_b32 v11, {61440 - 3072}"); e("v_cndmask_b32 v11, v11, 0, vcc"); e("v_add3_u32 v10, v8, v10, v11")
            e("v_mov_b32 v11, 2048"); e("v_mov_b32 v9, 3072"); e(f"v_cndmask_b32 v{78+nt}, v11, v9, vcc")
            e(f"v_mul_u32_u24 v11, s30, v{78+nt}"); e(f"v_add_u32 v{72+nt}, v10, v11")
        e("v_cmp_gt_u32 vcc, 4, v3"); e("v_cndmask_b32 v73, v14, v73, vcc")
        e("s_lshr_b32 s30, s29, 1"); e(f"s_mul_i32 s30, s30, {W1_C}")
        e("s_cmp_eq_u32 s28, 0"); e("s_cselect_b32 s31, 102400, 0"); e("s_add_u32 s30, s30, s31")
    e("s_waitcnt lgkmcnt(0)"); e("s_barrier")
    e("ds_read_b128 v[68:71], v69"); e("ds_read_b128 v[74:77], v69 offset:256")
    e("s_waitcnt lgkmcnt(0)")
    for nt, b in ((0, 68), (1, 74)):
        e(f"v_pk_add_f32 v[{b}:{b+1}], v[{b}:{b+1}], v[{b+2}:{b+3}]"); e(f"v_add_f32 v{b}, v{b}, v{b+1}")
        e(f"v_mul_f32 v{64+2*nt}, {1.0/640.0!r}, v{b}")
    st.mark("f_sums")
    for mp in range(5):
        for nt in range(2):
            dA = 80 + 8 * (2*mp) + 4 * nt; dB = 80 + 8 * (2*mp+1) + 4 * nt
            for d in (dA, dB):
                for hb in range(2):
                    e(f"v_pk_add_f32 v[{d+2*hb}:{d+2*hb+1}], v[{d+2*hb}:{d+2*hb+1}], v[{64+2*nt}:{65+2*nt}] op_sel_hi:[1,0] neg_lo:[0,1] neg_hi:[0,1]")
            r0 = 16 + 4 * (2*mp + nt)
            e(f"v_cvt_pk_bf16_f32 v{r0}, v{dA}, v{dA+1}"); e(f"v_cvt_pk_bf16_f32 v{r0+1}, v{dA+2}, v{dA+3}")
            e(f"v_cvt_pk_bf16_f32 v{r0+2}, v{dB}, v{dB+1}"); e(f"v_cvt_pk_bf16_f32 v{r0+3}, v{dB+2}, v{dB+3}")
            e(f"v_permlane16_swap_b32 v{r0}, v{r0+2}"); e(f"v_permlane16_swap_b32 v{r0+1}, v{r0+3}")
            e(f"buffer_store_dwordx4 v[{r0}:{r0+3}], v{72+nt}, s[24:27], s30 offen sc1")
        if not l4: e("s_add_u32 s30, s30, 5120")
        elif mp < 4: e("v_add_u32 v72, v72, v78"); e("v_add_u32 v73, v73, v79")
    st.mark("f_stores")
    if clear_kv == 2:
        for r in range(4): e(f"v_mov_b32 v{204+r}, -1")
        e("s_mul_i32 s30, s2, 12288"); e("v_lshlrev_b32 v8, 4, v0"); e("v_add_u32 v8, s30, v8")
        e(f"s_mov_b32 s31, {KVP_OFF[0]}")
        for r in range(3):
            e(f"v_cmp_gt_u32 vcc, {256*4096}, v8") if False else None
            e(f"v_mov_b32 v10, {256*4096}"); e("v_cmp_gt_u32 vcc, v10, v8"); e("v_cndmask_b32 v9, v14, v8, vcc")
            e("buffer_store_dwordx4 v[204:207], v9, s[24:27], s31 offen sc1")
            if r < 2: e("v_add_u32 v8, 4096, v8")
    e("s_cmp_eq_u32 s28, 2")
    e(f"s_cbranch_scc1 {name}_tables")
    e(f"s_branch {name}_end")

    a.label(f"{name}_wf")
    e("s_sub_u32 s34, s34, 12")
    e("s_and_b32 s28, s33, 1"); e("s_mul_i32 s28, s28, 5"); e("s_lshr_b32 s30, s34, 2"); e("s_add_u32 s28, s28, s30")
    e("s_lshr_b32 s29, s33, 1"); e("s_lshl_b32 s29, s29, 2"); e("s_and_b32 s30, s34, 3"); e("s_add_u32 s29, s29, s30")
    srd(a, 32, 8, 9, 0, 640 * 1280)
    srd(a, 36, 12, 13, 0, 640 * 1280)
    srd(a, 40, 14, 15, 0, 640 * 1280)
    wv = VM(a); wv.q = ["x"] * (1 if xlate else 4) + ["z"] * (1 + NS)
    e("s_lshl_b32 s54, s18, 2"); e("v_add_u32 v8, s54, v4"); e("v_xor_b32 v8, v8, v3"); e("v_lshlrev_b32 v8, 4, v8")
    e("v_mul_u32_u24 v9, 1280, v4"); e("v_add_u32 v24, v8, v9")
    if l4: e("v_lshrrev_b32 v9, 1, v4"); e("v_mul_u32_u24 v9, 10, v9"); e("v_and_b32 v10, 1, v4"); e("v_add_u32 v9, v9, v10"); e("v_mul_u32_u24 v9, 1280, v9"); e("v_add_u32 v25, v8, v9")
    for gi in range(4):
        e(f"s_lshl_b32 s30, s28, 6"); e("s_add_u32 s30, s30, s54"); e(f"s_add_u32 s30, s30, {16*gi}")
        e("s_mul_i32 s31, s30, 52429"); e("s_lshr_b32 s31, s31, 21"); e("s_mul_i32 s31, s31, 40"); e("s_sub_u32 s31, s30, s31")
        if not l4:
            e("s_cmp_eq_u32 s31, 20"); e("s_cselect_b32 s55, 16, 0"); e("s_add_u32 s30, s30, s55")
            e("s_cmp_ge_u32 s31, 24"); e("s_cselect_b32 s55, 4, 0"); e("s_sub_u32 s30, s30, s55")
        else:
            e("s_sub_u32 s30, s30, s31"); e("s_lshr_b32 s55, s31, 3"); e("s_lshl_b32 s55, s55, 1"); e("s_add_u32 s55, s55, s31")
            e("s_cmp_eq_u32 s31, 32"); e("s_cselect_b32 s55, 8, s55"); e("s_cmp_eq_u32 s31, 36"); e("s_cselect_b32 s55, 28, s55")
            e("s_add_u32 s30, s30, s55")
            e("s_cmp_ge_u32 s31, 32"); e("s_cselect_b64 s[52:53], -1, 0"); e(f"v_cndmask_b32 v{26+gi}, v24, v25, s[52:53]")
        e(f"s_mul_i32 s{20+gi}, s30, 1280")
    e("s_mul_i32 s55, s29, 20"); e("s_add_u32 s55, s55, 1")
    e("s_add_u32 s30, s55, s54"); e("s_mul_i32 s60, s30, 1280")
    e("s_add_u32 s30, s55, 16"); e("s_mul_i32 s30, s30, 1280")
    e("s_mul_i32 s45, s18, 5120")
    e("s_add_u32 s31, s45, 81920 + 40960"); e("s_add_u32 s56, s45, 81920 + 20480")
    e("s_cmp_lt_u32 s18, 2"); e("s_cselect_b32 s61, s30, s60"); e("s_cselect_b32 s44, s31, s56")
    e("s_cmp_eq_u32 s18, 0"); e("s_cselect_b32 s64, s36, s40"); e("s_cselect_b32 s65, s37, s41"); e(f"s_mov_b32 s66, {640*1280}"); e("s_mov_b32 s67, 0x20000")
    def seg_items(n):
        it = []
        for gi in range(4):
            it.append([f"s_add_u32 s30, s{20+gi}, {256*n}", f"s_add_u32 m0, s45, {gi*20480 + 1024*n}", ("s[32:35]", 26+gi if l4 else 24)])
        it.append([f"s_add_u32 s30, s60, {256*n}", f"s_add_u32 m0, s45, {81920 + 1024*n}", ("s[36:39]", 24)])
        it.append([f"s_add_u32 s30, s60, {256*n}", f"s_add_u32 m0, s56, {1024*n}", ("s[40:43]", 24)])
        it.append([f"s_add_u32 s30, s61, {256*n}", f"s_add_u32 m0, s44, {1024*n}", ("s[64:67]", 24)])
        return it
    def issue_seg(n):
        for p0, p1, (srdn, va) in seg_items(n):
            e(p0); e(p1); wv.issue(f"buffer_load_dwordx4 v{va}, {srdn}, s30 offen lds", f"g{n}")
    for n in range(segup): issue_seg(n)
    st.mark("w_issue")
    if not xlate:
        xconv_finish(a, name, 7*segup + 1 + NS)
        wv.q = [t for t in wv.q if t.startswith("g")] + ["xs"] * 4
    e("v_lshrrev_b32 v21, 2, v3"); e("v_mul_u32_u24 v21, 5120, v21"); e("v_and_b32 v9, 3, v3"); e("v_lshl_add_u32 v21, v9, 8, v21")
    e("s_mul_i32 s30, s18, 20480"); e("s_mov_b32 s31, 81920")
    for p in range(4):
        e(f"v_add_u32 v9, {4*p}, v4"); e("v_xor_b32 v9, v9, v3"); e("v_lshlrev_b32 v9, 4, v9")
        e(f"v_add3_u32 v{184+p}, v21, v9, s30"); e(f"v_add3_u32 v{188+p}, v21, v9, s31")
    e("s_mul_i32 s31, s29, 5")
    for k, dst in ((0, 15), (4, 16)):
        e(f"v_add_u32 v9, s31, v4")
        if k: e(f"v_add_u32 v9, {k}, v9")
        e("v_lshrrev_b32 v10, 4, v9"); e("v_lshlrev_b32 v10, 10, v10"); e("v_and_b32 v9, 15, v9"); e("v_xor_b32 v9, v9, v3"); e("v_lshl_add_u32 v10, v9, 4, v10")
        e(f"v_add3_u32 v{dst}, v21, v10, s30")
    e("v_mov_b32 v22, 0x3f80"); e("v_mov_b32 v23, 0x3f800000")
    e("v_lshlrev_b32 v9, 3, v4"); e("v_sub_u32 v17, v3, v9"); e("v_add_u32 v18, 16, v17")
    ident_frag(a, 112, 17, 22)
    ident_frag(a, 116, 18, 22)
    def rd(s):
        b0 = 144 + 16*(s & 1)
        e(f"ds_read_b128 v[{b0}:{b0+3}], v{184+(s&3)} offset:{(s>>2)*1024}")
        for nt in range(3):
            e(f"ds_read_b128 v[{b0+4+4*nt}:{b0+7+4*nt}], v{188+(s&3)} offset:{nt*20480 + (s>>2)*1024}")
    wv.wait("g0"); e("s_barrier")
    st.mark("w_loads")
    rd(0)
    for s in range(20):
        if s % 4 == 3 and s < 19:
            n = (s + 1) // 4
            wv.wait(f"g{n}"); e("s_barrier")
        if s in (0, 4) and segup + s // 4 < 5: issue_seg(segup + s // 4)
        if xlate and s == 8:
            for it in xloads: wv.issue(it, "xl")
        if s + 1 < 20: rd(s + 1); e("s_waitcnt lgkmcnt(4)")
        else: e("s_waitcnt lgkmcnt(0)")
        b0 = 144 + 16*(s & 1)
        for nt in range(3):
            c = "0" if s == 0 else f"v[{120+4*nt}:{123+4*nt}]"
            e(f"v_mfma_f32_16x16x32_bf16 v[{120+4*nt}:{123+4*nt}], v[{b0}:{b0+3}], v[{b0+4+4*nt}:{b0+7+4*nt}], {c}")
    e("ds_read_b128 v[104:107], v15"); e("ds_read_b128 v[108:111], v16"); e("s_waitcnt lgkmcnt(0)")
    e("v_mfma_f32_16x16x32_bf16 v[132:135], v[104:107], v[112:115], 0")
    e("v_mfma_f32_16x16x32_bf16 v[136:139], v[104:107], v[116:119], 0")
    e("v_mfma_f32_16x16x32_bf16 v[140:143], v[108:111], v[112:115], 0")
    st.mark("w_mfma")
    e("s_lshr_b32 s31, s18, 1"); e("s_mul_i32 s31, s31, 5120"); e("s_and_b32 s30, s18, 1"); e("s_lshl_b32 s30, s30, 9"); e("s_add_u32 s30, s30, s31"); e(f"s_add_u32 s30, s30, {XL}")
    e("v_lshrrev_b32 v8, 1, v4"); e("v_lshlrev_b32 v8, 8, v8"); e("v_and_b32 v9, 1, v4"); e("v_lshl_add_u32 v8, v9, 3, v8"); e("v_add_u32 v8, s30, v8")
    e(f"v_mov_b32 v14, {XL + 10240}")
    def xf_addr(dst, vu, ri_const=None, vri=None):
        if l4:
            e(f"v_cmp_le_u32 vcc, 10, v{vu}"); e("v_cndmask_b32 v10, 10, 0, vcc"); e(f"v_add_u32 v10, v{vu}, v10")
            e("v_cndmask_b32 v11, 0, 4, vcc"); e("v_and_b32 v15, 3, v10"); e("v_add_u32 v11, v11, v15")
            if ri_const is not None:
                if ri_const: e("v_add_u32 v11, 8, v11")
            else: e(f"v_lshl_add_u32 v11, v{vri}, 3, v11")
            e("v_lshrrev_b32 v10, 2, v10"); e("v_lshlrev_b32 v10, 10, v10"); e("v_lshlrev_b32 v11, 4, v11")
            e(f"v_add3_u32 v{dst}, v8, v10, v11")
            return
        e(f"v_lshrrev_b32 v10, 2, v{vu}"); e("v_lshlrev_b32 v10, 10, v10")
        e(f"v_and_b32 v11, 3, v{vu}")
        if ri_const is not None: e(f"v_add_u32 v11, {4*(2+ri_const)}, v11")
        else: e(f"v_lshl_add_u32 v11, v{vri}, 2, v11"); e("v_add_u32 v11, 8, v11")
        e("v_lshlrev_b32 v11, 4, v11")
        e(f"v_add3_u32 v{dst}, v8, v10, v11")
    xf_addr(16, 3, 0); xf_addr(17, 3, 1)
    e("v_and_b32 v12, 3, v3"); e("v_add_u32 v12, 16, v12"); e("v_lshrrev_b32 v13, 2, v3")
    xf_addr(18, 12, None, 13)
    e("v_cmp_gt_u32 vcc, 8, v3"); e("v_cndmask_b32 v18, v14, v18, vcc")
    for nt in range(3):
        if l4:
            if nt < 2:
                e("v_lshrrev_b32 v13, 3, v3")
                if nt: e("v_add_u32 v13, 2, v13")
                e("v_bfe_u32 v10, v3, 2, 1"); e("v_lshlrev_b32 v10, 10, v10"); e("v_and_b32 v11, 3, v3")
            else:
                e("v_lshrrev_b32 v13, 1, v3"); e("v_mov_b32 v10, 2048"); e("v_and_b32 v11, 1, v3")
            e("v_lshl_add_u32 v11, v13, 2, v11"); e("v_lshlrev_b32 v11, 4, v11")
            e(f"v_add3_u32 v{19+nt}, v8, v10, v11")
            continue
        e(f"v_add_u32 v12, {16*nt}, v3")
        e("v_cmp_le_u32 vcc, 20, v12"); e("v_cndmask_b32 v13, 0, 1, vcc")
        e("v_lshlrev_b32 v15, 2, v13"); e("v_sub_u32 v15, v12, v15")
        e("v_cmp_le_u32 vcc, 24, v12"); e("v_subrev_u32 v12, 24, v12"); e("v_cndmask_b32 v12, v15, v12, vcc")
        e("v_lshrrev_b32 v10, 2, v12"); e("v_lshlrev_b32 v10, 10, v10")
        e("v_and_b32 v11, 3, v12"); e("v_lshl_add_u32 v11, v13, 2, v11"); e("v_lshlrev_b32 v11, 4, v11")
        e(f"v_add3_u32 v{19+nt}, v8, v10, v11")
    e("v_cmp_gt_u32 vcc, 8, v3"); e("v_cndmask_b32 v21, v14, v21, vcc")
    for t in range(6):
        d = 120 + 4 * t
        e(f"v_cvt_pk_bf16_f32 v{d}, v{d}, v{d+1}")
        e(f"v_cvt_pk_bf16_f32 v{d+1}, v{d+2}, v{d+3}")
        e(f"ds_write_b64 v{16+t}, v[{d}:{d+1}]")
    e("s_waitcnt lgkmcnt(0)"); e("s_barrier")
    e("v_lshlrev_b32 v8, 4, v0"); e(f"v_add_u32 v9, {XL}, v8")
    for r in range(3): e(f"ds_read_b128 v[{120+4*r}:{123+4*r}], v9 offset:{4096*r}")
    if xlate:
        e("s_waitcnt vmcnt(0)")
        e("buffer_store_dwordx4 v[232:235], v219, s[24:27], s58 offen sc1")
        for r in range(3):
            e(f"v_subrev_u32 v{216+r}, {XL}, v{216+r}")
            if r == 2:
                e("v_cmp_gt_u32 vcc, 128, v0"); e("s_and_saveexec_b64 s[52:53], vcc")
            e(f"ds_write_b128 v{216+r}, v[{220+4*r}:{223+4*r}]")
            if r == 2: e("s_mov_b64 exec, s[52:53]")
    e(f"s_mul_i32 s30, s29, {W2_C}"); e("s_mul_i32 s31, s28, 10240"); e("s_add_u32 s30, s30, s31"); e(f"s_add_u32 s30, s30, {W2_OFF}")
    e(f"v_mov_b32 v14, {OOB}"); e("v_cmp_gt_u32 vcc, 128, v0"); e("v_cndmask_b32 v9, v14, v8, vcc")
    e("s_waitcnt lgkmcnt(2)" if xlate else "s_waitcnt lgkmcnt(0)")
    e("buffer_store_dwordx4 v[120:123], v8, s[24:27], s30 offen sc1")
    e("s_add_u32 s30, s30, 4096"); e("buffer_store_dwordx4 v[124:127], v8, s[24:27], s30 offen sc1")
    e("s_add_u32 s30, s30, 4096"); e("buffer_store_dwordx4 v[128:131], v9, s[24:27], s30 offen sc1")
    if xlate:
        e("s_waitcnt lgkmcnt(0)"); e("s_barrier")
        for r in range(3): e(f"ds_read_b128 v[{220+4*r}:{223+4*r}], v8 offset:{4096*r}")
        e("s_waitcnt lgkmcnt(0)")
        e("buffer_store_dwordx4 v[220:223], v8, s[24:27], s46 offen" + (" sc1" if xsc else ""))
        e("s_add_u32 s46, s46, 4096"); e("buffer_store_dwordx4 v[224:227], v8, s[24:27], s46 offen" + (" sc1" if xsc else ""))
        e("s_add_u32 s46, s46, 4096"); e("buffer_store_dwordx4 v[228:231], v9, s[24:27], s46 offen" + (" sc1" if xsc else ""))
    e(f"s_branch {name}_end")

    a.label(f"{name}_tables")
    e("s_mov_b32 s28, s29")
    e("s_cmp_gt_u32 s28, 4")
    e(f"s_cbranch_scc1 {name}_end")
    e("v_lshlrev_b32 v9, 4, v1")
    e("s_cmp_eq_u32 s28, 4")
    e(f"s_cbranch_scc1 {name}_tab2")
    e("s_lshl_b32 s29, s28, 4"); e("v_add_u32 v8, s29, v3")
    e("s_cmp_ge_u32 s18, 2")
    e(f"s_cbranch_scc1 {name}_tabtw")
    e("s_lshl_b32 s29, s18, 5"); e("v_lshlrev_b32 v10, 3, v4"); e("v_add_u32 v10, s29, v10")
    for jj in range(8):
        e(f"v_add_u32 v11, {jj}, v10"); e("v_mul_u32_u24 v11, v11, v8"); e("v_and_b32 v11, 63, v11")
        e("v_cvt_f32_u32 v11, v11"); e(f"v_mul_f32 v11, {1.0/64!r}, v11")
        e(f"v_cos_f32 v{16+jj}, v11"); e(f"v_sin_f32 v{24+jj}, v11")
    for q in range(4):
        e(f"v_cvt_pk_bf16_f32 v{32+q}, v{16+2*q}, v{17+2*q}")
        e(f"v_cvt_pk_bf16_f32 v{40+q}, v{24+2*q}, v{25+2*q}")
        e(f"v_xor_b32 v{36+q}, 0x80008000, v{40+q}")
    e("s_mul_i32 s29, s28, 6144"); e("s_lshl_b32 s30, s18, 10"); e("s_add_u32 s29, s29, s30"); e(f"s_add_u32 s29, s29, {TAB_OFF + TAB_W64}")
    for var in range(3):
        if var == 2: e("s_add_u32 s29, s29, 4096")
        e(f"buffer_store_dwordx4 v[{32+4*var}:{35+4*var}], v9, s[24:27], s29 offen offset:{2048*(var&1)}")
    e(f"s_branch {name}_end")
    a.label(f"{name}_tabtw")
    e("s_cmp_lg_u32 s18, 2")
    e(f"s_cbranch_scc1 {name}_end")
    for T in range(2):
        for b in range(4):
            e(f"v_lshlrev_b32 v11, 2, v4"); e(f"v_add_u32 v11, {16*T+b}, v11"); e("v_mul_u32_u24 v11, v11, v8")
            e("v_cvt_f32_u32 v11, v11"); e(f"v_mul_f32 v11, {1.0/2048!r}, v11")
            e(f"v_cos_f32 v{16+4*T+b}, v11"); e(f"v_sin_f32 v{24+4*T+b}, v11")
    e("s_lshl_b32 s29, s28, 12"); e(f"s_add_u32 s29, s29, {TAB_OFF + TAB_TW}")
    for q in range(4):
        e(f"buffer_store_dwordx4 v[{16+4*q}:{19+4*q}], v9, s[24:27], s29 offen offset:{1024*q}")
    e(f"s_branch {name}_end")
    a.label(f"{name}_tab2")
    e("s_cmp_ge_u32 s18, 2")
    e(f"s_cbranch_scc1 {name}_end")
    e("s_lshl_b32 s29, s18, 4"); e("v_add_u32 v8, s29, v3")
    for jj in range(8):
        e(f"v_lshlrev_b32 v11, 2, v4"); e(f"v_add_u32 v11, {16*(jj>>2) + (jj&3)}, v11"); e("v_mul_u32_u24 v11, v11, v8"); e("v_and_b32 v11, 31, v11")
        e("v_cvt_f32_u32 v11, v11"); e(f"v_mul_f32 v11, {1.0/32!r}, v11")
        e(f"v_cos_f32 v{16+jj}, v11"); e(f"v_sin_f32 v{24+jj}, v11")
    for q in range(4):
        e(f"v_cvt_pk_bf16_f32 v{32+q}, v{16+2*q}, v{17+2*q}")
        e(f"v_cvt_pk_bf16_f32 v{36+q}, v{24+2*q}, v{25+2*q}")
    e("s_lshl_b32 s29, s18, 11"); e(f"s_add_u32 s29, s29, {TAB_OFF + TAB_S2}")
    e("buffer_store_dwordx4 v[32:35], v9, s[24:27], s29 offen")
    e("buffer_store_dwordx4 v[36:39], v9, s[24:27], s29 offen offset:1024")
    a.label(f"{name}_end")
    if stamps:
        e("s_waitcnt vmcnt(0)"); st.mark("end"); st.flush(16, 17, 18)
    a.label(f"{name}_exit")
    e("s_endpgm")
    gen_k0.names = st.names
    return kernel_header(name) + a.text() + kernel_desc(name, 256, 0, 102 if stamps else 72)
```

```python
from asm import *
from layout import *
from k1b import x_items, dma_item, w_items, emit_now
from kA import signal, wait_cnt, force
OOB = 0x40000000
TB = 0
PITCH = 352
KVT = 45056
KVZ = 49152
KVS = 51200
XB = 51200
UREG = 61440

def hoisted(a, XBP=False):
    e = a.e
    e("v_and_b32 v8, 1, v3"); e("v_lshrrev_b32 v12, 1, v3")
    e("v_lshlrev_b32 v236, 4, v2"); e("v_lshl_add_u32 v238, v12, 3, v236"); e("v_lshl_add_u32 v236, v3, 8, v236"); e(f"v_add_u32 v237, {AF_WT}, v236")
    e(f"v_mul_u32_u24 v9, {AF_WT}, v8"); e("v_add_u32 v238, v238, v9"); e("v_add_u32 v238, 1024, v238")
    e("s_mul_i32 s46, s17, 1280"); e("s_add_u32 s46, s46, s44")
    e("s_lshl_b32 s19, s18, 5"); e("v_add_u32 v9, s19, v2"); e(f"v_mul_u32_u24 v9, {PITCH}, v9")
    e("v_mul_u32_u24 v10, 48, v3"); e("v_add_u32 v244, v9, v10")
    e("v_lshl_add_u32 v245, v3, 5, v9"); e("v_add_u32 v245, 192, v245")
    e("v_lshrrev_b32 v9, 2, v2"); e("v_lshl_add_u32 v9, v3, 2, v9"); e(f"v_mul_u32_u24 v9, {PITCH}, v9"); e("v_and_b32 v10, 3, v1"); e("v_lshl_add_u32 v9, v10, 3, v9")
    e("s_lshr_b32 s19, s18, 1"); e("s_and_b32 s23, s18, 1")
    e("s_mul_i32 s3, s19, 96"); e("v_add_u32 v246, s3, v9")
    e("s_lshl_b32 s3, s18, 5"); e("s_add_u32 s3, s3, 192"); e("v_add_u32 v247, s3, v9")
    e("s_mul_i32 s3, s23, 10"); e("v_add_u32 v9, s3, v2"); e("v_cmp_eq_u32 vcc, 10, v2"); e("v_mov_b32 v10, 20"); e("v_cndmask_b32 v9, v9, v10, vcc")
    e("v_mul_u32_u24 v9, 96, v9"); e("v_lshl_add_u32 v9, v3, 3, v9")
    e("s_mul_i32 s3, s19, 2016"); e(f"s_add_u32 s3, s3, {KVS}"); e("v_add_u32 v9, s3, v9")
    e("s_sub_u32 s3, 11, s23"); e(f"v_mov_b32 v11, {KVS + 4096}"); e("v_cmp_gt_u32 vcc, s3, v2"); e("v_cndmask_b32 v248, v11, v9, vcc")
    e("v_lshlrev_b32 v9, 4, v0"); e(f"v_add_u32 v251, {KVS}, v9"); e(f"v_add_u32 v252, {KVT}, v9")
    e(f"v_mov_b32 v11, {OOB}"); e("v_cmp_gt_u32 vcc, 252, v0"); e("v_cndmask_b32 v250, v11, v9, vcc")
    e("s_lshl_b32 s3, s17, 4"); e(f"s_mul_i32 s61, s3, {KVP_ST}"); e(f"s_add_u32 s61, s61, {KVP_OFF[0]}")
    e(f"s_mul_i32 s56, s16, {KVP_ST}"); e("s_add_u32 s56, s56, s61")
    e("v_and_b32 v13, 3, v2"); e("v_bfe_u32 v10, v2, 2, 1"); e("v_mul_u32_u24 v10, 10, v10"); e("v_add_u32 v10, v10, v13")
    e("v_mul_u32_u24 v11, 2016, v12"); e("v_mul_u32_u24 v14, 48, v8"); e("v_add_u32 v11, v11, v14"); e(f"v_add_u32 v11, {KVT}, v11")
    e("v_mul_u32_u24 v14, 96, v10"); e("v_add_u32 v14, v14, v11")
    e("v_lshrrev_b32 v15, 3, v2"); e("v_cmp_eq_u32 s[40:41], v15, v12"); e(f"v_mov_b32 v15, {KVZ}"); e("v_cndmask_b32 v253, v15, v14, s[40:41]")
    e("v_add_u32 v10, 8, v10"); e("v_cmp_eq_u32 vcc, 2, v13"); e("v_mov_b32 v14, 20"); e("v_cndmask_b32 v10, v10, v14, vcc")
    e("v_mul_u32_u24 v14, 96, v10"); e("v_add_u32 v14, v14, v11"); e("v_cndmask_b32 v14, v15, v14, s[40:41]")
    e("v_cmp_eq_u32 vcc, 3, v13"); e("v_cndmask_b32 v249, v14, v15, vcc")
    if XBP:
        e("v_mul_u32_u24 v10, 5472, v8"); e("v_mul_u32_u24 v11, 272, v12"); e("v_add_u32 v10, v10, v11")
    else:
        e("v_mul_u32_u24 v10, 5120, v8"); e("v_lshl_add_u32 v10, v12, 8, v10")
    e("v_lshrrev_b32 v11, 2, v2"); e("v_lshl_add_u32 v10, v11, 6, v10"); e("v_lshl_add_u32 v10, v13, 2, v10")
    e("s_lshl_b32 s3, s18, 4")
    if not XBP: e(f"s_add_u32 s3, s3, {XB}")
    e("v_add_u32 v254, s3, v10")
    if XBP: e("v_lshrrev_b32 v10, 4, v0"); e("v_lshl_add_u32 v239, v10, 4, v9")
    else: e(f"v_add_u32 v239, {XB}, v9")
    e("v_lshrrev_b32 v10, 4, v0"); e("v_lshlrev_b32 v10, 12, v10"); e("v_bfe_u32 v11, v0, 2, 2"); e("v_lshl_add_u32 v10, v11, 8, v10")
    e("v_and_b32 v11, 3, v0"); e("v_lshl_add_u32 v255, v11, 4, v10")
    e(f"v_mov_b32 v11, {OOB}"); e("v_cmp_gt_u32 vcc, 128, v0"); e("v_cndmask_b32 v243, v11, v255, vcc")
    e("s_lshr_b32 s19, s16, 1"); e("s_lshr_b32 s60, s19, 2"); e("s_lshl_b32 s60, s60, 11")
    e("s_and_b32 s3, s19, 3"); e("s_lshl_b32 s3, s3, 6"); e("s_add_u32 s60, s60, s3")
    e("s_and_b32 s23, s16, 1"); e("s_lshl_b32 s3, s23, 10"); e("s_add_u32 s60, s60, s3"); e("s_mul_i32 s3, s17, 163840"); e("s_add_u32 s60, s60, s3"); e(f"s_add_u32 s60, s60, {XF_OFF[0]}")
    e("s_lshl_b32 s19, s19, 2"); e("s_add_u32 s19, s19, s18"); e("s_lshl_b32 s59, s19, 6"); e("s_lshl_b32 s3, s23, 5"); e("s_add_u32 s59, s59, s3"); e("s_lshl_b32 s59, s59, 2"); e(f"s_add_u32 s59, s59, {ST_OFF[0]}")
    e("v_lshl_add_u32 v10, v2, 1, v12"); e("v_lshlrev_b32 v10, 2, v10"); e(f"v_mov_b32 v11, {OOB}"); e("v_cmp_eq_u32 vcc, 0, v8"); e("v_cndmask_b32 v242, v11, v10, vcc")
    for r in range(152, 156): e(f"v_mov_b32 v{r}, 0x3f803f80")
    e("v_cmp_eq_u32 s[24:25], 1, v13"); e("v_cmp_eq_u32 s[28:29], 3, v13")
    e("v_lshrrev_b32 v9, 2, v2"); e("v_lshl_add_u32 v9, v9, 4, v2"); e("v_lshlrev_b32 v9, 2, v9")

def pair_reduce(e, op, x0, x1):
    e(f"v_permlane16_swap_b32 v{x0}, v{x1}"); e(f"{op} v{x0}, v{x0}, v{x1}")
    e(f"v_mov_b32 v{x1}, v{x0}"); e(f"v_permlane16_swap_b32 v{x0}, v{x1}")

def softmax_l4_a(r, K, C, E, tmp, ratio=False):
    e = r.e
    mx = (tmp, tmp+1); mn = (tmp+2, tmp+3); sp = (tmp+4, tmp+5); sm = (tmp+6, tmp+7)
    for tt in range(2):
        k = K[tt]
        e(f"v_max3_f32 v{mx[tt]}, v{k}, v{k+1}, v{k+2}"); e(f"v_min3_f32 v{mn[tt]}, v{k}, v{k+1}, v{k+2}")
    for u in (3, 5, 7):
        for tt in range(2):
            k = K[tt]
            e(f"v_max3_f32 v{mx[tt]}, v{mx[tt]}, v{k+u}, v{k+u+1}"); e(f"v_min3_f32 v{mn[tt]}, v{mn[tt]}, v{k+u}, v{k+u+1}")
    for tt in range(2):
        k = K[tt]
        e(f"v_max_f32 v{mx[tt]}, v{mx[tt]}, v{k+9}"); e(f"v_min_f32 v{mn[tt]}, v{mn[tt]}, v{k+9}")
    e(f"v_permlane16_swap_b32 v{mx[0]}, v{mx[1]}"); e(f"v_permlane16_swap_b32 v{mn[0]}, v{mn[1]}")
    e(f"v_max_f32 v{mx[0]}, v{mx[0]}, v{mx[1]}"); e(f"v_min_f32 v{mn[0]}, v{mn[0]}, v{mn[1]}")
    e(f"v_mov_b32 v{mx[1]}, v{mx[0]}"); e(f"v_mov_b32 v{mn[1]}, v{mn[0]}")
    e(f"v_permlane16_swap_b32 v{mx[0]}, v{mx[1]}"); e(f"v_permlane16_swap_b32 v{mn[0]}, v{mn[1]}")
    for tt in range(2):
        e(f"v_mul_f32 v{mx[tt]}, v{C[tt]}, v{mx[tt]}"); e(f"v_mul_f32 v{mn[tt]}, v{C[tt]}, v{mn[tt]}")
    seq = [(tt, u) for u in range(10) for tt in range(2)]
    def fm(tt, u):
        e(f"v_fma_f32 v{E[tt]+u}, v{K[tt]+u}, v{C[tt]}, -v{mx[tt]}"); e(f"v_fma_f32 v{K[tt]+u}, -v{K[tt]+u}, v{C[tt]}, v{mn[tt]}")
    def ex(tt, u):
        e(f"v_exp_f32 v{E[tt]+u}, v{E[tt]+u}"); e(f"v_exp_f32 v{K[tt]+u}, v{K[tt]+u}")
    def ad(tt, u):
        if u == 0: return
        if u == 1:
            e(f"v_add_f32 v{sp[tt]}, v{E[tt]}, v{E[tt]+1}"); e(f"v_add_f32 v{sm[tt]}, v{K[tt]}, v{K[tt]+1}")
        else:
            e(f"v_add_f32 v{sp[tt]}, v{sp[tt]}, v{E[tt]+u}"); e(f"v_add_f32 v{sm[tt]}, v{sm[tt]}, v{K[tt]+u}")
    n = len(seq)
    for i in range(n + 4):
        if i < n: fm(*seq[i])
        if 0 <= i - 2 < n: ex(*seq[i-2])
        if 0 <= i - 4 < n: ad(*seq[i-4])
    e(f"v_permlane16_swap_b32 v{sp[0]}, v{sp[1]}"); e(f"v_permlane16_swap_b32 v{sm[0]}, v{sm[1]}")
    e(f"v_add_f32 v{sp[0]}, v{sp[0]}, v{sp[1]}"); e(f"v_add_f32 v{sm[0]}, v{sm[0]}, v{sm[1]}")
    if ratio:
        e(f"v_rcp_f32 v{sm[0]}, v{sm[0]}"); e(f"v_mov_b32 v{sp[1]}, v{sp[0]}"); e(f"v_mul_f32 v{sm[0]}, v{sp[0]}, v{sm[0]}")
        e(f"v_mov_b32 v{sm[1]}, v{sm[0]}")
    else:
        e(f"v_rcp_f32 v{sp[0]}, v{sp[0]}"); e(f"v_rcp_f32 v{sm[0]}, v{sm[0]}")
        e(f"v_mov_b32 v{sp[1]}, v{sp[0]}"); e(f"v_mov_b32 v{sm[1]}, v{sm[0]}")
    e(f"v_permlane16_swap_b32 v{sp[0]}, v{sp[1]}"); e(f"v_permlane16_swap_b32 v{sm[0]}, v{sm[1]}")
def softmax_l4_b(r, K, E, tmp, P, ratio=False, after=None):
    e = r.e
    sp = tmp + 4; sm = tmp + 6
    for tt in range(2):
        for u in range(10):
            if not ratio: e(f"v_mul_f32 v{E[tt]+u}, v{sp+tt}, v{E[tt]+u}")
            e(f"v_mul_f32 v{K[tt]+u}, v{sm+tt}, v{K[tt]+u}")
        for q in range(5):
            e(f"v_cvt_pk_bf16_f32 v{P[tt]+q}, v{E[tt]+2*q}, v{E[tt]+2*q+1}")
            e(f"v_cvt_pk_bf16_f32 v{P[tt]+5+q}, v{K[tt]+2*q}, v{K[tt]+2*q+1}")
        e(f"v_mov_b32 v{P[tt]+10}, 0"); e(f"v_mov_b32 v{P[tt]+11}, 0")
        if after: after(tt)

def stats_items(r):
    e = r.e
    for tt in range(2):
        g0 = 144 + 4*tt
        e(f"v_cndmask_b32 v{g0}, v{g0}, v{g0+1}, s[24:25]")
        e(f"v_cndmask_b32 v{g0+2}, v{g0+2}, v{g0+3}, s[28:29]")
        e(f"v_cndmask_b32 v{g0+2}, v{g0}, v{g0+2}, s[22:23]")
    e("ds_bpermute_b32 v145, v9, v146"); e("ds_bpermute_b32 v149, v9, v150")
    for tt in range(2): e(f"v_mul_f32 v{136+4*tt}, {1/640!r}, v{136+4*tt}")
    r.mark("step")
    for tt in range(2): e(f"v_mul_f32 v{145+4*tt}, {1/640!r}, v{145+4*tt}")
    for tt in range(2): e(f"v_fma_f32 v{145+4*tt}, -v{136+4*tt}, v{136+4*tt}, v{145+4*tt}")
    for tt in range(2): e(f"v_max_f32 v{145+4*tt}, 0, v{145+4*tt}")
    for tt in range(2): e(f"v_add_f32 v{145+4*tt}, 0x3727c5ac, v{145+4*tt}")
    for tt in range(2): e(f"v_rsq_f32 v{10+tt}, v{145+4*tt}")
    e("v_mov_b32 v205, 0x3f80"); e("v_mov_b32 v213, 0x3f80")
    for tt in range(2): e(f"v_mul_f32 v{14+tt}, {LOG2E!r}, v{10+tt}")
    for q in (206, 207, 214, 215): e(f"v_mov_b32 v{q}, 0")

def epiA_tail(r):
    e = r.e
    B = lambda nt, ks: (56 + 16*nt + 4*ks) if nt < 2 else (156 + 4*ks)
    for ks in range(4):
        e(f"ds_read_b64_tr_b16 v[{216+4*ks}:{217+4*ks}], v247 offset:{ks*32*PITCH}")
        e(f"ds_read_b64_tr_b16 v[{218+4*ks}:{219+4*ks}], v247 offset:{ks*32*PITCH + 16*PITCH}")
        for nt in range(3):
            b = B(nt, ks)
            e(f"ds_read_b64_tr_b16 v[{b}:{b+1}], v246 offset:{ks*32*PITCH + 32*nt}")
            e(f"ds_read_b64_tr_b16 v[{b+2}:{b+3}], v246 offset:{ks*32*PITCH + 16*PITCH + 32*nt}")
    r.mark("step")
    for ks in range(4):
        for nt in range(3):
            b = B(nt, ks); d = 176 + 4*nt
            c = "0" if ks == 0 else f"v[{d}:{d+3}]"
            e(f"v_mfma_f32_16x16x32_bf16 v[{d}:{d+3}], v[{b}:{b+3}], v[{216+4*ks}:{219+4*ks}], {c}")
    r.mark("step")
    for nt in range(3):
        d = 176 + 4*nt
        e(f"v_cvt_pk_bf16_f32 v{d}, v{d}, v{d+1}"); e(f"v_cvt_pk_bf16_f32 v{d+1}, v{d+2}, v{d+3}")
        e(f"ds_write_b64 v248, v[{d}:{d+1}] offset:{32*nt}")
    r.mark("barrier")
    e("ds_read_b128 v[176:179], v251")
    r.mark("step")
    r.items.append(("VM", "buffer_store_dwordx4 v[176:179], v250, s[12:15], s56 offen sc1", "kvst", []))

def sprinkle(a, vm, items, pend, every, start=0, st=None):
    e = a.e
    for i, it in enumerate(items):
        if isinstance(it, tuple):
            if it[0] == "MARK": e("s_waitcnt lgkmcnt(0)")
            elif it[0] == "VM": vm.issue(it[1], it[2])
            elif it[0] == "ST" and st: st.mark(it[1])
        else: e(it)
        if i >= start and (i - start) % every == every - 1 and pend:
            while pend:
                p = pend.pop(0)
                if isinstance(p, tuple): vm.issue(p[1], p[2]); break
                e(p)
    emit_now(a, vm, pend); pend.clear()

def gen_kA(name, stamps=False, NLEAD=22, VMGAP=4, fine=False, SIGSTEP=5, WT=True, LEAD5=6, PADN=1, only=None, HSH=False, SLA=2, SLB=2, GAPA2=3, GAPB2=4, PREW=0, LDEV=8, EARLYW=False, WE=1, KPSC=True, OSC=True, ASY=False, SIG1=17, CK0=4, CK1=12, TSL=4, TSN=3, KPGAP=2, SENT=False, KS0=2, SUMPOS=None, KCLR=0, MFR=3, HEV=12, EP5=False, LW=0, LWS=0, GAP5=None, T5N=0, B5=11, SELB=False, T4O=False, KNAN=False, KDLY=False, B2S=0, NPE=8, NPT=8, U0L=False, XBP=False, RL=0, PRO=0):
    a = Asm(); e = a.e; vm = VM(a); st = Stamps(a, stamps, 1)
    if only is not None:
        _mark = st.mark
        st.mark = lambda nm: _mark(nm) if nm in only else None
    a.label(f"{name}_body")
    e("s_cmp_ge_u32 s2, 256")
    e(f"s_cbranch_scc1 {name}_end")
    st.mark("start")
    if stamps: e("s_mov_b32 s57, 0"); e("s_mov_b32 s58, 0")
    e("s_load_dwordx2 s[30:31], s[0:1], 88")
    wg_to_rc(a, 16, 17, 19)
    e("v_and_b32 v1, 63, v0"); e("v_lshrrev_b32 v2, 6, v0")
    e("v_readfirstlane_b32 s18, v2")
    e("v_lshlrev_b32 v5, 4, v1")
    e("s_lshl_b32 s44, s16, 2"); e("s_add_u32 s44, s44, s18"); e(f"s_mul_i32 s44, s44, {2*AF_WT}")
    e(f"s_add_u32 s19, s44, {XIN_OFF[0]}")
    e(f"s_mul_i32 s34, s17, {W1_C}")
    e("s_lshl_b32 s21, s18, 10"); e("s_mul_i32 s64, s18, 3072"); e("s_lshl_b32 s65, s18, 11")
    e("s_mov_b32 s20, 0"); e(f"s_mov_b32 s35, {AF_WT}")
    e(f"s_mov_b32 s6, {2*AF_WT}"); e("s_mov_b32 s7, 0x20000"); e(f"s_mov_b32 s10, {163840}"); e("s_mov_b32 s11, 0x20000")
    e("s_add_u32 s19, s19, s32")
    e("s_waitcnt lgkmcnt(0)")
    e("s_add_u32 s4, s30, s19"); e("s_addc_u32 s5, s31, 0")
    e("s_add_u32 s8, s30, s34"); e("s_addc_u32 s9, s31, 0")
    X = lambda tt, s: f"a[{(2*s+tt)*4}:{(2*s+tt)*4+3}]"
    def dma(sreg, off, srdn, tag): return [f"s_add_u32 m0, {sreg}, {off}", ("VM", f"buffer_load_dwordx4 v5, {srdn}, m0 offen lds", tag, [])]
    def grp3(G, base, srdn, tag):
        return sum((dma("s64", base + G*12288 + T*1024, srdn, tag) for T in range(3)), [])
    def grp2(G, base, srdn, tag):
        return sum((dma("s65", base + G*8192 + T*1024, srdn, tag) for T in range(2)), [])
    xt = lambda s: [(i[0], i[1], f"x{s}", i[3]) if isinstance(i, tuple) else i for i in x_items(X, s)]
    loadsA = grp3(0, 0, "s[8:11]", "W0") + xt(0) + xt(1)
    for G in range(1, 5):
        loadsA += grp3(G, 0, "s[8:11]", f"W{G}")
        for s in range(4*G - 2, 4*G + 2): loadsA += xt(s)
    loadsA += (xt(18) + xt(19) + grp2(0, UREG, "s[8:11]", "U0")) if U0L else (xt(18) + grp2(0, UREG, "s[8:11]", "U0") + xt(19))
    for G in range(1, 5): loadsA += grp2(G, UREG, "s[8:11]", f"U{G}")
    loadsP = []
    for G in range(5): loadsP += grp3(G, 102400, "s[8:11]", f"P{G}")
    r = Rec()
    r.e("v_and_b32 v2, 15, v1"); r.e("v_lshrrev_b32 v3, 4, v1")
    r.e(f"v_add_u32 v6, {UREG}, v5"); r.e("v_add_u32 v7, 102400, v5")
    r.e("s_add_u32 s36, s8, 102400"); r.e("s_addc_u32 s37, s9, 0"); r.e("s_mov_b32 s38, 102400"); r.e("s_mov_b32 s39, 0x20000")
    r.e("s_add_u32 s12, s30, s32"); r.e("s_addc_u32 s13, s31, 0"); r.e(f"s_sub_u32 s14, {WS_USED}, s32"); r.e("s_mov_b32 s15, 0x20000")
    r.e(f"s_mul_i32 s34, s17, {W2_C}"); r.e(f"s_add_u32 s34, s34, {W2_OFF - 102400}")
    r.e("s_add_u32 s48, s30, s34"); r.e("s_addc_u32 s49, s31, 0"); r.e("s_mov_b32 s50, 163840"); r.e("s_mov_b32 s51, 0x20000")
    r.e(f"s_add_u32 s52, s48, {163840 if B2S else 102400}"); r.e("s_addc_u32 s53, s49, 0"); r.e(f"s_mov_b32 s54, {40960 if B2S else 102400}"); r.e("s_mov_b32 s55, 0x20000")
    hoisted(r, XBP)
    r.e("v_and_b32 v8, 2, v2"); r.e("v_cmp_eq_u32 s[22:23], 2, v8")
    r.e(f"s_lshl_b32 s45, s17, 7"); r.e(f"s_add_u32 s45, s45, {CNT_OFF[0]}")
    setup = []
    for i in r.items:
        if i.startswith("s_nop"): continue
        if i.startswith("s_addc") or i.startswith("s_cselect"): setup[-1] += "\n" + i
        else: setup.append(i)
    lead = []; n = 0
    while n < NLEAD:
        it = loadsA.pop(0); lead.append(it)
        if isinstance(it, tuple): n += 1
    sideH = Side(a, vm)
    if HSH:
        for q in range(152, 156): e(f"v_mov_b32 v{q}, 0x3f803f80")
        sideH.add([i for i in setup if "0x3f803f80" not in i]); setup = []
    per = -(-len(setup) // max(1, NLEAD - 3)); k = 0
    for it in lead:
        if isinstance(it, tuple):
            vm.issue(it[1], it[2]); k += 1
            if k > 3:
                n = 0
                while setup and n < per:
                    e(setup.pop(0)); n += 1
        else: e(it)
    for it in setup: e(it)
    sideA = Side(a, vm, VMGAP); sideA.add(loadsA)
    if not fine: st.mark("issued")
    vm.wait("W0"); e("s_barrier")
    accA = lambda tt, T: 56 + 20*tt + 4*T
    accB = lambda tt, T: 96 + 20*tt + 4*T
    def need(side, t):
        force(side, vm, t)
        if t in vm.q: vm.wait(t)
    B3 = (16, 28, 40); B2 = (16, 24, 32, 40)
    def preA1(s):
        if only and s in (5, 10, 15): st.mark(f"A1s{s}")
        need(sideA, f"x{s}")
        if s % 4 == 2 and s < 18:
            need(sideA, f"W{(s+2)//4}"); e("s_barrier")
    def extra0(s):
        out = []
        for tt in range(2):
            c0 = "0" if s == 0 else f"v[{136+4*tt}:{139+4*tt}]"
            c1 = "0" if s == 0 else f"v[{144+4*tt}:{147+4*tt}]"
            out.append(f"v_mfma_f32_16x16x32_bf16 v[{136+4*tt}:{139+4*tt}], v[152:155], {X(tt,s)}, {c0}")
            out.append(f"v_mfma_f32_16x16x32_bf16 v[{144+4*tt}:{147+4*tt}], {X(tt,s)}, {X(tt,s)}, {c1}")
        return out
    gemm3(a, 20, [0, 1, 2], lambda s, T: (5, s*3072 + T*1024), accA, B3, X, True, [sideA, sideH], extra0, preA1)
    sideH.flush()
    st.mark("A1")
    need(sideA, "U0"); e("s_barrier")
    sideA.vm_gap = GAPA2; sideA.add(loadsP)
    sideS = Side(a, vm); sideS.debt = True
    KA = (56, 76); EE = (156, 166); PP = (176, 188)
    r = Rec(); stats_items(r); softmax_l4_a(r, KA, (14, 15), EE, 216); sideS.add(r.items)
    def preA2(s):
        if only and s in (1, 2, 5, 6, 10, 15): st.mark(f"A2s{s}")
        if s % 4 == 1 and s < 17:
            need(sideA, f"U{(s+3)//4}"); e("s_barrier")
        if (PRO & 2) and s == 18:
            need(sideA, "P0"); e("s_barrier")
    gemm3(a, 20, [3, 4], lambda s, T: (6, s*2048 + (T-3)*1024), accA, B2, X, True, [sideA, sideS], None, preA2, slots=SLA, wait_every=WE)
    st.mark("A2")
    r = Rec()
    for tt in range(2):
        vb = 66 + 20*tt
        for u in range(10): r.e(f"v_mul_f32 v{vb+u}, v{10+tt}, v{vb+u}")
        for q in range(5): r.e(f"v_cvt_pk_bf16_f32 v{200+8*tt+q}, v{vb+2*q}, v{vb+2*q+1}")
        for q in range(2): r.e(f"ds_write_b128 v245, v[{200+8*tt+4*q}:{203+8*tt+4*q}] offset:{16*q + tt*16*PITCH}")
    r.items.append(("ST", "h_v"))
    r.items += sideS.q; sideS.q = []
    r.items.append(("ST", "h_a"))
    def phi_rows(tt):
        for q in range(3): r.e(f"ds_write_b128 v244, v[{PP[tt]+4*q}:{PP[tt]+4*q+3}] offset:{16*q + tt*16*PITCH}")
    softmax_l4_b(r, KA, EE, 216, PP, after=phi_rows)
    r.items.append(("ST", "h_b"))
    mB1 = {}
    if PRO & 2:
        for s_ in range(2):
            for T in range(3): e(f"ds_read_b128 v[{B3[s_] + 4*T}:{B3[s_] + 4*T + 3}], v7 offset:{s_*3072 + T*1024}")
            mB1[s_] = a.nds
    pend = list(sideA.q); sideA.q = []
    if KCLR == 1:
        for q in range(4): e(f"v_mov_b32 v{232+q}, -1")
        e("s_cmp_eq_u32 s32, 0"); e(f"s_cselect_b32 s3, 0, {OOB}"); e(f"v_subrev_u32 v8, {KVS}, v251"); e("v_add_u32 v8, s3, v8")
        e("s_lshl_b32 s3, s2, 12"); e(f"s_add_u32 s3, s3, {KVP_OFF[0] + LSTRIDE}")
        vm.issue("buffer_store_dwordx4 v[232:235], v8, s[12:15], s3 offen sc1", "kclr")
    if KCLR == 2:
        e("s_cmp_lg_u32 s32, 0"); e(f"s_cbranch_scc1 {name}_nokclr")
        for q in range(4): e(f"v_mov_b32 v{232+q}, -1")
        e(f"v_subrev_u32 v8, {KVS}, v251")
        e("s_lshl_b32 s3, s2, 12"); e(f"s_add_u32 s3, s3, {KVP_OFF[0] + LSTRIDE}")
        e("buffer_store_dwordx4 v[232:235], v8, s[12:15], s3 offen sc1")
        a.label(f"{name}_nokclr")
    sprinkle(a, vm, r.items, pend, HEV, st=st if only else None)
    for q in range(4): e(f"v_mov_b32 v{232+q}, 0")
    e(f"v_add_u32 v8, {KVZ - KVS}, v251")
    e("v_cmp_gt_u32 vcc, 128, v0"); e("s_and_saveexec_b64 s[40:41], vcc")
    e("ds_write_b128 v8, v[232:235]")
    e("s_mov_b64 exec, s[40:41]")
    e("s_waitcnt lgkmcnt(0)")
    if only: st.mark("h_w")
    if "P0" in vm.q: vm.wait("P0")
    if only: st.mark("h_p")
    e("s_barrier")
    st.mark("head")
    sideB = Side(a, vm, VMGAP); sideW = Side(a, vm, VMGAP)
    r = Rec(); epiA_tail(r)
    if KDLY:
        r.items.insert(len(r.items) - 1, f"s_bitcmp1_b32 s16, 0\ns_cbranch_scc0 {name}_nodly\ns_sleep 60\n{name}_nodly:")
    sideB.add(r.items)
    for q in range(4): e(f"v_mov_b32 v{232+q}, -1")
    e(f"s_add_u32 s47, s46, {O_OFF[0]}")
    sideW.q = [("VM", "buffer_store_dwordx4 v[232:235], v236, s[12:15], s47 offen sc1", "clr", []),
               ("VM", "buffer_store_dwordx4 v[232:235], v237, s[12:15], s47 offen sc1", "clr", []),
               ("VM", "buffer_store_dwordx2 v[232:233], v238, s[12:15], s47 offen sc1", "clr", [])]
    for G in range(5): sideW.add(grp2(G, UREG, "s[36:39]", f"V{G}"))
    state = {"sig": False}
    def do_signal():
        assert not any(isinstance(i, tuple) and i[0] == "VM" and i[2] in (("clr",) if SENT else ("clr", "kvst")) for i in sideW.q + ([] if SENT else sideB.q))
        if "kvst" in vm.q and not SENT: vm.wait("kvst")
        if "clr" in vm.q: vm.wait("clr")
        signal(a, "s45", f"{name}_sig1"); state["sig"] = True
    def preB1(s):
        if only and s in (2, 5, 10, 15): st.mark(f"B1s{s}")
        if s % 4 == 2 and s < 18:
            t = f"P{(s+2)//4}"
            if t in vm.q: vm.wait(t)
            e("s_barrier")
        if (ASY or SENT) and s == SIG1: do_signal()
        if (PRO & 4) and s == 14:
            need(sideW, "V0"); e("s_barrier")
    B2r = (40, 48, 16, 24) if PRO & 4 else B2
    mB2 = {}
    def midB1(s, i):
        if not (PRO & 4): return
        plan = {(18, 2): (0, 0), (18, 3): (0, 1), (18, 4): (1, 0), (18, 5): (1, 1), (19, 3): (2, 0), (19, 4): (2, 1)}
        if (s, i) in plan:
            s_, ti = plan[(s, i)]
            e(f"ds_read_b128 v[{B2r[s_] + 4*ti}:{B2r[s_] + 4*ti + 3}], v6 offset:{s_*2048 + ti*1024}")
            if ti == 1: mB2[s_] = a.nds
    sel = Rec()
    sel.e("v_and_b32 v8, 1, v2"); sel.e("v_lshlrev_b32 v8, 4, v8"); sel.e("v_mov_b32 v12, 0x3f80"); sel.e("v_lshlrev_b32 v8, v8, v12")
    sel.e("v_lshrrev_b32 v12, 2, v2"); sel.e("v_cmp_eq_u32 vcc, v12, v3"); sel.items[-1] += "\nv_cndmask_b32 v8, 0, v8, vcc"
    sel.e("v_and_b32 v12, 2, v2"); sel.e("v_cmp_eq_u32 vcc, 0, v12"); sel.items[-1] += "\nv_cndmask_b32 v210, 0, v8, vcc\nv_cndmask_b32 v211, v8, 0, vcc"
    for q in (208, 209, 212, 213): sel.e(f"v_mov_b32 v{q}, 0")
    if SELB: sideB.add(sel.items); sel.items = []
    gemm3(a, 20, [0, 1, 2], lambda s, T: (7, s*3072 + T*1024), accB, B3, X, True, [sideB, sideW], None, preB1,
          slots=(lambda s: TSL if s < TSN else 2) if (ASY or SENT) else 2, mid=midB1, marks0=mB1)
    st.mark("B1")
    sideB.flush()
    if not (PRO & 4): need(sideW, "V0"); e("s_barrier")
    sideW.vm_gap = GAPB2
    sideS = Side(a, vm); sideS.debt = True
    KQ = (96, 116)
    r = Rec(); softmax_l4_a(r, KQ, (14, 15), EE, 200, ratio=True); sideS.add(r.items)
    KP = lambda R: (56 + 4*R) if R < 10 else (216 + 4*(R-10)) if R < 14 else (136 + 4*(R-14))
    kpl = []
    for R in range(16):
        kpl.append(("VM", f"buffer_load_dwordx4 v[{KP(R)}:{KP(R)+3}], v250, s[12:15], s61 offen" + (" sc1" if KPSC else ""), f"kp{R//4}", []))
        if R < 15: kpl.append(f"s_add_u32 s61, s61, {KVP_ST}")
    def kp_check(G):
        r0 = [KP(4*G + i) for i in range(4)]
        return [f"v_max3_u32 v8, v{r0[0]}, v{r0[0]+3}, v{r0[1]}", f"v_max3_u32 v8, v8, v{r0[1]+3}, v{r0[2]}", f"v_max3_u32 v8, v8, v{r0[2]+3}, v{r0[3]}",
                f"v_max_u32 v8, v8, v{r0[3]+3}", "v_cmp_eq_u32 vcc, -1, v8"]
    def preB2(s):
        if only and s in (1, 2, 5, 6, 10, 15): st.mark(f"B2s{s}")
        if s % 4 == 1 and s < 17:
            need(sideW, f"V{(s+3)//4}"); e("s_barrier")
        if s == 1:
            for s2 in range(12): sideW.add(w_items(s2, 102400, "s[48:51]", lambda s: f"w{s//4}"))
        if not ASY and not SENT and s == SIGSTEP: do_signal()
        if SENT and s == KS0:
            idx = max([i + 1 for i, it in enumerate(sideW.q) if isinstance(it, tuple) and it[2].startswith("V")] + [1 if (sideW.q and isinstance(sideW.q[0], tuple)) else 0])
            sideW.q = sideW.q[:idx] + kpl + sideW.q[idx:]; sideW.vm_gap = KPGAP
        if ASY and s == CK0:
            e("v_mov_b32 v240, 0"); vm.issue("buffer_load_dword v241, v240, s[12:15], s45 offen sc1", "cnt")
        if ASY and s == CK1:
            vm.wait("cnt"); e("v_readfirstlane_b32 s43, v241"); e("s_cmp_lt_u32 s43, 16"); e(f"s_cbranch_scc1 {name}_cw")
            a.label(f"{name}_cwd")
            while sideW.q and not isinstance(sideW.q[0], tuple) and " m0," not in sideW.q[0]: e(sideW.q.pop(0))
            k = 1 if (sideW.q and isinstance(sideW.q[0], tuple)) else 0
            sideW.q = sideW.q[:k] + kpl + sideW.q[k:]; sideW.vm_gap = KPGAP
    gemm3(a, B2S or 20, [3, 4], lambda s, T: (6, s*2048 + (T-3)*1024), accB, B2r, X, True, [sideW, sideS], None, preB2, slots=SLB, wait_every=WE, marks0=mB2)
    assert state["sig"]
    st.mark("B2")
    rest = Rec(); rest.items += sideS.q; sideS.q = []
    softmax_l4_b(rest, KQ, EE, 200, PP, ratio=True)
    if not ASY and not SENT:
        for it in rest.items[:PREW]: e(it)
        rest.items = rest.items[PREW:]
        wait_cnt(a, "s45", 16, f"{name}_w1")
        pend = list(kpl); wleft = list(sideW.q); vm.q = []
    else:
        pend = list(sideW.q); wleft = []
    sideW.q = []
    lateW = []
    for s2 in range(12, 20): lateW += w_items(s2, -61440 if B2S else 0, "s[52:55]", lambda s: f"w{s//4}")
    if LW:
        e("s_barrier"); pend += lateW; lateW = []
    wq = []
    if B2S:
        kpi = max([i + 1 for i, it in enumerate(pend) if isinstance(it, tuple) and it[2].startswith("kp")] + [1 if (pend and isinstance(pend[0], tuple)) else 0])
        wq = pend[kpi:] + lateW; pend = pend[:kpi]; lateW = []
        def take(n):
            out = []
            while wq and n > 0:
                it = wq.pop(0); out.append(it)
                if isinstance(it, tuple): n -= 1
            return out
        pend += take(NPE)
    st.mark("kvwait")
    later = wleft + [f"s_add_u32 s3, s46, {XIN_OFF[0]}",
             ("VM", "buffer_load_dwordx4 v[224:227], v236, s[12:15], s3 offen", "res", []),
             ("VM", "buffer_load_dwordx4 v[228:231], v237, s[12:15], s3 offen", "res", []),
             ("VM", "buffer_load_dwordx2 v[232:233], v238, s[12:15], s3 offen", "res", [])]
    later += ["v_and_b32 v234, 15, v1", "v_lshlrev_b32 v234, 7, v234", f"s_mov_b32 s47, {CNT_OFF[0]}",
              ("VM", "buffer_load_dword v235, v234, s[12:15], s47 offen sc1", "res", [])]
    def sum_mf(R, h):
        d = 144 + 4*h; c = "0" if R == 0 else f"v[{d}:{d+3}]"
        return f"v_mfma_f32_16x16x32_bf16 v[{d}:{d+3}], v[{210-2*h}:{213-2*h}], v[{KP(R)}:{KP(R)+3}], {c}"
    def sum_head(G):
        vm.wait(f"kp{G}")
        if SENT and not KNAN:
            for it in kp_check(G): e(it)
            e(f"s_cbranch_vccnz {name}_kr{G}"); a.label(f"{name}_kc{G}")
    if SUMPOS is None:
        sprinkle(a, vm, rest.items + sel.items, pend, LDEV)
        st.mark("epiB")
        for R in range(16):
            if R % 4 == 0: sum_head(R // 4)
            for h in range(2): e(sum_mf(R, h))
    else:
        items = sel.items + rest.items; mfq = []; nxt = 0; cnt = 0
        for i, it in enumerate(items):
            if nxt < 4 and i >= SUMPOS[nxt] and not mfq and not any(isinstance(p, tuple) and p[2] == f"kp{nxt}" for p in pend):
                sum_head(nxt); mfq = [sum_mf(R, h) for R in range(4*nxt, 4*nxt + 4) for h in range(2)]; nxt += 1
            if mfq and i % MFR == 0: e(mfq.pop(0))
            e(it)
            if i % LDEV == LDEV - 1 and pend:
                while pend:
                    p = pend.pop(0)
                    if isinstance(p, tuple): vm.issue(p[1], p[2]); break
                    e(p)
        emit_now(a, vm, pend); pend.clear()
        st.mark("epiB")
        for m in mfq: e(m)
        while nxt < 4:
            sum_head(nxt)
            for R in range(4*nxt, 4*nxt + 4):
                for h in range(2): e(sum_mf(R, h))
            nxt += 1
    if SENT and KNAN:
        e("v_cmp_u_f32 vcc, v144, v148"); e(f"s_cbranch_vccnz {name}_kn"); a.label(f"{name}_knd")
    for q in range(4): e(f"v_cvt_pk_bf16_f32 v{208+q}, v{144+2*q}, v{145+2*q}")
    e("v_cmp_gt_u32 vcc, 252, v0"); e("s_and_saveexec_b64 s[40:41], vcc")
    e("ds_write_b128 v252, v[208:211]")
    e("s_mov_b64 exec, s[40:41]")
    emit_now(a, vm, later)
    if EARLYW: emit_now(a, vm, lateW); lateW = []
    e("s_waitcnt lgkmcnt(0)"); e("s_barrier")
    if not fine: st.mark("kvsum")
    for Tp in (2, 0, 1):
        for ch in range(3):
            rr = 16 + 12*Tp + 4*ch
            if Tp < 2: e(f"ds_read_b128 v[{rr}:{rr+3}], v253 offset:{Tp*384 + ch*16}")
            else: e(f"ds_read_b128 v[{rr}:{rr+3}], v249 offset:{ch*16}")
    def t4mf(tt, Tp, ch):
        rr = 16 + 12*Tp + 4*ch; d = 56 + 12*tt + 4*Tp
        c = "0" if ch == 0 else f"v[{d}:{d+3}]"
        return f"v_mfma_f32_16x16x32_bf16 v[{d}:{d+3}], v[{rr}:{rr+3}], v[{PP[tt]+4*ch}:{PP[tt]+4*ch+3}], {c}"
    def t4epi(tt):
        ob = 56 + 12*tt; it = []
        for u in range(10): it.append(f"v_mul_f32 v{ob+u}, v{80+tt}, v{ob+u}")
        for q in range(4): it.append(f"v_cvt_pk_bf16_f32 v{156+4*tt+q}, v{ob+2*q}, v{ob+2*q+1}")
        it.append(f"v_cvt_pk_bf16_f32 v{164+tt}, v{ob+8}, v{ob+9}")
        return it
    if T4O:
        e(f"s_add_u32 s3, s46, {O_OFF[0]}")
        t4q = take(NPT) if B2S else []
        def t4load():
            while t4q:
                p = t4q.pop(0)
                if isinstance(p, tuple): vm.issue(p[1], p[2]); break
                e(p)
        for i, Tp in enumerate((2, 0, 1)):
            e(f"s_waitcnt lgkmcnt({6 - 3*i})")
            for ch in range(3):
                e(t4mf(0, Tp, ch))
                if ch != 1: t4load()
        mf1 = [t4mf(1, Tp, ch) for Tp in (2, 0, 1) for ch in range(3)]
        ep0 = ["v_fmac_f32 v66, 0x358637bd, v204", "v_rcp_f32 v80, v66"] + t4epi(0)
        for i, m in enumerate(mf1):
            e(m)
            if i >= 1:
                for it in ep0[:2]: e(it)
                ep0 = ep0[2:]
            if i == 4: e("v_fmac_f32 v78, 0x358637bd, v205"); e("v_rcp_f32 v81, v78")
            if i % 3 == 0: t4load()
        for it in ep0: e(it)
        while t4q: t4load()
        vm.issue("buffer_store_dwordx4 v[156:159], v236, s[12:15], s3 offen sc1", "ost")
        for it in t4epi(1): e(it)
        vm.issue("buffer_store_dwordx4 v[160:163], v237, s[12:15], s3 offen sc1", "ost")
        e("v_permlane16_swap_b32 v164, v165")
        vm.issue("buffer_store_dwordx2 v[164:165], v238, s[12:15], s3 offen sc1", "ost")
    else:
        for i, Tp in enumerate((2, 0, 1)):
            e(f"s_waitcnt lgkmcnt({6 - 3*i})")
            for ch in range(3):
                rr = 16 + 12*Tp + 4*ch
                for tt in range(2):
                    d = 56 + 12*tt + 4*Tp
                    c = "0" if ch == 0 else f"v[{d}:{d+3}]"
                    e(f"v_mfma_f32_16x16x32_bf16 v[{d}:{d+3}], v[{rr}:{rr+3}], v[{PP[tt]+4*ch}:{PP[tt]+4*ch+3}], {c}")
            if i == 1:
                e("v_fmac_f32 v66, 0x358637bd, v204"); e("v_fmac_f32 v78, 0x358637bd, v205"); e("v_rcp_f32 v80, v66"); e("v_rcp_f32 v81, v78")
        for tt in range(2):
            sel = "op_sel_hi:[1,0]" if tt == 0 else "op_sel:[0,1] op_sel_hi:[1,1]"
            ob = 56 + 12*tt
            for u in range(0, 10, 2): e(f"v_pk_mul_f32 v[{ob+u}:{ob+u+1}], v[{ob+u}:{ob+u+1}], v[80:81] {sel}")
            for q in range(4): e(f"v_cvt_pk_bf16_f32 v{156+4*tt+q}, v{ob+2*q}, v{ob+2*q+1}")
            e(f"v_cvt_pk_bf16_f32 v{164+tt}, v{ob+8}, v{ob+9}")
        e(f"s_add_u32 s3, s46, {O_OFF[0]}")
        vm.issue("buffer_store_dwordx4 v[156:159], v236, s[12:15], s3 offen sc1", "ost")
        e("v_permlane16_swap_b32 v164, v165")
        vm.issue("buffer_store_dwordx4 v[160:163], v237, s[12:15], s3 offen sc1", "ost")
        vm.issue("buffer_store_dwordx2 v[164:165], v238, s[12:15], s3 offen sc1", "ost")
    st.mark("T4")
    vm.wait("res")
    e("v_permlane16_swap_b32 v232, v233")
    for tt in range(2):
        for q in range(4):
            e(f"v_lshlrev_b32 v{96+20*tt+2*q}, 16, v{224+4*tt+q}"); e(f"v_and_b32 v{97+20*tt+2*q}, 0xffff0000, v{224+4*tt+q}")
        e(f"v_lshlrev_b32 v{104+20*tt}, 16, v{232+tt}"); e(f"v_and_b32 v{105+20*tt}, 0xffff0000, v{232+tt}")
    if B2S:
        sideX = Side(a, vm, 2); sideX.add(wq); wq = []
        gemm3(a, 20, [3, 4], lambda s, T: (6, s*2048 + (T-3)*1024), accB, B2, X, True, [sideX], None, None, wait_every=WE, s0=B2S)
        sideX.flush()
        st.mark("B2b")
    else:
        e("s_waitcnt vmcnt(3)"); e("s_barrier")
        vm.q = ["ost"] * 3
    e("v_cmp_gt_u32 vcc, 16, v235"); e(f"s_cbranch_vccnz {name}_gw")
    a.label(f"{name}_gwd")
    if not LWS: emit_now(a, vm, lateW); lateW = []
    st.mark("owait")
    e(f"s_add_u32 s19, s44, {O_OFF[0]}")
    e("s_add_u32 s4, s12, s19"); e("s_addc_u32 s5, s13, 0")
    if T5N:
        e("s_mov_b32 s33, 0")
        a.label(f"{name}_t5")
    e("s_mov_b32 s20, 0"); e(f"s_mov_b32 s35, {AF_WT}")
    osc = " sc1" if OSC else ""
    if OSC == "lead":
        assert T5N >= LEAD5
        osc = " sc1"
    for s in range(LEAD5): emit_now(a, vm, x_items(X, s, extra="" if OSC == "lead" else osc))
    sideO = Side(a, vm, GAP5 or VMGAP)
    for s in range(LEAD5, 20):
        sideO.add(x_items(X, s, extra=osc))
        if LWS and lateW and s >= LWS:
            sideO.add(lateW[:4]); lateW = lateW[4:]
    assert not lateW
    stubs = []
    def check_items(s):
        b0, b1 = (2*s)*4, (2*s+1)*4
        return [f"v_accvgpr_read_b32 v8, a{b0}", f"v_accvgpr_read_b32 v9, a{b0+2}", f"v_accvgpr_read_b32 v10, a{b1}", f"v_accvgpr_read_b32 v11, a{b1+2}",
                "v_max_u32 v8, v8, v9", "v_max3_u32 v8, v8, v10, v11", "v_cmp_eq_u32 vcc, -1, v8"]
    def branch(s):
        e(f"s_cbranch_vccnz {name}_rt{s}")
        a.label(f"{name}_c{s}")
        pendt = {i[2] for i in sideO.q if isinstance(i, tuple) and i[0] == "VM"}
        stubs.append((s, [s2 for s2 in range(s, 20) if f"s{s2}" not in pendt]))
    sideC = Side(a, vm, VMGAP)
    m5 = None
    if PRO & 1:
        for T in range(5): e(f"ds_read_b128 v[{16 + 4*T}:{19 + 4*T}], v7 offset:{T*1024}")
        m5 = a.nds
    vm.wait("s0")
    for it in check_items(0): e(it)
    branch(0)
    if B2S:
        e("s_cmp_lg_u32 s33, 0"); e(f"s_cbranch_scc1 {name}_nob0")
        e("s_barrier")
        a.label(f"{name}_nob0")
    def lds5(s, T):
        off = (s*5+T)*1024
        return (7, off) if s < 12 else ((5, off - 61440) if B2S else (6, off - UREG))
    def pre5(s):
        if only and s in (0, 1, 2, 3, 4, 6, 8, 10, 12, 14, 16, 18): st.mark(f"T5s{s}")
        if s == B5 and not B2S:
            if LWS:
                force(sideO, vm, "w4")
                if "w4" in vm.q: vm.wait("w4")
            if T5N: e("s_cmp_lg_u32 s33, 0"); e(f"s_cbranch_scc1 {name}_nob")
            e("s_barrier")
            if T5N: a.label(f"{name}_nob")
        if s > 0 and (not T5N or s < T5N):
            sideC.flush(); branch(s)
    def mid5(s, i):
        if i == 4 and s + 1 < 20:
            force(sideO, vm, f"s{s+1}")
            if f"s{s+1}" in vm.q: vm.wait(f"s{s+1}")
            if not T5N or s + 1 < T5N: sideC.add(check_items(s + 1))
    accN = (lambda tt, T: 56 + 20*tt + 4*T) if T5N else accB
    gemm2(a, 20, lds5, accN, (16, 36), X, False, [sideC, sideO], None, pre5, mid=mid5, c0=accB if T5N else None, mark0=m5)
    if T5N:
        e("v_cmp_u_f32 vcc, v56, v76"); e(f"s_cbranch_vccnz {name}_t5r")
        a.label(f"{name}_t5d")
    AB = 56 if T5N else 96; XP = 96 if T5N else 56; RD = 110 if T5N else 76
    st.mark("T5")
    if EP5 == 2:
        wt = " sc1" if WT else ""
        for q in range(10):
            e(f"v_cvt_pk_bf16_f32 v{56+q}, v{106+q}, v{126+q}")
            if q: e(f"ds_write_b32 v254, v{55+q} offset:{(q-1)*512}")
        for tt in range(2):
            b = 96 + 20*tt; s_ = 136 + 4*tt
            e(f"v_pk_mul_f32 v[{s_+2}:{s_+3}], v[{b}:{b+1}], v[{b}:{b+1}]"); e(f"v_pk_add_f32 v[{s_}:{s_+1}], v[{b}:{b+1}], v[{b+2}:{b+3}]")
            if tt == 0: e("ds_write_b32 v254, v65 offset:4608")
            e(f"v_pk_fma_f32 v[{s_+2}:{s_+3}], v[{b+2}:{b+3}], v[{b+2}:{b+3}], v[{s_+2}:{s_+3}]")
            for u in range(4, 10, 2):
                e(f"v_pk_add_f32 v[{s_}:{s_+1}], v[{s_}:{s_+1}], v[{b+u}:{b+u+1}]"); e(f"v_pk_fma_f32 v[{s_+2}:{s_+3}], v[{b+u}:{b+u+1}], v[{b+u}:{b+u+1}], v[{s_+2}:{s_+3}]")
        for tt in range(2):
            s_ = 136 + 4*tt
            e(f"v_add_f32 v{s_}, v{s_}, v{s_+1}"); e(f"v_add_f32 v{s_+2}, v{s_+2}, v{s_+3}")
        e("s_waitcnt lgkmcnt(0)"); e("s_barrier")
        for rr in range(3): e(f"ds_read_b128 v[{76+4*rr}:{79+4*rr}], v239 offset:{4096*rr}")
        e("v_permlane32_swap_b32 v136, v140"); e("v_permlane32_swap_b32 v138, v142")
        e("s_add_u32 s34, s59, 8192")
        e("v_add_f32 v136, v136, v140"); e("v_add_f32 v138, v138, v142")
        e("v_mov_b32 v140, v136"); e("v_mov_b32 v141, v138")
        e("v_permlane16_swap_b32 v136, v140"); e("v_permlane16_swap_b32 v138, v141")
        e("v_add_f32 v136, v136, v140"); e("v_add_f32 v138, v138, v141")
        e("buffer_atomic_add_f32 v136, v242, s[12:15], s59 offen")
        e("buffer_atomic_add_f32 v138, v242, s[12:15], s34 offen")
        e("s_waitcnt lgkmcnt(2)"); e("buffer_store_dwordx4 v[76:79], v255, s[12:15], s60 offen" + wt); e("s_add_u32 s60, s60, 65536")
        for q in range(4): e(f"v_cvt_pk_bf16_f32 v{156+q}, v{96+2*q}, v{97+2*q}")
        e("s_waitcnt lgkmcnt(1)"); e("buffer_store_dwordx4 v[80:83], v255, s[12:15], s60 offen" + wt); e("s_add_u32 s60, s60, 65536")
        for q in range(4): e(f"v_cvt_pk_bf16_f32 v{160+q}, v{116+2*q}, v{117+2*q}")
        e("s_waitcnt lgkmcnt(0)"); e("buffer_store_dwordx4 v[84:87], v243, s[12:15], s60 offen" + wt)
        e(f"s_add_u32 s3, s46, {X1_OFF[0]}")
        e("v_cvt_pk_bf16_f32 v164, v104, v105"); e("v_cvt_pk_bf16_f32 v165, v124, v125")
        e("buffer_store_dwordx4 v[156:159], v236, s[12:15], s3 offen" + wt)
        e("v_permlane16_swap_b32 v164, v165")
        e("buffer_store_dwordx4 v[160:163], v237, s[12:15], s3 offen" + wt)
        e("buffer_store_dwordx2 v[164:165], v238, s[12:15], s3 offen" + wt)
    elif EP5:
        wt = " sc1" if WT else ""
        for q in range(10):
            e(f"v_cvt_pk_bf16_f32 v{56+q}, v{106+q}, v{126+q}")
            if q: e(f"ds_write_b32 v254, v{55+q} offset:{(q-1)*512}")
        for tt in range(2):
            b = 96 + 20*tt
            for q in range(4): e(f"v_cvt_pk_bf16_f32 v{156+4*tt+q}, v{b+2*q}, v{b+2*q+1}")
            if tt == 0: e("ds_write_b32 v254, v65 offset:4608")
            e(f"v_cvt_pk_bf16_f32 v{164+tt}, v{b+8}, v{b+9}")
        e(f"s_add_u32 s3, s46, {X1_OFF[0]}")
        e("buffer_store_dwordx4 v[156:159], v236, s[12:15], s3 offen" + wt)
        e("v_permlane16_swap_b32 v164, v165")
        e("buffer_store_dwordx4 v[160:163], v237, s[12:15], s3 offen" + wt)
        e("s_waitcnt lgkmcnt(0)"); e("s_barrier")
        for rr in range(3): e(f"ds_read_b128 v[{76+4*rr}:{79+4*rr}], v239 offset:{4096*rr}")
        e("buffer_store_dwordx2 v[164:165], v238, s[12:15], s3 offen" + wt)
        for tt in range(2):
            b = 96 + 20*tt; s_ = 136 + 4*tt
            e(f"v_pk_mul_f32 v[{s_+2}:{s_+3}], v[{b}:{b+1}], v[{b}:{b+1}]"); e(f"v_pk_add_f32 v[{s_}:{s_+1}], v[{b}:{b+1}], v[{b+2}:{b+3}]")
            e(f"v_pk_fma_f32 v[{s_+2}:{s_+3}], v[{b+2}:{b+3}], v[{b+2}:{b+3}], v[{s_+2}:{s_+3}]")
            if tt == 0:
                e("s_waitcnt lgkmcnt(2)"); e("buffer_store_dwordx4 v[76:79], v255, s[12:15], s60 offen" + wt); e("s_add_u32 s60, s60, 65536")
            for u in range(4, 10, 2):
                e(f"v_pk_add_f32 v[{s_}:{s_+1}], v[{s_}:{s_+1}], v[{b+u}:{b+u+1}]"); e(f"v_pk_fma_f32 v[{s_+2}:{s_+3}], v[{b+u}:{b+u+1}], v[{b+u}:{b+u+1}], v[{s_+2}:{s_+3}]")
            if tt == 0:
                e("s_waitcnt lgkmcnt(1)"); e("buffer_store_dwordx4 v[80:83], v255, s[12:15], s60 offen" + wt); e("s_add_u32 s60, s60, 65536")
        e("s_waitcnt lgkmcnt(0)"); e("buffer_store_dwordx4 v[84:87], v243, s[12:15], s60 offen" + wt)
        for tt in range(2):
            s_ = 136 + 4*tt
            e(f"v_add_f32 v{s_}, v{s_}, v{s_+1}"); e(f"v_add_f32 v{s_+2}, v{s_+2}, v{s_+3}")
        e("v_permlane32_swap_b32 v136, v140"); e("v_permlane32_swap_b32 v138, v142")
        e("s_add_u32 s34, s59, 8192")
        e("v_add_f32 v136, v136, v140"); e("v_add_f32 v138, v138, v142")
        e("v_mov_b32 v140, v136"); e("v_mov_b32 v141, v138")
        e("v_permlane16_swap_b32 v136, v140"); e("v_permlane16_swap_b32 v138, v141")
        e("v_add_f32 v136, v136, v140"); e("v_add_f32 v138, v138, v141")
        e("buffer_atomic_add_f32 v136, v242, s[12:15], s59 offen")
        e("buffer_atomic_add_f32 v138, v242, s[12:15], s34 offen")
    else:
        wt = " sc1" if WT else ""
        for tt in range(2):
            b = AB + 20*tt; s_ = 136 + 4*tt
            e(f"v_pk_mul_f32 v[{s_+2}:{s_+3}], v[{b}:{b+1}], v[{b}:{b+1}]"); e(f"v_pk_add_f32 v[{s_}:{s_+1}], v[{b}:{b+1}], v[{b+2}:{b+3}]")
            e(f"v_pk_fma_f32 v[{s_+2}:{s_+3}], v[{b+2}:{b+3}], v[{b+2}:{b+3}], v[{s_+2}:{s_+3}]")
            for u in range(4, 10, 2):
                e(f"v_pk_add_f32 v[{s_}:{s_+1}], v[{s_}:{s_+1}], v[{b+u}:{b+u+1}]"); e(f"v_pk_fma_f32 v[{s_+2}:{s_+3}], v[{b+u}:{b+u+1}], v[{b+u}:{b+u+1}], v[{s_+2}:{s_+3}]")
        for tt in range(2):
            s_ = 136 + 4*tt
            e(f"v_add_f32 v{s_}, v{s_}, v{s_+1}"); e(f"v_add_f32 v{s_+2}, v{s_+2}, v{s_+3}")
        for tt in range(2):
            b = AB + 20*tt
            for q in range(4): e(f"v_cvt_pk_bf16_f32 v{156+4*tt+q}, v{b+2*q}, v{b+2*q+1}")
            e(f"v_cvt_pk_bf16_f32 v{164+tt}, v{b+8}, v{b+9}")
        e("v_permlane32_swap_b32 v136, v140"); e("v_permlane32_swap_b32 v138, v142")
        e(f"s_add_u32 s3, s46, {X1_OFF[0]}")
        e("buffer_store_dwordx4 v[156:159], v236, s[12:15], s3 offen" + wt)
        e("v_add_f32 v136, v136, v140"); e("v_add_f32 v138, v138, v142")
        e("v_permlane16_swap_b32 v164, v165")
        e("buffer_store_dwordx4 v[160:163], v237, s[12:15], s3 offen" + wt)
        e("v_mov_b32 v140, v136"); e("v_mov_b32 v141, v138"); e("s_add_u32 s34, s59, 8192")
        e("buffer_store_dwordx2 v[164:165], v238, s[12:15], s3 offen" + wt)
        e("v_permlane16_swap_b32 v136, v140"); e("v_permlane16_swap_b32 v138, v141")
        for q in range(10): e(f"v_cvt_pk_bf16_f32 v{XP+q}, v{AB+10+q}, v{AB+30+q}")
        e("v_add_f32 v136, v136, v140"); e("v_add_f32 v138, v138, v141")
        for q in range(10): e(f"ds_write_b32 v254, v{XP+q} offset:{q*(544 if XBP else 512)}")
        if XBP: e("v_cmp_lt_u32 vcc, 63, v0"); e("v_cndmask_b32 v234, 0, 32, vcc"); e("v_add_u32 v234, v234, v239")
        e("buffer_atomic_add_f32 v136, v242, s[12:15], s59 offen")
        e("buffer_atomic_add_f32 v138, v242, s[12:15], s34 offen")
        e("s_waitcnt lgkmcnt(0)"); e("s_barrier")
        for rr in range(3):
            if XBP: e(f"ds_read_b128 v[{RD+4*rr}:{RD+3+4*rr}], v{234 if rr == 1 else 239} offset:{4352*rr + (32 if rr == 2 else 0)}")
            else: e(f"ds_read_b128 v[{RD+4*rr}:{RD+3+4*rr}], v239 offset:{4096*rr}")
        e("s_waitcnt lgkmcnt(2)")
        e(f"buffer_store_dwordx4 v[{RD}:{RD+3}], v255, s[12:15], s60 offen" + wt)
        e("s_add_u32 s60, s60, 65536"); e("s_waitcnt lgkmcnt(1)")
        e(f"buffer_store_dwordx4 v[{RD+4}:{RD+7}], v255, s[12:15], s60 offen" + wt)
        e("s_add_u32 s60, s60, 65536"); e("s_waitcnt lgkmcnt(0)")
        e(f"buffer_store_dwordx4 v[{RD+8}:{RD+11}], v243, s[12:15], s60 offen" + wt)
    if not fine: st.mark("epi5")
    if stamps: e("s_waitcnt vmcnt(0)"); st.mark("drain")
    st.extra = ["s57", "s58"]
    if stamps:
        e("s_cmp_eq_u32 s32, 0"); e("s_cselect_b32 s33, 0, 262144"); e("s_add_u32 s30, s30, s33"); e("s_addc_u32 s31, s31, 0")
    st.flush(30, 31, 18)
    a.label(f"{name}_end")
    e("s_endpgm")
    if ASY:
        a.label(f"{name}_cw")
        e(f"s_mov_b32 s42, {1 << 16}")
        a.label(f"{name}_cwl")
        if stamps: e("s_add_u32 s57, s57, 1"); e(f"s_or_b32 s58, s58, {1 << 19}")
        e("buffer_load_dword v241, v240, s[12:15], s45 offen sc1"); e("s_waitcnt vmcnt(0)")
        e("v_readfirstlane_b32 s43, v241"); e("s_cmp_ge_u32 s43, 16"); e(f"s_cbranch_scc1 {name}_cwd")
        e("s_sub_u32 s42, s42, 1"); e("s_cmp_lg_u32 s42, 0"); e(f"s_cbranch_scc1 {name}_cwl")
        e(f"s_branch {name}_cwd")
    if T5N:
        a.label(f"{name}_t5r")
        if stamps: e("s_add_u32 s57, s57, 1"); e(f"s_or_b32 s58, s58, {1 << 15}")
        e("s_add_u32 s33, s33, 1"); e(f"s_cmp_ge_u32 s33, {1 << 10}"); e(f"s_cbranch_scc1 {name}_t5d")
        e("s_waitcnt vmcnt(0)"); e(f"s_branch {name}_t5")
    if SENT and KNAN:
        a.label(f"{name}_kn")
        e(f"s_mov_b32 s42, {1 << 14}")
        a.label(f"{name}_knl")
        if stamps: e("s_add_u32 s57, s57, 1"); e(f"s_or_b32 s58, s58, {1 << 16}")
        for R in range(16):
            e(f"s_sub_u32 s47, s61, {(15 - R) * KVP_ST}")
            e(f"buffer_load_dwordx4 v[{KP(R)}:{KP(R)+3}], v250, s[12:15], s47 offen sc1")
        e("s_waitcnt vmcnt(0)")
        for R in range(16):
            for h in range(2): e(sum_mf(R, h))
        e("v_cmp_u_f32 vcc, v144, v148"); e(f"s_cbranch_vccz {name}_knd")
        e("s_sub_u32 s42, s42, 1"); e("s_cmp_lg_u32 s42, 0"); e(f"s_cbranch_scc1 {name}_knl")
        e(f"s_branch {name}_knd")
    if SENT and not KNAN:
        for G in range(4):
            a.label(f"{name}_kr{G}")
            e(f"s_mov_b32 s42, {1 << 14}")
            a.label(f"{name}_kl{G}")
            if stamps: e("s_add_u32 s57, s57, 1"); e(f"s_or_b32 s58, s58, {1 << (16 + G)}")
            for R in range(4*G, 4*G + 4):
                e(f"s_sub_u32 s47, s61, {(15 - R) * KVP_ST}")
                e(f"buffer_load_dwordx4 v[{KP(R)}:{KP(R)+3}], v250, s[12:15], s47 offen sc1")
            e("s_waitcnt vmcnt(0)")
            for it in kp_check(G): e(it)
            e(f"s_cbranch_vccz {name}_kc{G}")
            e("s_sub_u32 s42, s42, 1"); e("s_cmp_lg_u32 s42, 0"); e(f"s_cbranch_scc1 {name}_kl{G}")
            e(f"s_branch {name}_kc{G}")
    a.label(f"{name}_gw")
    e(f"s_mov_b32 s42, {1 << 16}"); e(f"s_mov_b32 s47, {CNT_OFF[0]}")
    a.label(f"{name}_gwl")
    e("buffer_load_dword v235, v234, s[12:15], s47 offen sc1"); e("s_waitcnt vmcnt(0)")
    e("v_cmp_gt_u32 vcc, 16, v235"); e(f"s_cbranch_vccz {name}_gwd")
    e("s_sub_u32 s42, s42, 1"); e("s_cmp_lg_u32 s42, 0"); e(f"s_cbranch_scc1 {name}_gwl")
    e(f"s_branch {name}_gwd")
    for s, lst in stubs:
        a.label(f"{name}_rt{s}")
        e(f"s_mov_b32 s42, {1 << 14}")
        a.label(f"{name}_rl{s}")
        if stamps: e(f"s_add_u32 s57, s57, 1"); e(f"s_or_b32 s58, s58, {1 << s}")
        if not RL: e("s_waitcnt vmcnt(0)")
        for s2 in (lst[:RL] if RL else lst):
            e(f"s_mov_b32 s47, {s2*1024}"); e(f"s_mov_b32 s43, {AF_WT + s2*1024}")
            e(f"buffer_load_dwordx4 {X(0,s2)}, v5, s[4:7], s47 offen sc1")
            e(f"buffer_load_dwordx4 {X(1,s2)}, v5, s[4:7], s43 offen sc1")
        e("s_waitcnt vmcnt(0)")
        for it in check_items(s): e(it)
        e(f"s_cbranch_vccz {name}_c{s}")
        e("s_sub_u32 s42, s42, 1"); e("s_cmp_lg_u32 s42, 0"); e(f"s_cbranch_scc1 {name}_rl{s}")
        e(f"s_branch {name}_c{s}")
    gen_kA.names = st.names
    ent = lambda L: kernel_header(f"{name}l{L}_kernel") + f"    s_mov_b32 s32, {L*LSTRIDE}\n    s_branch {name}_body\n"
    desc = "".join(kernel_desc(f"{name}l{L}_kernel", 256, 160, 102 if stamps else 72) for L in range(2))
    pad = "    s_nop 0\n" * PADN
    return ent(1) + ent(0).replace(f"    s_branch {name}_body\n", pad) + a.text() + desc
```

```python
from gen_best import *
W = "work/"
build_v12(W + "u1s.s", stamps=True, k0kw=K0B, **{**BEST, "CM": True})
build_v12(W + "u1.s", k0kw=K0B, **{**BEST, "CM": True})
build_v12(W + "u2s.s", stamps=True, k0kw=K0B, **{**BEST, "CM": True, "TSL": 3, "TSN": 3})
```

```python
import re

TRANS = ("v_exp_f32", "v_log_f32", "v_rcp_f32", "v_rsq_f32", "v_sqrt_f32", "v_sin_f32", "v_cos_f32", "v_rcp_iflag_f32")
REG_RE = re.compile(r"(?<![\w.])([vas])(\d+)(?![\w\[])|(?<![\w.])([vas])\[(\d+):(\d+)\]|(?<![\w.])(vcc|exec|m0|scc)(_lo|_hi)?(?![\w])")

def regs_of(tok):
    out = []
    for m in REG_RE.finditer(tok):
        if m.group(1): out.append((m.group(1), int(m.group(2))))
        elif m.group(3):
            for i in range(int(m.group(4)), int(m.group(5)) + 1): out.append((m.group(3), i))
        else:
            nm = m.group(6)
            if nm == "vcc":
                if m.group(7) == "_lo": out.append(("s", 106))
                elif m.group(7) == "_hi": out.append(("s", 107))
                else: out += [("s", 106), ("s", 107)]
            elif nm == "exec": out += [("x", 0)]
            elif nm == "m0": out.append(("m", 0))
    return out

def split_ops(s):
    ops, depth, cur = [], 0, ""
    for ch in s:
        if ch == "[" or ch == "(": depth += 1
        if ch == "]" or ch == ")": depth -= 1
        if ch == "," and depth == 0: ops.append(cur.strip()); cur = ""
        else: cur += ch
    if cur.strip(): ops.append(cur.strip())
    return ops

class Inst:
    __slots__ = ("text", "op", "cls", "wr", "rd", "states", "passes", "srcc", "store_data", "isdpp", "lds_dma", "mask_rd", "sgpr_valu_wr", "ab")
    def __init__(self, text):
        self.text = text
        t = text.split(";")[0].strip()
        parts = t.split(None, 1)
        self.op = op = parts[0]
        rest = parts[1] if len(parts) > 1 else ""
        ops = split_ops(rest)
        self.wr, self.rd = [], []
        self.states = 1; self.passes = 0; self.srcc = []; self.store_data = []; self.ab = []
        self.isdpp = ("row_" in rest or "quad_perm" in rest or "wave_" in rest or "dpp" in op)
        self.lds_dma = False; self.mask_rd = []; self.sgpr_valu_wr = []
        R = lambda i: regs_of(ops[i].split(" ")[0] if i == len(ops) - 1 else ops[i]) if i < len(ops) else []
        if op == "s_nop":
            self.cls = "nop"; self.states = int(ops[0], 0) + 1
        elif op.startswith("v_mfma"):
            self.cls = "mfma"; self.wr = R(0); self.ab = R(1) + R(2); self.srcc = R(3); self.rd = self.ab + self.srcc
            self.passes = 8 if "32x32" in op else 4
        elif op.startswith("v_"):
            self.cls = "trans" if op.replace("_e32", "").replace("_e64", "") in TRANS else "valu"
            base = op.replace("_e32", "").replace("_e64", "")
            if base.startswith("v_cmp"):
                self.wr = R(0); self.rd = R(1) + R(2)
            elif base.startswith("v_permlane") and "swap" in base:
                self.wr = R(0) + R(1); self.rd = R(0) + R(1)
            elif base in ("v_readfirstlane_b32", "v_readlane_b32"):
                self.wr = R(0); self.rd = sum((R(i) for i in range(1, len(ops))), [])
            elif base in ("v_add_co_u32", "v_sub_co_u32", "v_addc_co_u32", "v_subb_co_u32", "v_mad_u64_u32"):
                self.wr = R(0) + R(1); self.rd = sum((R(i) for i in range(2, len(ops))), [])
            else:
                self.wr = R(0); self.rd = sum((R(i) for i in range(1, len(ops))), [])
                if base.startswith("v_fmac") or base.startswith("v_pk_fmac") or base.startswith("v_dot2c") or base in ("v_writelane_b32",): self.rd += R(0)
                if base == "v_cndmask_b32":
                    if len(ops) == 3: self.rd += [("s", 106), ("s", 107)]; self.mask_rd = [("s", 106), ("s", 107)]
                    else: self.mask_rd = R(3)
            self.sgpr_valu_wr = [r for r in self.wr if r[0] == "s"]
        elif op.startswith("ds_"):
            self.cls = "ds"
            if op.startswith("ds_read") or op.startswith("ds_bpermute") or op.startswith("ds_permute") or op.startswith("ds_swizzle"):
                self.wr = R(0); self.rd = sum((R(i) for i in range(1, len(ops))), [])
            else:
                self.rd = sum((R(i) for i in range(len(ops))), [])
        elif op.startswith("buffer_") or op.startswith("global_"):
            self.cls = "vmem"
            words = rest.replace(",", " ").split()
            islds = ("lds" in words) or ("_lds_" in op)
            allr = sum((R(i) for i in range(len(ops))), [])
            if op in ("buffer_wbl2", "buffer_inv"): pass
            elif islds:
                self.lds_dma = True; self.rd = allr + [("m", 0)]
            elif "_load" in op:
                self.wr = R(0); self.rd = sum((R(i) for i in range(1, len(ops))), [])
            elif "_store" in op:
                self.rd = allr
                d = R(0) if op.startswith("buffer_") else R(1)
                if "x4" in op or "x3" in op: self.store_data = d
            elif "_atomic" in op:
                self.rd = allr
                if "sc0" in words: self.wr = R(0)
        elif op.startswith("s_"):
            self.cls = "salu"
            if op.startswith(("s_waitcnt", "s_barrier", "s_branch", "s_cbranch", "s_endpgm", "s_setprio", "s_sleep")):
                self.cls = "sctl"
            elif op.startswith("s_cmp"):
                self.rd = sum((R(i) for i in range(len(ops))), [])
            elif op.startswith("s_load") or op.startswith("s_memtime") or op.startswith("s_memrealtime") or op.startswith("s_getreg") or op.startswith("s_getpc"):
                self.wr = R(0); self.rd = sum((R(i) for i in range(1, len(ops))), [])
            else:
                self.wr = R(0); self.rd = sum((R(i) for i in range(1, len(ops))), [])
                if "saveexec" in op: self.wr += [("x", 0)]
        else:
            raise ValueError("unknown instruction: " + text)

def need(prod, cons):
    n = 0
    pw = set(prod.wr);
    isvalu = lambda i: i.cls in ("valu", "trans")
    crd = set(cons.rd); cwr = set(cons.wr)
    if isvalu(prod):
        vw = {r for r in pw if r[0] in "va"}
        if vw & crd:
            if cons.cls == "mfma": n = max(n, 2)
            if cons.op.startswith("v_permlane"): n = max(n, 2)
            if cons.op.startswith(("v_readlane", "v_readfirstlane")): n = max(n, 1)
            if cons.isdpp: n = max(n, 2)
            if prod.cls == "trans" and cons.cls != "trans": n = max(n, 1)
        sw = {r for r in pw if r[0] == "s"}
        if sw & crd:
            if cons.cls == "vmem": n = max(n, 5)
            elif cons.op.startswith(("v_readlane", "v_writelane")): n = max(n, 4)
            elif isvalu(cons) or cons.cls == "mfma": n = max(n, 2)
            elif cons.cls in ("salu",): n = max(n, 1)
    if prod.cls == "mfma":
        p = prod.passes
        d = set(prod.wr)
        if cons.cls == "mfma":
            if d & set(cons.ab): n = max(n, 8 if p == 4 else 12)
            c = set(cons.srcc)
            if d & c and not (c == d and cons.passes == p): n = max(n, 6 if p == 4 else 10)
            if d & cwr and not (d & c): n = max(n, 6 if p == 4 else 10)
        else:
            if d & (crd | cwr): n = max(n, 8 if p == 4 else 12)
        if isvalu(cons) and set(prod.srcc) & cwr: n = max(n, 3 if p == 4 else 7)
    if prod.cls == "salu" and ("m", 0) in pw and cons.lds_dma: n = max(n, 1)
    if prod.store_data and set(prod.store_data) & cwr:
        n = max(n, 2 if isvalu(cons) or cons.cls == "mfma" else 1)
    return n

class Asm:
    def __init__(self):
        self.out = []
        self.hist = []
        self.nops = 0
        self.nds = 0
    def raw(self, s): self.out.append(s)
    def label(self, name):
        self.out.append(name + ":")
    def e(self, text):
        for line in text.split("\n"):
            line = line.strip()
            if not line or line.startswith(";"): continue
            if line.endswith(":"): self.label(line[:-1]); continue
            ins = Inst(line)
            mo = re.search(r"offset:(-?\d+)", line)
            if mo:
                ov = int(mo.group(1))
                if ins.op.startswith("buffer_"): assert 0 <= ov <= 4095, line
                elif ins.op.startswith("global_"): assert -4096 <= ov <= 4095, line
                elif ins.op.startswith("ds_"): assert 0 <= ov <= 65535, line
            req = 0; dist = 0
            for p in reversed(self.hist):
                k = need(p, ins)
                if k > dist: req = max(req, k - dist)
                dist += p.states
                if dist >= 12: break
            if req > 0 and ins.cls != "nop":
                nop = Inst(f"s_nop {req-1}")
                self.out.append("    " + nop.text); self.hist.append(nop); self.nops += 1
            self.out.append("    " + line)
            if ins.cls == "ds": self.nds += 1
            self.hist.append(ins)
            if len(self.hist) > 24: self.hist = self.hist[-24:]
    def text(self): return "\n".join(self.out) + "\n"

def kernel_header(name):
    return f".text\n.globl {name}\n.p2align 8\n.type {name},@function\n{name}:\n"
def kernel_desc(name, vgpr, agpr=0, sgpr=100):
    acc = (vgpr + 3) // 4 * 4
    nfv = acc + agpr if agpr else vgpr
    return f""".section .rodata,"a"
.p2align 6
.amdhsa_kernel {name}
  .amdhsa_next_free_vgpr {nfv}
  .amdhsa_next_free_sgpr {sgpr}
  .amdhsa_accum_offset {acc}
  .amdhsa_group_segment_fixed_size 0
  .amdhsa_kernarg_size 96
  .amdhsa_user_sgpr_count 2
  .amdhsa_user_sgpr_kernarg_segment_ptr 1
  .amdhsa_system_sgpr_workgroup_id_x 1
  .amdhsa_float_denorm_mode_32 3
.end_amdhsa_kernel
"""

class VM:
    def __init__(self, a): self.a = a; self.q = []
    def issue(self, text, tag):
        self.a.e(text); self.q.append(tag)
    def wait(self, tag, extra=""):
        idx = max(i for i, t in enumerate(self.q) if t == tag)
        n = len(self.q) - 1 - idx
        assert n <= 63, n
        self.a.e(f"s_waitcnt vmcnt({n}){extra}")
        self.q = self.q[idx+1:]
    def wait_all(self):
        self.a.e("s_waitcnt vmcnt(0)"); self.q = []

def srd(a, s, base_lo, base_hi, off, size):
    if isinstance(off, str):
        a.e(f"s_add_u32 s{s}, s{base_lo}, {off}"); a.e(f"s_addc_u32 s{s+1}, s{base_hi}, 0")
    elif off:
        a.e(f"s_add_u32 s{s}, s{base_lo}, {off}"); a.e(f"s_addc_u32 s{s+1}, s{base_hi}, 0")
    else:
        a.e(f"s_mov_b32 s{s}, s{base_lo}"); a.e(f"s_mov_b32 s{s+1}, s{base_hi}")
    a.e(f"s_mov_b32 s{s+2}, {size}")
    a.e(f"s_mov_b32 s{s+3}, 0x20000")

def wg_to_rc(a, sR, sC, tmp):
    e = a.e
    e(f"s_and_b32 s{tmp}, s2, 7"); e(f"s_lshr_b32 s{tmp+1}, s2, 3")
    e(f"s_lshr_b32 s{sR}, s{tmp}, 1"); e(f"s_lshl_b32 s{sR}, s{sR}, 2"); e(f"s_and_b32 s{sC}, s{tmp+1}, 3"); e(f"s_add_u32 s{sR}, s{sR}, s{sC}")
    e(f"s_and_b32 s{sC}, s{tmp}, 1"); e(f"s_lshl_b32 s{sC}, s{sC}, 3"); e(f"s_lshr_b32 s{tmp+1}, s{tmp+1}, 2"); e(f"s_add_u32 s{sC}, s{sC}, s{tmp+1}")

LOG2E = 1.4426950408889634

def softmax_pair(a, K, vC, Ep, tmp, P):
    e = a.e
    mx, mn, sp, sm = tmp, tmp + 1, tmp + 2, tmp + 3
    e(f"v_max3_f32 v{mx}, v{K[0]}, v{K[1]}, v{K[2]}")
    e(f"v_min3_f32 v{mn}, v{K[0]}, v{K[1]}, v{K[2]}")
    for u in range(3, 19, 2):
        e(f"v_max3_f32 v{mx}, v{mx}, v{K[u]}, v{K[u+1]}")
        e(f"v_min3_f32 v{mn}, v{mn}, v{K[u]}, v{K[u+1]}")
    e(f"v_max_f32 v{mx}, v{mx}, v{K[19]}")
    e(f"v_min_f32 v{mn}, v{mn}, v{K[19]}")
    e(f"v_mul_f32 v{mx}, v{vC}, v{mx}")
    e(f"v_mul_f32 v{mn}, v{vC}, v{mn}")
    for u in range(20):
        e(f"v_fma_f32 v{Ep+u}, v{K[u]}, v{vC}, -v{mx}")
        e(f"v_fma_f32 v{K[u]}, -v{K[u]}, v{vC}, v{mn}")
    for u in range(20):
        e(f"v_exp_f32 v{Ep+u}, v{Ep+u}")
        e(f"v_exp_f32 v{K[u]}, v{K[u]}")
    e(f"v_add_f32 v{sp}, v{Ep}, v{Ep+1}")
    e(f"v_add_f32 v{sm}, v{K[0]}, v{K[1]}")
    for u in range(2, 20):
        e(f"v_add_f32 v{sp}, v{sp}, v{Ep+u}")
        e(f"v_add_f32 v{sm}, v{sm}, v{K[u]}")
    e(f"v_rcp_f32 v{sp}, v{sp}")
    e(f"v_rcp_f32 v{sm}, v{sm}")
    for u in range(20):
        e(f"v_mul_f32 v{Ep+u}, v{sp}, v{Ep+u}")
        e(f"v_mul_f32 v{K[u]}, v{sm}, v{K[u]}")
    for q in range(10):
        e(f"v_cvt_pk_bf16_f32 v{P+q}, v{Ep+2*q}, v{Ep+2*q+1}")
        e(f"v_cvt_pk_bf16_f32 v{P+10+q}, v{K[2*q]}, v{K[2*q+1]}")

STAMP_OFF = 200 * 1024 * 1024
class Stamps:
    def __init__(self, a, on, kid): self.a = a; self.on = on; self.n = 0; self.kid = kid; self.names = []
    def mark(self, nm):
        if not self.on: return
        r = 70 + 2 * self.n; self.n += 1; self.names.append(nm)
        assert r + 1 <= 101
        if self.n == 1: self.a.e("s_memrealtime s[62:63]")
        self.a.e(f"s_memtime s[{r}:{r+1}]"); self.a.e("s_waitcnt lgkmcnt(0)")
    def flush(self, ws_lo, ws_hi, wave_sgpr):
        if not self.on: return
        e = self.a.e
        e("s_memrealtime s[68:69]"); e("s_waitcnt lgkmcnt(0)")
        e(f"s_cmp_lg_u32 s{wave_sgpr}, 0"); lab = f"Lstamp_{self.kid}"
        e(f"s_cbranch_scc1 {lab}")
        e(f"s_lshl_b32 s66, s2, 7"); e(f"s_add_u32 s66, s66, {STAMP_OFF + self.kid * 65536}")
        e(f"s_add_u32 s64, s{ws_lo}, s66"); e(f"s_addc_u32 s65, s{ws_hi}, 0")
        e("v_mov_b32 v160, 0")
        for i in range(self.n):
            e(f"v_mov_b32 v161, s{70+2*i}")
            e(f"global_store_dword v160, v161, s[64:65] offset:{4*i}")
        e("v_mov_b32 v161, s68"); e(f"global_store_dword v160, v161, s[64:65] offset:120")
        e("v_mov_b32 v161, s62"); e(f"global_store_dword v160, v161, s[64:65] offset:116")
        for k, r in enumerate(getattr(self, "extra", [])):
            e(f"v_mov_b32 v161, {r}"); e(f"global_store_dword v160, v161, s[64:65] offset:{112 - 4*k}")
        self.a.label(lab)

def softmax_pair_pk(a, K, vC, Ep, tmp, P):
    e = a.e
    assert K % 2 == 0 and Ep % 2 == 0 and tmp % 2 == 0 and vC % 2 == 0
    mx, mn, sp, sm = tmp, tmp + 2, tmp + 4, tmp + 6
    e(f"v_max3_f32 v{mx}, v{K}, v{K+1}, v{K+2}")
    e(f"v_min3_f32 v{mn}, v{K}, v{K+1}, v{K+2}")
    for u in range(3, 19, 2):
        e(f"v_max3_f32 v{mx}, v{mx}, v{K+u}, v{K+u+1}")
        e(f"v_min3_f32 v{mn}, v{mn}, v{K+u}, v{K+u+1}")
    e(f"v_max_f32 v{mx}, v{mx}, v{K+19}")
    e(f"v_min_f32 v{mn}, v{mn}, v{K+19}")
    e(f"v_mul_f32 v{mx}, v{vC}, v{mx}")
    e(f"v_mul_f32 v{mn}, v{vC}, v{mn}")
    for u in range(0, 20, 2):
        e(f"v_pk_fma_f32 v[{Ep+u}:{Ep+u+1}], v[{K+u}:{K+u+1}], v[{vC}:{vC+1}], v[{mx}:{mx+1}] op_sel_hi:[1,0,0] neg_lo:[0,0,1] neg_hi:[0,0,1]")
        e(f"v_pk_fma_f32 v[{K+u}:{K+u+1}], v[{K+u}:{K+u+1}], v[{vC}:{vC+1}], v[{mn}:{mn+1}] op_sel_hi:[1,0,0] neg_lo:[1,0,0] neg_hi:[1,0,0]")
    for u in range(20):
        e(f"v_exp_f32 v{Ep+u}, v{Ep+u}")
        e(f"v_exp_f32 v{K+u}, v{K+u}")
    e(f"v_pk_add_f32 v[{sp}:{sp+1}], v[{Ep}:{Ep+1}], v[{Ep+2}:{Ep+3}]")
    e(f"v_pk_add_f32 v[{sm}:{sm+1}], v[{K}:{K+1}], v[{K+2}:{K+3}]")
    for u in range(4, 20, 2):
        e(f"v_pk_add_f32 v[{sp}:{sp+1}], v[{sp}:{sp+1}], v[{Ep+u}:{Ep+u+1}]")
        e(f"v_pk_add_f32 v[{sm}:{sm+1}], v[{sm}:{sm+1}], v[{K+u}:{K+u+1}]")
    e(f"v_add_f32 v{sp}, v{sp}, v{sp+1}")
    e(f"v_add_f32 v{sm}, v{sm}, v{sm+1}")
    e(f"v_rcp_f32 v{sp}, v{sp}")
    e(f"v_rcp_f32 v{sm}, v{sm}")
    for u in range(0, 20, 2):
        e(f"v_pk_mul_f32 v[{Ep+u}:{Ep+u+1}], v[{Ep+u}:{Ep+u+1}], v[{sp}:{sp+1}] op_sel_hi:[1,0]")
        e(f"v_pk_mul_f32 v[{K+u}:{K+u+1}], v[{K+u}:{K+u+1}], v[{sm}:{sm+1}] op_sel_hi:[1,0]")
    for q in range(10):
        e(f"v_cvt_pk_bf16_f32 v{P+q}, v{Ep+2*q}, v{Ep+2*q+1}")
        e(f"v_cvt_pk_bf16_f32 v{P+10+q}, v{K+2*q}, v{K+2*q+1}")

class Rec:
    def __init__(self): self.items = []
    def e(self, text):
        for line in text.split("\n"):
            line = line.strip()
            if line and not line.startswith(";"): self.items.append(line)
    def mark(self, m): self.items.append(("MARK", m))

def slot_cost(line):
    op = line.split()[0]
    if op in TRANS or op.startswith("v_permlane"): return 2
    if op.startswith("v_mfma"): return 0
    return 1

class Side:
    def __init__(self, a, vm, vm_gap=4):
        self.a, self.vm, self.q, self.vm_gap = a, vm, [], vm_gap
        self.since_vm = 99; self.blocked = False; self.want_barrier = False; self.debt = False
    def add(self, items): self.q += list(items)
    def step_boundary(self):
        if self.want_barrier: self.a.e("s_barrier"); self.want_barrier = False
        self.blocked = False
    def fill(self, slots):
        self.since_vm += 1
        while self.q and slots > 0 and not self.blocked:
            it = self.q[0]
            if isinstance(it, tuple) and it[0] == "STAMP":
                self.q.pop(0); continue
            if isinstance(it, tuple) and it[0] == "MARK":
                self.q.pop(0); self.blocked = True
                if it[1] == "barrier": self.want_barrier = True
                continue
            if isinstance(it, tuple) and it[0] == "VM":
                if self.since_vm < self.vm_gap: return slots
                self.q.pop(0)
                for pre in it[3]: self.a.e(pre)
                self.vm.issue(it[1], it[2]); self.since_vm = 0; slots -= 1 + len(it[3]); continue
            c = slot_cost(it)
            if c > slots and slots < 2 and not self.debt: return slots
            self.q.pop(0); self.a.e(it); slots -= c
            if " m0," in it: return slots
        return slots
    def flush(self):
        while self.q:
            it = self.q.pop(0)
            if isinstance(it, tuple) and it[0] == "STAMP":
                if getattr(self, "st", None): self.st.mark(it[1])
                continue
            if isinstance(it, tuple) and it[0] == "MARK":
                self.a.e("s_waitcnt lgkmcnt(0)")
                if it[1] == "barrier": self.a.e("s_barrier")
            elif isinstance(it, tuple) and it[0] == "VM":
                for pre in it[3]: self.a.e(pre)
                self.vm.issue(it[1], it[2])
            else: self.a.e(it)
        if self.want_barrier: self.a.e("s_waitcnt lgkmcnt(0)"); self.a.e("s_barrier"); self.want_barrier = False
        self.blocked = False

def gemm2(a, nsteps, lds_of, acc, abuf, xreg, first_zero, sides, extra=None, pre=None, slots=2, mid=None, counted=True, c0=None, mark0=None):
    e = a.e
    def read(s, T):
        vb, imm = lds_of(s, T); r = abuf[s & 1] + 4 * T
        e(f"ds_read_b128 v[{r}:{r+3}], v{vb} offset:{imm}")
    if mark0 is None:
        for T in range(5): read(0, T)
        mark = a.nds
    else: mark = mark0
    for s in range(nsteps):
        n = a.nds - mark
        if any(sd.blocked or sd.want_barrier for sd in sides) or n > 15 or not counted: n = 0
        e(f"s_waitcnt lgkmcnt({n})")
        for sd in sides: sd.step_boundary()
        if pre: pre(s)
        mf = []
        for T in range(5):
            r = abuf[s & 1] + 4 * T
            for tt in range(2):
                d = acc(tt, T); c = "0" if (s == 0 and first_zero) else f"v[{d}:{d+3}]"
                if s == 0 and c0: c = f"v[{c0(tt, T)}:{c0(tt, T)+3}]"
                mf.append(f"v_mfma_f32_16x16x32_bf16 v[{d}:{d+3}], v[{r}:{r+3}], {xreg(tt, s)}, {c}")
        if extra: mf += extra(s)
        for i, m in enumerate(mf):
            e(m)
            if mid: mid(s, i)
            left = slots
            if s + 1 < nsteps and i < 5:
                read(s + 1, i); left -= 1
                if i == 4: mark = a.nds
            for sd in sides: sd.since_vm += 1
            for sd in sides:
                n0 = len(sd.q); sv = sd.since_vm
                if left > 0:
                    sd.since_vm -= 1; sd.fill(left)
                if len(sd.q) != n0: break


def gemm3(a, nsteps, tiles, lds_of, acc, bufs, xreg, first_zero, sides, extra=None, pre=None, slots=2, mid=None, post=None, wait_every=1, s0=0, marks0=None):
    e = a.e
    D = len(bufs); nt = len(tiles)
    marks = {}; carry = 0
    def read(s, ti):
        vb, imm = lds_of(s, tiles[ti]); r = bufs[s % D] + 4 * ti
        e(f"ds_read_b128 v[{r}:{r+3}], v{vb} offset:{imm}")
    for s in range(s0, min(s0 + D - 1, nsteps)):
        if marks0 and s in marks0: marks[s] = marks0[s]; continue
        for ti in range(nt): read(s, ti)
        marks[s] = a.nds
    for s in range(s0, nsteps):
        blk = any(sd.blocked or sd.want_barrier for sd in sides)
        if blk or (s - s0) % wait_every == 0:
            last = min(s + wait_every - 1, nsteps - 1) if (s - s0) % wait_every == 0 else s
            assert last in marks
            n = 0 if blk else a.nds - marks[last]
            e(f"s_waitcnt lgkmcnt({min(n, 15)})")
        for sd in sides: sd.step_boundary()
        if pre: pre(s)
        mf = []
        for ti, T in enumerate(tiles):
            r = bufs[s % D] + 4 * ti
            for tt in range(2):
                d = acc(tt, T); c = "0" if (s == 0 and first_zero) else f"v[{d}:{d+3}]"
                mf.append(f"v_mfma_f32_16x16x32_bf16 v[{d}:{d+3}], v[{r}:{r+3}], {xreg(tt, s)}, {c}")
        if extra: mf += extra(s)
        for i, m in enumerate(mf):
            e(m)
            if mid: mid(s, i)
            left = (slots(s) if callable(slots) else slots) + carry
            if s + D - 1 < nsteps and i < nt:
                read(s + D - 1, i); left -= 1
                if i == nt - 1: marks[s + D - 1] = a.nds
            for sd in sides: sd.since_vm += 1
            for sd in sides:
                if left <= 0: break
                sd.since_vm -= 1; left = sd.fill(left)
            carry = min(left, 0)
        if post: post(s)
```

```python
from asm import *
from layout import *
OOB = 0x40000000
RB = 0
YB = 8704
TBL = 34048

def af_addr(a, dst, vt, t0, t1):
    e = a.e
    e(f"v_and_b32 v{t0}, 31, v{vt}")
    e(f"v_lshrrev_b32 v{t1}, 5, v{vt}")
    e(f"v_lshrrev_b32 v{dst}, 2, v{t0}"); e(f"v_lshlrev_b32 v{dst}, 4, v{dst}")
    e(f"v_and_b32 v{t0}, 3, v{t0}"); e(f"v_lshl_add_u32 v{dst}, v{t0}, 1, v{dst}")
    e(f"v_lshrrev_b32 v{t0}, 5, v{t1}"); e(f"v_lshl_add_u32 v{dst}, v{t0}, 3, v{dst}")
    e(f"v_and_b32 v{t0}, 1, v{t1}"); e(f"v_add_u32 v{dst}, v{dst}, v{t0}")
    e(f"v_mul_u32_u24 v{dst}, {AF_WT}, v{dst}")
    e(f"v_bfe_u32 v{t0}, v{t1}, 1, 4"); e(f"v_lshl_add_u32 v{dst}, v{t0}, 4, v{dst}")

def gen_k3(name, layer, stamps=False, linemap=False, early=0, late=False, helpc=False):
    a = Asm(); e = a.e; vm = VM(a); sm = Stamps(a, stamps, 3 + 4*layer)
    if linemap:
        e("s_cmp_ge_u32 s2, 256"); e(f"s_cbranch_scc1 {name}_end")
        e("s_and_b32 s16, s2, 7"); e("s_cmp_ge_u32 s16, 5"); e(f"s_cbranch_scc1 {name}_end")
    else:
        e("s_cmp_ge_u32 s2, 160"); e(f"s_cbranch_scc1 {name}_end")
    sm.mark("start")
    e("s_load_dwordx2 s[30:31], s[0:1], 88")
    if layer == 1: e("s_load_dwordx2 s[24:25], s[0:1], 72")
    if linemap:
        e("s_lshr_b32 s17, s2, 3"); e("s_lshl_b32 s16, s16, 3"); e("s_and_b32 s19, s17, 7"); e("s_add_u32 s16, s16, s19"); e("s_lshr_b32 s17, s17, 3")
    else:
        e("s_and_b32 s16, s2, 7"); e("s_lshr_b32 s17, s2, 3"); e("s_lshr_b32 s19, s17, 2"); e("s_lshl_b32 s19, s19, 3")
        e("s_add_u32 s16, s16, s19")
        e("s_and_b32 s17, s17, 3")
    e("v_and_b32 v1, 63, v0"); e("v_lshrrev_b32 v2, 6, v0")
    e("v_readfirstlane_b32 s18, v2")
    e("v_and_b32 v2, 15, v1"); e("v_lshrrev_b32 v3, 4, v1")
    e("v_lshlrev_b32 v5, 4, v1")
    e("v_lshlrev_b32 v6, 4, v0")
    e(f"v_mov_b32 v20, {OOB}"); e("v_cmp_gt_u32 vcc, 512, v0"); e("v_cndmask_b32 v7, v20, v6, vcc")
    e("s_lshl_b32 s3, s16, 3"); e("s_add_u32 s3, s3, s18"); e("s_sub_u32 s20, s3, 1"); e("s_lshl_b32 s20, s20, 13"); e(f"s_add_u32 s20, s20, {XF_OFF[layer]}")
    e("s_cmp_eq_u32 s3, 0"); e(f"s_cselect_b32 s3, {OOB}, 0"); e("v_add_u32 v4, s3, v5"); e("s_add_u32 s21, s20, 4096")
    e(f"s_mov_b32 s22, {ST_OFF[layer]}"); e(f"s_mov_b32 s23, {ST_OFF[layer] + 8192}")
    e("s_waitcnt lgkmcnt(0)")
    srd(a, 12, 30, 31, 0, WS_USED)
    vm.issue("buffer_load_dwordx4 v[8:11], v7, s[12:15], s22 offen", "st")
    vm.issue("buffer_load_dwordx4 v[12:15], v7, s[12:15], s23 offen", "st")
    e("s_cmp_ge_u32 s18, 7"); e(f"s_cbranch_scc1 {name}_notab")
    for h in range(2):
        e(f"s_lshl_b32 s3, s18, 1");
        if h: e("s_add_u32 s3, s3, 1")
        e("s_lshl_b32 s19, s3, 10")
        e("s_mul_i32 s33, s17, 6144"); e(f"s_add_u32 s33, s33, {TAB_OFF + TAB_W64}")
        e("s_lshl_b32 s34, s17, 12"); e(f"s_add_u32 s34, s34, {TAB_OFF + TAB_TW - 6144}")
        e("s_cmp_ge_u32 s3, 6"); e("s_cselect_b32 s33, s34, s33")
        e("s_cmp_ge_u32 s3, 10"); e(f"s_cselect_b32 s33, {TAB_OFF + TAB_S2 - 10240}, s33")
        e("s_add_u32 s33, s33, s19")
        e(f"s_add_u32 m0, s19, {TBL}")
        e("buffer_load_dwordx4 v5, s[12:15], s33 offen lds")
    a.label(f"{name}_notab")
    Xr = lambda T, st, ri: 32 + ((T*2+st)*2+ri)*4
    def data_loads(T):
        for st in range(2):
            for ri in range(2):
                r = Xr(T, st, ri)
                e(f"buffer_load_dwordx4 v[{r}:{r+3}], v4, s[12:15], {'s37' if ri else 's36'} offen offset:{T*2048 + st*1024}")
    e("s_mov_b32 s36, s20"); e("s_mov_b32 s37, s21"); e("s_mov_b32 s28, 0xffff0000")
    if helpc:
        e("s_cmp_lg_u32 s18, 8"); e(f"s_cbranch_scc1 {name}_nw8")
        e("s_waitcnt vmcnt(0)"); e(f"s_branch {name}_w8a")
        a.label(f"{name}_nw8")
    data_loads(0)
    if helpc:
        assert early == 0 and not late
        e("s_cmp_eq_u32 s18, 5"); e("s_cselect_b32 s39, 4, s18"); e("s_sub_u32 s39, s39, 1")
        e("s_cmp_le_u32 s18, 3"); e("s_cselect_b32 s40, 1, 0"); e("s_cmp_eq_u32 s18, 0"); e("s_cselect_b32 s40, 0, s40"); e("s_cmp_eq_u32 s18, 5"); e("s_cselect_b32 s40, 1, s40")
        e("s_cmp_eq_u32 s40, 1"); e(f"s_cselect_b32 s41, 0, {OOB}"); e("v_add_u32 v23, s41, v5")
        e("s_and_b32 s39, s39, 3"); e("s_lshl_b32 s41, s16, 3"); e("s_add_u32 s41, s41, 7"); e("s_lshl_b32 s41, s41, 13"); e(f"s_add_u32 s41, s41, {XF_OFF[layer]}")
        e("s_lshl_b32 s42, s39, 10"); e("s_add_u32 s41, s41, s42"); e("s_add_u32 s42, s41, 4096")
        e("s_cmp_lg_u32 s40, 1"); e(f"s_cbranch_scc1 {name}_w8a")
        e("buffer_load_dwordx4 v[152:155], v23, s[12:15], s41 offen"); e("buffer_load_dwordx4 v[156:159], v23, s[12:15], s42 offen")
        a.label(f"{name}_w8a")
    e("v_lshrrev_b32 v16, 5, v0"); e("v_and_b32 v17, 31, v0"); e("v_lshl_add_u32 v16, v17, 6, v16"); e("s_lshl_b32 s3, s17, 4"); e("v_add_u32 v16, s3, v16")
    e("v_sub_u32 v17, 2048, v16"); e("v_and_b32 v17, 2047, v17")
    af_addr(a, 18, 16, 22, 21); af_addr(a, 19, 17, 22, 21)
    e("v_cmp_gt_u32 vcc, 512, v0"); e("v_cndmask_b32 v18, v20, v18, vcc"); e("v_cndmask_b32 v19, v20, v19, vcc")
    e("s_lshl_b32 s20, s16, 8"); e("s_sub_u32 s22, 20224, s20")
    e(f"s_add_u32 s21, s20, {X1_OFF[layer]}"); e(f"s_add_u32 s23, s22, {X1_OFF[layer]}")
    if early >= 1: data_loads(1)
    if early >= 2:
        e("buffer_load_dwordx4 v[24:27], v18, s[12:15], s21 offen")
        e("buffer_load_dwordx4 v[28:31], v19, s[12:15], s23 offen")
    sm.mark("issued")
    e(f"s_waitcnt vmcnt({(4, 8, 10)[early]})")
    for q in range(4):
        e(f"v_mul_f32 v{8+q}, {1/640!r}, v{8+q}")
        e(f"v_mul_f32 v{12+q}, {1/640!r}, v{12+q}")
        e(f"v_fma_f32 v{12+q}, -v{8+q}, v{8+q}, v{12+q}")
        e(f"v_max_f32 v{12+q}, 0, v{12+q}")
        e(f"v_add_f32 v{12+q}, 0x3727c5ac, v{12+q}")
        e(f"v_rsq_f32 v{12+q}, v{12+q}")
    e("v_lshrrev_b32 v8, 4, v0"); e("v_mul_u32_u24 v8, 272, v8"); e("v_and_b32 v9, 15, v0"); e("v_lshl_add_u32 v8, v9, 4, v8")
    e("s_cmp_eq_u32 s18, 8"); e(f"s_cbranch_scc1 {name}_nor")
    e("ds_write_b128 v8, v[12:15]")
    a.label(f"{name}_nor")
    if early == 1:
        e("buffer_load_dwordx4 v[24:27], v18, s[12:15], s21 offen")
        e("buffer_load_dwordx4 v[28:31], v19, s[12:15], s23 offen")
    e("s_waitcnt lgkmcnt(0)"); e("s_barrier")
    sm.mark("rtab")
    lateq = []
    if late:
        assert early == 0
        for st_ in range(2):
            for ri in range(2):
                r_ = Xr(1, st_, ri)
                lateq.append(f"buffer_load_dwordx4 v[{r_}:{r_+3}], v4, s[12:15], {'s37' if ri else 's36'} offen offset:{2048 + st_*1024}")
        lateq += ["buffer_load_dwordx4 v[24:27], v18, s[12:15], s21 offen", "buffer_load_dwordx4 v[28:31], v19, s[12:15], s23 offen"]
    elif early == 0:
        if helpc: e("s_cmp_eq_u32 s18, 8"); e(f"s_cbranch_scc1 {name}_w8b")
        data_loads(1)
        e("buffer_load_dwordx4 v[24:27], v18, s[12:15], s21 offen")
        e("buffer_load_dwordx4 v[28:31], v19, s[12:15], s23 offen")
        if helpc: a.label(f"{name}_w8b")
    e("v_mul_u32_u24 v8, 272, v2"); e("v_lshl_add_u32 v8, v3, 5, v8")
    e(f"v_add_u32 v9, {TBL}, v5")
    RR = lambda T, st: 64 + (T*2+st)*8
    for T in range(2):
        for st in range(2):
            r = RR(T, st)
            e(f"ds_read_b128 v[{r}:{r+3}], v8 offset:{T*16*272 + st*128}")
            e(f"ds_read_b128 v[{r+4}:{r+7}], v8 offset:{T*16*272 + st*128 + 16}")
    for k in range(6): e(f"ds_read_b128 v[{96+4*k}:{99+4*k}], v9 offset:{k*1024}")
    W = lambda var, st: 96 + (var*2+st)*4
    ng = 0
    if helpc:
        e("s_cmp_eq_u32 s18, 8"); e(f"s_cbranch_scc1 {name}_w8")
    for T in range(2):
        for st in range(2):
            nvm = (2, 4, 4, 2)[ng] if late else 2*(3-ng) + 2
            if helpc and ng == 2:
                e("s_cmp_lg_u32 s40, 1"); e(f"s_cbranch_scc1 {name}_nohelp")
                e("s_lshr_b32 s42, s39, 1"); e(f"s_mul_i32 s42, s42, {16*272}"); e("s_and_b32 s43, s39, 1"); e("s_lshl_b32 s43, s43, 7"); e("s_add_u32 s42, s42, s43")
                e("v_add_u32 v22, s42, v8")
                e("ds_read_b128 v[160:163], v22"); e("ds_read_b128 v[164:167], v22 offset:16")
                e("s_lshl_b32 s42, s39, 11"); e(f"s_add_u32 s42, s42, {HB}"); e("v_add_u32 v23, s42, v5")
                e("s_waitcnt vmcnt(6) lgkmcnt(0)")
                for ri in range(2):
                    for q in range(4):
                        d_ = 152 + 4*ri + q; t0 = 10 + 2*(q & 1)
                        e(f"v_lshlrev_b32 v{t0}, 16, v{d_}"); e(f"v_and_b32 v{t0+1}, s28, v{d_}")
                        e(f"v_pk_mul_f32 v[{t0}:{t0+1}], v[{t0}:{t0+1}], v[{160+2*q}:{161+2*q}]")
                        e(f"v_cvt_pk_bf16_f32 v{d_}, v{t0}, v{t0+1}")
                    e(f"ds_write_b128 v23, v[{152+4*ri}:{155+4*ri}] offset:{1024*ri}")
                a.label(f"{name}_nohelp")
            e(f"s_waitcnt vmcnt({nvm})" + (" lgkmcnt(6)" if ng == 0 else ""))
            if ng == 1:
                for k in range(8): e(f"ds_read_b128 v[{120+4*k}:{123+4*k}], v9 offset:{6144 + k*1024}")
            for ri in range(2):
                d = Xr(T, st, ri); r = RR(T, st)
                for q in range(4):
                    t0 = 20 + 2*(q & 1)
                    e(f"v_lshlrev_b32 v{t0}, 16, v{d+q}"); e(f"v_and_b32 v{t0+1}, s28, v{d+q}")
                    e(f"v_pk_mul_f32 v[{t0}:{t0+1}], v[{t0}:{t0+1}], v[{r+2*q}:{r+2*q+1}]")
                    e(f"v_cvt_pk_bf16_f32 v{d+q}, v{t0}, v{t0+1}")
                    if late and q % 2 == 0 and ((ng == 0 and len(lateq) > 2) or (ng == 1 and lateq)): e(lateq.pop(0))
            ng += 1
    if helpc:
        e("s_waitcnt lgkmcnt(0)"); e("s_barrier")
        e(f"s_branch {name}_w8d")
        a.label(f"{name}_w8")
        for k in range(8): e(f"ds_read_b128 v[{120+4*k}:{123+4*k}], v9 offset:{6144 + k*1024}")
        e("s_waitcnt vmcnt(0) lgkmcnt(0)"); e("s_barrier")
        e(f"v_add_u32 v22, {HB}, v5")
        for T in range(2):
            for st in range(2):
                for ri in range(2):
                    r_ = Xr(T, st, ri)
                    e(f"ds_read_b128 v[{r_}:{r_+3}], v22 offset:{(T*2+st)*2048 + ri*1024}")
        a.label(f"{name}_w8d")
    sm.mark("scaled")
    e("s_waitcnt lgkmcnt(0)")
    G = lambda T, ri: 152 + (T*2+ri)*4
    def mf(d, A, B, first):
        c = "0" if first else f"v[{d}:{d+3}]"
        e(f"v_mfma_f32_16x16x32_bf16 v[{d}:{d+3}], v[{A}:{A+3}], v[{B}:{B+3}], {c}")
    for T in range(2):
        for st in range(2):
            mf(G(T,0), Xr(T,st,0), W(0,st), st == 0)
            mf(G(T,1), Xr(T,st,0), W(1,st), st == 0)
        for st in range(2):
            mf(G(T,0), Xr(T,st,1), W(2,st), False)
            mf(G(T,1), Xr(T,st,1), W(0,st), False)
    for T in range(2):
        for b in range(4):
            c, s = 120 + 4*T + b, 128 + 4*T + b
            gr, gi = G(T,0) + b, G(T,1) + b
            e(f"v_mul_f32 v{32+4*T+b}, v{gr}, v{c}"); e(f"v_mul_f32 v{40+4*T+b}, v{gi}, v{c}")
            e(f"v_fmac_f32 v{32+4*T+b}, v{gi}, v{s}"); e(f"v_fma_f32 v{40+4*T+b}, -v{gr}, v{s}, v{40+4*T+b}")
    for q in range(4):
        e(f"v_cvt_pk_bf16_f32 v{48+q}, v{32+2*q}, v{33+2*q}")
        e(f"v_cvt_pk_bf16_f32 v{52+q}, v{40+2*q}, v{41+2*q}")
    e("v_mul_u32_u24 v8, 33, v2"); e("v_lshl_add_u32 v8, v3, 2, v8"); e("v_mul_u32_u24 v8, 48, v8"); e("s_lshl_b32 s3, s18, 2"); e(f"s_add_u32 s3, s3, {YB}"); e("v_add_u32 v8, s3, v8")
    for T2 in range(2):
        mf(56 + 4*T2, 136 + 8*T2, 48, True)
    for T2 in range(2):
        mf(56 + 4*T2, 140 + 8*T2, 52, False)
    sm.mark("fft")
    for T2 in range(2):
        for b in range(4):
            e(f"ds_write_b32 v8, v{56+4*T2+b} offset:{768*T2 + 48*b}")
    e("s_waitcnt lgkmcnt(0)"); e("s_barrier")
    sm.mark("ybar")
    e("s_cmp_eq_u32 s18, 8"); e(f"s_cbranch_scc1 {name}_end")
    e("v_lshrrev_b32 v8, 5, v0"); e("v_mul_u32_u24 v8, 33, v8"); e("v_and_b32 v9, 31, v0"); e("v_add_u32 v8, v8, v9"); e("v_mul_u32_u24 v8, 48, v8")
    e(f"ds_read_b128 v[32:35], v8 offset:{YB}"); e(f"ds_read_b128 v[36:39], v8 offset:{YB+16}"); e(f"ds_read_b32 v64, v8 offset:{YB+32}")
    e("s_waitcnt vmcnt(0)")
    for q in range(4):
        e(f"v_lshlrev_b32 v{40+2*q}, 16, v{24+q}"); e(f"v_and_b32 v{41+2*q}, s28, v{24+q}")
        e(f"v_lshlrev_b32 v{48+2*q}, 16, v{28+q}"); e(f"v_and_b32 v{49+2*q}, s28, v{28+q}")
    e("s_waitcnt lgkmcnt(0)")
    for q in range(8):
        e(f"v_add_f32 v{40+q}, v{40+q}, v{32+q}")
        e(f"v_add_f32 v{48+q}, v{48+q}, v{64 if q == 0 else 40-q}")
    for q in range(4):
        e(f"v_cvt_pk_bf16_f32 v{56+q}, v{40+2*q}, v{41+2*q}")
        e(f"v_cvt_pk_bf16_f32 v{60+q}, v{48+2*q}, v{49+2*q}")
    if layer == 0:
        e(f"s_add_u32 s21, s20, {XIN_OFF[1]}"); e(f"s_add_u32 s23, s22, {XIN_OFF[1]}")
        e("buffer_store_dwordx4 v[56:59], v18, s[12:15], s21 offen sc1")
        e("buffer_store_dwordx4 v[60:63], v19, s[12:15], s23 offen sc1")
    else:
        e(f"s_mov_b32 s26, {ACT}"); e("s_mov_b32 s27, 0x20000")
        e("v_mul_u32_u24 v18, 1280, v16"); e("v_mul_u32_u24 v19, 1280, v17")
        e("s_lshl_b32 s20, s16, 4"); e("s_sub_u32 s22, 1264, s20")
        e("buffer_store_dwordx4 v[56:59], v18, s[24:27], s20 offen")
        e("buffer_store_dwordx4 v[60:63], v19, s[24:27], s22 offen")
    if stamps:
        sm.mark("stored"); e("s_waitcnt vmcnt(0)"); sm.mark("drain"); sm.flush(30, 31, 18)
    a.label(f"{name}_end")
    e("s_endpgm")
    gen_k3.names = sm.names
    return kernel_header(name) + a.text() + kernel_desc(name, 168, 0, 102 if stamps else 64)
K3_LDS = TBL + 14336
HB = K3_LDS
K3_LDS_H = HB + 8192
```
